```python
import torch

def _softmax(x, axis=-1):
    return torch.softmax(x, dim=axis)
def _gelu(x):
    return torch.nn.functional.gelu(x, approximate="tanh")
def _silu(x):
    return torch.nn.functional.silu(x)
def _sigmoid(x):
    return torch.sigmoid(x)
def _layernorm(x, axis=-1, eps=1e-5):
    m = x.mean(dim=axis, keepdim=True)
    v = x.var(dim=axis, keepdim=True, unbiased=False)
    return (x - m) / torch.sqrt(v + eps)
def _scatter_add(tgt, idx, src, axis=0):
    return tgt.clone().index_add_(axis, idx, src)
def _segment_sum(src, seg, n):
    out = torch.zeros((n,) + src.shape[1:], dtype=src.dtype)
    return out.index_add_(0, seg, src)
def _pad(x, pw):
    flat = tuple(v for pair in reversed(pw) for v in pair)
    return torch.nn.functional.pad(x, flat)

kernel_name = 'sequential_preLN__ssm_conv_s4__glu_gated_reglu__prompt'

def setup_inputs():

    _w = (lambda a: (lambda t: t.to(torch.bfloat16) if t.is_floating_point() else t)(torch.as_tensor(a)))
    def _A_setup():
        B, L, D, N = 1, 2048, 640, 128
        A_re = -(lambda _x: torch.exp(torch.as_tensor(_x)))((lambda *s: torch.randn(*s, dtype=torch.bfloat16) * 6.4)(D, N))
        A_im = torch.pi * (lambda *s: torch.randn(*s, dtype=torch.bfloat16) * 0.05)(D, N)
        B_re = (lambda *s: torch.randn(*s, dtype=torch.bfloat16) * 0.05)(D, N)
        B_im = (lambda *s: torch.randn(*s, dtype=torch.bfloat16) * 0.05)(D, N)
        C_re = (lambda *s: torch.randn(*s, dtype=torch.bfloat16) * 0.05)(D, N)
        C_im = (lambda *s: torch.randn(*s, dtype=torch.bfloat16) * 0.05)(D, N)
        log_dt = (lambda *s: torch.randn(*s, dtype=torch.bfloat16) * 0.05)(D) * 0.5 - 4.0
        Dskip = (lambda *s: torch.randn(*s, dtype=torch.bfloat16) * 0.05)(D)
        return {
            "u": _w((lambda *s: torch.randn(*s, dtype=torch.bfloat16) * 0.05)(B, L, D)),
            "A_re": _w(A_re),
            "A_im": _w(A_im),
            "B_re": _w(B_re),
            "B_im": _w(B_im),
            "C_re": _w(C_re),
            "C_im": _w(C_im),
            "log_dt": _w(log_dt),
            "Dskip": _w(Dskip),
        }
    _A_in = _A_setup()

    def _B_setup():
        B, S, D, F = 1, 2048, 640, 1728
        return {
            "x": _w((lambda *s: torch.randn(*s, dtype=torch.bfloat16) * 0.05)(B, S, D)),
            "W_gate": _w((lambda *s: torch.randn(*s, dtype=torch.bfloat16) * 0.4)(D, F) * (2.0 / D) ** 0.5),
            "W_up": _w((lambda *s: torch.randn(*s, dtype=torch.bfloat16) * 0.4)(D, F) * (2.0 / D) ** 0.5),
            "W_down": _w((lambda *s: torch.randn(*s, dtype=torch.bfloat16) * 0.4)(F, D) * (1.0 / F) ** 0.5),
        }
    _B_in = _B_setup()

    return {
        "A_u": _A_in["u"],
        "A_A_re": _A_in["A_re"],
        "A_A_im": _A_in["A_im"],
        "A_B_re": _A_in["B_re"],
        "A_B_im": _A_in["B_im"],
        "A_C_re": _A_in["C_re"],
        "A_C_im": _A_in["C_im"],
        "A_log_dt": _A_in["log_dt"],
        "A_Dskip": _A_in["Dskip"],
        "B_x": _B_in["x"],
        "B_W_gate": _B_in["W_gate"],
        "B_W_up": _B_in["W_up"],
        "B_W_down": _B_in["W_down"],
    }

def reference(A_u, A_A_re, A_A_im, A_B_re, A_B_im, A_C_re, A_C_im, A_log_dt, A_Dskip, B_x, B_W_gate, B_W_up, B_W_down):
    def _A_ref(u, A_re, A_im, B_re, B_im, C_re, C_im, log_dt, Dskip):
        Bsz, L, D = u.shape
        dt = torch.exp(log_dt)[:, None]
        A = A_re + 1j * A_im
        Bc = B_re + 1j * B_im
        Cc = C_re + 1j * C_im
        logdA = dt * A
        dB = dt * Bc
        l = (lambda x, dt: x.to(dt))(torch.arange(L), A_re.dtype)
        P = torch.exp(logdA[:, :, None] * l[None, None, :])
        K = torch.einsum("dn,dnl,dn->dl", Cc, P, dB).real
        L2 = 2 * L
        Kp = _pad(K, ((0, 0), (0, L)))
        up = (lambda x, *d: x.permute(*d))(u, 0, 2, 1)
        up = _pad(up, ((0, 0), (0, 0), (0, L)))
        Kf = (lambda x, axes=(-2,-1): torch.fft.rfft2(x.float(), dim=axes))(Kp[:, None, :], axes=(-2, -1))
        Uf = (lambda x, axes=(-2,-1): torch.fft.rfft2(x.float(), dim=axes))(up[:, :, None, :], axes=(-2, -1))
        Yf = Uf * Kf[None, :, :, :]
        y = (lambda x, s, axes=(-2,-1): torch.fft.irfft2(x, s=s, dim=axes).to(torch.bfloat16))(Yf, (1, L2), axes=(-2, -1))[:, :, 0, :L]
        y = (lambda x, *d: x.permute(*d))(y, 0, 2, 1) + u * Dskip[None, None, :]
        return y

    def _B_ref(x, W_gate, W_up, W_down):
        gate = torch.einsum("bsd,df->bsf", x, W_gate)
        up = torch.einsum("bsd,df->bsf", x, W_up)
        gate = gate * (lambda x, dt: x.to(dt))(gate > 0, gate.dtype)
        h = gate * up
        return torch.einsum("bsf,fd->bsd", h, W_down)

    x = A_u
    h = x + _A_ref(_layernorm(x, axis=-1), A_A_re, A_A_im, A_B_re, A_B_im, A_C_re, A_C_im, A_log_dt, A_Dskip)
    h2 = h + _B_ref(_layernorm(h, axis=-1), B_W_gate, B_W_up, B_W_down)
    return h2
```

```python
import re
REG = re.compile(r'^(-|abs\()?([vas])(\d+|\[(\d+):(\d+)\])\)?$')
def regs(op):
    op = op.strip()
    if op in ('vcc', 'vcc_lo', 'vcc_hi'): return ['vcc']
    if op in ('exec', 'exec_lo', 'exec_hi'): return ['exec']
    if op == 'm0': return ['m0']
    m = REG.match(op)
    if not m: return []
    k = m.group(2)
    if m.group(4) is not None: return [k + str(i) for i in range(int(m.group(4)), int(m.group(5)) + 1)]
    return [k + m.group(3)]
TRANS = ('v_exp_', 'v_log_', 'v_rcp_', 'v_rsq_', 'v_sqrt_', 'v_sin_', 'v_cos_')
class Ins:
    __slots__ = ('txt', 'op', 'cls', 'd', 'u', 'A', 'B', 'C', 'passes', 'label', 'target', 'ws', 'data', 'dpp', 'wide', 'lanesel', 'opsel_dst', 'constsrc')
    def __init__(s, txt):
        s.txt = txt; s.label = None; s.target = None; s.ws = 1; s.A = s.B = s.C = (); s.passes = 0; s.data = (); s.dpp = False
        s.wide = False; s.lanesel = (); s.opsel_dst = False; s.d = set(); s.u = set(); s.constsrc = ()
        t = txt.split(';')[0].strip()
        if t.endswith(':'):
            s.cls = 'label'; s.label = t[:-1]; s.op = ''; s.ws = 0; return
        if t.startswith('.') or not t:
            s.cls = 'dir'; s.op = ''; s.ws = 0; return
        parts = t.split(None, 1); op = parts[0]; s.op = op
        rest = parts[1] if len(parts) > 1 else ''
        ops = []
        for x in rest.split(','):
            x = x.strip()
            if not x: continue
            ops.append(x)
        mods = ''
        joined = []; depth = 0
        for x in ops:
            if depth > 0: joined[-1] += ',' + x
            else: joined.append(x)
            depth += x.count('[') - x.count(']')
        ops = joined
        if ops:
            w = ops[-1].split(None, 1)
            ops[-1] = w[0]; mods = w[1] if len(w) > 1 else ''
        R = [regs(o) for o in ops]
        fl = lambda L: set(r for l in L for r in l)
        if op.startswith('v_mfma'):
            s.cls = 'mfma'; s.d = set(R[0]); s.A, s.B, s.C = R[1], R[2], R[3]; s.u = fl(R[1:]) | {'exec'}
            s.passes = 8 if '32x32' in op else 4
        elif op.startswith('v_'):
            s.cls = 'valu'
            s.dpp = '_dpp' in op or 'quad_perm' in mods or 'row_' in mods or 'wave_' in mods
            if op.startswith('v_cmp'):
                s.d = set(R[0]); s.u = fl(R[1:])
                if op.startswith('v_cmpx'): s.d.add('exec')
            elif op.startswith(('v_swap', 'v_permlane16_swap', 'v_permlane32_swap')):
                s.d = fl(R[:2]); s.u = fl(R[:2])
            elif op.startswith(('v_add_co', 'v_sub_co', 'v_addc_co', 'v_subb_co', 'v_subrev_co')):
                s.d = fl(R[:2]); s.u = fl(R[2:])
            elif op.startswith('v_readlane') or op.startswith('v_writelane'):
                s.d = set(R[0]); s.u = fl(R[1:]); s.lanesel = R[2]
                if op.startswith('v_writelane'): s.u |= s.d
            else:
                s.d = set(R[0]); s.u = fl(R[1:])
                if op.startswith(('v_fmac', 'v_dot2c', 'v_pk_fmac')) or s.dpp or ('sdwa' in op and 'UNUSED_PRESERVE' in mods): s.u |= s.d
                if op.startswith('v_cndmask') and len(ops) == 3: s.u.add('vcc')
            if 'sdwa' in op and 'dst_sel:DWORD' not in mods: s.opsel_dst = True
            s.constsrc = [r for r in s.u if r[0] == 's' or r == 'vcc']
            s.u.add('exec_implicit')
        elif op.startswith('ds_'):
            s.cls = 'ds'
            if op.startswith(('ds_read', 'ds_bpermute', 'ds_permute', 'ds_swizzle')): s.d = set(R[0]); s.u = fl(R[1:])
            else: s.u = fl(R)
        elif op.startswith('buffer_') or op.startswith('global_'):
            s.cls = 'vmem'
            lds = ' lds' in (' ' + mods) or 'load_lds' in op
            if op in ('buffer_wbl2', 'buffer_inv'): pass
            elif lds: s.u = fl(R) | {'m0'}
            elif '_load' in op: s.d = set(R[0]); s.u = fl(R[1:])
            elif '_store' in op or '_atomic' in op:
                s.u = fl(R)
                s.data = R[0] if op.startswith('buffer_') else R[1]
                s.wide = op.endswith('x3') or op.endswith('x4')
                if '_atomic' in op and 'sc0' in mods:
                    s.d = set(R[0])
        elif op.startswith('s_'):
            if op == 's_nop': s.cls = 'nop'; s.ws = int(ops[0], 0) + 1
            elif op in ('s_waitcnt', 's_barrier', 's_sleep', 's_setprio', 's_endpgm'): s.cls = 'sopp'
            elif op.startswith('s_cbranch') or op == 's_branch':
                s.cls = 'br'; s.target = ops[0]
                if 'vcc' in op: s.u = {'vcc'}
                if 'exec' in op: s.u = {'exec'}
            elif op.startswith(('s_load', 's_memtime', 's_memrealtime', 's_buffer_load')): s.cls = 'smem'; s.d = set(R[0]); s.u = fl(R[1:])
            elif op.startswith('s_cmp') or op.startswith('s_bitcmp'): s.cls = 'salu'; s.u = fl(R)
            else:
                s.cls = 'salu'; s.d = set(R[0]); s.u = fl(R[1:])
                if 'saveexec' in op: s.d.add('exec'); s.u.add('exec')
                if op in ('s_addk_i32', 's_mulk_i32'): s.u |= s.d
        else:
            raise ValueError("unknown instr: " + txt)

def need(p, c):
    n = 0
    if p.cls == 'mfma':
        big = p.passes == 8
        if c.cls == 'mfma':
            if p.d & (set(c.A) | set(c.B)): n = max(n, 12 if big else 8)
            if p.d & set(c.C) and not (set(c.C) == p.d and c.passes == p.passes): n = max(n, 10 if big else 6)
            if p.d & c.d and not (set(c.C) == p.d and c.passes == p.passes): n = max(n, 10 if big else 6)
        elif c.cls in ('valu', 'vmem', 'ds'):
            if p.d & (c.u | c.d): n = max(n, 12 if big else 8)
            if c.cls == 'valu' and set(p.C) & c.d: n = max(n, 7 if big else 3)
        return n
    if p.cls == 'valu':
        vd = set(r for r in p.d if r[0] in 'va' and r != 'vcc')
        sd = set(r for r in p.d if r[0] == 's' or r == 'vcc')
        if c.cls == 'mfma':
            if vd & c.u: n = max(n, 3 if p.op.startswith('v_dot') else 2)
            if 'exec' in p.d: n = max(n, 4)
        if c.cls == 'vmem' and sd & c.u: n = max(n, 5)
        if c.cls == 'valu':
            if sd & set(c.lanesel): n = max(n, 4)
            if sd & set(c.constsrc): n = max(n, 2)
            if c.dpp and vd & c.u: n = max(n, 2)
            if c.dpp and 'exec' in p.d: n = max(n, 5)
            if c.op.startswith(('v_readlane', 'v_readfirstlane')) and vd & c.u: n = max(n, 1)
            if c.op.startswith(('v_readlane', 'v_readfirstlane', 'v_writelane', 'v_permlane')) and 'exec' in p.d: n = max(n, 4)
            if c.op.startswith('v_permlane') and vd & c.u: n = max(n, 2)
            if p.op.startswith(TRANS) and not c.op.startswith(TRANS) and vd & c.u: n = max(n, 1)
            if p.opsel_dst and vd & (c.u | c.d): n = max(n, 1)
            if p.op.startswith('v_dot') and vd & (c.u | c.d):
                same = c.op == p.op
                srcs = c.txt.split(';')[0].split(None, 1)[1].split(',')
                ab = set(regs(srcs[1].strip()) + regs(srcs[2].strip().split()[0])) if len(srcs) > 2 else set()
                if not (same and not (vd & ab)): n = max(n, 3)
        if c.cls in ('vmem', 'ds') and p.op.startswith('v_dot') and vd & c.u: n = max(n, 3)
        if c.cls == 'br' and ('vcc' in sd and 'vcc' in c.u): n = max(n, 0)
        if c.cls == 'salu' and sd & c.u: n = max(n, 1)
        return n
    if p.cls == 'salu':
        if 'm0' in p.d and c.cls == 'vmem' and 'm0' in c.u: n = max(n, 1)
        return n
    if p.cls == 'vmem' and p.wide:
        if set(p.data) & c.d: n = max(n, 2 if c.cls == 'valu' else 1)
    return n

def hazard_pass(lines, verbose=False):
    ins = [Ins(l) for l in lines]
    total = 0
    for rnd in range(4):
        labels = {x.label: i for i, x in enumerate(ins) if x.cls == 'label'}
        srcs = {}
        for i, x in enumerate(ins):
            if x.cls == 'br': srcs.setdefault(labels[x.target], []).append(i)
        out = []; added = 0
        ins_n = {}
        for j, c in enumerate(ins):
            if c.cls in ('label', 'dir', 'nop', 'sopp'): continue
            worst = 0
            stack = [(j, 0)]; seen = set()
            while stack:
                k, dist = stack.pop()
                preds = []
                if k > 0:
                    q = ins[k - 1]
                    if not (q.op in ('s_branch', 's_endpgm')): preds.append(k - 1)
                if ins[k].cls == 'label': preds += srcs.get(k, [])
                for p in preds:
                    if (p, dist) in seen: continue
                    seen.add((p, dist))
                    x = ins[p]
                    r = need(x, c) if x.cls in ('mfma', 'valu', 'salu', 'vmem') else 0
                    if r - dist > worst: worst = r - dist
                    nd = dist + x.ws + ins_n.get(p, 0)
                    if nd < 13: stack.append((p, nd))
            if worst > 0:
                ins_n[j] = worst; added += 1
                if verbose: print(f"  nop {worst} before: {c.txt}")
        if not ins_n: break
        new = []
        for j, c in enumerate(ins):
            if j in ins_n: new.append(Ins(f"s_nop {ins_n[j] - 1}"))
            new.append(c)
        ins = new; total += added
    return [x.txt for x in ins], total

class B:
    def __init__(s):
        s.L = []; s.vi = 0; s.vd = 0; s.li = 0; s.ld = 0; s.smem_out = False
    def e(s, txt):
        for l in txt.split('\n'):
            l = l.strip()
            if l: s.L.append(l)
    def vm(s, txt):
        s.e(txt); s.vi += 1; return s.vi - 1
    def lg(s, txt):
        s.e(txt); s.li += 1; return s.li - 1
    def sm(s, txt):
        s.e(txt); s.smem_out = True
    def wait(s, vm=None, lg=None):
        p = []
        if vm is not None and vm >= s.vd:
            n = min(62, s.vi - vm - 1); p.append(f"vmcnt({n})"); s.vd = s.vi - n
        if lg is not None and lg >= s.ld:
            n = 0 if s.smem_out else min(14, s.li - lg - 1)
            p.append(f"lgkmcnt({n})"); s.ld = s.li - n
            if n == 0: s.smem_out = False
        if p: s.e("s_waitcnt " + " ".join(p))
    def wait_all(s, vm=True, lg=True, force=True):
        p = []
        if vm and (force or s.vd < s.vi): p.append("vmcnt(0)"); s.vd = s.vi
        if lg and (force or s.ld < s.li or s.smem_out): p.append("lgkmcnt(0)"); s.ld = s.li; s.smem_out = False
        if p: s.e("s_waitcnt " + " ".join(p))
    def fork(s):
        o = B(); o.L = s.L; o.vi, o.vd, o.li, o.ld, o.smem_out = s.vi, s.vd, s.li, s.ld, s.smem_out; return o

import subprocess, tempfile, os
def sizes_of(lines):
    src = ".amdgcn_target \"amdgcn-amd-amdhsa--gfx950\"\n.text\n" + "\n".join(lines) + "\n"
    r = subprocess.run(["llvm-mc", "-triple", "amdgcn-amd-amdhsa", "-mcpu=gfx950", "-show-encoding"], input=src, capture_output=True, text=True)
    if r.returncode: raise RuntimeError(r.stderr[:3000])
    out = []
    for l in r.stdout.split("\n"):
        m = re.search(r"; encoding: \[(.*)\]", l)
        if m: out.append((len(m.group(1).split(",")), l.split(";")[0].strip()))
    return out
NO64 = ('v_swap', 'v_readfirstlane', 'v_permlane', 'v_fmaak', 'v_fmamk', 'v_accvgpr', 'v_nop', 'v_dot2c')
def align_pass(lines, mis_cost=1.33, nop_cost=4.0, start_par=0):
    idx = [i for i, l in enumerate(lines) if not (l.endswith(':') or l.startswith('.'))]
    sz = sizes_of(lines)
    assert len(sz) == len(idx), (len(sz), len(idx))
    opts = {}
    for i, (n, canon) in zip(idx, sz):
        o = [(lines[i], n)]
        op = canon.split()[0]
        if n == 4 and op.endswith('_e32') and not op.startswith(NO64):
            t = lines[i].split(None, 1); base = t[0][:-4] if t[0].endswith('_e32') else t[0]
            o.append((base + '_e64 ' + t[1], 8))
        if n == 4 and op == 's_addk_i32':
            a = [x.strip() for x in lines[i].split(None, 1)[1].split(',')]
            o.append((f"s_add_u32 {a[0]}, {a[0]}, {a[1]}", 8))
        opts[i] = o
    INF = 1e18
    cost = [0 if start_par == 0 else INF, 0 if start_par == 1 else INF]
    back = []
    for i in idx:
        nc = [INF, INF]; bk = [None, None]
        for p in (0, 1):
            if cost[p] >= INF: continue
            for pad in (0, 1):
                q = p ^ pad
                for k, (t, n) in enumerate(opts[i]):
                    c = cost[p] + pad * nop_cost + (mis_cost if (n >= 8 and q == 1) else 0) + (0.01 * k)
                    r = q ^ ((n // 4) & 1)
                    if c < nc[r]: nc[r] = c; bk[r] = (p, pad, k)
        cost = nc; back.append(bk)
    p = 0 if cost[0] <= cost[1] else 1
    choice = {}
    for i, bk in zip(reversed(idx), reversed(back)):
        pp, pad, k = bk[p]; choice[i] = (pad, k); p = pp
    out = []; npad = nprom = 0
    for i, l in enumerate(lines):
        if i in choice:
            pad, k = choice[i]
            if pad: out.append("s_nop 0"); npad += 1
            out.append(opts[i][k][0]); nprom += k > 0
        else: out.append(l)
    return out, npad, nprom, min(cost)
```

```python
sPAN, sDMA, sM0, sW2, sH0 = 60, 61, 62, 63, 64
sHP, sSTK = 68, 72
CSB = 147456
A_PAN, A_RING, A_W2 = 0, 48, 80
V_ACC1, V_ACC2, V_PAN = 32, 96, 144
V_G2, V_HR = 144, 32

def ffn_map(b, helper):
    if helper:
        b.e(f"""s_lshr_b32 s56, s2, 3
            s_mul_i32 s57, s56, 43
            s_lshr_b32 s57, s57, 7
            s_mul_i32 s58, s57, 3
            s_sub_u32 s56, s56, s58
            s_and_b32 s58, s{sXCD}, 1
            s_mul_i32 s58, s58, 3
            s_add_u32 s{sI}, s56, s58""")
    else:
        b.e(f"""s_sub_u32 s56, s2, 96
            s_lshr_b32 s56, s56, 3
            s_mul_i32 s57, s56, 52
            s_lshr_b32 s57, s57, 8
            s_mul_i32 s58, s57, 5
            s_sub_u32 s56, s56, s58
            s_and_b32 s58, s{sXCD}, 1
            s_mul_i32 s58, s58, 5
            s_add_u32 s56, s56, s58
            s_add_u32 s{sI}, s56, 6""")
    b.e(f"""s_lshr_b32 s58, s{sXCD}, 1
        s_lshl_b32 s58, s58, 2
        s_add_u32 s{sJ}, s57, s58
        s_bfe_u32 s56, s{sJ}, 0x10002
        s_lshl_b32 s{sRHO}, s{sI}, 1
        s_add_u32 s{sRHO}, s{sRHO}, s56
        s_lshr_b32 s56, s{sJ}, 3
        s_lshl_b32 s56, s56, 2
        s_and_b32 s57, s{sJ}, 3
        s_add_u32 s{sC}, s56, s57
        v_lshlrev_b32 v4, 4, v1
        s_lshl_b32 s{sM0}, s{sW}, 12
        s_mul_i32 s{sDMA}, s{sJ}, {JSTR}
        s_add_u32 s{sDMA}, s{sDMA}, s{sM0}
        s_add_u32 s{sDMA}, s{sDMA}, {W1P}
        s_mul_i32 s56, s{sC}, 56
        s_mul_i32 s57, s{sW}, 14
        s_add_u32 s56, s56, s57
        s_mul_i32 s{sW2}, s56, 5120
        s_add_u32 s{sW2}, s{sW2}, {W2P}""")

def dma_w1(b, n):
    blk, k = n >> 2, n & 3
    if k == 0:
        b.e(f"s_add_u32 m0, s{sM0}, {(blk % 9) * 16384}")
        if n > 0: b.e(f"s_addk_i32 s{sDMA}, 16384")
        else: b.e("s_nop 0")
    return b.vm(f"buffer_load_dwordx4 v4, {WS}, s{sDMA} offen offset:{k * 1024} sc1 lds")

def w2_load(b, m):
    n, dt = divmod(m, 5)
    if m and m % 4 == 0: b.e(f"s_addk_i32 s{sW2}, 4096")
    return b.vm(f"buffer_load_dwordx4 {ar(A_W2 + (n % 8) * 20 + dt * 4, 4)}, v4, {WS}, s{sW2} offen offset:{(m % 4) * 1024} sc1")

def preload(b, lo, hi):
    for n in range(lo, hi): dma_w1(b, n)
    if hi == 36:
        b.e(f"""v_cmp_lt_u32 vcc, 27, v1
            v_mov_b32 v2, 0
            v_mov_b32 v3, {7168 - 448}
            v_cndmask_b32 v2, v2, v3, vcc
            v_add_u32 v2, v2, v4
            s_mul_i32 s56, s{sJ}, 448
            s_add_u32 s56, s56, {CS}
            s_mov_b32 m0, {CSB}""")
        b.vm(f"buffer_load_dwordx4 v2, {WS}, s56 offen sc1 lds")
        for m in range(40):
            if m == 16: b.e("s_waitcnt vmcnt(40)")
            w2_load(b, m)

def ffn(b):
    b.e(f"""v_add_u32 v5, 0x10000, v4
        v_add_u32 v6, 0x20000, v4
        v_and_b32 v2, 15, v1
        v_lshrrev_b32 v3, 4, v1
        v_lshlrev_b32 v7, 4, v2
        v_lshl_add_u32 v7, v3, 9, v7
        v_lshlrev_b32 v8, 4, v3
        v_add_u32 v8, {CSB}, v8
        v_lshlrev_b32 v9, 3, v2
        s_lshl_b32 s56, s{sI}, 2
        s_add_u32 s56, s56, s{sW}
        s_mul_i32 s{sPAN}, s56, 40960
        s_add_u32 s{sPAN}, s{sPAN}, {HT}
        s_lshl_b32 s{sSTK}, s56, 7
        s_add_u32 s{sSTK}, s{sSTK}, {ST2}
        s_mul_i32 s56, s56, {2 * 56 * 1024}
        s_add_u32 s56, s56, {HP}""")
    for k in range(2):
        b.e(f"""s_lshl_b32 s57, s{sJ}, 1
            s_add_u32 s57, s57, {k}
            s_and_b32 s58, s57, 3
            s_mul_i32 s58, s58, 14
            s_lshr_b32 s57, s57, 2
            s_add_u32 s57, s57, s58
            s_lshl_b32 s57, s57, 10
            s_add_u32 s{sHP + k}, s56, s57""")
    for k in range(2):
        b.e(f"s_mov_b32 s57, s{sJ}" if k == 0 else f"s_lshr_b32 s57, s{sJ}, 1\ns_add_u32 s57, s57, 15")
        b.e(f"""s_and_b32 s58, s57, 3
            s_lshr_b32 s59, s58, 1
            s_xor_b32 s58, s58, s59
            s_mul_i32 s58, s58, 14
            s_lshr_b32 s57, s57, 2
            s_add_u32 s57, s57, s58
            s_add_u32 s57, s57, 8
            s_lshl_b32 s57, s57, 10
            s_add_u32 s{sHP + 2 + k}, s56, s57""")
    b.e(f"""s_and_b32 s57, s{sJ}, 1
        s_lshl_b32 s57, s57, 3
        s_add_u32 s{sHP + 3}, s{sHP + 3}, s57""")
    for k in range(4):
        b.e(f"""s_xor_b32 s57, s{sW}, {k}
            s_lshl_b32 s58, s{sRHO}, 2
            s_add_u32 s57, s57, s58
            s_mul_i32 s57, s57, 56
            s_mul_i32 s58, s{sW}, 14
            s_add_u32 s57, s57, s58
            s_lshl_b32 s57, s57, 10
            s_add_u32 s{sH0 + k}, s57, {HP}""")
    mk_srd(b, 12, P_OUT, 2621440)
    stamp(b, 'pre_issued')
    sk = lab("np")
    b.e(f"s_cmp_lg_u32 s{sW}, 0\ns_cbranch_scc1 {sk}")
    poll(b.fork(), ld_ctr(FLH), "v_cmp_gt_u32 vcc, 20, v29")
    b.e(f"{sk}:")
    b.wait_all()
    b.e("s_barrier")
    stamp(b, 'g1_start')
    if OPT['stop'] == 'pre': stamp_dump(b); b.e("s_endpgm")
    b.e(f"s_cmp_eq_u32 s{sJ}, 15\ns_cbranch_scc1 L_j15")
    g12(b.fork(), 4, 3, False)
    b.e("L_j15:")
    g12(b.fork(), 2, 1, True)

def flag_store(b, base):
    sk = lab("fs")
    b.e(f"""s_cmp_lg_u32 s{sW}, 0
        s_cbranch_scc1 {sk}
        s_lshl_b32 s3, s{sI}, 8
        s_lshl_b32 s55, s{sJ}, 2
        s_add_u32 s3, s3, s55
        s_add_u32 s3, s3, {base}
        v_mov_b32 v28, 0
        v_mov_b32 v29, 1
        s_mov_b64 exec, 1
        buffer_store_dword v29, v28, {WS}, s3 offen sc1
        s_mov_b64 exec, -1
        {sk}:""")

def ld_flags(base):
    def f(b):
        b.e(f"s_lshl_b32 s55, s{sI}, 8\ns_add_u32 s55, s55, {base}\nv_lshrrev_b32 v28, 1, v9")
        return b.vm(f"buffer_load_dword v29, v28, {WS}, s55 offen sc1")
    return f
COND_FLAG = "v_cmp_eq_u32 vcc, 0, v29"
def ld_st2(b):
    return b.vm(f"buffer_load_dwordx2 v[10:11], v9, {WS}, s{sSTK} offen sc1")
COND_ST2 = "v_min_u32 v28, v10, v11\nv_cmp_eq_u32 vcc, 0, v28"

def g12(b, np1, np2, stats):
    NK = 20
    ptok = {}
    def pan(k, s):
        return vr(V_PAN + 8 * k + 4 * s, 4) if k < 14 else ar(A_PAN + 8 * (k - 14) + 4 * s, 4)
    def pan_load(k):
        if k and k % 2 == 0: b.e(f"s_addk_i32 s{sPAN}, 4096")
        o = (k & 1) * 2048
        if k < 14:
            for p in range(2):
                ptok[k] = b.vm(f"buffer_load_dwordx4 {vr(V_PAN + 8 * k + 4 * p, 4)}, v7, {WS}, s{sPAN} offen offset:{o + p * 256} sc1")
        else:
            for s in range(2):
                for p in range(2):
                    ptok[k] = b.vm(f"buffer_load_dwordx2 {ar(A_PAN + 8 * (k - 14) + 4 * s + 2 * p, 2)}, v7, {WS}, s{sPAN} offen offset:{o + p * 256 + s * 8} sc1")
    def pan_fix(k):
        b.wait(vm=ptok[k])
        if k < 14:
            r = V_PAN + 8 * k
            b.e(f"v_swap_b32 v{r + 2}, v{r + 4}\nv_swap_b32 v{r + 3}, v{r + 5}")
    LA = OPT.get('la', 5)
    for k in range(LA): pan_load(k)
    nslot1, nslot2 = 2 * np1 * NK, 2 * np2 * NK
    ftok = {}
    ring = dict(vis=9, free=0, rd=-1, used=-1)
    def frag_read(n):
        if n >= nslot1 + nslot2: return
        assert n // 16 < ring['vis'], ("ring RAW", n)
        ring['rd'] = n
        pos = (n % 144) * 1024
        ftok[n] = b.lg(f"ds_read_b128 {ar(A_RING + (n % 8) * 4, 4)}, v{4 + (pos >> 16)} offset:{pos & 0xffff}")
    FA = 6
    if stats:
        b.e("s_mov_b32 s3, 0x3f803f80\nv_mov_b32 v12, s3\nv_mov_b32 v13, s3\nv_mov_b32 v14, s3\nv_mov_b32 v15, s3")
        pan_fix(0)
        for k in range(NK):
            if k + LA < NK: pan_load(k + LA)
            if k + 1 < NK: pan_fix(k + 1)
            for s in range(2):
                b.e(f"v_mfma_f32_16x16x32_bf16 {vr(96 + 4 * s, 4)}, v[12:15], {pan(k, s)}, {'0' if k == 0 else vr(96 + 4 * s, 4)}")
                b.e(f"v_mfma_f32_16x16x32_bf16 {vr(104 + 4 * s, 4)}, {pan(k, s)}, {pan(k, s)}, {'0' if k == 0 else vr(104 + 4 * s, 4)}")
        b.e("""v_and_b32 v2, 3, v1
            v_cmp_eq_u32 s[56:57], 1, v2
            v_cmp_eq_u32 s[58:59], 2, v2
            v_cmp_eq_u32 s[74:75], 3, v2
            v_bfe_u32 v2, v1, 2, 2
            v_lshrrev_b32 v3, 4, v1
            v_cmp_eq_u32 s[76:77], v2, v3""")
        for s in range(2):
            g = 104 + 4 * s
            b.e(f"v_cndmask_b32 v{g}, v{g}, v{g+1}, s[56:57]\nv_cndmask_b32 v{g}, v{g}, v{g+2}, s[58:59]\nv_cndmask_b32 v{g}, v{g}, v{g+3}, s[74:75]")
            stats_finish(b, 96 + 4 * s, g, 16 + s)
        b.e("s_mov_b64 exec, s[76:77]")
        b.vm(f"buffer_store_dwordx2 v[16:17], v9, {WS}, s{sSTK} offen sc1")
        b.e("s_mov_b64 exec, -1")
    for n in range(FA): frag_read(n)
    if not stats: pan_fix(0)
    dman = [36]
    dtok = {}
    def dma_next():
        if dman[0] < 72 and not stats:
            assert (dman[0] // 4 - 9 + 1) * 16 <= ring['free'], ("ring WAR", dman[0])
            dtok[dman[0]] = dma_w1(b, dman[0]); dman[0] += 1
    def ring_barrier(upto):
        if upto - 1 in dtok: b.wait(vm=dtok[upto - 1])
        else: assert upto == 36 or stats
        b.e("s_barrier")
        ring['vis'] = max(ring['vis'], upto // 4); ring['free'] = ring['used'] + 1
    def epi_ops(acc, tau0, taus, dsts, pk):
        ops = []
        st = {}
        for ti, t in enumerate(taus):
            cs = 16 + (ti & 1) * 8 if False else 16
            def rd(t=t):
                b.lg(f"ds_read_b128 v[16:19], v8 offset:{(tau0 + t) * 64}")
                st['cs'] = b.lg(f"ds_read_b128 v[20:23], v8 offset:{448 + (tau0 + t) * 64}")
            ops.append(rd)
            ops.append(None)
            ops.append(lambda: b.wait(lg=st['cs']))
            for s in range(2):
                g = acc + ((t * 2 + 0) * 2 + s) * 4; u = acc + ((t * 2 + 1) * 2 + s) * 4
                if pk:
                    for (r, c) in ((g, 16), (g + 2, 18), (u, 20), (u + 2, 22)):
                        ops.append(lambda r=r, c=c, s=s: b.e(f"v_pk_fma_f32 {vr(r,2)}, {vr(c,2)}, v[12:13], {vr(r,2)} op_sel:[0,{s},0] op_sel_hi:[1,{s},1]"))
                else:
                    for q in range(4):
                        ops.append(lambda r=g + q, c=16 + q, s=s: b.e(f"v_fmac_f32 v{r}, v{c}, v{12 + s}"))
                    for q in range(4):
                        ops.append(lambda r=u + q, c=20 + q, s=s: b.e(f"v_fmac_f32 v{r}, v{c}, v{12 + s}"))
                for q in range(4):
                    ops.append(lambda r=g + q: b.e(f"v_max_f32 v{r}, 0, v{r}"))
                if pk:
                    for q in (0, 2):
                        ops.append(lambda r=g + q, u=u + q: b.e(f"v_pk_mul_f32 {vr(r,2)}, {vr(r,2)}, {vr(u,2)}"))
                else:
                    for q in range(4):
                        ops.append(lambda r=g + q, u=u + q: b.e(f"v_mul_f32 v{r}, v{r}, v{u}"))
                d, half, sreg, last = dsts[ti](s)
                for q in range(2):
                    ops.append(lambda d=d + q, r=g + 2 * q: b.e(f"v_cvt_pk_bf16_f32 v{d}, v{r}, v{r + 1}"))
                if last == 4:
                    ops.append(lambda d=d - 2, s=s, sreg=sreg: st.__setitem__('last', b.vm(f"buffer_store_dwordx4 {vr(d,4)}, v{4 if s == 0 else 24}, {WS}, s{sreg} offen sc1")))
                elif last == 2:
                    ops.append(lambda d=d, s=s, sreg=sreg: st.__setitem__('last', b.vm(f"buffer_store_dwordx2 {vr(d,2)}, v{4 if s == 0 else 24}, {WS}, s{sreg} offen sc1")))
        return ops, st
    def dst_pair(acc, ta, second, sreg):
        def f(s):
            base = acc + ((ta * 2 + 1) * 2 + s) * 4
            return (base + (2 if second else 0), second, sreg, 4 if second else 0)
        return f
    def dst_half(acc, t, sreg):
        def f(s): return (acc + ((t * 2 + 1) * 2 + s) * 4, 0, sreg, 2)
        return f
    b.e(f"v_add_u32 v24, {56 * 1024}, v4")
    n = 0
    st2tok = None
    for k in range(NK):
        for t in range(np1):
            for mat in range(2):
                if n % 2 == 0: b.wait(lg=ftok[min(n + 1, nslot1 + nslot2 - 1)])
                for s in range(2):
                    a = V_ACC1 + ((t * 2 + mat) * 2 + s) * 4
                    b.e(f"v_mfma_f32_16x16x32_bf16 {vr(a,4)}, {ar(A_RING + (n % 8) * 4, 4)}, {pan(k, s)}, {'0' if k == 0 else vr(a,4)}")
                    if s == 0: frag_read(n + FA)
                idx = t * 2 + mat; ring['used'] = n
                if not stats:
                    if idx == 0 and k + LA < NK: pan_load(k + LA)
                    if idx == 3 and k >= 4: dma_next()
                    if idx == 6 and k >= 15: dma_next()
                    if idx == 5 and k + 1 < NK: pan_fix(k + 1)
                if k == NK - 2 and idx == 1: st2tok = ld_st2(b)
                n += 1
        stamp(b, f'p1_{k}')
        if not stats and k in (3, 7, 11, 15, 19):
            ring_barrier({3: 36, 7: 36, 11: 40, 15: 44, 19: 52}[k])
    stamp(b, 'p1_end')
    poll(b, ld_st2, COND_ST2, st2tok)
    b.e("v_lshlrev_b32 v12, 16, v10\nv_lshlrev_b32 v13, 16, v11\nv_xor_b32 v12, 0x80000000, v12\nv_xor_b32 v13, 0x80000000, v13")
    d1 = [dst_pair(V_ACC1, 0, False, sHP), dst_pair(V_ACC1, 0, True, sHP), dst_pair(V_ACC1, 2, False, sHP + 1), dst_pair(V_ACC1, 2, True, sHP + 1)]
    ops, est = epi_ops(V_ACC1, 0, list(range(np1)), d1, False)
    per = OPT.get('epi_per', 3)
    oi = 0
    flagged = False; etok = None
    for k in range(NK):
        for t in range(np2):
            for mat in range(2):
                if n % 2 == 0: b.wait(lg=ftok[min(n + 1, nslot1 + nslot2 - 1)])
                for s in range(2):
                    a = V_ACC2 + ((t * 2 + mat) * 2 + s) * 4
                    b.e(f"v_mfma_f32_16x16x32_bf16 {vr(a,4)}, {ar(A_RING + (n % 8) * 4, 4)}, {pan(k, s)}, {'0' if k == 0 else vr(a,4)}")
                    if s == 0: frag_read(n + FA)
                    cnt = (per + (1 - s)) // 2 if np2 > 1 else 4
                    for _ in range(cnt):
                        if oi < len(ops):
                            if ops[oi]: ops[oi]()
                            oi += 1
                idx = t * 2 + mat; ring['used'] = n
                if idx in (1, 4): dma_next()
                n += 1
        stamp(b, f'p2_{k}')
        if not stats and k == 4: ring_barrier(60)
        if oi >= len(ops) and not flagged and k >= OPT.get('kflag', 11):
            b.wait(vm=est['last'])
            ring_barrier(72)
            flag_store(b, FLE); flagged = True
        if k == NK - 2: etok = ld_flags(FLE)(b)
    while oi < len(ops):
        if ops[oi]: ops[oi]()
        oi += 1
    assert flagged
    stamp(b, 'p2_end')
    htok = {}
    b.e("v_mov_b32 v25, v4")
    def h_load(nn):
        if nn >= 14: return
        if nn and nn % 4 == 0: b.e("v_add_u32 v25, 4096, v25")
        for tt in range(4):
            htok[nn] = b.vm(f"buffer_load_dwordx4 {vr(V_HR + (nn % 4) * 16 + tt * 4, 4)}, v25, {WS}, s{sH0 + tt} offen offset:{(nn % 4) * 1024} sc1")
    poll(b, ld_flags(FLE), COND_FLAG, etok)
    stamp(b, 'early_seen')
    for nn in range(4): h_load(nn)
    if np2 == 3: d2 = [dst_pair(V_ACC2, 0, False, sHP + 2), dst_pair(V_ACC2, 0, True, sHP + 2), dst_half(V_ACC2, 2, sHP + 3)]
    else: d2 = [dst_half(V_ACC2, 0, sHP + 3)]
    ops, est = epi_ops(V_ACC2, np1, list(range(np2)), d2, True)
    for o in ops:
        if o: o()
    stamp(b, 'epi2_end')
    b.e(f"""v_and_b32 v2, 15, v1
        v_lshrrev_b32 v3, 4, v1
        v_lshlrev_b32 v14, 4, v2
        v_lshl_add_u32 v14, v3, 8, v14
        s_lshr_b32 s56, s{sW}, 1
        s_lshl_b32 s57, s{sRHO}, 1
        s_add_u32 s56, s56, s57
        s_and_b32 s57, s{sW}, 1
        s_mul_i32 s58, s56, 40960
        s_mul_i32 s59, s{sC}, 5120
        s_add_u32 s58, s58, s59
        s_lshl_b32 s59, s57, 3
        s_add_u32 s58, s58, s59
        s_add_u32 s74, s58, {HT}
        s_add_u32 s75, s74, 4096
        s_lshl_b32 s56, s56, 5
        s_add_u32 s56, s56, s57
        s_lshl_b32 s76, s56, 2
        s_add_u32 s76, s76, {ST2}
        s_mul_i32 s77, s56, 1280
        s_mul_i32 s59, s{sC}, 160
        s_add_u32 s77, s77, s59
        v_mul_u32_u24 v15, 2560, v2
        v_lshl_add_u32 v15, v3, 3, v15""")
    wtok = {}
    ltok = None
    for nn in range(14):
        skip = None
        if nn == 7 or nn == 13:
            skip = lab("sk")
        b.wait(vm=max(htok[nn], wtok.get(nn, -1)))
        if skip: b.e(f"s_cmp_eq_u32 s{sW}, {3 if nn == 7 else 2}\ns_cbranch_scc1 {skip}")
        for dt in range(5):
            for tt in range(4):
                a = V_G2 + (tt * 5 + dt) * 4
                b.e(f"v_mfma_f32_16x16x32_bf16 {vr(a,4)}, {ar(A_W2 + (nn % 8) * 20 + dt * 4, 4)}, {vr(V_HR + (nn % 4) * 16 + tt * 4, 4)}, {'0' if nn == 0 else vr(a,4)}")
        if skip: b.e(f"{skip}:")
        stamp(b, f'g2_{nn}')
        if nn == 1:
            b.wait(vm=est['last'])
            b.e("s_barrier")
            flag_store(b, FLL)
        if nn + 8 < 14:
            for dt in range(5): wtok[nn + 8] = w2_load(b, (nn + 8) * 5 + dt)
        if nn + 4 < 8 or nn >= 8: h_load(nn + 4)
        if nn == 2:
            for dt in range(5):
                rt = b.vm(f"buffer_load_dwordx2 {vr(96 + 2 * dt, 2)}, v14, {WS}, s{74 if dt < 4 else 75} offen offset:{(dt % 4) * 1024} sc1")
            rt = b.vm(f"buffer_load_dword v106, v9, {WS}, s76 offen sc1")
        if nn == 6: ltok = ld_flags(FLL)(b)
        if nn == 7:
            poll(b, ld_flags(FLL), COND_FLAG, ltok)
            stamp(b, 'late_seen')
            for q in range(8, 12): h_load(q)
    stamp(b, 'g2_end')
    b.e(f"""s_xor_b32 s56, s{sW}, 1
        s_mul_i32 s56, s56, 15360
        v_add_u32 v16, s56, v4
        s_xor_b32 s56, s{sW}, 2
        s_mul_i32 s56, s56, 15360
        v_add_u32 v17, s56, v4
        s_xor_b32 s56, s{sW}, 3
        s_mul_i32 s56, s56, 15360
        v_add_u32 v18, s56, v4
        s_mul_i32 s56, s{sW}, 15360
        v_add_u32 v19, s56, v4""")
    for tt in range(1, 4):
        for dt in range(5):
            b.lg(f"ds_write_b128 v{15 + tt}, {vr(V_G2 + (tt * 5 + dt) * 4, 4)} offset:{(tt - 1) * 5120 + dt * 1024}")
    b.wait(vm=rt)
    b.e("v_and_b32 v106, 0xffff0000, v106\nv_rcp_f32 v106, v106")
    for dt in range(5):
        for k in range(2):
            b.e(f"v_lshlrev_b32 v{108 + 4 * dt + 2 * k}, 16, v{96 + 2 * dt + k}\nv_and_b32 v{109 + 4 * dt + 2 * k}, 0xffff0000, v{96 + 2 * dt + k}")
    b.e("v_mul_f32 v106, v106, v106")
    b.wait_all(vm=False)
    b.e("s_barrier")
    rk = {}
    for dt in range(5):
        for k in range(3):
            rk[dt] = b.lg(f"ds_read_b128 {vr(164 + (dt * 3 + k) * 4, 4)}, v19 offset:{k * 5120 + dt * 1024}")
    for dt in range(5):
        b.wait(lg=rk[dt])
        a = V_G2 + dt * 4; r = 164 + dt * 12
        for h in (0, 2):
            b.e(f"v_pk_add_f32 {vr(a + h, 2)}, {vr(a + h, 2)}, {vr(r + h, 2)}")
            b.e(f"v_pk_add_f32 {vr(r + 4 + h, 2)}, {vr(r + 4 + h, 2)}, {vr(r + 8 + h, 2)}")
        for h in (0, 2):
            b.e(f"v_pk_add_f32 {vr(a + h, 2)}, {vr(a + h, 2)}, {vr(r + 4 + h, 2)}")
        for h in (0, 2):
            b.e(f"v_pk_fma_f32 {vr(a + h, 2)}, {vr(a + h, 2)}, v[106:107], {vr(108 + 4 * dt + h, 2)} op_sel_hi:[1,0,1]")
        b.e(f"v_cvt_pk_bf16_f32 v{a}, v{a}, v{a + 1}\nv_cvt_pk_bf16_f32 v{a + 1}, v{a + 2}, v{a + 3}")
        b.vm(f"buffer_store_dwordx2 {vr(a, 2)}, v15, {OUT}, s77 offen offset:{dt * 32} {OPT.get('outaux', '')}")
    stamp(b, 'end')
    stamp_dump(b)
    b.e("s_endpgm")
```

```python
import sys, os
from asmlib import B, hazard_pass, align_pass
KN = "sequential_preLN__ssm_conv_s4__glu_gated_reglu__prompt_kernel"
OPT = dict(stamps=False, stop=None, spin=2000000)

ST1, ST2 = 0, 8192
FLP, FLH, FLE, FLL = 16384, 18432, 20480, 24576
ZERO_BYTES = 28672
CS = 0x8000
STAMP = 0xC000
XT, HT, W1P, W2P, HP = 0x10000, 0x300000, 0x600000, 0xB00000, 0xE00000
WS_STAMP = 0x1600000
WS_SIZE = 0x1700000
JSTR = 286720
P_X, P_ARE, P_AIM, P_BRE, P_BIM, P_CRE, P_CIM, P_LDT, P_DSK, P_BX, P_WG, P_WU, P_WD, P_OUT, P_DBG, P_WS = [16 + 2 * k for k in range(16)]
sW, sXCD, sI, sJ, sRHO, sC = 48, 49, 51, 52, 53, 54
SRC = "s[4:7]"; WS = "s[8:11]"; OUT = "s[12:15]"
def sp(r): return f"s[{r}:{r+1}]"
def vr(r, n): return f"v[{r}:{r+n-1}]" if n > 1 else f"v{r}"
def ar(r, n): return f"a[{r}:{r+n-1}]" if n > 1 else f"a{r}"
RSTR = 36160
_lab = [0]
def lab(p):
    _lab[0] += 1; return f"L_{p}{_lab[0]}"

def stamp(b, name):
    st = OPT['stamps']
    if not st or name not in st: return
    r = 78 + 2 * st.index(name)
    b.sm(f"s_memrealtime s[{r}:{r+1}]")
def stamp_init(b):
    if OPT['stamps']:
        for r in range(78, 102, 2): b.e(f"s_mov_b64 s[{r}:{r+1}], 0")
def stamp_dump(b):
    if not OPT['stamps']: return
    b.e(f"s_waitcnt lgkmcnt(0)\ns_lshl_b32 s3, s2, 2\ns_add_u32 s3, s3, s{sW}\ns_lshl_b32 s3, s3, 7\ns_add_u32 s3, s3, {WS_STAMP}\nv_mov_b32 v30, 0")
    for k in range(12):
        b.e(f"v_mov_b32 v31, s{78 + 2 * k}\nbuffer_store_dword v31, v30, {WS}, s3 offen offset:{4 * k}")

def poll(b, load, cond, tok=None):
    if tok is None: tok = load(b)
    b.wait(vm=tok)
    lo, ok = lab("poll"), lab("ok")
    b.e(cond)
    b.e(f"s_cbranch_vccz {ok}\ns_mov_b32 s3, 0\n{lo}:")
    f = b.fork(); load(f); f.wait_all(lg=False)
    b.e(cond)
    b.e(f"s_add_u32 s3, s3, 1\ns_cmp_gt_u32 s3, {OPT['spin']}\ns_cbranch_scc1 {ok}\ns_cbranch_vccnz {lo}\n{ok}:")

def ld_ready(b):
    b.e("v_mov_b32 v28, 0")
    return b.vm(f"global_load_dword v29, v28, {sp(P_DBG)} sc1")
COND_READY = "v_cmp_eq_u32 vcc, 0, v29"

def code_prefetch(b):
    b.e(f"s_getpc_b64 s[56:57]\nL_pc{_lab[0]}:\ns_sub_u32 s56, s56, L_pc{_lab[0]}-{KN}\ns_subb_u32 s57, s57, 0")
    _lab[0] += 1
    b.e(f"s_mov_b32 s3, L_code_end-{KN}-4\nv_lshlrev_b32 v26, 7, v0\nv_add_u32 v27, 0x8000, v26\nv_min_u32 v26, s3, v26\nv_min_u32 v27, s3, v27")
    b.vm("global_load_dword a254, v26, s[56:57]")
    b.vm("global_load_dword a255, v27, s[56:57]")

def mk_srd(b, r, ptr, size):
    b.e(f"s_mov_b32 s{r}, s{ptr}\ns_mov_b32 s{r+1}, s{ptr+1}\ns_mov_b32 s{r+2}, {size}\ns_mov_b32 s{r+3}, 0x20000")

LNB = 144640
LNS = LNB + 4 * 2624
def x_dma(b):
    t = None
    for k in range(3):
        if k == 2: b.e("s_mov_b32 exec_hi, 0")
        t = b.vm(f"buffer_load_dwordx4 v2, {SRC}, s57 offen offset:{k * 1024} nt lds")
    b.e("s_mov_b32 exec_hi, -1")
    return t
def entry(b):
    b.e(f"s_load_dwordx16 s[16:31], s[0:1], 0\ns_load_dwordx16 s[32:47], s[0:1], 64")
    b.e("s_cmp_ge_u32 s2, 256\ns_cbranch_scc1 L_exit")
    b.e(f"""v_lshrrev_b32 v2, 6, v0
        v_and_b32 v1, 63, v0
        v_readfirstlane_b32 s{sW}, v2
        s_and_b32 s{sXCD}, s2, 7
        v_lshlrev_b32 v2, 4, v1
        s_mul_i32 s57, s2, 10240
        s_mul_i32 s58, s{sW}, 2560
        s_add_u32 s57, s57, s58
        s_mul_i32 s58, s{sW}, 2624
        s_add_u32 s58, s58, {LNB}
        s_mov_b32 m0, s58
        s_mov_b32 s6, 2621440
        s_mov_b32 s7, 0x20000
        s_mov_b32 s10, {WS_SIZE}
        s_mov_b32 s11, 0x20000""")
    stamp_init(b)
    b.e(f"""s_cmp_lg_u32 s2, 0
        s_waitcnt lgkmcnt(0)
        s_mov_b32 s4, s{P_X}
        s_mov_b32 s5, s{P_X + 1}
        s_mov_b32 s8, s{P_WS}
        s_mov_b32 s9, s{P_WS + 1}
        s_cbranch_scc1 L_noinit
        v_mov_b32 v4, 0
        v_mov_b32 v5, 0
        v_mov_b32 v6, 0
        v_mov_b32 v7, 0
        v_lshlrev_b32 v3, 4, v0
        s_mov_b32 s56, 0""")
    for k in range(ZERO_BYTES // 4096):
        b.e(f"buffer_store_dwordx4 v[4:7], v3, {WS}, s56 offen sc1\ns_addk_i32 s56, 4096")
    b.e("L_noinit:")
    t = x_dma(b)
    stamp(b, 'start')
    b.e("s_cmp_lt_u32 s2, 96\ns_cbranch_scc1 L_help")
    c = b.fork()
    c.e(f"""s_sub_u32 s50, s2, 96
        s_lshl_b32 s59, s50, 3
        s_lshl_b32 s60, s50, 10
        s_lshl_b32 s61, s{sW}, 8
        s_add_u32 s60, s60, s61
        v_lshl_add_u32 v2, v1, 2, s60""")
    pt = []
    for k, p in enumerate((P_ARE, P_AIM, P_BRE, P_BIM, P_CRE, P_CIM)):
        pt.append(c.vm(f"global_load_dword v{4 + k}, v2, {sp(p)} nt"))
    c.sm(f"s_load_dwordx2 s[62:63], {sp(P_LDT)}, s59\ns_load_dwordx2 s[64:65], {sp(P_DSK)}, s59")
    if OPT.get('wpf', 0) == 2: w_prefetch(c)
    code_prefetch(c)
    c.e("s_branch L_conv")
    b.e("""L_help:
        s_cmp_lg_u32 s2, 0
        s_cbranch_scc1 L_noinit2
        s_waitcnt vmcnt(3)
        s_barrier
        v_mov_b32 v4, 0
        v_mov_b32 v5, 1
        s_mov_b64 exec, 1""")
    b.e(f"global_store_dword v4, v5, {sp(P_DBG)} sc1\ns_mov_b64 exec, -1\nL_noinit2:")
    stamp(b, 'init_done')
    return t, c, pt

def ln1_a(b, xtok, R):
    b.e(f"""v_and_b32 v2, 3, v1
        v_lshrrev_b32 v3, 2, v1
        v_mul_u32_u24 v16, 2624, v2
        v_lshl_add_u32 v16, v3, 3, v16
        s_lshl_b32 s3, s{sW}, 7
        s_add_u32 s3, s3, {LNB}
        v_add_u32 v16, s3, v16
        v_lshlrev_b32 v17, 8, v3
        v_lshl_add_u32 v17, v2, 4, v17
        s_lshl_b32 s3, s{sW}, 12
        v_add_u32 v17, s3, v17
        v_lshrrev_b32 v2, 5, v1
        v_and_b32 v3, 31, v1
        v_mul_u32_u24 v18, 1280, v2
        v_lshl_add_u32 v18, v3, 3, v18
        v_add_u32 v18, s58, v18
        s_lshl_b32 s3, s{sW}, 3
        s_add_u32 s3, s3, {LNS}
        v_lshl_add_u32 v19, v2, 2, s3
        s_lshr_b32 s57, s2, 2
        s_mul_i32 s57, s57, 40960
        s_and_b32 s3, s2, 3
        s_lshl_b32 s3, s3, 6
        s_add_u32 s57, s57, s3
        s_add_u32 s57, s57, {XT}
        s_mov_b32 s56, 0x3f803f80""")
    b.wait(vm=xtok)
    st = [b.lg(f"ds_read_b64 {vr(R + 12 + 2 * k, 2)}, v18 offset:{256 * k}") for k in range(5)]
    b.e("s_barrier")
    stamp(b, 'ln_x')
    tk = []
    for k in range(3):
        b.lg(f"ds_read_b64 {vr(R + 4 * k, 2)}, v16 offset:{512 * k}")
        tk.append(b.lg(f"ds_read_b64 {vr(R + 4 * k + 2, 2)}, v16 offset:{512 * k + 1280}"))
    b.e("v_mov_b32 v20, 0\nv_mov_b32 v21, 0\nv_mov_b32 v22, 0\nv_mov_b32 v23, 0")
    for k in range(2):
        b.wait(lg=tk[k])
        last = b.vm(f"buffer_store_dwordx4 {vr(R + 4 * k, 4)}, v17, {WS}, s57 offen sc1")
        b.e("s_addk_i32 s57, 16384")
    b.wait(lg=tk[2])
    sk = lab("l3")
    b.e(f"s_cmp_ge_u32 s{sW}, 2\ns_cbranch_scc1 {sk}\nbuffer_store_dwordx4 {vr(R + 8, 4)}, v17, {WS}, s57 offen sc1\n{sk}:")
    for k in range(10):
        r = R + 12 + k
        b.e(f"v_dot2_f32_bf16 v{20 + (k & 1)}, v{r}, s56, v{20 + (k & 1)}")
        b.e(f"v_dot2_f32_bf16 v{22 + (k & 1)}, v{r}, v{r}, v{22 + (k & 1)}")
    b.e("v_add_f32 v20, v20, v21\nv_add_f32 v22, v22, v23")
    for m in ("quad_perm:[1,0,3,2] row_mask:0xf", "quad_perm:[2,3,0,1] row_mask:0xf", "row_half_mirror row_mask:0xf", "row_mirror row_mask:0xf", "row_bcast:15 row_mask:0xa"):
        b.e(f"v_add_f32_dpp v20, v20, v20 {m} bank_mask:0xf\nv_add_f32_dpp v22, v22, v22 {m} bank_mask:0xf")
    stats_finish(b, 20, 22, 21)
    b.e("s_mov_b32 exec_lo, 0x10000\ns_mov_b32 exec_hi, 0x10000")
    b.lg("ds_write_b32 v19, v21")
    b.e("s_mov_b64 exec, -1")
    return last

def ln1_r(b):
    sk = lab("lr")
    b.e(f"s_cmp_lg_u32 s{sW}, 0\ns_cbranch_scc1 {sk}")
    ld_ready(b.fork())
    b.e(f"{sk}:")
def ln1_b(b, last):
    sk0 = lab("l0")
    b.wait(vm=last, lg=b.li - 1)
    b.e(f"s_cmp_lg_u32 s{sW}, 0\ns_cbranch_scc1 {sk0}")
    f = b.fork()
    poll(f, ld_ready, COND_READY, last)
    b.e(f"{sk0}:\ns_barrier")
    sk = lab("ln")
    b.e(f"s_cmp_lg_u32 s{sW}, 0\ns_cbranch_scc1 {sk}")
    f = b.fork()
    f.e("v_lshlrev_b32 v2, 2, v1\ns_mov_b64 exec, 0xff")
    t = f.lg(f"v_add_u32 v3, {LNS}, v2\nds_read_b32 v3, v3")
    f.e(f"s_lshl_b32 s56, s2, 5")
    f.wait(lg=t)
    f.vm(f"buffer_store_dword v3, v2, {WS}, s56 offen sc1")
    f.e("s_mov_b64 exec, -1")
    b.e(f"{sk}:")
    stamp(b, 'ln_done')

def w_prefetch(b):
    b.e(f"""s_lshl_b32 s3, s50, 2
        s_add_u32 s3, s3, s{sW}
        s_mul_i32 s3, s3, {27 * 128}
        v_min_u32 v2, 26, v1
        v_lshl_add_u32 v2, v2, 7, s3""")
    for k, p in enumerate((P_WG, P_WU, P_WD)):
        b.vm(f"global_load_dword a{251 + k}, v2, {sp(p)}")

def stats_finish(b, vs, vq, vo):
    b.e(f"""s_mov_b32 s3, 0x3acccccd
        v_mul_f32 v{vs}, s3, v{vs}
        v_mul_f32 v{vq}, s3, v{vq}
        v_fma_f32 v{vq}, -v{vs}, v{vs}, v{vq}
        v_max_f32 v{vq}, 0, v{vq}
        v_cvt_pk_bf16_f32 v{vq}, v{vq}, v{vq}
        v_lshlrev_b32 v{vq}, 16, v{vq}
        v_add_f32 v{vq}, 0x3727c5ac, v{vq}
        v_cvt_pk_bf16_f32 v{vq}, v{vq}, v{vq}
        v_lshlrev_b32 v{vq}, 16, v{vq}
        v_sqrt_f32 v{vq}, v{vq}
        v_cvt_pk_bf16_f32 v{vo}, v{vs}, v{vq}""")

PKB = 0
def pack(b):
    done = "L_packdone"
    b.e(f"""s_sub_u32 s56, 95, s2
        s_cmp_ge_u32 s56, 81
        s_cbranch_scc1 {done}
        s_mul_i32 s58, s{sW}, 20480
        s_add_u32 s58, s58, {PKB}
        v_lshrrev_b32 v2, 3, v1
        v_and_b32 v3, 7, v1
        v_lshlrev_b32 v3, 4, v3
        v_lshlrev_b32 v9, 4, v1
        v_lshrrev_b32 v4, 4, v1
        v_bfe_u32 v5, v1, 2, 2
        v_and_b32 v6, 3, v1
        v_lshlrev_b32 v6, 3, v6
        v_lshl_add_u32 v6, v5, 7, v6
        v_add_u32 v6, s58, v6
        s_cmp_ge_u32 s56, 54
        s_cbranch_scc1 L_packw2""")
    f = b.fork()
    f.e(f"""s_and_b32 s59, s56, 1
        s_lshr_b32 s60, s56, 1
        s_cmp_eq_u32 s59, 0
        s_cselect_b32 s4, s{P_WG}, s{P_WU}
        s_cselect_b32 s5, s{P_WG+1}, s{P_WU+1}
        s_mov_b32 s6, 2211840
        s_mov_b32 s7, 0x20000
        v_mul_u32_u24 v2, 3456, v2
        v_add_u32 v2, v2, v3
        s_mul_i32 s61, s{sW}, {160 * 3456}
        s_lshl_b32 s62, s60, 7
        s_add_u32 s61, s61, s62
        s_mov_b32 m0, s58""")
    dm = []
    for n in range(20):
        dm.append(f.vm(f"buffer_load_dwordx4 v2, {SRC}, s61 offen nt lds"))
        f.e("s_addk_i32 s61, 27648\ns_add_u32 m0, m0, 1024")
    f.e("v_lshl_add_u32 v6, v4, 10, v6")
    for t in range(4):
        T, J, TA, BS, STR = 62, 63, 64, 66 + 2 * t, 67 + 2 * t
        f.e(f"""s_lshl_b32 s{T}, s60, 2
            s_add_u32 s{T}, s{T}, {t}
            s_mul_i32 s{J}, s{T}, 9363
            s_lshr_b32 s{J}, s{J}, 16
            s_mul_i32 s{TA}, s{J}, 7
            s_sub_u32 s{TA}, s{T}, s{TA}
            s_cmp_eq_u32 s{J}, 15
            s_cselect_b32 s65, 2, 4
            s_cselect_b32 s74, 1, 3
            s_mul_i32 s75, s65, 40
            s_cmp_lt_u32 s{TA}, s65
            s_cselect_b32 s{STR}, s65, s74
            s_cselect_b32 s75, 0, s75
            s_cselect_b32 s65, 0, s65
            s_sub_u32 s{TA}, s{TA}, s65
            s_lshl_b32 s{TA}, s{TA}, 1
            s_add_u32 s{TA}, s{TA}, s59
            s_add_u32 s{TA}, s{TA}, s75
            s_lshl_b32 s{STR}, s{STR}, 11
            s_lshl_b32 s{TA}, s{TA}, 10
            s_mul_i32 s{J}, s{J}, {JSTR}
            s_add_u32 s{BS}, s{J}, s{TA}
            s_mul_i32 s{TA}, s{STR}, s{sW}
            s_mul_i32 s{TA}, s{TA}, 5
            s_add_u32 s{BS}, s{BS}, s{TA}
            s_add_u32 s{BS}, s{BS}, {W1P}""")
    f.e("s_mov_b32 s3, 0x3f803f80\nv_mov_b32 v12, s3\nv_mov_b32 v13, s3\nv_mov_b32 v14, s3\nv_mov_b32 v15, s3")
    stamp(f, 'pk_issued')
    for k in range(5):
        f.wait(vm=dm[4 * k + 3])
        if k == 4: stamp(f, 'pk_loaded')
        tk = []
        for t in range(4):
            r = 32 + (k * 4 + t) * 4
            f.lg(f"ds_read_b64_tr_b16 {vr(r, 2)}, v6 offset:{k * 4096 + t * 32}")
            tk.append(f.lg(f"ds_read_b64_tr_b16 {vr(r + 2, 2)}, v6 offset:{k * 4096 + 512 + t * 32}"))
        for t in range(4):
            r = 32 + (k * 4 + t) * 4
            f.wait(lg=tk[t])
            f.vm(f"buffer_store_dwordx4 {vr(r, 4)}, v9, {WS}, s{66 + 2 * t} offen sc1")
            f.e(f"s_add_u32 s{66 + 2 * t}, s{66 + 2 * t}, s{67 + 2 * t}")
            f.e(f"v_mfma_f32_16x16x32_bf16 {vr(112 + 4 * t, 4)}, {vr(r, 4)}, v[12:15], {'0' if k == 0 else vr(112 + 4 * t, 4)}")
    f.e(f"""s_lshl_b32 s3, s{sW}, 8
        s_add_u32 s3, s3, 0x10000
        v_lshl_add_u32 v2, v4, 4, s3
        v_and_b32 v3, 15, v1
        v_cmp_eq_u32 vcc, 0, v3
        s_and_saveexec_b64 s[62:63], vcc""")
    for t in range(4):
        f.lg(f"ds_write_b128 v2, {vr(112 + 4 * t, 4)} offset:{81920 + t * 64 - 65536}")
    f.e("s_mov_b64 exec, s[62:63]")
    f.wait_all(vm=False)
    f.e("s_barrier\nv_lshlrev_b32 v2, 2, v1\nv_add_u32 v3, 0x10000, v2")
    for k in range(4): f.lg(f"ds_read_b32 v{16 + k}, v3 offset:{81920 + k * 256 - 65536}")
    f.e(f"s_mul_i32 s61, s59, 7168\ns_lshl_b32 s62, s60, 8\ns_add_u32 s61, s61, s62\ns_add_u32 s61, s61, {CS}")
    f.wait_all(vm=False)
    f.e("v_add_f32 v16, v16, v17\nv_add_f32 v18, v18, v19\nv_add_f32 v16, v16, v18")
    f.vm(f"buffer_store_dword v16, v2, {WS}, s61 offen sc1")
    f.e(f"s_branch {done}")
    b.e("L_packw2:")
    f = b.fork()
    mk_srd(f, 4, P_WD, 2211840)
    f.e(f"""s_sub_u32 s56, s56, 54
        s_lshl_b32 s56, s56, 2
        s_add_u32 s56, s56, s{sW}
        s_and_b32 s59, s56, 1
        s_lshr_b32 s60, s56, 1
        s_cmp_ge_u32 s60, 31
        s_cbranch_scc1 L_w2late
        s_lshr_b32 s61, s60, 1
        s_mul_i32 s61, s61, 112
        s_and_b32 s62, s60, 1
        s_lshl_b32 s62, s62, 5
        s_add_u32 s61, s61, s62
        s_add_u32 s62, s61, 16
        s_and_b32 s63, s60, 3
        s_mul_i32 s63, s63, 14
        s_lshr_b32 s64, s60, 2
        s_add_u32 s63, s63, s64
        s_branch L_w2go
        L_w2late:
        s_sub_u32 s60, s60, 31
        s_mul_i32 s61, s60, 112
        s_add_u32 s61, s61, 64
        s_add_u32 s62, s61, 16
        s_sub_u32 s64, s60, 15
        s_mul_i32 s64, s64, 224
        s_add_u32 s64, s64, 96
        s_add_u32 s65, s64, 112
        s_min_u32 s65, s65, 1712
        s_cmp_lt_u32 s60, 15
        s_cselect_b32 s61, s61, s64
        s_cselect_b32 s62, s62, s65
        s_and_b32 s63, s60, 3
        s_lshr_b32 s64, s63, 1
        s_xor_b32 s63, s63, s64
        s_mul_i32 s63, s63, 14
        s_lshr_b32 s64, s60, 2
        s_add_u32 s63, s63, s64
        s_add_u32 s63, s63, 8
        L_w2go:
        v_mul_u32_u24 v2, 1280, v2
        v_add_u32 v2, v2, v3
        s_mul_i32 s64, s59, 640
        s_mul_i32 s61, s61, 1280
        s_mul_i32 s62, s62, 1280
        s_add_u32 s61, s61, s64
        s_add_u32 s62, s62, s64""")
    dm = {}
    for cb in range(5):
        pass
    for p in range(2):
        for rh in range(2):
            for cb in range(5):
                f.e(f"s_add_u32 m0, s58, {((p * 2 + rh) * 5 + cb) * 1024 - cb * 128}")
                dm[(p, rh, cb)] = f.vm(f"buffer_load_dwordx4 v2, {SRC}, s{61 + p} offen offset:{cb * 128} nt lds")
            f.e(f"s_addk_i32 s{61 + p}, 10240")
    f.e(f"""v_lshrrev_b32 v5, 1, v4
        v_mul_u32_u24 v5, 5120, v5
        v_and_b32 v4, 1, v4
        v_lshl_add_u32 v5, v4, 9, v5
        v_add_u32 v6, v6, v5
        s_mul_i32 s64, s59, 224
        s_add_u32 s63, s63, s64
        s_mul_i32 s63, s63, 5120
        s_add_u32 s63, s63, {W2P}
        v_add_u32 v10, 4096, v9""")
    stamp(f, 'pk_issued')
    f.wait_all(lg=False)
    stamp(f, 'pk_loaded')
    tk = []
    for dt in range(20):
        r = 32 + dt * 4
        f.lg(f"ds_read_b64_tr_b16 {vr(r, 2)}, v6 offset:{(dt >> 2) * 1024 + (dt & 3) * 32}")
        tk.append(f.lg(f"ds_read_b64_tr_b16 {vr(r + 2, 2)}, v6 offset:{10240 + (dt >> 2) * 1024 + (dt & 3) * 32}"))
        if dt >= 4:
            w2store(f, dt - 4, tk)
    for dt in range(16, 20): w2store(f, dt, tk)
    b.e(f"{done}:")
    b.vi = 1000; b.vd = 0; b.li = 0; b.ld = 0
    stamp(b, 'pk_stored')
    b.wait_all()
    b.e("s_barrier")
    arrive(b, FLP)
    stamp(b, 'pack_done')

def w2store(f, dt, tk):
    r = 32 + dt * 4
    f.wait(lg=tk[dt])
    d5 = dt % 5
    f.vm(f"buffer_store_dwordx4 {vr(r, 4)}, {'v10' if d5 == 4 else 'v9'}, {WS}, s63 offen offset:{0 if d5 == 4 else d5 * 1024} sc1")
    if d5 == 4: f.e(f"s_add_u32 s63, s63, {JSTR}")

def arrive(b, base):
    sk = lab("ar")
    b.e(f"""s_cmp_lg_u32 s{sW}, 0
        s_cbranch_scc1 {sk}
        s_lshl_b32 s3, s{sXCD}, 8
        s_add_u32 s3, s3, {base}
        v_mov_b32 v2, 0
        v_mov_b32 v3, 1
        s_mov_b64 exec, 1
        buffer_atomic_add v3, v2, {WS}, s3 offen sc1
        s_mov_b64 exec, -1
        {sk}:""")

def ld_ctr(base):
    def f(b):
        b.e(f"v_and_b32 v28, 7, v1\nv_lshlrev_b32 v28, 8, v28\ns_mov_b32 s55, {base}")
        return b.vm(f"buffer_load_dword v29, v28, {WS}, s55 offen sc1")
    return f

L2E, L2E_LO, LN2 = 0x3FB8AA3B, 0x32A57060, 0x3F317218
def cmul(b, o, x, w, t):
    b.e(f"v_pk_mul_f32 {vr(t,2)}, {vr(x,2)}, {vr(w,2)} op_sel_hi:[1,0]")
    b.e(f"v_pk_fma_f32 {vr(o,2)}, {vr(x,2)}, {vr(w,2)}, {vr(t,2)} op_sel:[1,1,0] op_sel_hi:[0,1,1] neg_lo:[0,1,0]")

def conv(b, xtok, pt):
    b.e("L_conv:")
    b.e(f"""s_mul_i32 s61, s{sW}, {RSTR}
        v_lshl_add_u32 v10, v1, 3, s61
        v_and_b32 v2, 31, v1
        v_lshrrev_b32 v3, 5, v1
        v_lshl_add_u32 v3, v3, 4, s61
        v_lshrrev_b32 v11, 3, v2
        v_lshlrev_b32 v11, 2, v11
        v_and_b32 v12, 3, v2
        v_add_u32 v11, v11, v12
        v_bfe_u32 v12, v2, 2, 1
        v_lshl_add_u32 v11, v12, 4, v11
        v_and_b32 v13, 1, v2
        v_lshl_add_u32 v12, v12, 1, v13
        v_add_u32 v12, 32, v12
        v_add_u32 v13, 36, v2
        s_movk_i32 s3, 528
        v_mad_u32_u24 v11, v11, s3, v3
        v_mad_u32_u24 v12, v12, s3, v3
        v_mad_u32_u24 v13, v13, s3, v3""")
    b.wait_all(vm=False)
    xlast = ln1_a(b, xtok, 96)
    ln1_r(b)
    if OPT.get('wpf', 0) == 1: w_prefetch(b)
    b.e(f"""s_lshr_b32 s3, s{sW}, 1
        s_cmp_eq_u32 s3, 0
        s_cselect_b32 s62, s62, s63
        s_and_b32 s3, s{sW}, 1
        s_lshl_b32 s3, s3, 4
        s_lshr_b32 s62, s62, s3
        s_lshl_b32 s62, s62, 16
        s_mov_b32 s63, 0x{L2E:x}
        v_mov_b32 v14, s62
        v_mul_f32 v15, s63, v14
        v_fma_f32 v16, v14, s63, -v15
        v_fmac_f32 v16, 0x{L2E_LO:x}, v14
        v_exp_f32 v15, v15
        v_mul_f32 v16, 0x{LN2:x}, v16
        v_fmac_f32 v15, v15, v16
        v_cvt_pk_bf16_f32 v15, v15, v15
        v_lshlrev_b32 v14, 16, v15
        s_lshl_b32 s66, s64, 16
        s_and_b32 s67, s64, 0xffff0000
        s_lshl_b32 s68, s65, 16
        s_and_b32 s69, s65, 0xffff0000""")
    AL, BE, CC, Z1, Z8, Z256, T, DB, X, X2, X4, X6, X8, X10, Y = range(0, 30, 2)
    R = lambda n, k: 32 + n * 32 + k
    b.wait(vm=pt[5])
    stamp(b, 'kg_par')
    for n in range(2):
        un = (lambda d, s: f"v_lshlrev_b32 v{d}, 16, v{s}") if n == 0 else (lambda d, s: f"v_and_b32 v{d}, 0xffff0000, v{s}")
        b.e("\n".join([un(R(n, AL), 4), un(R(n, BE), 5), un(R(n, DB), 6), un(R(n, DB) + 1, 7), un(R(n, CC), 8), un(R(n, CC) + 1, 9)]))
    for n in range(2):
        b.e(f"""v_mul_f32 v{R(n,AL)}, v14, v{R(n,AL)}
            v_mul_f32 v{R(n,BE)}, v14, v{R(n,BE)}
            v_mul_f32 v{R(n,DB)}, v14, v{R(n,DB)}
            v_mul_f32 v{R(n,DB)+1}, v14, v{R(n,DB)+1}
            v_mul_f32 v{R(n,AL)}, s63, v{R(n,AL)}
            v_mul_f32 v{R(n,BE)}, 0.15915494, v{R(n,BE)}""")
    for n in range(2): cmul(b, R(n, X), R(n, CC), R(n, DB), R(n, T))
    for (z, p) in ((Z1, None), (Z8, 0x41000000), (Z256, 0x43800000)):
        for n in range(2):
            e, ph = R(n, T), R(n, T) + 1
            if p is None: b.e(f"v_exp_f32 v{e}, v{R(n,AL)}\nv_fract_f32 v{ph}, v{R(n,BE)}")
            else: b.e(f"v_mul_f32 v{e}, 0x{p:x}, v{R(n,AL)}\nv_mul_f32 v{ph}, 0x{p:x}, v{R(n,BE)}\nv_exp_f32 v{e}, v{e}\nv_fract_f32 v{ph}, v{ph}")
        for n in range(2):
            b.e(f"v_cos_f32 v{R(n,z)}, v{R(n,T)+1}\nv_sin_f32 v{R(n,z)+1}, v{R(n,T)+1}")
        for n in range(2):
            b.e(f"v_pk_mul_f32 {vr(R(n,z),2)}, {vr(R(n,z),2)}, {vr(R(n,T),2)} op_sel_hi:[1,0]")
    pk = [0]
    def put(src, rows, neg=False):
        d = 16 + 2 * (pk[0] & 3); pk[0] += 1
        for n in range(2):
            b.e(f"v_cvt_pk_bf16_f32 v{d + n}, v{R(n,src)}, {'-' if neg else ''}v{R(n,src)+1}")
        for r in rows: b.lg(f"ds_write_b64 v10, {vr(d,2)} offset:{r * 528}")
    def mul(o, x, w):
        for n in range(2): b.e(f"v_pk_mul_f32 {vr(R(n,T),2)}, {vr(R(n,x),2)}, {vr(R(n,w),2)} op_sel_hi:[1,0]")
        for n in range(2): b.e(f"v_pk_fma_f32 {vr(R(n,o),2)}, {vr(R(n,x),2)}, {vr(R(n,w),2)}, {vr(R(n,T),2)} op_sel:[1,1,0] op_sel_hi:[0,1,1] neg_lo:[0,1,0]")
    stamp(b, 'kg_base')
    b.e("v_mov_b32 v24, 0x3f80\nv_mov_b32 v25, 0x3f80")
    b.lg(f"ds_write_b64 v10, v[24:25] offset:{36 * 528}")
    put(Z8, [37], True)
    cur = Z8
    for j in range(2, 32):
        mul(Y, cur, Z8); cur = Y; put(Y, [36 + j], True)
        if j == OPT.get('lnb_at', 12): ln1_b(b, xlast)
    put(X, [0])
    keep = {2: X2, 4: X4, 6: X6, 8: X8, 10: X10}
    cur = X
    for o in range(1, 11):
        d = keep.get(o, Y)
        mul(d, cur, Z1); cur = d; put(d, [o])
    for src, rows in ((X, [16, 17]), (X2, [18]), (X4, [19, 20, 21]), (X6, [22]), (X8, [23, 24, 25]), (X10, [26])):
        mul(src, src, Z256); put(src, rows)
    for r0 in (11, 27):
        for k, src in enumerate((X, X4, X8)):
            mul(src, src, Z256); put(src, [r0 + k])
    for r0 in (14, 30, 32, 34):
        for k, src in enumerate((X, X8)):
            mul(src, src, Z256); put(src, [r0 + k])
    b.wait_all(vm=False)
    stamp(b, 'kg_pow')
    tk = {}
    def rd(ks):
        r = 32 + (ks % 4) * 12
        b.lg(f"ds_read_b128 {vr(r,4)}, v11 offset:{32 * ks}")
        b.lg(f"ds_read_b128 {vr(r+4,4)}, v13 offset:{32 * ks}")
        tk[ks] = b.lg(f"ds_read_b128 {vr(r+8,4)}, v12 offset:{32 * ks}")
    fill = [l.strip() for l in f"""v_sub_u32 v2, 63, v1
        v_lshl_add_u32 v27, v2, 4, s61
        v_lshl_add_u32 v16, v1, 4, s61
        v_lshl_add_u32 v17, v1, 3, s61
        v_and_b32 v2, 15, v1
        v_lshrrev_b32 v3, 4, v1
        v_sub_u32 v4, 2, v2
        v_and_b32 v4, 3, v4
        v_add_u32 v5, v2, v4
        v_sub_u32 v5, 18, v5
        v_lshlrev_b32 v5, 1, v5
        v_mul_u32_u24 v4, 4160, v4
        v_add3_u32 v5, v5, v4, s61
        v_lshl_add_u32 v6, v3, 4, v5
        v_lshlrev_b32 v5, 5, v2
        v_lshl_add_u32 v5, v3, 4, v5
        s_add_u32 s3, s61, 16896
        v_add_u32 v7, s3, v5
        v_lshlrev_b32 v5, 4, v2
        v_lshl_add_u32 v5, v3, 2, v5
        v_add_u32 v8, s61, v5
        v_lshrrev_b32 v5, 2, v2
        v_mul_u32_u24 v5, {RSTR}, v5
        v_lshl_add_u32 v5, v3, 5, v5
        v_and_b32 v4, 3, v2
        v_lshl_add_u32 v5, v4, 3, v5
        s_lshl_b32 s3, s{sW}, 7
        v_add_u32 v9, s3, v5
        v_mov_b32 v20, 0
        v_mov_b32 v21, 0
        v_mov_b32 v22, 0
        v_mov_b32 v23, 0
        v_and_b32 v2, 1, v1
        v_cmp_eq_u32 s[70:71], 0, v2
        v_cmp_eq_u32 s[72:73], 0, v1""".split("\n")]
    for ks in range(3): rd(ks)
    for ks in range(16):
        r = 32 + (ks % 4) * 12
        b.wait(lg=tk[ks])
        b.e(f"v_mfma_f32_32x32x16_bf16 v[96:111], {vr(r,4)}, {vr(r+4,4)}, {'0' if ks == 0 else 'v[96:111]'}")
        if ks + 3 < 16: rd(ks + 3)
        b.e(f"v_mfma_f32_32x32x16_bf16 v[112:127], {vr(r+8,4)}, {vr(r+4,4)}, {'0' if ks == 0 else 'v[112:127]'}")
        for _ in range(3):
            if fill: b.e(fill.pop(0))
    for l in fill: b.e(l)
    stamp(b, 'kg_mfma')
    b.e("""v_cmp_eq_u32 vcc, 31, v1
        v_cndmask_b32 v24, 0, v96, s[72:73]
        v_cndmask_b32 v25, 0, v97, s[72:73]
        v_cndmask_b32 v26, 0, v98, s[72:73]
        v_cndmask_b32 v105, v105, v104, vcc
        v_cmp_eq_u32 vcc, 63, v1
        v_cndmask_b32 v14, v111, v110, s[70:71]
        v_cndmask_b32 v15, v113, v112, s[70:71]
        v_cndmask_b32 v106, v106, v104, vcc""")
    pats = [list(range(96, 107)),
            [107] * 3 + [108] * 3 + [109] * 5,
            [110] * 4 + [14] + [111] * 6,
            [112] * 4 + [15] + [113] * 6]
    for rnd, w in enumerate(pats):
        for c in range(4):
            d = 32 + ((rnd * 4 + c) % 8) * 4
            for k in range(4):
                b.e(f"v_cvt_pk_bf16_f32 v{d + k}, v{w[10 - c - 2 * k]}, v{w[9 - c - 2 * k]}")
            b.lg(f"ds_write_b128 v27, {vr(d,4)} offset:{c * 4160 + (3 - rnd) * 1024}")
    b.e("""v_cvt_pk_bf16_f32 v72, v26, v25
        v_cvt_pk_bf16_f32 v73, v24, 0
        v_mov_b32 v74, 0
        v_mov_b32 v75, 0
        v_cvt_pk_bf16_f32 v64, v25, v24
        v_mov_b32 v65, 0
        v_mov_b32 v66, 0
        v_mov_b32 v67, 0
        v_mov_b32 v68, v73
        v_mov_b32 v69, 0
        v_mov_b32 v70, 0
        v_mov_b32 v71, 0""")
    b.lg("ds_write_b64 v17, v[20:21] offset:16896")
    b.e("s_mov_b64 exec, 3")
    for c, d in enumerate((72, 64, 68, 20)):
        b.lg(f"ds_write_b128 v16, {vr(d,4)} offset:{c * 4160 + 4096}")
    b.e("s_mov_b64 exec, -1")
    b.e(f"""v_lshrrev_b32 v2, 4, v0
        v_mul_u32_u24 v2, 40960, v2
        v_and_b32 v3, 15, v0
        v_lshl_add_u32 v10, v3, 4, v2
        v_lshlrev_b32 v11, 3, v0
        v_add_u32 v12, 4096, v11
        v_lshlrev_b32 v13, 2, v0
        v_add_u32 v13, {16896 + 512}, v13
        v_add_u32 v14, {2 * RSTR}, v13
        s_lshl_b32 s74, s50, 8
        s_add_u32 s75, s74, {XT}
        s_add_u32 s74, s74, {HT}""")
    b.wait_all(vm=False)
    b.e("s_barrier")
    stamp(b, 'kgen_done')
    def ld_st(bb):
        for q in range(4):
            t = bb.vm(f"buffer_load_dwordx2 {vr(16 + 2 * q, 2)}, v{11 + (q >> 1)}, {WS}, 0 offen offset:{(q & 1) * 2048} sc1")
        return t
    poll(b, ld_st, "v_min3_u32 v2, v16, v17, v18\nv_min3_u32 v3, v19, v20, v21\nv_min3_u32 v2, v2, v22, v23\nv_min_u32 v2, v2, v3\nv_cmp_eq_u32 vcc, 0, v2")
    xt = []
    for q in range(4):
        xt.append(b.vm(f"buffer_load_dwordx4 {vr(64 + 4 * q, 4)}, v10, {WS}, s75 offen sc1"))
        b.e("s_add_u32 s75, s75, 655360")
    stamp(b, 'st1_seen')
    for k in range(8):
        b.e(f"v_and_b32 v{32 + 2 * k}, 0xffff0000, v{16 + k}\nv_lshlrev_b32 v{33 + 2 * k}, 16, v{16 + k}")
    for k in range(8): b.e(f"v_rcp_f32 v{32 + 2 * k}, v{32 + 2 * k}")
    for k in range(8): b.e(f"v_mul_f32 v{33 + 2 * k}, -v{33 + 2 * k}, v{32 + 2 * k}")
    XF, UF = 128, 160
    for q in range(4):
        b.wait(vm=xt[q])
        for k in range(4):
            b.e(f"v_lshlrev_b32 v{XF + 8 * q + 2 * k}, 16, v{64 + 4 * q + k}\nv_and_b32 v{XF + 8 * q + 2 * k + 1}, 0xffff0000, v{64 + 4 * q + k}")
        for k in range(4):
            rr = 32 + 2 * (2 * q + (k >> 1))
            b.e(f"v_pk_fma_f32 {vr(UF + 8 * q + 2 * k, 2)}, {vr(XF + 8 * q + 2 * k, 2)}, {vr(rr, 2)}, {vr(rr, 2)} op_sel:[0,0,1] op_sel_hi:[1,0,1]")
        for c in range(4):
            b.e(f"v_cvt_pk_bf16_f32 v{80 + 4 * q + c}, v{UF + 8 * q + c}, v{UF + 8 * q + 4 + c}")
        for c in range(4):
            b.lg(f"ds_write_b32 v{13 + (c >> 1)}, v{80 + 4 * q + c} offset:{(c & 1) * RSTR + q * 1024}")
    b.wait_all(vm=False)
    b.e("s_barrier")
    stamp(b, 'conv_start')
    ACC, VB = 32, 64
    def reads(it):
        d0 = 2 * it + 1; par = it & 1; L = []
        for k in range(8):
            L.append(f"ds_read_b64 {ar(par * 32 + 4 * k, 2)}, v6 offset:{4064 - 32 * (d0 + 16 * k)}")
            L.append(f"ds_read_b64 {ar(par * 32 + 4 * k + 2, 2)}, v6 offset:{4064 - 32 * (d0 + 16 * k) + 8}")
            L.append(f"ds_read_b128 {vr(VB + par * 32 + 4 * k, 4)}, v7 offset:{512 + 512 * k - 32 * d0}")
        return L
    for r in reads(0): b.lg(r)
    base_ops = []
    for q in range(4):
        for k in range(4):
            base_ops.append(f"v_pk_fma_f32 {vr(XF + 8 * q + 2 * k, 2)}, {vr(UF + 8 * q + 2 * k, 2)}, s[{66 + 2 * (k & 1)}:{67 + 2 * (k & 1)}], {vr(XF + 8 * q + 2 * k, 2)}")
    for o in base_ops: b.e(o)
    packtok = None
    for it in range(8):
        par = it & 1
        b.wait_all(vm=False)
        nxt = reads(it + 1) if it < 7 else []
        if it == 7: packtok = ld_ctr(FLP)(b)
        n = 0
        for i in range(8):
            for ct in range(i, 8):
                c = '0' if (it == 0 and i == 0) else vr(ACC + 4 * ct, 4)
                b.e(f"v_mfma_f32_16x16x32_bf16 {vr(ACC + 4 * ct, 4)}, {ar(par * 32 + 4 * i, 4)}, {vr(VB + par * 32 + 4 * (ct - i), 4)}, {c}")
                if n < len(nxt): b.lg(nxt[n])
                n += 1
    stamp(b, 'conv_end')
    for ct in range(8):
        b.e(f"v_cvt_pk_bf16_f32 v{64 + 2 * ct}, v{ACC + 4 * ct}, v{ACC + 4 * ct + 2}\nv_cvt_pk_bf16_f32 v{65 + 2 * ct}, v{ACC + 4 * ct + 1}, v{ACC + 4 * ct + 3}")
        b.lg(f"ds_write_b32 v8, v{64 + 2 * ct} offset:{256 * ct}")
        b.lg(f"ds_write_b32 v8, v{65 + 2 * ct} offset:{256 * ct + 2048}")
    b.wait_all(vm=False)
    b.e("s_barrier")
    yt = []
    for q in range(4):
        b.lg(f"ds_read_b64_tr_b16 {vr(80 + 4 * q, 2)}, v9 offset:{512 * q}")
        yt.append(b.lg(f"ds_read_b64_tr_b16 {vr(82 + 4 * q, 2)}, v9 offset:{512 * q + 2048}"))
    for q in range(4):
        b.wait(lg=yt[q])
        for k in range(4):
            b.e(f"v_lshlrev_b32 v{UF + 8 * q + 2 * k}, 16, v{80 + 4 * q + k}\nv_and_b32 v{UF + 8 * q + 2 * k + 1}, 0xffff0000, v{80 + 4 * q + k}")
        for k in range(4):
            b.e(f"v_pk_add_f32 {vr(UF + 8 * q + 2 * k, 2)}, {vr(UF + 8 * q + 2 * k, 2)}, {vr(XF + 8 * q + 2 * k, 2)}")
        for k in range(4):
            b.e(f"v_cvt_pk_bf16_f32 v{96 + 4 * q + k}, v{UF + 8 * q + 2 * k}, v{UF + 8 * q + 2 * k + 1}")
        hs = b.vm(f"buffer_store_dwordx4 {vr(96 + 4 * q, 4)}, v10, {WS}, s74 offen sc1")
        b.e("s_add_u32 s74, s74, 655360")
    stamp(b, 'h_stored')
    return packtok, hs

from ffn import ffn_map, preload, ffn

def build():
    _lab[0] = 0
    b = B()
    xtok, b3, pt = entry(b)
    b2 = b.fork()
    xlast = ln1_a(b2, xtok, 32)
    ln1_r(b2)
    ln1_b(b2, xlast)
    pack(b2)
    if OPT['stop'] == 'pack': (stamp_dump(b2), b2.e("s_endpgm"))
    ffn_map(b2, helper=True)
    poll(b2, ld_ctr(FLP), "v_cmp_gt_u32 vcc, 12, v29")
    preload(b2, 0, 36)
    b2.e("s_branch L_g1")
    packtok, hs = conv(b3, xtok, pt)
    if OPT['stop'] in ('pack', 'conv'): (stamp_dump(b3), b3.e("s_endpgm"))
    ffn_map(b3, helper=False)
    poll(b3, ld_ctr(FLP), "v_cmp_gt_u32 vcc, 12, v29", packtok)
    b3.e("s_barrier")
    preload(b3, 0, 12)
    b3.wait(vm=hs)
    b3.e("s_barrier")
    arrive(b3, FLH)
    stamp(b3, 'h_arrive')
    preload(b3, 12, 36)
    b3.e("L_g1:")
    b4 = B(); b4.L = b.L; b4.vi = 100
    ffn(b4)
    b.e("L_exit:\ns_endpgm\nL_code_end:")
    lines, nn = hazard_pass(b.L, verbose=OPT.get('verbose', False))
    if OPT.get('align', 1):
        lines = align_pass([KN + ':'] + lines, nop_cost=OPT.get('nopc', 4.0))[0][1:]
    hdr = open(os.path.join(os.path.dirname(os.path.abspath(__file__)), "header.txt")).read()
    out = hdr + (f"; stamps: {','.join(OPT['stamps'])}\n" if OPT['stamps'] else "") + "; @launch grid=(256,1,1) block=(256,1,1) lds=163840\n"
    out += f'.amdgcn_target "amdgcn-amd-amdhsa--gfx950"\n.text\n.globl {KN}\n.p2align 8\n.type {KN},@function\n{KN}:\n'
    out += "\n".join(("" if l.endswith(":") else "    ") + l for l in lines)
    out += f"""
.section .rodata,"a"
.p2align 6
.amdhsa_kernel {KN}
  .amdhsa_next_free_vgpr 512
  .amdhsa_next_free_sgpr 102
  .amdhsa_accum_offset 256
  .amdhsa_group_segment_fixed_size 0
  .amdhsa_kernarg_size 128
  .amdhsa_user_sgpr_count 2
  .amdhsa_user_sgpr_kernarg_segment_ptr 1
  .amdhsa_system_sgpr_workgroup_id_x 1
.end_amdhsa_kernel
"""
    return out, nn, len(lines)

if __name__ == "__main__":
    import ffn as _f
    for a in sys.argv[2:]:
        k, v = a.split("=")
        OPT[k] = eval(v)
    out, nn, nl = build()
    open(sys.argv[1], "w").write(out)
    print(f"wrote {sys.argv[1]}: {nl} lines, {nn} hazard nops")
```

```python
import sys, os
from asmlib import B, hazard_pass, align_pass
KN = "sequential_preLN__ssm_conv_s4__glu_gated_reglu__prompt_kernel"
OPT = dict(stamps=False, stop=None, spin=2000000)

ST1, ST2 = 0, 8192
FLP, FLH, FLE, FLL = 16384, 18432, 20480, 24576
ZERO_BYTES = 28672
CS = 0x8000
STAMP = 0xC000
XT, HT, W1P, W2P, HP = 0x10000, 0x300000, 0x600000, 0xB00000, 0xE00000
WS_STAMP = 0x1600000
WS_SIZE = 0x1700000
JSTR = 286720
P_X, P_ARE, P_AIM, P_BRE, P_BIM, P_CRE, P_CIM, P_LDT, P_DSK, P_BX, P_WG, P_WU, P_WD, P_OUT, P_DBG, P_WS = [16 + 2 * k for k in range(16)]
sW, sXCD, sI, sJ, sRHO, sC = 48, 49, 51, 52, 53, 54
SRC = "s[4:7]"; WS = "s[8:11]"; OUT = "s[12:15]"
def sp(r): return f"s[{r}:{r+1}]"
def vr(r, n): return f"v[{r}:{r+n-1}]" if n > 1 else f"v{r}"
def ar(r, n): return f"a[{r}:{r+n-1}]" if n > 1 else f"a{r}"
RSTR = 36160
_lab = [0]
def lab(p):
    _lab[0] += 1; return f"L_{p}{_lab[0]}"

def stamp(b, name):
    st = OPT['stamps']
    if not st or name not in st: return
    r = 78 + 2 * st.index(name)
    b.sm(f"s_memrealtime s[{r}:{r+1}]")
def stamp_init(b):
    if OPT['stamps']:
        for r in range(78, 102, 2): b.e(f"s_mov_b64 s[{r}:{r+1}], 0")
def stamp_dump(b):
    if not OPT['stamps']: return
    if OPT.get('dbgdump'):
        sk = lab("dd")
        b.e(f"s_waitcnt lgkmcnt(0)\ns_cmp_lg_u32 s{sW}, 0\ns_cbranch_scc1 {sk}\ns_mov_b64 exec, 1\nv_mov_b32 v30, 0\ns_not_b32 s78, s78")
        for k in range(12):
            b.e(f"v_mov_b32 v31, s{78 + 2 * k}\nglobal_atomic_umax v30, v31, {sp(P_DBG)} offset:{4 * k + 4} sc1")
        b.e(f"{sk}:")
        return
    b.e(f"s_waitcnt lgkmcnt(0)\ns_lshl_b32 s3, s2, 2\ns_add_u32 s3, s3, s{sW}\ns_lshl_b32 s3, s3, 7\ns_add_u32 s3, s3, {WS_STAMP}\nv_mov_b32 v30, 0")
    for k in range(12):
        b.e(f"v_mov_b32 v31, s{78 + 2 * k}\nbuffer_store_dword v31, v30, {WS}, s3 offen offset:{4 * k}")

def poll(b, load, cond, tok=None):
    if tok is None: tok = load(b)
    b.wait(vm=tok)
    lo, ok = lab("poll"), lab("ok")
    b.e(cond)
    b.e(f"s_cbranch_vccz {ok}\ns_mov_b32 s3, 0\n{lo}:")
    f = b.fork(); load(f); f.wait_all(lg=False)
    b.e(cond)
    b.e(f"s_add_u32 s3, s3, 1\ns_cmp_gt_u32 s3, {OPT['spin']}\ns_cbranch_scc1 {ok}\ns_cbranch_vccnz {lo}\n{ok}:")

def ld_ready(b):
    b.e("v_mov_b32 v28, 0")
    return b.vm(f"global_load_dword v29, v28, {sp(P_DBG)} sc1")
COND_READY = "v_cmp_eq_u32 vcc, 0, v29"

def code_prefetch(b):
    b.e(f"s_getpc_b64 s[56:57]\nL_pc{_lab[0]}:\ns_sub_u32 s56, s56, L_pc{_lab[0]}-{KN}\ns_subb_u32 s57, s57, 0")
    _lab[0] += 1
    b.e(f"s_mov_b32 s3, L_code_end-{KN}-4\nv_lshlrev_b32 v26, 7, v0\nv_add_u32 v27, 0x8000, v26\nv_min_u32 v26, s3, v26\nv_min_u32 v27, s3, v27")
    b.vm("global_load_dword a254, v26, s[56:57]")
    b.vm("global_load_dword a255, v27, s[56:57]")

def mk_srd(b, r, ptr, size):
    b.e(f"s_mov_b32 s{r}, s{ptr}\ns_mov_b32 s{r+1}, s{ptr+1}\ns_mov_b32 s{r+2}, {size}\ns_mov_b32 s{r+3}, 0x20000")

LNB = 144640
LNS = LNB + 4 * 2624
def x_dma(b):
    t = None
    for k in range(3):
        if k == 2: b.e("s_mov_b32 exec_hi, 0")
        t = b.vm(f"buffer_load_dwordx4 v2, {SRC}, s57 offen offset:{k * 1024} nt lds")
    b.e("s_mov_b32 exec_hi, -1")
    return t
def entry(b):
    b.e(f"s_load_dwordx16 s[16:31], s[0:1], 0\ns_load_dwordx16 s[32:47], s[0:1], 64")
    b.e("s_cmp_ge_u32 s2, 256\ns_cbranch_scc1 L_exit")
    b.e(f"""v_lshrrev_b32 v2, 6, v0
        v_and_b32 v1, 63, v0
        v_readfirstlane_b32 s{sW}, v2
        s_and_b32 s{sXCD}, s2, 7
        v_lshlrev_b32 v2, 4, v1
        s_mul_i32 s57, s2, 10240
        s_mul_i32 s58, s{sW}, 2560
        s_add_u32 s57, s57, s58
        s_mul_i32 s58, s{sW}, 2624
        s_add_u32 s58, s58, {LNB}
        s_mov_b32 m0, s58
        s_mov_b32 s6, 2621440
        s_mov_b32 s7, 0x20000
        s_mov_b32 s10, {WS_SIZE}
        s_mov_b32 s11, 0x20000""")
    stamp_init(b)
    b.e(f"""s_cmp_lg_u32 s2, 0
        s_waitcnt lgkmcnt(0)
        s_mov_b32 s4, s{P_X}
        s_mov_b32 s5, s{P_X + 1}
        s_mov_b32 s8, s{P_WS}
        s_mov_b32 s9, s{P_WS + 1}
        s_cbranch_scc1 L_noinit
        v_mov_b32 v4, 0
        v_mov_b32 v5, 0
        v_mov_b32 v6, 0
        v_mov_b32 v7, 0
        v_lshlrev_b32 v3, 4, v0
        s_mov_b32 s56, 0""")
    for k in range(ZERO_BYTES // 4096):
        b.e(f"buffer_store_dwordx4 v[4:7], v3, {WS}, s56 offen sc1\ns_addk_i32 s56, 4096")
    b.e("L_noinit:")
    t = x_dma(b)
    stamp(b, 'start')
    b.e("s_cmp_lt_u32 s2, 96\ns_cbranch_scc1 L_help")
    c = b.fork()
    c.e(f"""s_sub_u32 s50, s2, 96
        s_lshl_b32 s59, s50, 3
        s_lshl_b32 s60, s50, 10
        s_lshl_b32 s61, s{sW}, 8
        s_add_u32 s60, s60, s61
        v_lshl_add_u32 v2, v1, 2, s60""")
    pt = []
    for k, p in enumerate((P_ARE, P_AIM, P_BRE, P_BIM, P_CRE, P_CIM)):
        pt.append(c.vm(f"global_load_dword v{4 + k}, v2, {sp(p)} nt"))
    c.sm(f"s_load_dwordx2 s[62:63], {sp(P_LDT)}, s59\ns_load_dwordx2 s[64:65], {sp(P_DSK)}, s59")
    if OPT.get('wpf', 0) == 2: w_prefetch(c)
    code_prefetch(c)
    c.e("s_branch L_conv")
    b.e("""L_help:
        s_cmp_lg_u32 s2, 0
        s_cbranch_scc1 L_noinit2
        s_waitcnt vmcnt(3)
        s_barrier
        v_mov_b32 v4, 0
        v_mov_b32 v5, 1
        s_mov_b64 exec, 1""")
    b.e(f"global_store_dword v4, v5, {sp(P_DBG)} sc1\ns_mov_b64 exec, -1\nL_noinit2:")
    stamp(b, 'init_done')
    return t, c, pt

def ln1_a(b, xtok, R):
    b.e(f"""v_and_b32 v2, 3, v1
        v_lshrrev_b32 v3, 2, v1
        v_mul_u32_u24 v16, 2624, v2
        v_lshl_add_u32 v16, v3, 3, v16
        s_lshl_b32 s3, s{sW}, 7
        s_add_u32 s3, s3, {LNB}
        v_add_u32 v16, s3, v16
        v_lshlrev_b32 v17, 8, v3
        v_lshl_add_u32 v17, v2, 4, v17
        s_lshl_b32 s3, s{sW}, 12
        v_add_u32 v17, s3, v17
        v_lshrrev_b32 v2, 5, v1
        v_and_b32 v3, 31, v1
        v_mul_u32_u24 v18, 1280, v2
        v_lshl_add_u32 v18, v3, 3, v18
        v_add_u32 v18, s58, v18
        s_lshl_b32 s3, s{sW}, 3
        s_add_u32 s3, s3, {LNS}
        v_lshl_add_u32 v19, v2, 2, s3
        s_lshr_b32 s57, s2, 2
        s_mul_i32 s57, s57, 40960
        s_and_b32 s3, s2, 3
        s_lshl_b32 s3, s3, 6
        s_add_u32 s57, s57, s3
        s_add_u32 s57, s57, {XT}
        s_mov_b32 s56, 0x3f803f80""")
    b.wait(vm=xtok)
    st = [b.lg(f"ds_read_b64 {vr(R + 12 + 2 * k, 2)}, v18 offset:{256 * k}") for k in range(5)]
    b.e("s_barrier")
    stamp(b, 'ln_x')
    tk = []
    for k in range(3):
        b.lg(f"ds_read_b64 {vr(R + 4 * k, 2)}, v16 offset:{512 * k}")
        tk.append(b.lg(f"ds_read_b64 {vr(R + 4 * k + 2, 2)}, v16 offset:{512 * k + 1280}"))
    b.e("v_mov_b32 v20, 0\nv_mov_b32 v21, 0\nv_mov_b32 v22, 0\nv_mov_b32 v23, 0")
    for k in range(2):
        b.wait(lg=tk[k])
        last = b.vm(f"buffer_store_dwordx4 {vr(R + 4 * k, 4)}, v17, {WS}, s57 offen sc1")
        b.e("s_addk_i32 s57, 16384")
    b.wait(lg=tk[2])
    sk = lab("l3")
    b.e(f"s_cmp_ge_u32 s{sW}, 2\ns_cbranch_scc1 {sk}\nbuffer_store_dwordx4 {vr(R + 8, 4)}, v17, {WS}, s57 offen sc1\n{sk}:")
    for k in range(10):
        r = R + 12 + k
        b.e(f"v_dot2_f32_bf16 v{20 + (k & 1)}, v{r}, s56, v{20 + (k & 1)}")
        b.e(f"v_dot2_f32_bf16 v{22 + (k & 1)}, v{r}, v{r}, v{22 + (k & 1)}")
    b.e("v_add_f32 v20, v20, v21\nv_add_f32 v22, v22, v23")
    for m in ("quad_perm:[1,0,3,2] row_mask:0xf", "quad_perm:[2,3,0,1] row_mask:0xf", "row_half_mirror row_mask:0xf", "row_mirror row_mask:0xf", "row_bcast:15 row_mask:0xa"):
        b.e(f"v_add_f32_dpp v20, v20, v20 {m} bank_mask:0xf\nv_add_f32_dpp v22, v22, v22 {m} bank_mask:0xf")
    stats_finish(b, 20, 22, 21)
    b.e("s_mov_b32 exec_lo, 0x10000\ns_mov_b32 exec_hi, 0x10000")
    b.lg("ds_write_b32 v19, v21")
    b.e("s_mov_b64 exec, -1")
    return last

def ln1_r(b):
    sk = lab("lr")
    b.e(f"s_cmp_lg_u32 s{sW}, 0\ns_cbranch_scc1 {sk}")
    ld_ready(b.fork())
    b.e(f"{sk}:")
def ln1_b(b, last):
    sk0 = lab("l0")
    b.wait(vm=last, lg=b.li - 1)
    b.e(f"s_cmp_lg_u32 s{sW}, 0\ns_cbranch_scc1 {sk0}")
    f = b.fork()
    poll(f, ld_ready, COND_READY, last)
    b.e(f"{sk0}:\ns_barrier")
    sk = lab("ln")
    b.e(f"s_cmp_lg_u32 s{sW}, 0\ns_cbranch_scc1 {sk}")
    f = b.fork()
    f.e("v_lshlrev_b32 v2, 2, v1\ns_mov_b64 exec, 0xff")
    t = f.lg(f"v_add_u32 v3, {LNS}, v2\nds_read_b32 v3, v3")
    f.e(f"s_lshl_b32 s56, s2, 5")
    f.wait(lg=t)
    f.vm(f"buffer_store_dword v3, v2, {WS}, s56 offen sc1")
    f.e("s_mov_b64 exec, -1")
    b.e(f"{sk}:")
    stamp(b, 'ln_done')

def w_prefetch(b):
    b.e(f"""s_lshl_b32 s3, s50, 2
        s_add_u32 s3, s3, s{sW}
        s_mul_i32 s3, s3, {27 * 128}
        v_min_u32 v2, 26, v1
        v_lshl_add_u32 v2, v2, 7, s3""")
    for k, p in enumerate((P_WG, P_WU, P_WD)):
        b.vm(f"global_load_dword a{251 + k}, v2, {sp(p)}")

def stats_finish(b, vs, vq, vo):
    b.e(f"""s_mov_b32 s3, 0x3acccccd
        v_mul_f32 v{vs}, s3, v{vs}
        v_mul_f32 v{vq}, s3, v{vq}
        v_fma_f32 v{vq}, -v{vs}, v{vs}, v{vq}
        v_max_f32 v{vq}, 0, v{vq}
        v_cvt_pk_bf16_f32 v{vq}, v{vq}, v{vq}
        v_lshlrev_b32 v{vq}, 16, v{vq}
        v_add_f32 v{vq}, 0x3727c5ac, v{vq}
        v_cvt_pk_bf16_f32 v{vq}, v{vq}, v{vq}
        v_lshlrev_b32 v{vq}, 16, v{vq}
        v_sqrt_f32 v{vq}, v{vq}
        v_cvt_pk_bf16_f32 v{vo}, v{vs}, v{vq}""")

PKB = 0
def pack(b):
    done = "L_packdone"
    b.e(f"""s_sub_u32 s56, 95, s2
        s_cmp_ge_u32 s56, 81
        s_cbranch_scc1 {done}
        s_mul_i32 s58, s{sW}, 20480
        s_add_u32 s58, s58, {PKB}
        v_lshrrev_b32 v2, 3, v1
        v_and_b32 v3, 7, v1
        v_lshlrev_b32 v3, 4, v3
        v_lshlrev_b32 v9, 4, v1
        v_lshrrev_b32 v4, 4, v1
        v_bfe_u32 v5, v1, 2, 2
        v_and_b32 v6, 3, v1
        v_lshlrev_b32 v6, 3, v6
        v_lshl_add_u32 v6, v5, 7, v6
        v_add_u32 v6, s58, v6
        s_cmp_ge_u32 s56, 54
        s_cbranch_scc1 L_packw2""")
    f = b.fork()
    f.e(f"""s_and_b32 s59, s56, 1
        s_lshr_b32 s60, s56, 1
        s_cmp_eq_u32 s59, 0
        s_cselect_b32 s4, s{P_WG}, s{P_WU}
        s_cselect_b32 s5, s{P_WG+1}, s{P_WU+1}
        s_mov_b32 s6, 2211840
        s_mov_b32 s7, 0x20000
        v_mul_u32_u24 v2, 3456, v2
        v_add_u32 v2, v2, v3
        s_mul_i32 s61, s{sW}, {160 * 3456}
        s_lshl_b32 s62, s60, 7
        s_add_u32 s61, s61, s62
        s_mov_b32 m0, s58""")
    dm = []
    for n in range(20):
        dm.append(f.vm(f"buffer_load_dwordx4 v2, {SRC}, s61 offen nt lds"))
        f.e("s_addk_i32 s61, 27648\ns_add_u32 m0, m0, 1024")
    f.e("v_lshl_add_u32 v6, v4, 10, v6")
    for t in range(4):
        T, J, TA, BS, STR = 62, 63, 64, 66 + 2 * t, 67 + 2 * t
        f.e(f"""s_lshl_b32 s{T}, s60, 2
            s_add_u32 s{T}, s{T}, {t}
            s_mul_i32 s{J}, s{T}, 9363
            s_lshr_b32 s{J}, s{J}, 16
            s_mul_i32 s{TA}, s{J}, 7
            s_sub_u32 s{TA}, s{T}, s{TA}
            s_cmp_eq_u32 s{J}, 15
            s_cselect_b32 s65, 2, 4
            s_cselect_b32 s74, 1, 3
            s_mul_i32 s75, s65, 40
            s_cmp_lt_u32 s{TA}, s65
            s_cselect_b32 s{STR}, s65, s74
            s_cselect_b32 s75, 0, s75
            s_cselect_b32 s65, 0, s65
            s_sub_u32 s{TA}, s{TA}, s65
            s_lshl_b32 s{TA}, s{TA}, 1
            s_add_u32 s{TA}, s{TA}, s59
            s_add_u32 s{TA}, s{TA}, s75
            s_lshl_b32 s{STR}, s{STR}, 11
            s_lshl_b32 s{TA}, s{TA}, 10
            s_mul_i32 s{J}, s{J}, {JSTR}
            s_add_u32 s{BS}, s{J}, s{TA}
            s_mul_i32 s{TA}, s{STR}, s{sW}
            s_mul_i32 s{TA}, s{TA}, 5
            s_add_u32 s{BS}, s{BS}, s{TA}
            s_add_u32 s{BS}, s{BS}, {W1P}""")
    f.e("s_mov_b32 s3, 0x3f803f80\nv_mov_b32 v12, s3\nv_mov_b32 v13, s3\nv_mov_b32 v14, s3\nv_mov_b32 v15, s3")
    stamp(f, 'pk_issued')
    for k in range(5):
        f.wait(vm=dm[4 * k + 3])
        if k == 4: stamp(f, 'pk_loaded')
        tk = []
        for t in range(4):
            r = 32 + (k * 4 + t) * 4
            f.lg(f"ds_read_b64_tr_b16 {vr(r, 2)}, v6 offset:{k * 4096 + t * 32}")
            tk.append(f.lg(f"ds_read_b64_tr_b16 {vr(r + 2, 2)}, v6 offset:{k * 4096 + 512 + t * 32}"))
        for t in range(4):
            r = 32 + (k * 4 + t) * 4
            f.wait(lg=tk[t])
            f.vm(f"buffer_store_dwordx4 {vr(r, 4)}, v9, {WS}, s{66 + 2 * t} offen sc1")
            f.e(f"s_add_u32 s{66 + 2 * t}, s{66 + 2 * t}, s{67 + 2 * t}")
            f.e(f"v_mfma_f32_16x16x32_bf16 {vr(112 + 4 * t, 4)}, {vr(r, 4)}, v[12:15], {'0' if k == 0 else vr(112 + 4 * t, 4)}")
    f.e(f"""s_lshl_b32 s3, s{sW}, 8
        s_add_u32 s3, s3, 0x10000
        v_lshl_add_u32 v2, v4, 4, s3
        v_and_b32 v3, 15, v1
        v_cmp_eq_u32 vcc, 0, v3
        s_and_saveexec_b64 s[62:63], vcc""")
    for t in range(4):
        f.lg(f"ds_write_b128 v2, {vr(112 + 4 * t, 4)} offset:{81920 + t * 64 - 65536}")
    f.e("s_mov_b64 exec, s[62:63]")
    f.wait_all(vm=False)
    f.e("s_barrier\nv_lshlrev_b32 v2, 2, v1\nv_add_u32 v3, 0x10000, v2")
    for k in range(4): f.lg(f"ds_read_b32 v{16 + k}, v3 offset:{81920 + k * 256 - 65536}")
    f.e(f"s_mul_i32 s61, s59, 7168\ns_lshl_b32 s62, s60, 8\ns_add_u32 s61, s61, s62\ns_add_u32 s61, s61, {CS}")
    f.wait_all(vm=False)
    f.e("v_add_f32 v16, v16, v17\nv_add_f32 v18, v18, v19\nv_add_f32 v16, v16, v18")
    f.vm(f"buffer_store_dword v16, v2, {WS}, s61 offen sc1")
    f.e(f"s_branch {done}")
    b.e("L_packw2:")
    f = b.fork()
    mk_srd(f, 4, P_WD, 2211840)
    f.e(f"""s_sub_u32 s56, s56, 54
        s_lshl_b32 s56, s56, 2
        s_add_u32 s56, s56, s{sW}
        s_and_b32 s59, s56, 1
        s_lshr_b32 s60, s56, 1
        s_cmp_ge_u32 s60, 31
        s_cbranch_scc1 L_w2late
        s_lshr_b32 s61, s60, 1
        s_mul_i32 s61, s61, 112
        s_and_b32 s62, s60, 1
        s_lshl_b32 s62, s62, 5
        s_add_u32 s61, s61, s62
        s_add_u32 s62, s61, 16
        s_and_b32 s63, s60, 3
        s_mul_i32 s63, s63, 14
        s_lshr_b32 s64, s60, 2
        s_add_u32 s63, s63, s64
        s_branch L_w2go
        L_w2late:
        s_sub_u32 s60, s60, 31
        s_mul_i32 s61, s60, 112
        s_add_u32 s61, s61, 64
        s_add_u32 s62, s61, 16
        s_sub_u32 s64, s60, 15
        s_mul_i32 s64, s64, 224
        s_add_u32 s64, s64, 96
        s_add_u32 s65, s64, 112
        s_min_u32 s65, s65, 1712
        s_cmp_lt_u32 s60, 15
        s_cselect_b32 s61, s61, s64
        s_cselect_b32 s62, s62, s65
        s_and_b32 s63, s60, 3
        s_lshr_b32 s64, s63, 1
        s_xor_b32 s63, s63, s64
        s_mul_i32 s63, s63, 14
        s_lshr_b32 s64, s60, 2
        s_add_u32 s63, s63, s64
        s_add_u32 s63, s63, 8
        L_w2go:
        v_mul_u32_u24 v2, 1280, v2
        v_add_u32 v2, v2, v3
        s_mul_i32 s64, s59, 640
        s_mul_i32 s61, s61, 1280
        s_mul_i32 s62, s62, 1280
        s_add_u32 s61, s61, s64
        s_add_u32 s62, s62, s64""")
    dm = {}
    for cb in range(5):
        pass
    for p in range(2):
        for rh in range(2):
            for cb in range(5):
                f.e(f"s_add_u32 m0, s58, {((p * 2 + rh) * 5 + cb) * 1024 - cb * 128}")
                dm[(p, rh, cb)] = f.vm(f"buffer_load_dwordx4 v2, {SRC}, s{61 + p} offen offset:{cb * 128} nt lds")
            f.e(f"s_addk_i32 s{61 + p}, 10240")
    f.e(f"""v_lshrrev_b32 v5, 1, v4
        v_mul_u32_u24 v5, 5120, v5
        v_and_b32 v4, 1, v4
        v_lshl_add_u32 v5, v4, 9, v5
        v_add_u32 v6, v6, v5
        s_mul_i32 s64, s59, 224
        s_add_u32 s63, s63, s64
        s_mul_i32 s63, s63, 5120
        s_add_u32 s63, s63, {W2P}
        v_add_u32 v10, 4096, v9""")
    stamp(f, 'pk_issued')
    f.wait_all(lg=False)
    stamp(f, 'pk_loaded')
    tk = []
    for dt in range(20):
        r = 32 + dt * 4
        f.lg(f"ds_read_b64_tr_b16 {vr(r, 2)}, v6 offset:{(dt >> 2) * 1024 + (dt & 3) * 32}")
        tk.append(f.lg(f"ds_read_b64_tr_b16 {vr(r + 2, 2)}, v6 offset:{10240 + (dt >> 2) * 1024 + (dt & 3) * 32}"))
        if dt >= 4:
            w2store(f, dt - 4, tk)
    for dt in range(16, 20): w2store(f, dt, tk)
    b.e(f"{done}:")
    b.vi = 1000; b.vd = 0; b.li = 0; b.ld = 0
    stamp(b, 'pk_stored')
    b.wait_all()
    b.e("s_barrier")
    arrive(b, FLP)
    stamp(b, 'pack_done')

def w2store(f, dt, tk):
    r = 32 + dt * 4
    f.wait(lg=tk[dt])
    d5 = dt % 5
    f.vm(f"buffer_store_dwordx4 {vr(r, 4)}, {'v10' if d5 == 4 else 'v9'}, {WS}, s63 offen offset:{0 if d5 == 4 else d5 * 1024} sc1")
    if d5 == 4: f.e(f"s_add_u32 s63, s63, {JSTR}")

def arrive(b, base):
    sk = lab("ar")
    b.e(f"""s_cmp_lg_u32 s{sW}, 0
        s_cbranch_scc1 {sk}
        s_lshl_b32 s3, s{sXCD}, 8
        s_add_u32 s3, s3, {base}
        v_mov_b32 v2, 0
        v_mov_b32 v3, 1
        s_mov_b64 exec, 1
        buffer_atomic_add v3, v2, {WS}, s3 offen sc1
        s_mov_b64 exec, -1
        {sk}:""")

def ld_ctr(base):
    def f(b):
        b.e(f"v_and_b32 v28, 7, v1\nv_lshlrev_b32 v28, 8, v28\ns_mov_b32 s55, {base}")
        return b.vm(f"buffer_load_dword v29, v28, {WS}, s55 offen sc1")
    return f

L2E, L2E_LO, LN2 = 0x3FB8AA3B, 0x32A57060, 0x3F317218
def cmul(b, o, x, w, t):
    b.e(f"v_pk_mul_f32 {vr(t,2)}, {vr(x,2)}, {vr(w,2)} op_sel_hi:[1,0]")
    b.e(f"v_pk_fma_f32 {vr(o,2)}, {vr(x,2)}, {vr(w,2)}, {vr(t,2)} op_sel:[1,1,0] op_sel_hi:[0,1,1] neg_lo:[0,1,0]")

def conv(b, xtok, pt):
    b.e("L_conv:")
    b.e(f"""s_mul_i32 s61, s{sW}, {RSTR}
        v_lshl_add_u32 v10, v1, 3, s61
        v_and_b32 v2, 31, v1
        v_lshrrev_b32 v3, 5, v1
        v_lshl_add_u32 v3, v3, 4, s61
        v_lshrrev_b32 v11, 3, v2
        v_lshlrev_b32 v11, 2, v11
        v_and_b32 v12, 3, v2
        v_add_u32 v11, v11, v12
        v_bfe_u32 v12, v2, 2, 1
        v_lshl_add_u32 v11, v12, 4, v11
        v_and_b32 v13, 1, v2
        v_lshl_add_u32 v12, v12, 1, v13
        v_add_u32 v12, 32, v12
        v_add_u32 v13, 36, v2
        s_movk_i32 s3, 528
        v_mad_u32_u24 v11, v11, s3, v3
        v_mad_u32_u24 v12, v12, s3, v3
        v_mad_u32_u24 v13, v13, s3, v3""")
    b.wait_all(vm=False)
    xlast = ln1_a(b, xtok, 96)
    ln1_r(b)
    if OPT.get('wpf', 0) == 1: w_prefetch(b)
    b.e(f"""s_lshr_b32 s3, s{sW}, 1
        s_cmp_eq_u32 s3, 0
        s_cselect_b32 s62, s62, s63
        s_and_b32 s3, s{sW}, 1
        s_lshl_b32 s3, s3, 4
        s_lshr_b32 s62, s62, s3
        s_lshl_b32 s62, s62, 16
        s_mov_b32 s63, 0x{L2E:x}
        v_mov_b32 v14, s62
        v_mul_f32 v15, s63, v14
        v_fma_f32 v16, v14, s63, -v15
        v_fmac_f32 v16, 0x{L2E_LO:x}, v14
        v_exp_f32 v15, v15
        v_mul_f32 v16, 0x{LN2:x}, v16
        v_fmac_f32 v15, v15, v16
        v_cvt_pk_bf16_f32 v15, v15, v15
        v_lshlrev_b32 v14, 16, v15
        s_lshl_b32 s66, s64, 16
        s_and_b32 s67, s64, 0xffff0000
        s_lshl_b32 s68, s65, 16
        s_and_b32 s69, s65, 0xffff0000""")
    AL, BE, CC, Z1, Z8, Z256, T, DB, X, X2, X4, X6, X8, X10, Y = range(0, 30, 2)
    R = lambda n, k: 32 + n * 32 + k
    b.wait(vm=pt[5])
    stamp(b, 'kg_par')
    for n in range(2):
        un = (lambda d, s: f"v_lshlrev_b32 v{d}, 16, v{s}") if n == 0 else (lambda d, s: f"v_and_b32 v{d}, 0xffff0000, v{s}")
        b.e("\n".join([un(R(n, AL), 4), un(R(n, BE), 5), un(R(n, DB), 6), un(R(n, DB) + 1, 7), un(R(n, CC), 8), un(R(n, CC) + 1, 9)]))
    for n in range(2):
        b.e(f"""v_mul_f32 v{R(n,AL)}, v14, v{R(n,AL)}
            v_mul_f32 v{R(n,BE)}, v14, v{R(n,BE)}
            v_mul_f32 v{R(n,DB)}, v14, v{R(n,DB)}
            v_mul_f32 v{R(n,DB)+1}, v14, v{R(n,DB)+1}
            v_mul_f32 v{R(n,AL)}, s63, v{R(n,AL)}
            v_mul_f32 v{R(n,BE)}, 0.15915494, v{R(n,BE)}""")
    for n in range(2): cmul(b, R(n, X), R(n, CC), R(n, DB), R(n, T))
    for (z, p) in ((Z1, None), (Z8, 0x41000000), (Z256, 0x43800000)):
        for n in range(2):
            e, ph = R(n, T), R(n, T) + 1
            if p is None: b.e(f"v_exp_f32 v{e}, v{R(n,AL)}\nv_fract_f32 v{ph}, v{R(n,BE)}")
            else: b.e(f"v_mul_f32 v{e}, 0x{p:x}, v{R(n,AL)}\nv_mul_f32 v{ph}, 0x{p:x}, v{R(n,BE)}\nv_exp_f32 v{e}, v{e}\nv_fract_f32 v{ph}, v{ph}")
        for n in range(2):
            b.e(f"v_cos_f32 v{R(n,z)}, v{R(n,T)+1}\nv_sin_f32 v{R(n,z)+1}, v{R(n,T)+1}")
        for n in range(2):
            b.e(f"v_pk_mul_f32 {vr(R(n,z),2)}, {vr(R(n,z),2)}, {vr(R(n,T),2)} op_sel_hi:[1,0]")
    pk = [0]
    def put(src, rows, neg=False):
        d = 16 + 2 * (pk[0] & 3); pk[0] += 1
        for n in range(2):
            b.e(f"v_cvt_pk_bf16_f32 v{d + n}, v{R(n,src)}, {'-' if neg else ''}v{R(n,src)+1}")
        for r in rows: b.lg(f"ds_write_b64 v10, {vr(d,2)} offset:{r * 528}")
    def mul(o, x, w):
        for n in range(2): b.e(f"v_pk_mul_f32 {vr(R(n,T),2)}, {vr(R(n,x),2)}, {vr(R(n,w),2)} op_sel_hi:[1,0]")
        for n in range(2): b.e(f"v_pk_fma_f32 {vr(R(n,o),2)}, {vr(R(n,x),2)}, {vr(R(n,w),2)}, {vr(R(n,T),2)} op_sel:[1,1,0] op_sel_hi:[0,1,1] neg_lo:[0,1,0]")
    stamp(b, 'kg_base')
    b.e("v_mov_b32 v24, 0x3f80\nv_mov_b32 v25, 0x3f80")
    b.lg(f"ds_write_b64 v10, v[24:25] offset:{36 * 528}")
    put(Z8, [37], True)
    cur = Z8
    for j in range(2, 32):
        mul(Y, cur, Z8); cur = Y; put(Y, [36 + j], True)
        if j == OPT.get('lnb_at', 12): ln1_b(b, xlast)
    put(X, [0])
    keep = {2: X2, 4: X4, 6: X6, 8: X8, 10: X10}
    cur = X
    for o in range(1, 11):
        d = keep.get(o, Y)
        mul(d, cur, Z1); cur = d; put(d, [o])
    for src, rows in ((X, [16, 17]), (X2, [18]), (X4, [19, 20, 21]), (X6, [22]), (X8, [23, 24, 25]), (X10, [26])):
        mul(src, src, Z256); put(src, rows)
    for r0 in (11, 27):
        for k, src in enumerate((X, X4, X8)):
            mul(src, src, Z256); put(src, [r0 + k])
    for r0 in (14, 30, 32, 34):
        for k, src in enumerate((X, X8)):
            mul(src, src, Z256); put(src, [r0 + k])
    b.wait_all(vm=False)
    stamp(b, 'kg_pow')
    tk = {}
    def rd(ks):
        r = 32 + (ks % 4) * 12
        b.lg(f"ds_read_b128 {vr(r,4)}, v11 offset:{32 * ks}")
        b.lg(f"ds_read_b128 {vr(r+4,4)}, v13 offset:{32 * ks}")
        tk[ks] = b.lg(f"ds_read_b128 {vr(r+8,4)}, v12 offset:{32 * ks}")
    fill = [l.strip() for l in f"""v_sub_u32 v2, 63, v1
        v_lshl_add_u32 v27, v2, 4, s61
        v_lshl_add_u32 v16, v1, 4, s61
        v_lshl_add_u32 v17, v1, 3, s61
        v_and_b32 v2, 15, v1
        v_lshrrev_b32 v3, 4, v1
        v_sub_u32 v4, 2, v2
        v_and_b32 v4, 3, v4
        v_add_u32 v5, v2, v4
        v_sub_u32 v5, 18, v5
        v_lshlrev_b32 v5, 1, v5
        v_mul_u32_u24 v4, 4160, v4
        v_add3_u32 v5, v5, v4, s61
        v_lshl_add_u32 v6, v3, 4, v5
        v_lshlrev_b32 v5, 5, v2
        v_lshl_add_u32 v5, v3, 4, v5
        s_add_u32 s3, s61, 16896
        v_add_u32 v7, s3, v5
        v_lshlrev_b32 v5, 4, v2
        v_lshl_add_u32 v5, v3, 2, v5
        v_add_u32 v8, s61, v5
        v_lshrrev_b32 v5, 2, v2
        v_mul_u32_u24 v5, {RSTR}, v5
        v_lshl_add_u32 v5, v3, 5, v5
        v_and_b32 v4, 3, v2
        v_lshl_add_u32 v5, v4, 3, v5
        s_lshl_b32 s3, s{sW}, 7
        v_add_u32 v9, s3, v5
        v_mov_b32 v20, 0
        v_mov_b32 v21, 0
        v_mov_b32 v22, 0
        v_mov_b32 v23, 0
        v_and_b32 v2, 1, v1
        v_cmp_eq_u32 s[70:71], 0, v2
        v_cmp_eq_u32 s[72:73], 0, v1""".split("\n")]
    for ks in range(3): rd(ks)
    for ks in range(16):
        r = 32 + (ks % 4) * 12
        b.wait(lg=tk[ks])
        b.e(f"v_mfma_f32_32x32x16_bf16 v[96:111], {vr(r,4)}, {vr(r+4,4)}, {'0' if ks == 0 else 'v[96:111]'}")
        if ks + 3 < 16: rd(ks + 3)
        b.e(f"v_mfma_f32_32x32x16_bf16 v[112:127], {vr(r+8,4)}, {vr(r+4,4)}, {'0' if ks == 0 else 'v[112:127]'}")
        for _ in range(3):
            if fill: b.e(fill.pop(0))
    for l in fill: b.e(l)
    stamp(b, 'kg_mfma')
    b.e("""v_cmp_eq_u32 vcc, 31, v1
        v_cndmask_b32 v24, 0, v96, s[72:73]
        v_cndmask_b32 v25, 0, v97, s[72:73]
        v_cndmask_b32 v26, 0, v98, s[72:73]
        v_cndmask_b32 v105, v105, v104, vcc
        v_cmp_eq_u32 vcc, 63, v1
        v_cndmask_b32 v14, v111, v110, s[70:71]
        v_cndmask_b32 v15, v113, v112, s[70:71]
        v_cndmask_b32 v106, v106, v104, vcc""")
    pats = [list(range(96, 107)),
            [107] * 3 + [108] * 3 + [109] * 5,
            [110] * 4 + [14] + [111] * 6,
            [112] * 4 + [15] + [113] * 6]
    for rnd, w in enumerate(pats):
        for c in range(4):
            d = 32 + ((rnd * 4 + c) % 8) * 4
            for k in range(4):
                b.e(f"v_cvt_pk_bf16_f32 v{d + k}, v{w[10 - c - 2 * k]}, v{w[9 - c - 2 * k]}")
            b.lg(f"ds_write_b128 v27, {vr(d,4)} offset:{c * 4160 + (3 - rnd) * 1024}")
    b.e("""v_cvt_pk_bf16_f32 v72, v26, v25
        v_cvt_pk_bf16_f32 v73, v24, 0
        v_mov_b32 v74, 0
        v_mov_b32 v75, 0
        v_cvt_pk_bf16_f32 v64, v25, v24
        v_mov_b32 v65, 0
        v_mov_b32 v66, 0
        v_mov_b32 v67, 0
        v_mov_b32 v68, v73
        v_mov_b32 v69, 0
        v_mov_b32 v70, 0
        v_mov_b32 v71, 0""")
    b.lg("ds_write_b64 v17, v[20:21] offset:16896")
    b.e("s_mov_b64 exec, 3")
    for c, d in enumerate((72, 64, 68, 20)):
        b.lg(f"ds_write_b128 v16, {vr(d,4)} offset:{c * 4160 + 4096}")
    b.e("s_mov_b64 exec, -1")
    b.e(f"""v_lshrrev_b32 v2, 4, v0
        v_mul_u32_u24 v2, 40960, v2
        v_and_b32 v3, 15, v0
        v_lshl_add_u32 v10, v3, 4, v2
        v_lshlrev_b32 v11, 3, v0
        v_add_u32 v12, 4096, v11
        v_lshlrev_b32 v13, 2, v0
        v_add_u32 v13, {16896 + 512}, v13
        v_add_u32 v14, {2 * RSTR}, v13
        s_lshl_b32 s74, s50, 8
        s_add_u32 s75, s74, {XT}
        s_add_u32 s74, s74, {HT}""")
    b.wait_all(vm=False)
    b.e("s_barrier")
    stamp(b, 'kgen_done')
    def ld_st(bb):
        for q in range(4):
            t = bb.vm(f"buffer_load_dwordx2 {vr(16 + 2 * q, 2)}, v{11 + (q >> 1)}, {WS}, 0 offen offset:{(q & 1) * 2048} sc1")
        return t
    poll(b, ld_st, "v_min3_u32 v2, v16, v17, v18\nv_min3_u32 v3, v19, v20, v21\nv_min3_u32 v2, v2, v22, v23\nv_min_u32 v2, v2, v3\nv_cmp_eq_u32 vcc, 0, v2")
    xt = []
    for q in range(4):
        xt.append(b.vm(f"buffer_load_dwordx4 {vr(64 + 4 * q, 4)}, v10, {WS}, s75 offen sc1"))
        b.e("s_add_u32 s75, s75, 655360")
    stamp(b, 'st1_seen')
    for k in range(8):
        b.e(f"v_and_b32 v{32 + 2 * k}, 0xffff0000, v{16 + k}\nv_lshlrev_b32 v{33 + 2 * k}, 16, v{16 + k}")
    for k in range(8): b.e(f"v_rcp_f32 v{32 + 2 * k}, v{32 + 2 * k}")
    for k in range(8): b.e(f"v_mul_f32 v{33 + 2 * k}, -v{33 + 2 * k}, v{32 + 2 * k}")
    XF, UF = 128, 160
    for q in range(4):
        b.wait(vm=xt[q])
        for k in range(4):
            b.e(f"v_lshlrev_b32 v{XF + 8 * q + 2 * k}, 16, v{64 + 4 * q + k}\nv_and_b32 v{XF + 8 * q + 2 * k + 1}, 0xffff0000, v{64 + 4 * q + k}")
        for k in range(4):
            rr = 32 + 2 * (2 * q + (k >> 1))
            b.e(f"v_pk_fma_f32 {vr(UF + 8 * q + 2 * k, 2)}, {vr(XF + 8 * q + 2 * k, 2)}, {vr(rr, 2)}, {vr(rr, 2)} op_sel:[0,0,1] op_sel_hi:[1,0,1]")
        for c in range(4):
            b.e(f"v_cvt_pk_bf16_f32 v{80 + 4 * q + c}, v{UF + 8 * q + c}, v{UF + 8 * q + 4 + c}")
        for c in range(4):
            b.lg(f"ds_write_b32 v{13 + (c >> 1)}, v{80 + 4 * q + c} offset:{(c & 1) * RSTR + q * 1024}")
    b.wait_all(vm=False)
    b.e("s_barrier")
    stamp(b, 'conv_start')
    ACC, VB = 32, 64
    def reads(it):
        d0 = 2 * it + 1; par = it & 1; L = []
        for k in range(8):
            L.append(f"ds_read_b64 {ar(par * 32 + 4 * k, 2)}, v6 offset:{4064 - 32 * (d0 + 16 * k)}")
            L.append(f"ds_read_b64 {ar(par * 32 + 4 * k + 2, 2)}, v6 offset:{4064 - 32 * (d0 + 16 * k) + 8}")
            L.append(f"ds_read_b128 {vr(VB + par * 32 + 4 * k, 4)}, v7 offset:{512 + 512 * k - 32 * d0}")
        return L
    for r in reads(0): b.lg(r)
    base_ops = []
    for q in range(4):
        for k in range(4):
            base_ops.append(f"v_pk_fma_f32 {vr(XF + 8 * q + 2 * k, 2)}, {vr(UF + 8 * q + 2 * k, 2)}, s[{66 + 2 * (k & 1)}:{67 + 2 * (k & 1)}], {vr(XF + 8 * q + 2 * k, 2)}")
    for o in base_ops: b.e(o)
    packtok = None
    for it in range(8):
        par = it & 1
        b.wait_all(vm=False)
        nxt = reads(it + 1) if it < 7 else []
        if it == 7: packtok = ld_ctr(FLP)(b)
        n = 0
        for i in range(8):
            for ct in range(i, 8):
                c = '0' if (it == 0 and i == 0) else vr(ACC + 4 * ct, 4)
                b.e(f"v_mfma_f32_16x16x32_bf16 {vr(ACC + 4 * ct, 4)}, {ar(par * 32 + 4 * i, 4)}, {vr(VB + par * 32 + 4 * (ct - i), 4)}, {c}")
                if n < len(nxt): b.lg(nxt[n])
                n += 1
    stamp(b, 'conv_end')
    for ct in range(8):
        b.e(f"v_cvt_pk_bf16_f32 v{64 + 2 * ct}, v{ACC + 4 * ct}, v{ACC + 4 * ct + 2}\nv_cvt_pk_bf16_f32 v{65 + 2 * ct}, v{ACC + 4 * ct + 1}, v{ACC + 4 * ct + 3}")
        b.lg(f"ds_write_b32 v8, v{64 + 2 * ct} offset:{256 * ct}")
        b.lg(f"ds_write_b32 v8, v{65 + 2 * ct} offset:{256 * ct + 2048}")
    b.wait_all(vm=False)
    b.e("s_barrier")
    yt = []
    for q in range(4):
        b.lg(f"ds_read_b64_tr_b16 {vr(80 + 4 * q, 2)}, v9 offset:{512 * q}")
        yt.append(b.lg(f"ds_read_b64_tr_b16 {vr(82 + 4 * q, 2)}, v9 offset:{512 * q + 2048}"))
    for q in range(4):
        b.wait(lg=yt[q])
        for k in range(4):
            b.e(f"v_lshlrev_b32 v{UF + 8 * q + 2 * k}, 16, v{80 + 4 * q + k}\nv_and_b32 v{UF + 8 * q + 2 * k + 1}, 0xffff0000, v{80 + 4 * q + k}")
        for k in range(4):
            b.e(f"v_pk_add_f32 {vr(UF + 8 * q + 2 * k, 2)}, {vr(UF + 8 * q + 2 * k, 2)}, {vr(XF + 8 * q + 2 * k, 2)}")
        for k in range(4):
            b.e(f"v_cvt_pk_bf16_f32 v{96 + 4 * q + k}, v{UF + 8 * q + 2 * k}, v{UF + 8 * q + 2 * k + 1}")
        hs = b.vm(f"buffer_store_dwordx4 {vr(96 + 4 * q, 4)}, v10, {WS}, s74 offen sc1")
        b.e("s_add_u32 s74, s74, 655360")
    stamp(b, 'h_stored')
    return packtok, hs

from ffn import ffn_map, preload, ffn

def build():
    _lab[0] = 0
    b = B()
    xtok, b3, pt = entry(b)
    b2 = b.fork()
    xlast = ln1_a(b2, xtok, 32)
    ln1_r(b2)
    ln1_b(b2, xlast)
    pack(b2)
    if OPT['stop'] == 'pack': (stamp_dump(b2), b2.e("s_endpgm"))
    ffn_map(b2, helper=True)
    poll(b2, ld_ctr(FLP), "v_cmp_gt_u32 vcc, 12, v29")
    preload(b2, 0, 36)
    b2.e("s_branch L_g1")
    packtok, hs = conv(b3, xtok, pt)
    if OPT['stop'] in ('pack', 'conv'): (stamp_dump(b3), b3.e("s_endpgm"))
    ffn_map(b3, helper=False)
    poll(b3, ld_ctr(FLP), "v_cmp_gt_u32 vcc, 12, v29", packtok)
    b3.e("s_barrier")
    preload(b3, 0, 12)
    b3.wait(vm=hs)
    b3.e("s_barrier")
    arrive(b3, FLH)
    stamp(b3, 'h_arrive')
    preload(b3, 12, 36)
    b3.e("L_g1:")
    b4 = B(); b4.L = b.L; b4.vi = 100
    ffn(b4)
    b.e("L_exit:\ns_endpgm\nL_code_end:")
    lines, nn = hazard_pass(b.L, verbose=OPT.get('verbose', False))
    if OPT.get('align', 1):
        lines = align_pass([KN + ':'] + lines, nop_cost=OPT.get('nopc', 4.0))[0][1:]
    hdr = open(os.path.join(os.path.dirname(os.path.abspath(__file__)), "header.txt")).read()
    out = hdr + (f"; stamps: {','.join(OPT['stamps'])}\n" if OPT['stamps'] else "") + "; @launch grid=(256,1,1) block=(256,1,1) lds=163840\n"
    out += f'.amdgcn_target "amdgcn-amd-amdhsa--gfx950"\n.text\n.globl {KN}\n.p2align 8\n.type {KN},@function\n{KN}:\n'
    out += "\n".join(("" if l.endswith(":") else "    ") + l for l in lines)
    out += f"""
.section .rodata,"a"
.p2align 6
.amdhsa_kernel {KN}
  .amdhsa_next_free_vgpr 512
  .amdhsa_next_free_sgpr 102
  .amdhsa_accum_offset 256
  .amdhsa_group_segment_fixed_size 0
  .amdhsa_kernarg_size 128
  .amdhsa_user_sgpr_count 2
  .amdhsa_user_sgpr_kernarg_segment_ptr 1
  .amdhsa_system_sgpr_workgroup_id_x 1
.end_amdhsa_kernel
"""
    return out, nn, len(lines)

if __name__ == "__main__":
    import ffn as _f
    for a in sys.argv[2:]:
        k, v = a.split("=")
        OPT[k] = eval(v)
    out, nn, nl = build()
    open(sys.argv[1], "w").write(out)
    print(f"wrote {sys.argv[1]}: {nl} lines, {nn} hazard nops")
```

```python
import sys, os
from asmlib import B, hazard_pass, align_pass
KN = "sequential_preLN__ssm_conv_s4__glu_gated_reglu__prompt_kernel"
OPT = dict(stamps=False, stop=None, spin=2000000)

ST1, ST2 = 0, 28672
FLP, FLH, FLE, FLL = 16384, 18432, 20480, 24576
ZERO_LO, ZERO_BYTES = 16384, 20480
EPOCH = 36864
CS = 0xA000
STAMP = 0xC000
XT, HT, W1P, W2P, HP = 0x10000, 0x300000, 0x600000, 0xB00000, 0xE00000
WS_STAMP = 0x1600000
WS_SIZE = 0x1700000
JSTR = 286720
P_X, P_ARE, P_AIM, P_BRE, P_BIM, P_CRE, P_CIM, P_LDT, P_DSK, P_BX, P_WG, P_WU, P_WD, P_OUT, P_DBG, P_WS = [16 + 2 * k for k in range(16)]
sW, sXCD, sI, sJ, sRHO, sC = 48, 49, 51, 52, 53, 54
SRC = "s[4:7]"; WS = "s[8:11]"; OUT = "s[12:15]"
def sp(r): return f"s[{r}:{r+1}]"
def vr(r, n): return f"v[{r}:{r+n-1}]" if n > 1 else f"v{r}"
def ar(r, n): return f"a[{r}:{r+n-1}]" if n > 1 else f"a{r}"
RSTR = 36160
_lab = [0]
def lab(p):
    _lab[0] += 1; return f"L_{p}{_lab[0]}"

def stamp(b, name):
    st = OPT['stamps']
    if not st or name not in st: return
    r = 78 + 2 * st.index(name)
    b.sm(f"s_memrealtime s[{r}:{r+1}]")
def stamp_init(b):
    if OPT['stamps']:
        for r in range(78, 102, 2): b.e(f"s_mov_b64 s[{r}:{r+1}], 0")
def stamp_dump(b):
    if not OPT['stamps']: return
    if OPT.get('amplify'):
        sk = lab("am"); lo = lab("al")
        b.e(f"""s_waitcnt lgkmcnt(0)
            s_cmp_lg_u32 s2, 100
            s_cbranch_scc1 {sk}
            s_sub_u32 s56, s80, s78
            s_mul_i32 s56, s56, 10
            s_min_u32 s56, s56, 100000
            s_memrealtime s[58:59]
            s_waitcnt lgkmcnt(0)
            {lo}:
            s_memrealtime s[60:61]
            s_waitcnt lgkmcnt(0)
            s_sub_u32 s57, s60, s58
            s_cmp_lt_u32 s57, s56
            s_cbranch_scc1 {lo}
            {sk}:""")
        return
    if OPT.get('dbgdump'):
        sk = lab("dd")
        b.e(f"s_waitcnt lgkmcnt(0)\ns_cmp_lg_u32 s{sW}, 0\ns_cbranch_scc1 {sk}\ns_mov_b64 exec, 1\nv_mov_b32 v30, 0\ns_not_b32 s78, s78")
        for k in range(12):
            b.e(f"v_mov_b32 v31, s{78 + 2 * k}\nglobal_atomic_umax v30, v31, {sp(P_DBG)} offset:{4 * k + 4} sc1")
        b.e(f"{sk}:")
        return
    b.e(f"s_waitcnt lgkmcnt(0)\ns_lshl_b32 s3, s2, 2\ns_add_u32 s3, s3, s{sW}\ns_lshl_b32 s3, s3, 7\ns_add_u32 s3, s3, {WS_STAMP}\nv_mov_b32 v30, 0")
    for k in range(12):
        b.e(f"v_mov_b32 v31, s{78 + 2 * k}\nbuffer_store_dword v31, v30, {WS}, s3 offen offset:{4 * k}")

def poll(b, load, cond, tok=None):
    if tok is None: tok = load(b)
    b.wait(vm=tok)
    lo, ok = lab("poll"), lab("ok")
    b.e(cond)
    b.e(f"s_cbranch_vccz {ok}\ns_mov_b32 s3, 0\n{lo}:")
    f = b.fork(); load(f); f.wait_all(lg=False)
    b.e(cond)
    b.e(f"s_add_u32 s3, s3, 1\ns_cmp_gt_u32 s3, {OPT['spin']}\ns_cbranch_scc1 {ok}\ns_cbranch_vccnz {lo}\n{ok}:")

def ld_ready(b):
    b.e(f"s_lshl_b32 s55, s{sW}, 8\nv_mov_b32 v26, s55")
    return b.vm(f"buffer_load_dwordx4 v[28:31], v26, {OUT}, 0 offen sc1")
COND_READY = "v_xor_b32 v26, v28, v30\nv_xor_b32 v27, v29, v31\nv_and_b32 v26, v26, v27\nv_cmp_ne_u32 vcc, -1, v26"
def ld_gran0(b):
    b.e("v_mov_b32 v26, 0")
    return b.vm(f"buffer_load_dwordx4 v[28:31], v26, {WS}, 0 offen sc1")
COND_GRAN0 = "v_xor_b32 v26, s0, v29\nv_xor_b32 v27, s1, v31\nv_or_b32 v26, v26, v27\nv_cmp_ne_u32 vcc, 0, v26"

def code_prefetch(b, stage):
    if stage == 1:
        b.e(f"""s_getpc_b64 s[76:77]
            L_pc:
            s_sub_u32 s76, s76, L_pc-{KN}
            s_subb_u32 s77, s77, 0
            s_lshr_b32 s55, s2, 3
            s_lshl_b32 s55, s55, 2
            s_add_u32 s55, s55, s{sW}
            s_and_b32 s55, s55, 31""")
    lo, hi = (KN, "L_stage2") if stage == 1 else ("L_stage2", "L_code_end")
    if OPT.get('cpf1', 1):
        if stage == 2: return
        hi = "L_code_end"
    nl = f"((({hi}-{lo})+4095)/4096)"
    b.e(f"""s_mul_i32 s3, s55, {nl}*128
        s_add_u32 s3, s3, {lo}-{KN}
        v_min_u32 v26, {nl}-1, v1
        v_lshl_add_u32 v26, v26, 7, s3
        s_mov_b32 s3, L_code_end-{KN}-4
        v_min_u32 v26, s3, v26""")
    b.vm(f"global_load_dword a{253 + stage}, v26, s[76:77]")

def mk_srd(b, r, ptr, size):
    b.e(f"s_mov_b32 s{r}, s{ptr}\ns_mov_b32 s{r+1}, s{ptr+1}\ns_mov_b32 s{r+2}, {size}\ns_mov_b32 s{r+3}, 0x20000")

LNB = 144640
LNS = LNB + 4 * 2624
def x_dma(b):
    t = None
    for k in range(3):
        if k == 2: b.e("s_mov_b32 exec_hi, 0")
        t = b.vm(f"buffer_load_dwordx4 v2, {SRC}, s57 offen offset:{k * 1024} nt lds")
    b.e("s_mov_b32 exec_hi, -1")
    return t
def entry(b):
    stamp_init(b)
    stamp(b, 'top')
    b.e(f"s_load_dwordx16 s[16:31], s[0:1], 0\ns_load_dwordx16 s[32:47], s[0:1], 64")
    b.e("s_cmp_ge_u32 s2, 256\ns_cbranch_scc1 L_exit")
    b.e(f"""v_lshrrev_b32 v2, 6, v0
        v_and_b32 v1, 63, v0
        v_readfirstlane_b32 s{sW}, v2
        s_and_b32 s{sXCD}, s2, 7""")
    code_prefetch(b, 1)
    b.e(f"""v_lshlrev_b32 v2, 4, v1
        s_mul_i32 s57, s2, 10240
        s_mul_i32 s58, s{sW}, 2560
        s_add_u32 s57, s57, s58
        s_mul_i32 s58, s{sW}, 2624
        s_add_u32 s58, s58, {LNB}
        s_mov_b32 m0, s58
        s_mov_b32 s6, 2621440
        s_mov_b32 s7, 0x20000
        s_mov_b32 s10, {WS_SIZE}
        s_mov_b32 s11, 0x20000""")
    b.e(f"""s_waitcnt lgkmcnt(0)
        s_mov_b32 s4, s{P_X}
        s_mov_b32 s5, s{P_X + 1}
        s_add_u32 s8, s{P_WS}, {OPT.get('wsoff', 0)}
        s_addc_u32 s9, s{P_WS + 1}, 0
        s_cmp_lg_u32 s2, 0
        s_cbranch_scc1 L_noinit
        v_mov_b32 v4, 0
        s_mov_b32 s56, {EPOCH}
        buffer_load_dwordx2 v[8:9], v4, {WS}, s56 offen sc1""")
    b.e("L_noinit:")
    if OPT.get('parfirst'):
        pass
    t = x_dma(b)
    stamp(b, 'start')
    b.e("s_cmp_lt_u32 s2, 96\ns_cbranch_scc1 L_help")
    c = b.fork()
    c.e(f"""s_sub_u32 s50, s2, 96
        s_lshl_b32 s59, s50, 3
        s_lshl_b32 s60, s50, 10
        s_lshl_b32 s61, s{sW}, 8
        s_add_u32 s60, s60, s61
        v_lshl_add_u32 v2, v1, 2, s60""")
    pt = []
    for k, p in enumerate((P_ARE, P_AIM, P_BRE, P_BIM, P_CRE, P_CIM)):
        pt.append(c.vm(f"global_load_dword v{4 + k}, v2, {sp(p)} {OPT.get('paux', 'nt')}"))
    c.sm(f"s_load_dwordx2 s[62:63], {sp(P_LDT)}, s59\ns_load_dwordx2 s[64:65], {sp(P_DSK)}, s59")
    if OPT.get('wpf', 0) == 2: w_prefetch(c)
    c.e("s_branch L_conv")
    b.e("L_help:")
    mk_srd(b, 12, P_DBG, 128)
    b.e(f"""v_lshlrev_b32 v3, 4, v0
        s_lshl_b32 s3, s2, 7
        v_add_u32 v10, s3, v3
        s_cmp_lt_u32 s2, 5
        s_cselect_b32 s3, 0, 0x40000000
        v_add_u32 v3, s3, v3
        s_lshl_b32 s56, s2, 12
        s_add_u32 s56, s56, {ZERO_LO}
        v_mov_b32 v4, 0
        v_mov_b32 v5, 0
        v_mov_b32 v6, 0
        v_mov_b32 v7, 0""")
    b.vm(f"buffer_store_dwordx4 v[4:7], v3, {WS}, s56 offen sc1")
    b.e(f"""s_cmp_lg_u32 s2, 0
        s_cbranch_scc1 L_noinit2
        s_waitcnt vmcnt(4)
        v_add_co_u32 v12, vcc, 1, v8
        v_addc_co_u32 v13, vcc, 0, v9, vcc
        v_not_b32 v14, v12
        v_not_b32 v15, v13
        L_noinit2:""")
    b.vm(f"buffer_store_dwordx4 v[12:15], v10, {OUT}, 0 offen sc1")
    stamp(b, 'init_done')
    return t, c, pt

def ln1_a(b, xtok, R):
    b.e(f"""v_and_b32 v2, 3, v1
        v_lshrrev_b32 v3, 2, v1
        v_mul_u32_u24 v16, 2624, v2
        v_lshl_add_u32 v16, v3, 3, v16
        s_lshl_b32 s3, s{sW}, 7
        s_add_u32 s3, s3, {LNB}
        v_add_u32 v16, s3, v16
        v_lshlrev_b32 v17, 8, v3
        v_lshl_add_u32 v17, v2, 4, v17
        s_lshl_b32 s3, s{sW}, 12
        v_add_u32 v17, s3, v17
        v_lshrrev_b32 v2, 5, v1
        v_and_b32 v3, 31, v1
        v_mul_u32_u24 v18, 1280, v2
        v_lshl_add_u32 v18, v3, 3, v18
        v_add_u32 v18, s58, v18
        s_lshl_b32 s3, s{sW}, 3
        s_add_u32 s3, s3, {LNS}
        v_lshl_add_u32 v19, v2, 2, s3
        s_lshr_b32 s57, s2, 2
        s_mul_i32 s57, s57, 40960
        s_and_b32 s3, s2, 3
        s_lshl_b32 s3, s3, 6
        s_add_u32 s57, s57, s3
        s_add_u32 s57, s57, {XT}
        s_lshr_b32 s3, s{sW}, 1
        s_lshl_b32 s3, s3, 30
        v_add_u32 v{R + 22}, s3, v17
        s_mov_b32 s56, 0x3f803f80""")
    b.wait(vm=xtok)
    st = [b.lg(f"ds_read_b64 {vr(R + 12 + 2 * k, 2)}, v18 offset:{256 * k}") for k in range(5)]
    b.e("s_barrier")
    stamp(b, 'ln_x')
    tk = []
    for k in range(3):
        b.lg(f"ds_read_b64 {vr(R + 4 * k, 2)}, v16 offset:{512 * k}")
        tk.append(b.lg(f"ds_read_b64 {vr(R + 4 * k + 2, 2)}, v16 offset:{512 * k + 1280}"))
    b.e("v_mov_b32 v20, 0\nv_mov_b32 v21, 0\nv_mov_b32 v22, 0\nv_mov_b32 v23, 0")
    for k in range(2):
        b.wait(lg=tk[k])
        last = b.vm(f"buffer_store_dwordx4 {vr(R + 4 * k, 4)}, v17, {WS}, s57 offen sc1")
        b.e("s_addk_i32 s57, 16384")
    b.wait(lg=tk[2])
    last = b.vm(f"buffer_store_dwordx4 {vr(R + 8, 4)}, v{R + 22}, {WS}, s57 offen sc1")
    for k in range(10):
        r = R + 12 + k
        b.e(f"v_dot2_f32_bf16 v{20 + (k & 1)}, v{r}, s56, v{20 + (k & 1)}")
        b.e(f"v_dot2_f32_bf16 v{22 + (k & 1)}, v{r}, v{r}, v{22 + (k & 1)}")
    b.e("v_add_f32 v20, v20, v21\nv_add_f32 v22, v22, v23")
    for m in ("quad_perm:[1,0,3,2] row_mask:0xf", "quad_perm:[2,3,0,1] row_mask:0xf", "row_half_mirror row_mask:0xf", "row_mirror row_mask:0xf", "row_bcast:15 row_mask:0xa"):
        b.e(f"v_add_f32_dpp v20, v20, v20 {m} bank_mask:0xf\nv_add_f32_dpp v22, v22, v22 {m} bank_mask:0xf")
    stats_finish(b, 20, 22, 21)
    b.e("s_mov_b32 exec_lo, 0x10000\ns_mov_b32 exec_hi, 0x10000")
    b.lg("ds_write_b32 v19, v21")
    b.e("s_mov_b64 exec, -1")
    stamp(b, 'ln_a')
    return last

def ln1_r(b):
    mk_srd(b, 12, P_DBG, 128)
    t = ld_ready(b)
    code_prefetch(b, 2)
    return t
def ln1_b(b, last):
    last = last + 1
    sk0 = lab("l0")
    b.wait(vm=last, lg=b.li - 1)
    stamp(b, 'ln_drain')
    b.e(f"s_cmp_lg_u32 s{sW}, 0\ns_cbranch_scc1 {sk0}")
    f = b.fork()
    poll(f, ld_ready, COND_READY, last)
    f.e(f"v_mov_b32 v2, {LNS + 32}\nv_readfirstlane_b32 s0, v28\nv_readfirstlane_b32 s1, v29\nds_write_b64 v2, v[28:29]\ns_waitcnt lgkmcnt(0)")
    b.e(f"{sk0}:\ns_barrier")
    sk = lab("ln")
    b.e(f"""s_cmp_lg_u32 s{sW}, 0
        s_cbranch_scc1 {sk}
        s_mov_b64 exec, 15
        v_lshlrev_b32 v26, 3, v1
        v_add_u32 v26, {LNS}, v26
        ds_read_b64 v[2:3], v26
        v_lshlrev_b32 v27, 4, v1
        s_lshl_b32 s56, s2, 6
        v_mov_b32 v30, v28
        v_mov_b32 v31, v29
        v_mov_b32 v29, v28
        s_waitcnt lgkmcnt(0)
        v_mov_b32 v28, v2
        v_swap_b32 v30, v3
        buffer_store_dwordx4 v[28:31], v27, {WS}, s56 offen sc1
        s_cmp_lg_u32 s2, 0
        s_cbranch_scc1 {sk}_x
        s_mov_b64 exec, 1
        v_mov_b32 v2, s0
        v_mov_b32 v3, s1
        s_mov_b32 s56, {EPOCH}
        buffer_store_dwordx2 v[2:3], v27, {WS}, s56 offen sc1
        {sk}_x:
        s_mov_b64 exec, -1
        {sk}:""")
    stamp(b, 'ln_done')

def w_prefetch(b):
    b.e(f"""s_lshl_b32 s3, s50, 2
        s_add_u32 s3, s3, s{sW}
        s_mul_i32 s3, s3, {27 * 128}
        v_min_u32 v2, 26, v1
        v_lshl_add_u32 v2, v2, 7, s3""")
    for k, p in enumerate((P_WG, P_WU, P_WD)):
        b.vm(f"global_load_dword a{251 + k}, v2, {sp(p)}")

def stats_finish(b, vs, vq, vo):
    b.e(f"""s_mov_b32 s3, 0x3acccccd
        v_mul_f32 v{vs}, s3, v{vs}
        v_mul_f32 v{vq}, s3, v{vq}
        v_fma_f32 v{vq}, -v{vs}, v{vs}, v{vq}
        v_max_f32 v{vq}, 0, v{vq}
        v_cvt_pk_bf16_f32 v{vq}, v{vq}, v{vq}
        v_lshlrev_b32 v{vq}, 16, v{vq}
        v_add_f32 v{vq}, 0x3727c5ac, v{vq}
        v_cvt_pk_bf16_f32 v{vq}, v{vq}, v{vq}
        v_lshlrev_b32 v{vq}, 16, v{vq}
        v_sqrt_f32 v{vq}, v{vq}
        v_cvt_pk_bf16_f32 v{vo}, v{vs}, v{vq}""")

PKB = 0
def pack(b, xtok):
    done = "L_packdone"
    b.e(f"""s_sub_u32 s56, 95, s2
        s_cmp_ge_u32 s56, 81
        s_cbranch_scc1 L_packnone
        s_mul_i32 s50, s{sW}, 20480
        s_add_u32 s50, s50, {PKB}
        v_lshrrev_b32 v24, 3, v1
        v_and_b32 v25, 7, v1
        v_lshlrev_b32 v25, 4, v25
        v_lshlrev_b32 v9, 4, v1
        v_lshrrev_b32 v4, 4, v1
        v_bfe_u32 v5, v1, 2, 2
        v_and_b32 v6, 3, v1
        v_lshlrev_b32 v6, 3, v6
        v_lshl_add_u32 v6, v5, 7, v6
        v_add_u32 v6, s50, v6
        s_cmp_ge_u32 s56, 54
        s_cbranch_scc1 L_packw2""")
    f = b.fork()
    f.e(f"""s_and_b32 s59, s56, 1
        s_lshr_b32 s60, s56, 1
        s_cmp_eq_u32 s59, 0
        s_cselect_b32 s4, s{P_WG}, s{P_WU}
        s_cselect_b32 s5, s{P_WG+1}, s{P_WU+1}
        s_mov_b32 s6, 2211840
        s_mov_b32 s7, 0x20000
        v_mul_u32_u24 v24, 3456, v24
        v_add_u32 v24, v24, v25
        s_mul_i32 s61, s{sW}, {160 * 3456}
        s_lshl_b32 s62, s60, 7
        s_add_u32 s61, s61, s62
        s_mov_b32 m0, s50""")
    dm = []
    for n in range(20):
        dm.append(f.vm(f"buffer_load_dwordx4 v24, {SRC}, s61 offen nt lds"))
        f.e("s_addk_i32 s61, 27648\ns_add_u32 m0, m0, 1024")
    f.e("v_lshl_add_u32 v6, v4, 10, v6")
    for t in range(4):
        T, J, TA, BS, STR = 62, 63, 64, 66 + 2 * t, 67 + 2 * t
        f.e(f"""s_lshl_b32 s{T}, s60, 2
            s_add_u32 s{T}, s{T}, {t}
            s_mul_i32 s{J}, s{T}, 9363
            s_lshr_b32 s{J}, s{J}, 16
            s_mul_i32 s{TA}, s{J}, 7
            s_sub_u32 s{TA}, s{T}, s{TA}
            s_cmp_eq_u32 s{J}, 15
            s_cselect_b32 s65, 2, 4
            s_cselect_b32 s74, 1, 3
            s_mul_i32 s75, s65, 40
            s_cmp_lt_u32 s{TA}, s65
            s_cselect_b32 s{STR}, s65, s74
            s_cselect_b32 s75, 0, s75
            s_cselect_b32 s65, 0, s65
            s_sub_u32 s{TA}, s{TA}, s65
            s_lshl_b32 s{TA}, s{TA}, 1
            s_add_u32 s{TA}, s{TA}, s59
            s_add_u32 s{TA}, s{TA}, s75
            s_lshl_b32 s{STR}, s{STR}, 11
            s_lshl_b32 s{TA}, s{TA}, 10
            s_mul_i32 s{J}, s{J}, {JSTR}
            s_add_u32 s{BS}, s{J}, s{TA}
            s_mul_i32 s{TA}, s{STR}, s{sW}
            s_mul_i32 s{TA}, s{TA}, 5
            s_add_u32 s{BS}, s{BS}, s{TA}
            s_add_u32 s{BS}, s{BS}, {W1P}""")
    f.e("s_mov_b32 s3, 0x3f803f80\nv_mov_b32 v12, s3\nv_mov_b32 v13, s3\nv_mov_b32 v14, s3\nv_mov_b32 v15, s3")
    stamp(f, 'pk_issued')
    for k in range(5):
        f.wait(vm=dm[4 * k + 3])
        if k == 4: stamp(f, 'pk_loaded')
        tk = []
        for t in range(4):
            r = 32 + (k * 4 + t) * 4
            f.lg(f"ds_read_b64_tr_b16 {vr(r, 2)}, v6 offset:{k * 4096 + t * 32}")
            tk.append(f.lg(f"ds_read_b64_tr_b16 {vr(r + 2, 2)}, v6 offset:{k * 4096 + 512 + t * 32}"))
        for t in range(4):
            r = 32 + (k * 4 + t) * 4
            f.wait(lg=tk[t])
            f.vm(f"buffer_store_dwordx4 {vr(r, 4)}, v9, {WS}, s{66 + 2 * t} offen sc1")
            f.e(f"s_add_u32 s{66 + 2 * t}, s{66 + 2 * t}, s{67 + 2 * t}")
            f.e(f"v_mfma_f32_16x16x32_bf16 {vr(112 + 4 * t, 4)}, {vr(r, 4)}, v[12:15], {'0' if k == 0 else vr(112 + 4 * t, 4)}")
    f.e(f"""s_lshl_b32 s3, s{sW}, 8
        s_add_u32 s3, s3, 0x10000
        v_lshl_add_u32 v24, v4, 4, s3
        v_and_b32 v25, 15, v1
        v_cmp_eq_u32 vcc, 0, v25
        s_and_saveexec_b64 s[62:63], vcc""")
    for t in range(4):
        f.lg(f"ds_write_b128 v24, {vr(112 + 4 * t, 4)} offset:{81920 + t * 64 - 65536}")
    f.e("s_mov_b64 exec, s[62:63]")
    f.wait_all(vm=False)
    f.e("s_barrier\nv_lshlrev_b32 v24, 2, v1\nv_add_u32 v25, 0x10000, v24")
    for k in range(4): f.lg(f"ds_read_b32 v{16 + k}, v25 offset:{81920 + k * 256 - 65536}")
    f.e(f"s_mul_i32 s61, s59, 7168\ns_lshl_b32 s62, s60, 8\ns_add_u32 s61, s61, s62\ns_add_u32 s61, s61, {CS}")
    f.wait_all(vm=False)
    f.e("v_add_f32 v16, v16, v17\nv_add_f32 v18, v18, v19\nv_add_f32 v16, v16, v18")
    f.vm(f"buffer_store_dword v16, v24, {WS}, s61 offen sc1")
    f.e(f"s_branch {done}")
    b.e("L_packw2:")
    f = b.fork()
    mk_srd(f, 4, P_WD, 2211840)
    f.e(f"""s_sub_u32 s56, s56, 54
        s_lshl_b32 s56, s56, 2
        s_add_u32 s56, s56, s{sW}
        s_and_b32 s59, s56, 1
        s_lshr_b32 s60, s56, 1
        s_cmp_ge_u32 s60, 31
        s_cbranch_scc1 L_w2late
        s_lshr_b32 s61, s60, 1
        s_mul_i32 s61, s61, 112
        s_and_b32 s62, s60, 1
        s_lshl_b32 s62, s62, 5
        s_add_u32 s61, s61, s62
        s_add_u32 s62, s61, 16
        s_and_b32 s63, s60, 3
        s_mul_i32 s63, s63, 14
        s_lshr_b32 s64, s60, 2
        s_add_u32 s63, s63, s64
        s_branch L_w2go
        L_w2late:
        s_sub_u32 s60, s60, 31
        s_mul_i32 s61, s60, 112
        s_add_u32 s61, s61, 64
        s_add_u32 s62, s61, 16
        s_sub_u32 s64, s60, 15
        s_mul_i32 s64, s64, 224
        s_add_u32 s64, s64, 96
        s_add_u32 s65, s64, 112
        s_min_u32 s65, s65, 1712
        s_cmp_lt_u32 s60, 15
        s_cselect_b32 s61, s61, s64
        s_cselect_b32 s62, s62, s65
        s_and_b32 s63, s60, 3
        s_lshr_b32 s64, s63, 1
        s_xor_b32 s63, s63, s64
        s_mul_i32 s63, s63, 14
        s_lshr_b32 s64, s60, 2
        s_add_u32 s63, s63, s64
        s_add_u32 s63, s63, 8
        L_w2go:
        v_mul_u32_u24 v24, 1280, v24
        v_add_u32 v24, v24, v25
        s_mul_i32 s64, s59, 640
        s_mul_i32 s61, s61, 1280
        s_mul_i32 s62, s62, 1280
        s_add_u32 s61, s61, s64
        s_add_u32 s62, s62, s64""")
    dm = {}
    n = 0
    for p in range(2):
        for rh in range(2):
            for cb in range(5):
                if n == NA:
                    xl = ln1_a(f, xtok, 32); ln1_r(f)
                if n == NB: ln1_b(f, xl)
                n += 1
                f.e(f"s_add_u32 m0, s50, {((p * 2 + rh) * 5 + cb) * 1024 - cb * 128}")
                dm[(p, rh, cb)] = f.vm(f"buffer_load_dwordx4 v24, {SRC}, s{61 + p} offen offset:{cb * 128} nt lds")
            f.e(f"s_addk_i32 s{61 + p}, 10240")
    f.e(f"""v_lshrrev_b32 v5, 1, v4
        v_mul_u32_u24 v5, 5120, v5
        v_and_b32 v4, 1, v4
        v_lshl_add_u32 v5, v4, 9, v5
        v_add_u32 v6, v6, v5
        s_mul_i32 s64, s59, 224
        s_add_u32 s63, s63, s64
        s_mul_i32 s63, s63, 5120
        s_add_u32 s63, s63, {W2P}
        v_add_u32 v10, 4096, v9""")
    stamp(f, 'pk_issued')
    f.wait_all(lg=False)
    stamp(f, 'pk_loaded')
    tk = []
    for dt in range(20):
        r = 32 + dt * 4
        f.lg(f"ds_read_b64_tr_b16 {vr(r, 2)}, v6 offset:{(dt >> 2) * 1024 + (dt & 3) * 32}")
        tk.append(f.lg(f"ds_read_b64_tr_b16 {vr(r + 2, 2)}, v6 offset:{10240 + (dt >> 2) * 1024 + (dt & 3) * 32}"))
        if dt >= 4:
            w2store(f, dt - 4, tk)
    for dt in range(16, 20): w2store(f, dt, tk)
    f.e(f"s_branch {done}")
    b.e("L_packnone:")
    f = b.fork()
    xl = ln1_a(f, xtok, 32); ln1_r(f); ln1_b(f, xl)
    b.e(f"{done}:")
    b.vi = 1000; b.vd = 0; b.li = 0; b.ld = 0
    stamp(b, 'pk_stored')
    sk = lab("g0")
    b.e(f"s_cmp_lg_u32 s{sW}, 0\ns_cbranch_scc1 {sk}")
    poll(b.fork(), ld_gran0, COND_GRAN0)
    b.e(f"{sk}:")
    b.wait_all()
    b.e("s_barrier")
    arrive(b, FLP)
    stamp(b, 'pack_done')

def w2store(f, dt, tk):
    r = 32 + dt * 4
    f.wait(lg=tk[dt])
    d5 = dt % 5
    f.vm(f"buffer_store_dwordx4 {vr(r, 4)}, {'v10' if d5 == 4 else 'v9'}, {WS}, s63 offen offset:{0 if d5 == 4 else d5 * 1024} sc1")
    if d5 == 4: f.e(f"s_add_u32 s63, s63, {JSTR}")

def arrive(b, base):
    sk = lab("ar")
    b.e(f"""s_cmp_lg_u32 s{sW}, 0
        s_cbranch_scc1 {sk}
        s_lshl_b32 s3, s{sXCD}, 8
        s_add_u32 s3, s3, {base}
        v_mov_b32 v2, 0
        v_mov_b32 v3, 1
        s_mov_b64 exec, 1
        buffer_atomic_add v3, v2, {WS}, s3 offen sc1
        s_mov_b64 exec, -1
        {sk}:""")

def ld_ctr(base):
    def f(b):
        b.e(f"v_and_b32 v28, 7, v1\nv_lshlrev_b32 v28, 8, v28\ns_mov_b32 s55, {base}")
        return b.vm(f"buffer_load_dword v29, v28, {WS}, s55 offen sc1")
    return f

L2E, L2E_LO, LN2 = 0x3FB8AA3B, 0x32A57060, 0x3F317218
def cmul(b, o, x, w, t):
    b.e(f"v_pk_mul_f32 {vr(t,2)}, {vr(x,2)}, {vr(w,2)} op_sel_hi:[1,0]")
    b.e(f"v_pk_fma_f32 {vr(o,2)}, {vr(x,2)}, {vr(w,2)}, {vr(t,2)} op_sel:[1,1,0] op_sel_hi:[0,1,1] neg_lo:[0,1,0]")

def conv(b, xtok, pt):
    b.e("L_conv:")
    b.e(f"""s_mul_i32 s61, s{sW}, {RSTR}
        v_lshl_add_u32 v10, v1, 3, s61
        v_and_b32 v2, 31, v1
        v_lshrrev_b32 v3, 5, v1
        v_lshl_add_u32 v3, v3, 4, s61
        v_lshrrev_b32 v11, 3, v2
        v_lshlrev_b32 v11, 2, v11
        v_and_b32 v12, 3, v2
        v_add_u32 v11, v11, v12
        v_bfe_u32 v12, v2, 2, 1
        v_lshl_add_u32 v11, v12, 4, v11
        v_and_b32 v13, 1, v2
        v_lshl_add_u32 v12, v12, 1, v13
        v_add_u32 v12, 32, v12
        v_add_u32 v13, 36, v2
        s_movk_i32 s3, 528
        v_mad_u32_u24 v11, v11, s3, v3
        v_mad_u32_u24 v12, v12, s3, v3
        v_mad_u32_u24 v13, v13, s3, v3""")
    b.wait_all(vm=False)
    xlast = ln1_a(b, xtok, 96)
    ln1_r(b)
    if OPT.get('wpf', 0) == 1: w_prefetch(b)
    b.e(f"""s_lshr_b32 s3, s{sW}, 1
        s_cmp_eq_u32 s3, 0
        s_cselect_b32 s62, s62, s63
        s_and_b32 s3, s{sW}, 1
        s_lshl_b32 s3, s3, 4
        s_lshr_b32 s62, s62, s3
        s_lshl_b32 s62, s62, 16
        s_mov_b32 s63, 0x{L2E:x}
        v_mov_b32 v14, s62
        v_mul_f32 v15, s63, v14
        v_fma_f32 v16, v14, s63, -v15
        v_fmac_f32 v16, 0x{L2E_LO:x}, v14
        v_exp_f32 v15, v15
        v_mul_f32 v16, 0x{LN2:x}, v16
        v_fmac_f32 v15, v15, v16
        v_cvt_pk_bf16_f32 v15, v15, v15
        v_lshlrev_b32 v14, 16, v15
        s_lshl_b32 s66, s64, 16
        s_and_b32 s67, s64, 0xffff0000
        s_lshl_b32 s68, s65, 16
        s_and_b32 s69, s65, 0xffff0000""")
    AL, BE, CC, Z1, Z8, Z256, T, DB, X, X2, X4, X6, X8, X10, Y = range(0, 30, 2)
    R = lambda n, k: 32 + n * 32 + k
    b.wait(vm=pt[5])
    stamp(b, 'kg_par')
    for n in range(2):
        un = (lambda d, s: f"v_lshlrev_b32 v{d}, 16, v{s}") if n == 0 else (lambda d, s: f"v_and_b32 v{d}, 0xffff0000, v{s}")
        b.e("\n".join([un(R(n, AL), 4), un(R(n, BE), 5), un(R(n, DB), 6), un(R(n, DB) + 1, 7), un(R(n, CC), 8), un(R(n, CC) + 1, 9)]))
    for n in range(2):
        b.e(f"""v_mul_f32 v{R(n,AL)}, v14, v{R(n,AL)}
            v_mul_f32 v{R(n,BE)}, v14, v{R(n,BE)}
            v_mul_f32 v{R(n,DB)}, v14, v{R(n,DB)}
            v_mul_f32 v{R(n,DB)+1}, v14, v{R(n,DB)+1}
            v_mul_f32 v{R(n,AL)}, s63, v{R(n,AL)}
            v_mul_f32 v{R(n,BE)}, 0.15915494, v{R(n,BE)}""")
    for n in range(2): cmul(b, R(n, X), R(n, CC), R(n, DB), R(n, T))
    for (z, p) in ((Z1, None), (Z8, 0x41000000), (Z256, 0x43800000)):
        for n in range(2):
            e, ph = R(n, T), R(n, T) + 1
            if p is None: b.e(f"v_exp_f32 v{e}, v{R(n,AL)}\nv_fract_f32 v{ph}, v{R(n,BE)}")
            else: b.e(f"v_mul_f32 v{e}, 0x{p:x}, v{R(n,AL)}\nv_mul_f32 v{ph}, 0x{p:x}, v{R(n,BE)}\nv_exp_f32 v{e}, v{e}\nv_fract_f32 v{ph}, v{ph}")
        for n in range(2):
            b.e(f"v_cos_f32 v{R(n,z)}, v{R(n,T)+1}\nv_sin_f32 v{R(n,z)+1}, v{R(n,T)+1}")
        for n in range(2):
            b.e(f"v_pk_mul_f32 {vr(R(n,z),2)}, {vr(R(n,z),2)}, {vr(R(n,T),2)} op_sel_hi:[1,0]")
    pk = [0]
    def put(src, rows, neg=False):
        d = 16 + 2 * (pk[0] & 3); pk[0] += 1
        for n in range(2):
            b.e(f"v_cvt_pk_bf16_f32 v{d + n}, v{R(n,src)}, {'-' if neg else ''}v{R(n,src)+1}")
        for r in rows: b.lg(f"ds_write_b64 v10, {vr(d,2)} offset:{r * 528}")
    def mul(o, x, w):
        for n in range(2): b.e(f"v_pk_mul_f32 {vr(R(n,T),2)}, {vr(R(n,x),2)}, {vr(R(n,w),2)} op_sel_hi:[1,0]")
        for n in range(2): b.e(f"v_pk_fma_f32 {vr(R(n,o),2)}, {vr(R(n,x),2)}, {vr(R(n,w),2)}, {vr(R(n,T),2)} op_sel:[1,1,0] op_sel_hi:[0,1,1] neg_lo:[0,1,0]")
    stamp(b, 'kg_base')
    b.e("v_mov_b32 v24, 0x3f80\nv_mov_b32 v25, 0x3f80")
    b.lg(f"ds_write_b64 v10, v[24:25] offset:{36 * 528}")
    put(Z8, [37], True)
    cur = Z8
    for j in range(2, 32):
        mul(Y, cur, Z8); cur = Y; put(Y, [36 + j], True)
        if j == OPT.get('lnb_at', 6): ln1_b(b, xlast)
    put(X, [0])
    keep = {2: X2, 4: X4, 6: X6, 8: X8, 10: X10}
    cur = X
    for o in range(1, 11):
        d = keep.get(o, Y)
        mul(d, cur, Z1); cur = d; put(d, [o])
    for src, rows in ((X, [16, 17]), (X2, [18]), (X4, [19, 20, 21]), (X6, [22]), (X8, [23, 24, 25]), (X10, [26])):
        mul(src, src, Z256); put(src, rows)
    for r0 in (11, 27):
        for k, src in enumerate((X, X4, X8)):
            mul(src, src, Z256); put(src, [r0 + k])
    for r0 in (14, 30, 32, 34):
        for k, src in enumerate((X, X8)):
            mul(src, src, Z256); put(src, [r0 + k])
    VX, VS, VU, SG, XR, RR = 192, 193, 194, 196, 212, 228
    b.e(f"""v_mov_b32 v2, {LNS + 32}""")
    et = b.lg("ds_read_b64 v[4:5], v2")
    b.e(f"""v_lshrrev_b32 v2, 4, v0
        v_mul_u32_u24 v2, 40960, v2
        v_and_b32 v3, 15, v0
        v_lshl_add_u32 v{VX}, v3, 4, v2
        v_lshlrev_b32 v{VS}, 4, v0
        s_movk_i32 s72, 4096
        s_movk_i32 s73, 8192
        s_movk_i32 s59, 12288
        v_lshlrev_b32 v{VU}, 2, v0
        v_add_u32 v{VU}, {16896 + 512}, v{VU}
        v_add_u32 v{VU + 1}, {2 * RSTR}, v{VU}
        s_lshl_b32 s74, s50, 8
        s_add_u32 s75, s74, {XT}
        s_add_u32 s74, s74, {HT}""")
    def ld_st(bb):
        for q in range(4):
            t = bb.vm(f"buffer_load_dwordx4 {vr(SG + 4 * q, 4)}, v{VS}, {WS}, {('0', 's72', 's73', 's59')[q]} offen sc1")
        return t
    stok = ld_st(b)
    b.wait_all(vm=False)
    b.e("v_readfirstlane_b32 s0, v4\nv_readfirstlane_b32 s1, v5")
    stamp(b, 'kg_pow')
    tk = {}
    def rd(ks):
        r = 32 + (ks % 4) * 12
        b.lg(f"ds_read_b128 {vr(r,4)}, v11 offset:{32 * ks}")
        b.lg(f"ds_read_b128 {vr(r+4,4)}, v13 offset:{32 * ks}")
        tk[ks] = b.lg(f"ds_read_b128 {vr(r+8,4)}, v12 offset:{32 * ks}")
    fill = [l.strip() for l in f"""v_sub_u32 v2, 63, v1
        v_lshl_add_u32 v27, v2, 4, s61
        v_lshl_add_u32 v16, v1, 4, s61
        v_lshl_add_u32 v17, v1, 3, s61
        v_and_b32 v2, 15, v1
        v_lshrrev_b32 v3, 4, v1
        v_sub_u32 v4, 2, v2
        v_and_b32 v4, 3, v4
        v_add_u32 v5, v2, v4
        v_sub_u32 v5, 18, v5
        v_lshlrev_b32 v5, 1, v5
        v_mul_u32_u24 v4, 4160, v4
        v_add3_u32 v5, v5, v4, s61
        v_lshl_add_u32 v6, v3, 4, v5
        v_lshlrev_b32 v5, 5, v2
        v_lshl_add_u32 v5, v3, 4, v5
        s_add_u32 s3, s61, 16896
        v_add_u32 v7, s3, v5
        v_lshlrev_b32 v5, 4, v2
        v_lshl_add_u32 v5, v3, 2, v5
        v_add_u32 v8, s61, v5
        v_lshrrev_b32 v5, 2, v2
        v_mul_u32_u24 v5, {RSTR}, v5
        v_lshl_add_u32 v5, v3, 5, v5
        v_and_b32 v4, 3, v2
        v_lshl_add_u32 v5, v4, 3, v5
        s_lshl_b32 s3, s{sW}, 7
        v_add_u32 v9, s3, v5
        v_mov_b32 v20, 0
        v_mov_b32 v21, 0
        v_mov_b32 v22, 0
        v_mov_b32 v23, 0
        v_and_b32 v2, 1, v1
        v_cmp_eq_u32 s[70:71], 0, v2
        v_cmp_eq_u32 s[56:57], 0, v1""".split("\n")]
    for ks in range(3): rd(ks)
    for ks in range(16):
        r = 32 + (ks % 4) * 12
        b.wait(lg=tk[ks])
        b.e(f"v_mfma_f32_32x32x16_bf16 v[96:111], {vr(r,4)}, {vr(r+4,4)}, {'0' if ks == 0 else 'v[96:111]'}")
        if ks + 3 < 16: rd(ks + 3)
        b.e(f"v_mfma_f32_32x32x16_bf16 v[112:127], {vr(r+8,4)}, {vr(r+4,4)}, {'0' if ks == 0 else 'v[112:127]'}")
        for _ in range(3):
            if fill: b.e(fill.pop(0))
    for l in fill: b.e(l)
    stamp(b, 'kg_mfma')
    cond = "\n".join(f"v_xor_b32 v2, s0, v{SG + 1 + 4 * q}\nv_xor_b32 v3, s1, v{SG + 3 + 4 * q}\n" + (f"v_or3_b32 v4, v2, v3, v4" if q else "v_or_b32 v4, v2, v3") for q in range(4))
    poll(b, ld_st, cond + "\nv_cmp_ne_u32 vcc, 0, v4", stok)
    xt = []
    for q in range(4):
        xt.append(b.vm(f"buffer_load_dwordx4 {vr(XR + 4 * q, 4)}, v{VX}, {WS}, s75 offen sc1"))
        b.e("s_add_u32 s75, s75, 655360")
    b.e("s_barrier")
    stamp(b, 'st1_seen')
    for k in range(8):
        b.e(f"v_and_b32 v{RR + 2 * k}, 0xffff0000, v{SG + 2 * k}\nv_lshlrev_b32 v{RR + 1 + 2 * k}, 16, v{SG + 2 * k}")
    for k in range(8): b.e(f"v_rcp_f32 v{RR + 2 * k}, v{RR + 2 * k}")
    for k in range(8): b.e(f"v_mul_f32 v{RR + 1 + 2 * k}, -v{RR + 1 + 2 * k}, v{RR + 2 * k}")
    b.e("""v_cmp_eq_u32 vcc, 31, v1
        v_cndmask_b32 v24, 0, v96, s[56:57]
        v_cndmask_b32 v25, 0, v97, s[56:57]
        v_cndmask_b32 v26, 0, v98, s[56:57]
        v_cndmask_b32 v105, v105, v104, vcc
        v_cmp_eq_u32 vcc, 63, v1
        v_cndmask_b32 v14, v111, v110, s[70:71]
        v_cndmask_b32 v15, v113, v112, s[70:71]
        v_cndmask_b32 v106, v106, v104, vcc""")
    pats = [list(range(96, 107)),
            [107] * 3 + [108] * 3 + [109] * 5,
            [110] * 4 + [14] + [111] * 6,
            [112] * 4 + [15] + [113] * 6]
    for rnd, w in enumerate(pats):
        for c in range(4):
            d = 32 + ((rnd * 4 + c) % 8) * 4
            for k in range(4):
                b.e(f"v_cvt_pk_bf16_f32 v{d + k}, v{w[10 - c - 2 * k]}, v{w[9 - c - 2 * k]}")
            b.lg(f"ds_write_b128 v27, {vr(d,4)} offset:{c * 4160 + (3 - rnd) * 1024}")
    b.e("""v_cvt_pk_bf16_f32 v72, v26, v25
        v_cvt_pk_bf16_f32 v73, v24, 0
        v_mov_b32 v74, 0
        v_mov_b32 v75, 0
        v_cvt_pk_bf16_f32 v64, v25, v24
        v_mov_b32 v65, 0
        v_mov_b32 v66, 0
        v_mov_b32 v67, 0
        v_mov_b32 v68, v73
        v_mov_b32 v69, 0
        v_mov_b32 v70, 0
        v_mov_b32 v71, 0""")
    b.lg("ds_write_b64 v17, v[20:21] offset:16896")
    b.e("s_mov_b64 exec, 3")
    for c, d in enumerate((72, 64, 68, 20)):
        b.lg(f"ds_write_b128 v16, {vr(d,4)} offset:{c * 4160 + 4096}")
    b.e("s_mov_b64 exec, -1")
    stamp(b, 'kgen_done')
    b.e("L_stage2:")
    XF, UF = 128, 160
    for q in range(4):
        b.wait(vm=xt[q])
        for k in range(4):
            b.e(f"v_lshlrev_b32 v{XF + 8 * q + 2 * k}, 16, v{XR + 4 * q + k}\nv_and_b32 v{XF + 8 * q + 2 * k + 1}, 0xffff0000, v{XR + 4 * q + k}")
        for k in range(4):
            rr = RR + 2 * (2 * q + (k >> 1))
            b.e(f"v_pk_fma_f32 {vr(UF + 8 * q + 2 * k, 2)}, {vr(XF + 8 * q + 2 * k, 2)}, {vr(rr, 2)}, {vr(rr, 2)} op_sel:[0,0,1] op_sel_hi:[1,0,1]")
        for c in range(4):
            b.e(f"v_cvt_pk_bf16_f32 v{SG + 4 * q + c}, v{UF + 8 * q + c}, v{UF + 8 * q + 4 + c}")
        for c in range(4):
            b.lg(f"ds_write_b32 v{VU + (c >> 1)}, v{SG + 4 * q + c} offset:{(c & 1) * RSTR + q * 1024}")
    b.wait_all(vm=False)
    b.e("s_barrier")
    stamp(b, 'conv_start')
    ACC, VB = 32, 64
    def reads(it):
        d0 = 2 * it + 1; par = it & 1; L = []
        for k in range(8):
            L.append(f"ds_read_b64 {ar(par * 32 + 4 * k, 2)}, v6 offset:{4064 - 32 * (d0 + 16 * k)}")
            L.append(f"ds_read_b64 {ar(par * 32 + 4 * k + 2, 2)}, v6 offset:{4064 - 32 * (d0 + 16 * k) + 8}")
            L.append(f"ds_read_b128 {vr(VB + par * 32 + 4 * k, 4)}, v7 offset:{512 + 512 * k - 32 * d0}")
        return L
    for r in reads(0): b.lg(r)
    base_ops = []
    for q in range(4):
        for k in range(4):
            base_ops.append(f"v_pk_fma_f32 {vr(XF + 8 * q + 2 * k, 2)}, {vr(UF + 8 * q + 2 * k, 2)}, s[{66 + 2 * (k & 1)}:{67 + 2 * (k & 1)}], {vr(XF + 8 * q + 2 * k, 2)}")
    for o in base_ops: b.e(o)
    packtok = None
    for it in range(8):
        par = it & 1
        b.wait_all(vm=False)
        nxt = reads(it + 1) if it < 7 else []
        if it == 7: packtok = ld_ctr(FLP)(b)
        n = 0
        for i in range(8):
            for ct in range(i, 8):
                c = '0' if (it == 0 and i == 0) else vr(ACC + 4 * ct, 4)
                b.e(f"v_mfma_f32_16x16x32_bf16 {vr(ACC + 4 * ct, 4)}, {ar(par * 32 + 4 * i, 4)}, {vr(VB + par * 32 + 4 * (ct - i), 4)}, {c}")
                if n < len(nxt): b.lg(nxt[n])
                n += 1
    stamp(b, 'conv_end')
    for ct in range(8):
        b.e(f"v_cvt_pk_bf16_f32 v{64 + 2 * ct}, v{ACC + 4 * ct}, v{ACC + 4 * ct + 2}\nv_cvt_pk_bf16_f32 v{65 + 2 * ct}, v{ACC + 4 * ct + 1}, v{ACC + 4 * ct + 3}")
        b.lg(f"ds_write_b32 v8, v{64 + 2 * ct} offset:{256 * ct}")
        b.lg(f"ds_write_b32 v8, v{65 + 2 * ct} offset:{256 * ct + 2048}")
    b.wait_all(vm=False)
    b.e("s_barrier")
    yt = []
    for q in range(4):
        b.lg(f"ds_read_b64_tr_b16 {vr(80 + 4 * q, 2)}, v9 offset:{512 * q}")
        yt.append(b.lg(f"ds_read_b64_tr_b16 {vr(82 + 4 * q, 2)}, v9 offset:{512 * q + 2048}"))
    for q in range(4):
        b.wait(lg=yt[q])
        for k in range(4):
            b.e(f"v_lshlrev_b32 v{UF + 8 * q + 2 * k}, 16, v{80 + 4 * q + k}\nv_and_b32 v{UF + 8 * q + 2 * k + 1}, 0xffff0000, v{80 + 4 * q + k}")
        for k in range(4):
            b.e(f"v_pk_add_f32 {vr(UF + 8 * q + 2 * k, 2)}, {vr(UF + 8 * q + 2 * k, 2)}, {vr(XF + 8 * q + 2 * k, 2)}")
        for k in range(4):
            b.e(f"v_cvt_pk_bf16_f32 v{96 + 4 * q + k}, v{UF + 8 * q + 2 * k}, v{UF + 8 * q + 2 * k + 1}")
        hs = b.vm(f"buffer_store_dwordx4 {vr(96 + 4 * q, 4)}, v{VX}, {WS}, s74 offen sc1")
        b.e("s_add_u32 s74, s74, 655360")
    stamp(b, 'h_stored')
    return packtok, hs

from ffn import ffn_map, preload, ffn

def build():
    _lab[0] = 0
    b = B()
    xtok, b3, pt = entry(b)
    b2 = b.fork()
    pack(b2, xtok)
    if OPT['stop'] in ('pack', 'conv'): (stamp_dump(b2), b2.e("s_endpgm"))
    ffn_map(b2, helper=True)
    poll(b2, ld_ctr(FLP), "v_cmp_gt_u32 vcc, 12, v29")
    preload(b2, 0, 36)
    b2.e("s_branch L_g1")
    packtok, hs = conv(b3, xtok, pt)
    if OPT['stop'] in ('pack', 'conv'): (stamp_dump(b3), b3.e("s_endpgm"))
    ffn_map(b3, helper=False)
    poll(b3, ld_ctr(FLP), "v_cmp_gt_u32 vcc, 12, v29", packtok)
    b3.e("s_barrier")
    preload(b3, 0, 12)
    b3.wait(vm=hs)
    b3.e("s_barrier")
    arrive(b3, FLH)
    stamp(b3, 'h_arrive')
    preload(b3, 12, 36)
    b3.e("L_g1:")
    b4 = B(); b4.L = b.L; b4.vi = 100
    ffn(b4)
    b.e("L_exit:\ns_endpgm\nL_code_end:")
    lines, nn = hazard_pass(b.L, verbose=OPT.get('verbose', False))
    if OPT.get('align', 1):
        lines = align_pass([KN + ':'] + lines, nop_cost=OPT.get('nopc', 4.0))[0][1:]
    hdr = open(os.path.join(os.path.dirname(os.path.abspath(__file__)), "header.txt")).read()
    out = hdr + (f"; stamps: {','.join(OPT['stamps'])}\n" if OPT['stamps'] else "") + "; @launch grid=(256,1,1) block=(256,1,1) lds=163840\n"
    out += f'.amdgcn_target "amdgcn-amd-amdhsa--gfx950"\n.text\n.globl {KN}\n.p2align 8\n.type {KN},@function\n{KN}:\n'
    out += "\n".join(("" if l.endswith(":") else "    ") + l for l in lines)
    out += f"""
.section .rodata,"a"
.p2align 6
.amdhsa_kernel {KN}
  .amdhsa_next_free_vgpr 512
  .amdhsa_next_free_sgpr 102
  .amdhsa_accum_offset 256
  .amdhsa_group_segment_fixed_size 0
  .amdhsa_kernarg_size 128
  .amdhsa_user_sgpr_count 2
  .amdhsa_user_sgpr_kernarg_segment_ptr 1
  .amdhsa_system_sgpr_workgroup_id_x 1
.end_amdhsa_kernel
"""
    return out, nn, len(lines)

if __name__ == "__main__":
    import ffn as _f
    for a in sys.argv[2:]:
        k, v = a.split("=")
        OPT[k] = eval(v)
    out, nn, nl = build()
    open(sys.argv[1], "w").write(out)
    print(f"wrote {sys.argv[1]}: {nl} lines, {nn} hazard nops")
```

```python
import re
REG = re.compile(r'^(-|abs\()?([vas])(\d+|\[(\d+):(\d+)\])\)?$')
def regs(op):
    op = op.strip()
    if op in ('vcc', 'vcc_lo', 'vcc_hi'): return ['vcc']
    if op in ('exec', 'exec_lo', 'exec_hi'): return ['exec']
    if op == 'm0': return ['m0']
    m = REG.match(op)
    if not m: return []
    k = m.group(2)
    if m.group(4) is not None: return [k + str(i) for i in range(int(m.group(4)), int(m.group(5)) + 1)]
    return [k + m.group(3)]
TRANS = ('v_exp_', 'v_log_', 'v_rcp_', 'v_rsq_', 'v_sqrt_', 'v_sin_', 'v_cos_')
class Ins:
    __slots__ = ('txt', 'op', 'cls', 'd', 'u', 'A', 'B', 'C', 'passes', 'label', 'target', 'ws', 'data', 'dpp', 'wide', 'lanesel', 'opsel_dst', 'constsrc')
    def __init__(s, txt):
        s.txt = txt; s.label = None; s.target = None; s.ws = 1; s.A = s.B = s.C = (); s.passes = 0; s.data = (); s.dpp = False
        s.wide = False; s.lanesel = (); s.opsel_dst = False; s.d = set(); s.u = set(); s.constsrc = ()
        t = txt.split(';')[0].strip()
        if t.endswith(':'):
            s.cls = 'label'; s.label = t[:-1]; s.op = ''; s.ws = 0; return
        if t.startswith('.') or not t:
            s.cls = 'dir'; s.op = ''; s.ws = 0; return
        parts = t.split(None, 1); op = parts[0]; s.op = op
        rest = parts[1] if len(parts) > 1 else ''
        ops = []
        for x in rest.split(','):
            x = x.strip()
            if not x: continue
            ops.append(x)
        mods = ''
        joined = []; depth = 0
        for x in ops:
            if depth > 0: joined[-1] += ',' + x
            else: joined.append(x)
            depth += x.count('[') - x.count(']')
        ops = joined
        if ops:
            w = ops[-1].split(None, 1)
            ops[-1] = w[0]; mods = w[1] if len(w) > 1 else ''
        R = [regs(o) for o in ops]
        fl = lambda L: set(r for l in L for r in l)
        if op.startswith('v_mfma'):
            s.cls = 'mfma'; s.d = set(R[0]); s.A, s.B, s.C = R[1], R[2], R[3]; s.u = fl(R[1:]) | {'exec'}
            s.passes = 8 if '32x32' in op else 4
        elif op.startswith('v_'):
            s.cls = 'valu'
            s.dpp = '_dpp' in op or 'quad_perm' in mods or 'row_' in mods or 'wave_' in mods
            if op.startswith('v_cmp'):
                s.d = set(R[0]); s.u = fl(R[1:])
                if op.startswith('v_cmpx'): s.d.add('exec')
            elif op.startswith(('v_swap', 'v_permlane16_swap', 'v_permlane32_swap')):
                s.d = fl(R[:2]); s.u = fl(R[:2])
            elif op.startswith(('v_add_co', 'v_sub_co', 'v_addc_co', 'v_subb_co', 'v_subrev_co')):
                s.d = fl(R[:2]); s.u = fl(R[2:])
            elif op.startswith('v_readlane') or op.startswith('v_writelane'):
                s.d = set(R[0]); s.u = fl(R[1:]); s.lanesel = R[2]
                if op.startswith('v_writelane'): s.u |= s.d
            else:
                s.d = set(R[0]); s.u = fl(R[1:])
                if op.startswith(('v_fmac', 'v_dot2c', 'v_pk_fmac')) or s.dpp or ('sdwa' in op and 'UNUSED_PRESERVE' in mods): s.u |= s.d
                if op.startswith('v_cndmask') and len(ops) == 3: s.u.add('vcc')
            if 'sdwa' in op and 'dst_sel:DWORD' not in mods: s.opsel_dst = True
            s.constsrc = [r for r in s.u if r[0] == 's' or r == 'vcc']
            s.u.add('exec_implicit')
        elif op.startswith('ds_'):
            s.cls = 'ds'
            if op.startswith(('ds_read', 'ds_bpermute', 'ds_permute', 'ds_swizzle')): s.d = set(R[0]); s.u = fl(R[1:])
            else: s.u = fl(R)
        elif op.startswith('buffer_') or op.startswith('global_'):
            s.cls = 'vmem'
            lds = ' lds' in (' ' + mods) or 'load_lds' in op
            if op in ('buffer_wbl2', 'buffer_inv'): pass
            elif lds: s.u = fl(R) | {'m0'}
            elif '_load' in op: s.d = set(R[0]); s.u = fl(R[1:])
            elif '_store' in op or '_atomic' in op:
                s.u = fl(R)
                s.data = R[0] if op.startswith('buffer_') else R[1]
                s.wide = op.endswith('x3') or op.endswith('x4')
                if '_atomic' in op and 'sc0' in mods:
                    s.d = set(R[0])
        elif op.startswith('s_'):
            if op == 's_nop': s.cls = 'nop'; s.ws = int(ops[0], 0) + 1
            elif op in ('s_waitcnt', 's_barrier', 's_sleep', 's_setprio', 's_endpgm'): s.cls = 'sopp'
            elif op.startswith('s_cbranch') or op == 's_branch':
                s.cls = 'br'; s.target = ops[0]
                if 'vcc' in op: s.u = {'vcc'}
                if 'exec' in op: s.u = {'exec'}
            elif op.startswith(('s_load', 's_memtime', 's_memrealtime', 's_buffer_load')): s.cls = 'smem'; s.d = set(R[0]); s.u = fl(R[1:])
            elif op.startswith('s_cmp') or op.startswith('s_bitcmp'): s.cls = 'salu'; s.u = fl(R)
            else:
                s.cls = 'salu'; s.d = set(R[0]); s.u = fl(R[1:])
                if 'saveexec' in op: s.d.add('exec'); s.u.add('exec')
                if op in ('s_addk_i32', 's_mulk_i32'): s.u |= s.d
        else:
            raise ValueError("unknown instr: " + txt)

def need(p, c):
    n = 0
    if p.cls == 'mfma':
        big = p.passes == 8
        if c.cls == 'mfma':
            if p.d & (set(c.A) | set(c.B)): n = max(n, 12 if big else 8)
            if p.d & set(c.C) and not (set(c.C) == p.d and c.passes == p.passes): n = max(n, 10 if big else 6)
            if p.d & c.d and not (set(c.C) == p.d and c.passes == p.passes): n = max(n, 10 if big else 6)
        elif c.cls in ('valu', 'vmem', 'ds'):
            if p.d & (c.u | c.d): n = max(n, 12 if big else 8)
            if c.cls == 'valu' and set(p.C) & c.d: n = max(n, 7 if big else 3)
        return n
    if p.cls == 'valu':
        vd = set(r for r in p.d if r[0] in 'va' and r != 'vcc')
        sd = set(r for r in p.d if r[0] == 's' or r == 'vcc')
        if c.cls == 'mfma':
            if vd & c.u: n = max(n, 3 if p.op.startswith('v_dot') else 2)
            if 'exec' in p.d: n = max(n, 4)
        if c.cls == 'vmem' and sd & c.u: n = max(n, 5)
        if c.cls == 'valu':
            if sd & set(c.lanesel): n = max(n, 4)
            if sd & set(c.constsrc): n = max(n, 2)
            if c.dpp and vd & c.u: n = max(n, 2)
            if c.dpp and 'exec' in p.d: n = max(n, 5)
            if c.op.startswith(('v_readlane', 'v_readfirstlane')) and vd & c.u: n = max(n, 1)
            if c.op.startswith(('v_readlane', 'v_readfirstlane', 'v_writelane', 'v_permlane')) and 'exec' in p.d: n = max(n, 4)
            if c.op.startswith('v_permlane') and vd & c.u: n = max(n, 2)
            if p.op.startswith(TRANS) and not c.op.startswith(TRANS) and vd & c.u: n = max(n, 1)
            if p.opsel_dst and vd & (c.u | c.d): n = max(n, 1)
            if p.op.startswith('v_dot') and vd & (c.u | c.d):
                same = c.op == p.op
                srcs = c.txt.split(';')[0].split(None, 1)[1].split(',')
                ab = set(regs(srcs[1].strip()) + regs(srcs[2].strip().split()[0])) if len(srcs) > 2 else set()
                if not (same and not (vd & ab)): n = max(n, 3)
        if c.cls in ('vmem', 'ds') and p.op.startswith('v_dot') and vd & c.u: n = max(n, 3)
        if c.cls == 'br' and ('vcc' in sd and 'vcc' in c.u): n = max(n, 0)
        if c.cls == 'salu' and sd & c.u: n = max(n, 1)
        return n
    if p.cls == 'salu':
        if 'm0' in p.d and c.cls == 'vmem' and 'm0' in c.u: n = max(n, 1)
        return n
    if p.cls == 'vmem' and p.wide:
        if set(p.data) & c.d: n = max(n, 2 if c.cls == 'valu' else 1)
    return n

def hazard_pass(lines, verbose=False):
    ins = [Ins(l) for l in lines]
    total = 0
    for rnd in range(4):
        labels = {x.label: i for i, x in enumerate(ins) if x.cls == 'label'}
        srcs = {}
        for i, x in enumerate(ins):
            if x.cls == 'br': srcs.setdefault(labels[x.target], []).append(i)
        out = []; added = 0
        ins_n = {}
        for j, c in enumerate(ins):
            if c.cls in ('label', 'dir', 'nop', 'sopp'): continue
            worst = 0
            stack = [(j, 0)]; seen = set()
            while stack:
                k, dist = stack.pop()
                preds = []
                if k > 0:
                    q = ins[k - 1]
                    if not (q.op in ('s_branch', 's_endpgm')): preds.append(k - 1)
                if ins[k].cls == 'label': preds += srcs.get(k, [])
                for p in preds:
                    if (p, dist) in seen: continue
                    seen.add((p, dist))
                    x = ins[p]
                    r = need(x, c) if x.cls in ('mfma', 'valu', 'salu', 'vmem') else 0
                    if r - dist > worst: worst = r - dist
                    nd = dist + x.ws + ins_n.get(p, 0)
                    if nd < 13: stack.append((p, nd))
            if worst > 0:
                ins_n[j] = worst; added += 1
                if verbose: print(f"  nop {worst} before: {c.txt}")
        if not ins_n: break
        new = []
        for j, c in enumerate(ins):
            if j in ins_n: new.append(Ins(f"s_nop {ins_n[j] - 1}"))
            new.append(c)
        ins = new; total += added
    return [x.txt for x in ins], total

class B:
    def __init__(s):
        s.L = []; s.vi = 0; s.vd = 0; s.li = 0; s.ld = 0; s.smem_out = False
    def e(s, txt):
        for l in txt.split('\n'):
            l = l.strip()
            if l: s.L.append(l)
    def vm(s, txt):
        s.e(txt); s.vi += 1; return s.vi - 1
    def lg(s, txt):
        s.e(txt); s.li += 1; return s.li - 1
    def sm(s, txt):
        s.e(txt); s.smem_out = True
    def wait(s, vm=None, lg=None):
        p = []
        if vm is not None and vm >= s.vd:
            n = min(62, s.vi - vm - 1); p.append(f"vmcnt({n})"); s.vd = s.vi - n
        if lg is not None and lg >= s.ld:
            n = 0 if s.smem_out else min(14, s.li - lg - 1)
            p.append(f"lgkmcnt({n})"); s.ld = s.li - n
            if n == 0: s.smem_out = False
        if p: s.e("s_waitcnt " + " ".join(p))
    def wait_all(s, vm=True, lg=True, force=True):
        p = []
        if vm and (force or s.vd < s.vi): p.append("vmcnt(0)"); s.vd = s.vi
        if lg and (force or s.ld < s.li or s.smem_out): p.append("lgkmcnt(0)"); s.ld = s.li; s.smem_out = False
        if p: s.e("s_waitcnt " + " ".join(p))
    def fork(s):
        o = B(); o.L = s.L; o.vi, o.vd, o.li, o.ld, o.smem_out = s.vi, s.vd, s.li, s.ld, s.smem_out; return o

import subprocess, tempfile, os
def sizes_of(lines):
    src = ".amdgcn_target \"amdgcn-amd-amdhsa--gfx950\"\n.text\n" + "\n".join(lines) + "\n"
    r = subprocess.run(["llvm-mc", "-triple", "amdgcn-amd-amdhsa", "-mcpu=gfx950", "-show-encoding"], input=src, capture_output=True, text=True)
    if r.returncode: raise RuntimeError(r.stderr[:3000])
    out = []
    for l in r.stdout.split("\n"):
        m = re.search(r"; encoding: \[(.*)\]", l)
        if m: out.append((len(m.group(1).split(",")), l.split(";")[0].strip()))
    return out
NO64 = ('v_swap', 'v_readfirstlane', 'v_permlane', 'v_fmaak', 'v_fmamk', 'v_accvgpr', 'v_nop', 'v_dot2c')
def align_pass(lines, mis_cost=1.33, nop_cost=4.0, start_par=0):
    idx = [i for i, l in enumerate(lines) if not (l.endswith(':') or l.startswith('.'))]
    sz = sizes_of(lines)
    assert len(sz) == len(idx), (len(sz), len(idx))
    opts = {}
    for i, (n, canon) in zip(idx, sz):
        o = [(lines[i], n)]
        op = canon.split()[0]
        if n == 4 and op.endswith('_e32') and not op.startswith(NO64):
            t = lines[i].split(None, 1); base = t[0][:-4] if t[0].endswith('_e32') else t[0]
            o.append((base + '_e64 ' + t[1], 8))
        if n == 4 and op == 's_addk_i32':
            a = [x.strip() for x in lines[i].split(None, 1)[1].split(',')]
            o.append((f"s_add_u32 {a[0]}, {a[0]}, {a[1]}", 8))
        opts[i] = o
    near = set()
    for p, i in enumerate(idx):
        if lines[i].startswith('v_mfma'):
            for q in range(max(0, p - 5), min(len(idx), p + 6)): near.add(idx[q])
    INF = 1e18
    cost = [0 if start_par == 0 else INF, 0 if start_par == 1 else INF]
    back = []
    for i in idx:
        nc = [INF, INF]; bk = [None, None]
        for p in (0, 1):
            if cost[p] >= INF: continue
            for pad in (0, 1):
                q = p ^ pad
                for k, (t, n) in enumerate(opts[i]):
                    c = cost[p] + pad * nop_cost + ((0.1 if i in near else mis_cost) if (n >= 8 and q == 1) else 0) + (0.01 * k)
                    r = q ^ ((n // 4) & 1)
                    if c < nc[r]: nc[r] = c; bk[r] = (p, pad, k)
        cost = nc; back.append(bk)
    p = 0 if cost[0] <= cost[1] else 1
    choice = {}
    for i, bk in zip(reversed(idx), reversed(back)):
        pp, pad, k = bk[p]; choice[i] = (pad, k); p = pp
    out = []; npad = nprom = 0
    for i, l in enumerate(lines):
        if i in choice:
            pad, k = choice[i]
            if pad: out.append("s_nop 0"); npad += 1
            out.append(opts[i][k][0]); nprom += k > 0
        else: out.append(l)
    return out, npad, nprom, min(cost)


class Gaps:
    def __init__(s, b, cap=2):
        s.b = b; s.cap = cap; s.q = []; s.used = 0
    @staticmethod
    def cost(txt):
        c = 0
        for l in txt.split('\n'):
            l = l.strip()
            if not l: continue
            c += 2 if l.startswith(('buffer_', 'global_', 'v_swap', 'v_rcp', 'v_exp', 'v_sqrt', 'v_permlane')) else 1
        return c
    def add(s, item, cost=None, front=False):
        if cost is None: cost = s.cost(item)
        (s.q.insert(0, (cost, item)) if front else s.q.append((cost, item)))
    def now(s, item, cost=None):
        if cost is None: cost = s.cost(item)
        n0 = len(s.b.L)
        s.b.e(item) if isinstance(item, str) else item()
        if len(s.b.L) > n0: s.used += cost
    def fill(s, reserve=0, cap=None):
        cap = (s.cap if cap is None else cap) - reserve
        while s.q and (s.used + s.q[0][0] <= cap or (s.used == 0 and reserve == 0)):
            c, it = s.q.pop(0); s.now(it, c)
    def mfma(s, txt):
        s.b.e(txt); s.used = 0
    def flush(s):
        while s.q:
            c, it = s.q.pop(0); s.now(it, c)
```

```python
sPAN, sDMA, sM0, sW2, sH0 = 60, 61, 62, 63, 64
sROT = 59
sHP, sSTK = 68, 72
CSB = 147456
A_PAN, A_RING, A_W2 = 0, 48, 80
V_ACC1, V_ACC2, V_PAN = 32, 96, 144
V_G2, V_HR = 144, 32

def ffn_map(helper):
    if helper:
        t = f"""s_lshr_b32 s76, s2, 3
            s_mul_i32 s{sJ}, s76, 43
            s_lshr_b32 s{sJ}, s{sJ}, 7
            s_mul_i32 s58, s{sJ}, 3
            s_sub_u32 s{sSI}, s76, s58
            s_and_b32 s58, s{sXCD}, 1
            s_mul_i32 s58, s58, 3
            s_add_u32 s{sI}, s{sSI}, s58
            s_mul_i32 s{sROT}, s{sSI}, 3
            s_lshr_b32 s{sC}, s76, 2
            """
    else:
        t = f"""s_lshr_b32 s76, s50, 3
            s_mul_i32 s{sJ}, s76, 52
            s_lshr_b32 s{sJ}, s{sJ}, 8
            s_mul_i32 s58, s{sJ}, 5
            s_sub_u32 s{sSI}, s76, s58
            s_and_b32 s58, s{sXCD}, 1
            s_mul_i32 s58, s58, 5
            s_add_u32 s58, s58, s{sSI}
            s_add_u32 s{sI}, s58, 6
            s_mov_b32 s{sROT}, 0
            s_lshr_b32 s{sC}, s76, 2
            s_add_u32 s{sC}, s{sC}, 3
            """
    return t + f"""s_lshr_b32 s58, s{sXCD}, 1
        s_lshl_b32 s58, s58, 2
        s_add_u32 s{sJ}, s{sJ}, s58
        s_and_b32 s76, s76, 3
        s_lshl_b32 s{sRHO}, s{sXCD}, 2
        s_add_u32 s{sRHO}, s{sRHO}, s76
        v_lshlrev_b32 v4, 4, v1
        s_lshl_b32 s{sM0}, s{sW}, 12
        s_mul_i32 s{sDMA}, s{sJ}, {JSTR}
        s_add_u32 s{sDMA}, s{sDMA}, s{sM0}
        s_add_u32 s{sDMA}, s{sDMA}, {W1P}
        s_mul_i32 s58, s{sC}, 56
        s_mul_i32 s{sW2}, s{sW}, 14
        s_add_u32 s58, s58, s{sW2}
        s_mul_i32 s{sW2}, s58, 5120
        s_add_u32 s{sW2}, s{sW2}, {W2P}"""

def w2_touch(b, late):
    nl = 60 if late else 80
    b.e(f"""s_and_b32 s3, s{sRHO}, 3
        s_mul_i32 s3, s3, {nl * 128}
        s_add_u32 s3, s3, s{sW2}
        v_lshlrev_b32 v2, 7, v1""")
    if late:
        b.e(f"s_add_u32 s3, s3, 4096\nv_min_u32 v2, {59 * 128}, v2")
        b.vm(f"buffer_load_dword a253, v2, {WS}, s3 offen sc1")
    else:
        b.e(f"v_add_u32 v3, 0x2000, v2\nv_min_u32 v3, {79 * 128}, v3")
        b.vm(f"buffer_load_dword a253, v2, {WS}, s3 offen sc1")
        b.vm(f"buffer_load_dword a254, v3, {WS}, s3 offen sc1")

def dma_w1(b, n):
    blk, k = n >> 2, n & 3
    if k == 0:
        b.e(f"s_add_u32 m0, s{sM0}, {(blk % 9) * 16384}\ns_addk_i32 s{sDMA}, 16384")
    return b.vm(f"buffer_load_dwordx4 v4, {WS}, s{sDMA} offen offset:{k * 1024} sc1 lds")

def w2_load(b, m):
    n, dt = divmod(m, 5)
    if m and m % 4 == 0: b.e(f"s_addk_i32 s{sW2}, 4096")
    return b.vm(f"buffer_load_dwordx4 {ar(A_W2 + (n % 8) * 20 + dt * 4, 4)}, v4, {WS}, s{sW2} offen offset:{(m % 4) * 1024} sc1")

def preload(b, lo, hi):
    for n in range(lo, hi):
        if n % 4 == 0:
            b.e(f"""s_lshl_b32 s56, s{sROT}, 14
                s_add_u32 m0, s{sM0}, s56
                s_add_u32 s57, s{sDMA}, s56
                s_add_u32 s{sROT}, s{sROT}, 1
                s_cmp_eq_u32 s{sROT}, 9
                s_cselect_b32 s{sROT}, 0, s{sROT}""")
        b.vm(f"buffer_load_dwordx4 v4, {WS}, s57 offen offset:{(n & 3) * 1024} sc1 lds")
    if hi == 36:
        b.e(f"""s_add_u32 s{sDMA}, s{sDMA}, {8 * 16384}
            v_cmp_lt_u32 vcc, 111, v0
            v_mov_b32 v2, 0
            v_mov_b32 v3, {7168 - 448}
            v_cndmask_b32 v2, v2, v3, vcc
            v_lshl_add_u32 v2, v0, 2, v2
            s_mul_i32 s56, s{sJ}, 448
            s_add_u32 s56, s56, {CSP}""")
        for k in range(7):
            b.vm(f"buffer_load_dword v{16 + k}, v2, {WS}, s56 offen sc1")
            b.e("s_addk_i32 s56, 14336")

def ffn(b):
    b.e(f"""v_add_u32 v5, 0x10000, v4
        v_add_u32 v6, 0x20000, v4
        v_and_b32 v2, 15, v1
        v_lshrrev_b32 v3, 4, v1
        v_lshlrev_b32 v7, 4, v2
        v_lshl_add_u32 v7, v3, 9, v7
        v_lshlrev_b32 v8, 4, v3
        v_add_u32 v8, {CSB}, v8
        v_lshlrev_b32 v9, 4, v2
        s_lshl_b32 s56, s{sI}, 2
        s_add_u32 s56, s56, s{sW}
        s_mul_i32 s{sPAN}, s56, 40960
        s_add_u32 s74, s{sPAN}, {HT}
        s_add_u32 s75, s74, 40960
        s_and_b32 s57, s{sJ}, 3
        s_mul_i32 s57, s57, {5 if OPT.get('krot', 0) else 0}
        s_lshr_b32 s57, s57, 1
        s_lshl_b32 s57, s57, 12
        s_add_u32 s{sPAN}, s74, s57
        s_lshl_b32 s{sSTK}, s56, 8
        s_add_u32 s{sSTK}, s{sSTK}, {ST2}
        s_mul_i32 s56, s56, {2 * 56 * 1024}
        s_add_u32 s56, s56, {HP}""")
    for k in range(2):
        b.e(f"""s_lshl_b32 s57, s{sJ}, 1
            s_add_u32 s57, s57, {k}
            s_and_b32 s58, s57, 3
            s_mul_i32 s58, s58, 14
            s_lshr_b32 s57, s57, 2
            s_add_u32 s57, s57, s58
            s_lshl_b32 s57, s57, 10
            s_add_u32 s{sHP + k}, s56, s57""")
    for k in range(2):
        b.e(f"s_mov_b32 s57, s{sJ}" if k == 0 else f"s_lshr_b32 s57, s{sJ}, 1\ns_add_u32 s57, s57, 15")
        b.e(f"""s_and_b32 s58, s57, 3
            s_lshr_b32 s59, s58, 1
            s_xor_b32 s58, s58, s59
            s_mul_i32 s58, s58, 14
            s_lshr_b32 s57, s57, 2
            s_add_u32 s57, s57, s58
            s_add_u32 s57, s57, 8
            s_lshl_b32 s57, s57, 10
            s_add_u32 s{sHP + 2 + k}, s56, s57""")
    b.e(f"""s_and_b32 s57, s{sJ}, 1
        s_lshl_b32 s57, s57, 3
        s_add_u32 s{sHP + 3}, s{sHP + 3}, s57""")
    for k in range(4):
        b.e(f"""s_xor_b32 s57, s{sW}, {k}
            s_lshl_b32 s58, s{sRHO}, 2
            s_add_u32 s57, s57, s58
            s_mul_i32 s57, s57, 56
            s_mul_i32 s58, s{sW}, 14
            s_add_u32 s57, s57, s58
            s_lshl_b32 s57, s57, 10
            s_add_u32 s{sH0 + k}, s57, {HP}""")
    mk_srd(b, 12, P_OUT, 2621440)
    stamp(b, 'pre_issued')
    sk = lab("np")
    b.e(f"s_cmp_lg_u32 s{sW}, 0\ns_cbranch_scc1 {sk}")
    poll(b.fork(), ld_lines(FLH, 160, 10), cond_lines(160, 10))
    b.e(f"{sk}:")
    b.wait_all()
    b.e(f"""v_add_f32 v16, v16, v17
        v_add_f32 v18, v18, v19
        v_add_f32 v20, v20, v21
        v_add_f32 v16, v16, v22
        v_add_f32 v18, v18, v20
        v_lshlrev_b32 v2, 2, v0
        v_add_u32 v2, {CSB}, v2
        v_add_f32 v16, v16, v18
        ds_write_b32 v2, v16
        s_waitcnt lgkmcnt(0)""")
    b.e("s_barrier")
    stamp(b, 'g1_start')
    if OPT['stop'] == 'pre': stamp_dump(b); b.e("s_endpgm")
    b.e(f"s_cmp_eq_u32 s{sJ}, 15\ns_cbranch_scc1 L_j15")
    g12(b.fork(), 4, 3, False)
    b.e("L_j15:")
    g12(b.fork(), 2, 1, True)

def flag_store(b, base):
    b.e(f"s_lshl_b32 s56, s{sI}, 4\ns_add_u32 s56, s56, s{sJ}")
    arrive(b, base, "s56")
def ld_flags(base):
    return ld_lines(f"s_lshr_b32 s55, s{sRHO}, 1\ns_lshl_b32 s55, s55, 11\ns_add_u32 s55, s55, {base}", 16)
COND_FLAG = cond_lines(16)
def ld_st2(b):
    return b.vm(f"buffer_load_dwordx4 v[28:31], v9, {WS}, s{sSTK} offen sc1")
COND_ST2 = "v_xor_b32 v26, s0, v29\nv_xor_b32 v27, s1, v31\nv_or_b32 v26, v26, v27\nv_cmp_ne_u32 vcc, 0, v26"

def g12(b, np1, np2, stats):
    NK = 20
    ptok = {}
    VT = V_ACC1 if stats else V_ACC2
    VS_ = 112
    def preg(k): return V_PAN + 8 * k if k < 14 else VT + 8 * (k - 14)
    def pan(k, s, first):
        return vr(preg(k) + 4 * s, 4) if (k < 14 or first) else ar(A_PAN + 8 * (k - 14) + 4 * s, 4)
    def pan_load(k):
        if k and k % 2 == 0:
            b.e(f"s_addk_i32 s{sPAN}, 4096")
            if OPT.get('krot', 0): b.e(f"s_cmp_eq_u32 s{sPAN}, s75\ns_cselect_b32 s{sPAN}, s74, s{sPAN}")
        for p in range(2):
            ptok[k] = b.vm(f"buffer_load_dwordx4 {vr(preg(k) + 4 * p, 4)}, v7, {WS}, s{sPAN} offen offset:{(k & 1) * 2048 + p * 256} sc1")
    def pan_fix(k):
        b.wait(vm=ptok[k])
        r = preg(k)
        b.e(f"v_swap_b32 v{r + 2}, v{r + 4}\nv_swap_b32 v{r + 3}, v{r + 5}")
        return [f"v_accvgpr_write_b32 a{A_PAN + 8 * (k - 14) + q}, v{r + q}" for q in range(8)] if k >= 14 else []
    def pan_load_ops(k):
        L = []
        if k and k % 2 == 0:
            L.append((f"s_addk_i32 s{sPAN}, 4096" + (f"\ns_cmp_eq_u32 s{sPAN}, s75\ns_cselect_b32 s{sPAN}, s74, s{sPAN}" if OPT.get('krot', 0) else ""), 1))
        for p in range(2):
            L.append((lambda p=p: ptok.__setitem__(k, b.vm(f"buffer_load_dwordx4 {vr(preg(k) + 4 * p, 4)}, v7, {WS}, s{sPAN} offen offset:{(k & 1) * 2048 + p * 256} sc1")), 2))
        return L
    def pan_fix_ops(k):
        r = preg(k)
        L = [(lambda: b.wait(vm=ptok[k]), 1), (f"v_swap_b32 v{r + 2}, v{r + 4}", 2), (f"v_swap_b32 v{r + 3}, v{r + 5}", 2)]
        if k >= 14: L += [(f"v_accvgpr_write_b32 a{A_PAN + 8 * (k - 14) + q}, v{r + q}", 1) for q in range(8)]
        return L
    LA = OPT.get('la', 5)
    for k in range(LA): pan_load(k)
    nslot1, nslot2 = 2 * np1 * NK, 2 * np2 * NK
    ftok = {}
    ring = dict(vis=9, free=0, rd=-1, used=-1)
    def frag_read(n):
        if n >= nslot1 + nslot2: return
        assert n // 16 < ring['vis'], ("ring RAW", n)
        pos = (n % 144) * 1024
        ftok[n] = b.lg(f"ds_read_b128 {ar(A_RING + (n % 8) * 4, 4)}, v{4 + (pos >> 16)} offset:{pos & 0xffff}")
    FA = OPT.get('fa', 7); WG_ = OPT.get('wg', 4)
    b.e(f"v_add_u32 v24, {56 * 1024}, v4")
    if stats:
        b.e("s_mov_b32 s3, 0x3f803f80\nv_mov_b32 v12, s3\nv_mov_b32 v13, s3\nv_mov_b32 v14, s3\nv_mov_b32 v15, s3")
        pan_fix(0)
        for k in range(NK):
            if k + LA < NK: pan_load(k + LA)
            cp = pan_fix(k + 1) if k + 1 < NK else []
            for s in range(2):
                b.e(f"v_mfma_f32_16x16x32_bf16 {vr(VS_ + 4 * s, 4)}, v[12:15], {pan(k, s, True)}, {'0' if k == 0 else vr(VS_ + 4 * s, 4)}")
                b.e(f"v_mfma_f32_16x16x32_bf16 {vr(VS_ + 8 + 4 * s, 4)}, {pan(k, s, True)}, {pan(k, s, True)}, {'0' if k == 0 else vr(VS_ + 8 + 4 * s, 4)}")
            for c in cp: b.e(c)
        b.e("""v_and_b32 v2, 3, v1
            v_cmp_eq_u32 s[56:57], 1, v2
            v_cmp_eq_u32 s[58:59], 2, v2
            v_cmp_eq_u32 s[74:75], 3, v2
            v_bfe_u32 v2, v1, 2, 2
            v_lshrrev_b32 v3, 4, v1
            v_cmp_eq_u32 s[76:77], v2, v3""")
        for s in range(2):
            g = VS_ + 8 + 4 * s
            b.e(f"v_cndmask_b32 v{g}, v{g}, v{g+1}, s[56:57]\nv_cndmask_b32 v{g}, v{g}, v{g+2}, s[58:59]\nv_cndmask_b32 v{g}, v{g}, v{g+3}, s[74:75]")
            stats_finish(b, VS_ + 4 * s, g, 16 + 2 * s)
        b.e("v_mov_b32 v17, s0\nv_mov_b32 v19, s1\ns_mov_b64 exec, s[76:77]")
        b.vm(f"buffer_store_dwordx4 v[16:19], v9, {WS}, s{sSTK} offen sc1")
        b.e("s_mov_b64 exec, -1")
    for n in range(FA): frag_read(n)
    if not stats: pan_fix(0)
    dman = [36]
    dtok = {}
    def dma_next():
        if dman[0] < 72 and not stats:
            assert (dman[0] // 4 - 9 + 1) * 16 <= ring['free'], ("ring WAR", dman[0])
            dtok[dman[0]] = dma_w1(b, dman[0]); dman[0] += 1
    dq = [36]
    def dma_ops():
        m = dq[0]
        if m >= 72 or stats: return []
        dq[0] += 1
        L = []
        if m % 4 == 0: L.append((f"s_add_u32 m0, s{sM0}, {((m >> 2) % 9) * 16384}\ns_addk_i32 s{sDMA}, 16384", 2))
        def go():
            assert (m // 4 - 9 + 1) * 16 <= ring['free'], ("ring WAR", m)
            dtok[m] = b.vm(f"buffer_load_dwordx4 v4, {WS}, s{sDMA} offen offset:{(m & 3) * 1024} sc1 lds"); dman[0] = m + 1
        L.append((go, 2))
        return L
    def ring_barrier(upto):
        if upto - 1 in dtok: b.wait(vm=dtok[upto - 1])
        else: assert upto == 36 or stats
        b.e("s_barrier")
        ring['vis'] = max(ring['vis'], upto // 4); ring['free'] = ring['used'] + 1
    def epi_ops(acc, tau0, taus, dsts, pk, CA, CB):
        ops = []; st = {}
        def rd(ti):
            if ti >= len(taus): return
            c = (CA, CB)[ti & 1]
            b.lg(f"ds_read_b128 {vr(c, 4)}, v8 offset:{(tau0 + taus[ti]) * 64}")
            st[ti] = b.lg(f"ds_read_b128 {vr(c + 4, 4)}, v8 offset:{448 + (tau0 + taus[ti]) * 64}")
        st['rd'] = rd
        for ti, t in enumerate(taus):
            c0 = (CA, CB)[ti & 1]
            ops.append(lambda ti=ti: (b.wait(lg=st[ti]), rd(ti + 1) if CA != CB else None))
            for s in range(2):
                g = acc + ((t * 2 + 0) * 2 + s) * 4; u = acc + ((t * 2 + 1) * 2 + s) * 4
                if pk:
                    for (r, c) in ((g, c0), (g + 2, c0 + 2), (u, c0 + 4), (u + 2, c0 + 6)):
                        ops.append(lambda r=r, c=c, s=s: b.e(f"v_pk_fma_f32 {vr(r,2)}, {vr(c,2)}, v[12:13], {vr(r,2)} op_sel:[0,{s},0] op_sel_hi:[1,{s},1]"))
                else:
                    for q in range(4):
                        ops.append(lambda r=g + q, c=c0 + q, s=s: b.e(f"v_fmac_f32 v{r}, v{c}, v{12 + s}"))
                    for q in range(4):
                        ops.append(lambda r=u + q, c=c0 + 4 + q, s=s: b.e(f"v_fmac_f32 v{r}, v{c}, v{12 + s}"))
                if s == 1 and CA == CB: ops.append(lambda ti=ti: rd(ti + 1))
                for q in range(4):
                    ops.append(lambda r=g + q: b.e(f"v_max_f32 v{r}, 0, v{r}"))
                if pk:
                    for q in (0, 2):
                        ops.append(lambda r=g + q, u=u + q: b.e(f"v_pk_mul_f32 {vr(r,2)}, {vr(r,2)}, {vr(u,2)}"))
                else:
                    for q in range(4):
                        ops.append(lambda r=g + q, u=u + q: b.e(f"v_mul_f32 v{r}, v{r}, v{u}"))
                d, half, sreg, last = dsts[ti](s)
                for q in range(2):
                    ops.append(lambda d=d + q, r=g + 2 * q: b.e(f"v_cvt_pk_bf16_f32 v{d}, v{r}, v{r + 1}"))
                if last == 4:
                    ops.append(lambda d=d - 2, s=s, sreg=sreg: st.__setitem__('last', b.vm(f"buffer_store_dwordx4 {vr(d,4)}, v{4 if s == 0 else 24}, {WS}, s{sreg} offen sc1")))
                elif last == 2:
                    ops.append(lambda d=d, s=s, sreg=sreg: st.__setitem__('last', b.vm(f"buffer_store_dwordx2 {vr(d,2)}, v{4 if s == 0 else 24}, {WS}, s{sreg} offen sc1")))
                if last: ops[-1].vm = True
        return [(o, 2 if getattr(o, 'vm', False) else 1) for o in ops], st
    def dst_pair(acc, ta, second, sreg):
        def f(s):
            base = acc + ((ta * 2 + 1) * 2 + s) * 4
            return (base + (2 if second else 0), second, sreg, 4 if second else 0)
        return f
    def dst_half(acc, t, sreg):
        def f(s): return (acc + ((t * 2 + 1) * 2 + s) * 4, 0, sreg, 2)
        return f
    d1 = [dst_pair(V_ACC1, 0, False, sHP), dst_pair(V_ACC1, 0, True, sHP), dst_pair(V_ACC1, 2, False, sHP + 1), dst_pair(V_ACC1, 2, True, sHP + 1)]
    ops, est = epi_ops(V_ACC1, 0, list(range(np1)), d1, OPT.get('pk1', 0), 16, 16)
    G = Gaps(b)
    n = 0
    tok = {}
    D1 = OPT.get('d1', 4); D2 = OPT.get('d2', 15)
    NT = nslot1 + nslot2
    def slot(n, k, accb, t, mat, cap=None):
        if n % WG_ == 0: G.now(lambda: b.wait(lg=ftok[min(n + WG_ - 1, NT - 1)]), 1)
        for s in range(2):
            a = accb + ((t * 2 + mat) * 2 + s) * 4
            G.mfma(f"v_mfma_f32_16x16x32_bf16 {vr(a,4)}, {ar(A_RING + (n % 8) * 4, 4)}, {pan(k, s, False)}, {'0' if k == 0 else vr(a,4)}")
            if s == 0: G.now(lambda: frag_read(n + FA), 1)
            G.fill(reserve=1 if (s == 1 and (n + 1) % WG_ == 0) else 0, cap=cap)
        ring['used'] = n
    for k in range(NK):
        if not stats:
            if k + LA < NK:
                for it in pan_load_ops(k + LA): G.add(*it)
            if k + 1 < NK:
                for it in pan_fix_ops(k + 1): G.add(*it)
            if k >= D1:
                for it in dma_ops(): G.add(*it)
            if k >= D2:
                for it in dma_ops() + (dma_ops() if k > 15 else []): G.add(*it)
        if k == OPT.get('t2at', 99): G.add(lambda: w2_touch(b, True), 6)
        if k == OPT.get('t1at', 1) and not stats:
            G.add(f"s_mul_i32 s3, s{sSI}, {136 * 128}\ns_add_u32 s3, s3, s{sDMA}")
            G.add(f"s_sub_u32 s3, s3, s{sM0}\nv_lshlrev_b32 v2, 7, v0"); G.add(f"s_add_u32 s3, s3, 16384\nv_min_u32 v2, {135 * 128}, v2")
            G.add(lambda: b.vm(f"buffer_load_dword a252, v2, {WS}, s3 offen sc1"), 2)
        if k == NK - 2: G.add(lambda: tok.__setitem__('st2', ld_st2(b)), 2)
        if k == NK - 1: G.add(lambda: est['rd'](0), 2)
        for t in range(np1):
            for mat in range(2):
                slot(n, k, V_ACC1, t, mat); n += 1
        G.flush()
        stamp(b, f'p1_{k}')
        if not stats and k in (3, 7, 11, 15, 19):
            ring_barrier(max(36, min(dman[0] - 3, {3: 36, 7: 36, 11: 40, 15: 44, 19: 56}[k]) // 4 * 4))
    st2tok = tok['st2']
    stamp(b, 'p1_end')
    poll(b, ld_st2, COND_ST2, st2tok)
    b.e("v_lshlrev_b32 v12, 16, v28\nv_lshlrev_b32 v13, 16, v30\nv_xor_b32 v12, 0x80000000, v12\nv_xor_b32 v13, 0x80000000, v13")
    htok = {}; wtok = {}
    def g2_setup():
        return [l.strip().replace('|', '\n') for l in f"""s_mul_i32 s50, s{sC}, {1024 * OPT.get('hrot', 1)}
        s_mul_i32 s58, s{sC}, {3 * OPT.get('hrot', 1)}
        s_lshr_b32 s58, s58, 2
        s_lshl_b32 s73, s58, 10
        s_cmp_eq_u32 s{sW}, 3|s_cselect_b32 s59, {7 * 1024}, -1
        s_cmp_eq_u32 s{sW}, 2|s_cselect_b32 s59, {13 * 1024}, s59
        v_and_b32 v2, 15, v1
        v_lshrrev_b32 v3, 4, v1
        v_lshlrev_b32 v14, 4, v2
        v_lshl_add_u32 v14, v3, 8, v14
        s_lshr_b32 s56, s{sW}, 1
        s_lshl_b32 s57, s{sRHO}, 1
        s_add_u32 s56, s56, s57
        s_and_b32 s57, s{sW}, 1
        s_mul_i32 s58, s56, 40960
        s_mul_i32 s3, s{sC}, 5120
        s_add_u32 s58, s58, s3
        s_lshl_b32 s3, s57, 3
        s_add_u32 s58, s58, s3
        s_add_u32 s74, s58, {HT}
        s_add_u32 s75, s74, 4096
        s_lshl_b32 s56, s56, 5
        s_add_u32 s56, s56, s57
        s_lshl_b32 s76, s56, 3
        s_add_u32 s76, s76, {ST2}
        s_mul_i32 s77, s56, 1280
        s_mul_i32 s3, s{sC}, 160
        s_add_u32 s77, s77, s3
        v_mul_u32_u24 v15, 2560, v2
        v_lshl_add_u32 v15, v3, 3, v15""".split("\n")]
    def h_ops(nn):
        if nn >= 14: return []
        def addr():
            if nn < 8: b.e(f"s_add_u32 s56, s50, {nn * 1024}\ns_and_b32 s56, s56, 7168")
            else: b.e(f"s_add_u32 s56, s73, {nn * 1024}\ns_sub_u32 s57, s56, 6144\ns_cmp_ge_u32 s56, {14 * 1024}\ns_cselect_b32 s56, s57, s56")
            b.e(f"s_cmp_eq_u32 s56, s59\ns_cselect_b32 s56, {OOB}, s56")
            b.e(f"v_add_u32 v{25 + (nn & 1) * 2}, s56, v4")
        L = [(addr, 2)]
        for tt in range(4):
            L.append((lambda tt=tt: htok.__setitem__(nn, b.vm(f"buffer_load_dwordx4 {vr(V_HR + (nn % 4) * 16 + tt * 4, 4)}, v{25 + (nn & 1) * 2}, {WS}, s{sH0 + tt} offen sc1")), 2))
        return L
    stg = [40]; stok = {}
    def stage_ops():
        m = stg[0]
        if m >= 60: return []
        stg[0] += 1
        L = []
        if m % 4 == 0: L.append((f"s_add_u32 m0, s{sM0}, {(m - 40) * 1024}\ns_addk_i32 s{sW2}, 4096", 2))
        L.append((lambda: stok.__setitem__(m, b.vm(f"buffer_load_dwordx4 v4, {WS}, s{sW2} offen offset:{(m % 4) * 1024} sc1 lds")), 2))
        return L
    flagged = False
    KE = OPT.get('ke', 17); KF = OPT.get('kflag', 11); KD = OPT.get('kdone', 9)
    if np2 == 3: d2 = [dst_pair(V_ACC2, 0, False, sHP + 2), dst_pair(V_ACC2, 0, True, sHP + 2), dst_half(V_ACC2, 2, sHP + 3)]
    else: d2 = [dst_half(V_ACC2, 0, sHP + 3)]
    ops2, est2 = epi_ops(V_ACC2, np1, list(range(np2)), d2, True, 16, 224)
    oi = 0
    for k in range(NK):
        for _ in range(2):
            for it in dma_ops(): G.add(*it)
        if k < KD:
            hi = (len(ops) * (k + 1)) // KD
            for it in ops[oi:hi]: G.add(*it)
            oi = hi
        if flagged and k <= KE:
            for _ in range(4 if k == KE else 3 + (k & 1)):
                for it in stage_ops(): G.add(*it)
            for _ in range(7):
                if setup: G.add(setup.pop(0))
        if k == KE - 1: G.add(lambda: tok.__setitem__('e', ld_flags(FLE)(b)), 4, front=True)
        tot = sum(c for c, _ in G.q); ng = 4 * np2
        free2 = 2 * ng - 2 * np2 - (2 * np2 + WG_ - 1) // WG_
        for t in range(np2):
            for mat in range(2):
                left = ng - 2 * (t * 2 + mat)
                need = sum(c for c, _ in G.q)
                cap = 2 if need <= free2 * left / ng else (3 if need <= (free2 + ng) * left / ng + 1 else 4 + need // left)
                slot(n, k, V_ACC2, t, mat, cap); n += 1
        G.flush()
        stamp(b, f'p2_{k}')
        if not stats and k == OPT.get('kb', 6): ring_barrier(min(dman[0] - 3, 72) // 4 * 4)
        if k == KF:
            b.wait(vm=est['last'])
            ring_barrier(72)
            flag_store(b, FLE); flagged = True
            assert stats or ring['free'] >= 224
            b.e(f"s_mul_i32 s{sM0}, s{sW}, 20480\nv_add_u32 v10, s{sM0}, v4")
            setup = g2_setup()
        if k == KE:
            assert stg[0] == 60 and not setup
            poll(b, ld_flags(FLE), COND_FLAG, tok['e'])
            stamp(b, 'early_seen')
            for it in h_ops(0): G.add(*it)
        if k == KE + 1 or (k == KE and KE == NK - 1):
            for it in h_ops(1): G.add(*it)
            G.add(lambda: est2['rd'](0), 2)
    G.flush()
    stamp(b, 'p2_end')
    for o, _ in ops2: o()
    for o, _ in h_ops(2): o()
    stamp(b, 'epi2_end')
    lseen = False; hnext = 3
    NF, NL = OPT.get('nf', 1), OPT.get('nl', 5)
    wl = {}
    if NF < 0:
        b.wait(vm=est2['last'])
        b.e("s_barrier")
        flag_store(b, FLL)
        stamp(b, 'late_flag')
    for nn in range(14):
        if hnext <= nn + 3 and (hnext < 8 or lseen):
            while hnext <= min(nn + 3, 13):
                for it in h_ops(hnext): G.add(*it)
                hnext += 1
        if 1 <= nn <= 4:
            G.add(lambda: b.wait(vm=stok[59]), 1)
            for dt in range(5):
                G.add(lambda dt=dt, nn=nn: wl.__setitem__(nn + 7, b.lg(f"ds_read_b128 {ar(A_W2 + (nn - 1) * 20 + dt * 4, 4)}, v10 offset:{((nn - 1) * 5 + dt) * 1024}")), 1)
        if nn in (5, 6):
            for dt in range(5): G.add(lambda dt=dt, nn=nn: wtok.__setitem__(nn + 7, w2_load(b, (nn + 7) * 5 + dt)), 2)
        if nn == max(NF + 1, 1):
            for dt in range(5):
                G.add(lambda dt=dt: b.vm(f"buffer_load_dwordx2 {vr(96 + 2 * dt, 2)}, v14, {WS}, s{74 if dt < 4 else 75} offen offset:{(dt % 4) * 1024} sc1"), 2)
            G.add(lambda: wtok.__setitem__('res', b.vm(f"buffer_load_dword v106, v9, {WS}, s76 offen sc1")), 2)
        if nn == NL - 1: G.add(lambda: wtok.__setitem__('late', ld_flags(FLL)(b)), 4)
        if nn == 12:
            G.add(lambda: (b.wait(vm=wtok['res']), b.e("v_and_b32 v106, 0xffff0000, v106")), 2)
            G.add("v_rcp_f32 v106, v106")
            for dt in range(5):
                for k in range(2):
                    G.add(f"v_lshlrev_b32 v{108 + 4 * dt + 2 * k}, 16, v{96 + 2 * dt + k}\nv_and_b32 v{109 + 4 * dt + 2 * k}, 0xffff0000, v{96 + 2 * dt + k}")
            G.add("v_mul_f32 v106, v106, v106")
        if nn == 13:
            for k in range(3): G.add(f"s_xor_b32 s56, s{sW}, {k + 1}\ns_mul_i32 s56, s56, 15360"); G.add(f"s_add_u32 s56, s56, 81920\nv_add_u32 v{16 + k}, s56, v4")
            G.add(f"s_mul_i32 s56, s{sW}, 15360\ns_add_u32 s56, s56, 81920"); G.add("v_add_u32 v19, s56, v4")
        b.wait(vm=max(htok[nn], wtok.get(nn, -1)), lg=wl.get(nn))
        for dt in range(5):
            for tt in range(4):
                a = V_G2 + (tt * 5 + dt) * 4
                G.mfma(f"v_mfma_f32_16x16x32_bf16 {vr(a,4)}, {ar(A_W2 + (nn % 8) * 20 + dt * 4, 4)}, {vr(V_HR + (nn % 4) * 16 + tt * 4, 4)}, {'0' if nn == 0 else vr(a,4)}")
                G.fill()
        G.flush()
        stamp(b, f'g2_{nn}')
        if nn == NF:
            b.wait(vm=est2['last'])
            b.e("s_barrier")
            flag_store(b, FLL)
        if nn == NL:
            poll(b, ld_flags(FLL), COND_FLAG, wtok['late']); lseen = True
            stamp(b, 'late_seen')
    stamp(b, 'g2_end')
    for tt in range(1, 4):
        for dt in range(5):
            b.lg(f"ds_write_b128 v{15 + tt}, {vr(V_G2 + (tt * 5 + dt) * 4, 4)} offset:{(tt - 1) * 5120 + dt * 1024}")
    b.wait_all(vm=False)
    b.e("s_barrier")
    rk = {}
    for dt in range(5):
        for k in range(3):
            rk[dt] = b.lg(f"ds_read_b128 {vr(164 + (dt * 3 + k) * 4, 4)}, v19 offset:{k * 5120 + dt * 1024}")
    for dt in range(5):
        b.wait(lg=rk[dt])
        a = V_G2 + dt * 4; r = 164 + dt * 12
        for h in (0, 2):
            b.e(f"v_pk_add_f32 {vr(a + h, 2)}, {vr(a + h, 2)}, {vr(r + h, 2)}")
            b.e(f"v_pk_add_f32 {vr(r + 4 + h, 2)}, {vr(r + 4 + h, 2)}, {vr(r + 8 + h, 2)}")
        for h in (0, 2):
            b.e(f"v_pk_add_f32 {vr(a + h, 2)}, {vr(a + h, 2)}, {vr(r + 4 + h, 2)}")
        for h in (0, 2):
            b.e(f"v_pk_fma_f32 {vr(a + h, 2)}, {vr(a + h, 2)}, v[106:107], {vr(108 + 4 * dt + h, 2)} op_sel_hi:[1,0,1]")
        b.e(f"v_cvt_pk_bf16_f32 v{a}, v{a}, v{a + 1}\nv_cvt_pk_bf16_f32 v{a + 1}, v{a + 2}, v{a + 3}")
        b.vm(f"buffer_store_dwordx2 {vr(a, 2)}, v15, {OUT}, s77 offen offset:{dt * 32} {OPT.get('outaux', '')}")
    stamp(b, 'end')
    stamp_dump(b)
    b.e("s_endpgm")
```

```python
import sys, os
from asmlib import B, hazard_pass, align_pass, Gaps
KN = "sequential_preLN__ssm_conv_s4__glu_gated_reglu__prompt_kernel"
OPT = dict(stamps=False, stop=None, spin=2000000)

ST1, ST2 = 0, 16384
EPOCH = 32768
FLP2, FLP, FLH, FLE, FLL = 0x1520000, 0x1524000, 0x1528000, 0x1530000, 0x1538000
CSP = 0x1500000
STAMP = 0xC000
XT, HT, W1P, W2P, HP = 0x10000, 0x300000, 0x600000, 0xB00000, 0xE00000
WS_STAMP = 0x1600000
WS_SIZE = 0x1700000
JSTR = 286720
P_X, P_ARE, P_AIM, P_BRE, P_BIM, P_CRE, P_CIM, P_LDT, P_DSK, P_BX, P_WG, P_WU, P_WD, P_OUT, P_DBG, P_WS = [16 + 2 * k for k in range(16)]
sW, sXCD, sI, sJ, sRHO, sC = 48, 49, 51, 52, 53, 54
sSI = 77
SRC = "s[4:7]"; WS = "s[8:11]"; OUT = "s[12:15]"
def sp(r): return f"s[{r}:{r+1}]"
def vr(r, n): return f"v[{r}:{r+n-1}]" if n > 1 else f"v{r}"
def ar(r, n): return f"a[{r}:{r+n-1}]" if n > 1 else f"a{r}"
RSTR = 36160
_lab = [0]
def lab(p):
    _lab[0] += 1; return f"L_{p}{_lab[0]}"

def stamp(b, name):
    st = OPT['stamps']
    if not st or name not in st: return
    r = 78 + 2 * st.index(name)
    b.sm(f"{'s_memtime' if OPT.get('cyc') else 's_memrealtime'} s[{r}:{r+1}]")
def stamp_init(b):
    if OPT['stamps']:
        for r in range(78, 102, 2): b.e(f"s_mov_b64 s[{r}:{r+1}], 0")
def stamp_dump(b):
    if not OPT['stamps']: return
    if OPT.get('amplify'):
        sk = lab("am"); lo = lab("al")
        b.e(f"""s_waitcnt lgkmcnt(0)
            s_cmp_lg_u32 s2, 100
            s_cbranch_scc1 {sk}
            s_sub_u32 s56, s80, s78
            s_mul_i32 s56, s56, 10
            s_min_u32 s56, s56, 100000
            s_memrealtime s[58:59]
            s_waitcnt lgkmcnt(0)
            {lo}:
            s_memrealtime s[60:61]
            s_waitcnt lgkmcnt(0)
            s_sub_u32 s57, s60, s58
            s_cmp_lt_u32 s57, s56
            s_cbranch_scc1 {lo}
            {sk}:""")
        return
    if OPT.get('dbgdump'):
        sk = lab("dd")
        b.e(f"s_waitcnt lgkmcnt(0)\ns_cmp_lg_u32 s{sW}, 0\ns_cbranch_scc1 {sk}\ns_mov_b64 exec, 1\nv_mov_b32 v30, 0\ns_not_b32 s78, s78")
        for k in range(12):
            b.e(f"v_mov_b32 v31, s{78 + 2 * k}\nglobal_atomic_umax v30, v31, {sp(P_DBG)} offset:{4 * k + 4} sc1")
        b.e(f"{sk}:")
        return
    b.e(f"s_waitcnt lgkmcnt(0)\ns_lshl_b32 s3, s2, 2\ns_add_u32 s3, s3, s{sW}\ns_lshl_b32 s3, s3, 7\ns_add_u32 s3, s3, {WS_STAMP}\nv_mov_b32 v30, 0")
    for k in range(12):
        b.e(f"v_mov_b32 v31, s{78 + 2 * k}\nbuffer_store_dword v31, v30, {WS}, s3 offen offset:{4 * k}")

def poll(b, load, cond, tok=None, sleep=0):
    if tok is None: tok = load(b)
    b.wait(vm=tok)
    lo, ok = lab("poll"), lab("ok")
    b.e(cond)
    b.e(f"s_cbranch_vccz {ok}\ns_mov_b32 s3, 0\n{lo}:")
    if sleep or OPT.get('backoff', 0): b.e(f"s_sleep {sleep or OPT['backoff']}")
    f = b.fork(); load(f); f.wait_all(lg=False)
    b.e(cond)
    b.e(f"s_add_u32 s3, s3, 1\ns_cmp_gt_u32 s3, {OPT['spin']}\ns_cbranch_scc1 {ok}\ns_cbranch_vccnz {lo}\n{ok}:")

def ld_ready(b, every=False):
    b.e("v_mov_b32 v26, 0" if every else f"s_lshl_b32 s55, s{sW}, 8\nv_mov_b32 v26, s55")
    return b.vm(f"buffer_load_dwordx4 v[28:31], v26, {OUT}, 0 offen sc1")
COND_READY = "v_xor_b32 v26, v28, v30\nv_xor_b32 v27, v29, v31\nv_and_b32 v26, v26, v27\nv_cmp_ne_u32 vcc, -1, v26"

def code_prefetch(b, stage):
    if stage == 1:
        b.e(f"""s_getpc_b64 s[76:77]
            L_pc:
            s_sub_u32 s76, s76, L_pc-{KN}
            s_subb_u32 s77, s77, 0
            s_lshr_b32 s55, s2, 3
            s_lshl_b32 s55, s55, 2
            s_add_u32 s55, s55, s{sW}
            s_and_b32 s55, s55, 31""")
    lo, hi = (KN, "L_stage2") if stage == 1 else ("L_stage2", "L_code_end")
    if OPT.get('cpf1', 1):
        if stage == 2: return
        hi = "L_code_end"
    nl = f"((({hi}-{lo})+4095)/4096)"
    b.e(f"""s_mul_i32 s3, s55, {nl}*128
        s_add_u32 s3, s3, {lo}-{KN}
        v_min_u32 v26, {nl}-1, v1
        v_lshl_add_u32 v26, v26, 7, s3
        s_mov_b32 s3, L_code_end-{KN}-4
        v_min_u32 v26, s3, v26""")
    b.vm(f"global_load_dword a{253 + stage}, v26, s[76:77]")

def mk_srd(b, r, ptr, size):
    b.e(f"s_mov_b32 s{r}, s{ptr}\ns_mov_b32 s{r+1}, s{ptr+1}\ns_mov_b32 s{r+2}, {size}\ns_mov_b32 s{r+3}, 0x20000")

LNB = 143104
LNS = LNB - 128
OOB = 0x40000000
def entry(b):
    stamp_init(b)
    stamp(b, 'top')
    b.e(f"s_load_dwordx16 s[16:31], s[0:1], 0\ns_load_dwordx16 s[32:47], s[0:1], 64")
    b.e("s_cmp_ge_u32 s2, 256\ns_cbranch_scc1 L_exit")
    b.e(f"""v_lshrrev_b32 v2, 6, v0
        v_and_b32 v1, 63, v0
        v_readfirstlane_b32 s{sW}, v2
        s_and_b32 s{sXCD}, s2, 7""")
    code_prefetch(b, 1)
    b.e(f"""s_sub_u32 s50, s2, 96
        s_cmp_lt_u32 s50, 128
        s_cselect_b32 s60, 0, {OOB}
        v_lshl_add_u32 v2, v1, 4, s60
        s_mul_i32 s57, s50, 20480
        s_mul_i32 s58, s{sW}, 5120
        s_add_u32 s57, s57, s58
        s_mul_i32 s58, s{sW}, 5184
        s_add_u32 s58, s58, {LNB}
        s_mov_b32 m0, s58
        s_mov_b32 s6, 2621440
        s_mov_b32 s7, 0x20000
        s_mov_b32 s10, {WS_SIZE}
        s_mov_b32 s11, 0x20000
        s_mov_b32 s14, 128
        s_mov_b32 s15, 0x20000
        s_waitcnt lgkmcnt(0)
        s_mov_b32 s4, s{P_X}
        s_mov_b32 s5, s{P_X + 1}
        s_add_u32 s8, s{P_WS}, {OPT.get('wsoff', 0)}
        s_addc_u32 s9, s{P_WS + 1}, 0
        s_mov_b32 s12, s{P_DBG}
        s_mov_b32 s13, s{P_DBG + 1}
        s_cmp_lt_u32 s2, 96
        s_cbranch_scc1 L_help""")
    c = b.fork()
    c.e(f"""s_lshl_b32 s59, s50, 3
        s_lshl_b32 s61, s50, 10
        s_lshl_b32 s56, s{sW}, 8
        s_add_u32 s61, s61, s56
        v_lshl_add_u32 v3, v1, 2, s61""")
    pt = []
    for k, p in enumerate((P_ARE, P_AIM, P_BRE, P_BIM, P_CRE, P_CIM)):
        pt.append(c.vm(f"global_load_dword v{4 + k}, v3, {sp(p)} nt"))
    for p in range(2):
        if p: c.e("s_add_u32 m0, s58, 2592\ns_addk_i32 s57, 2560")
        for k in range(3):
            if k == 2: c.e("s_mov_b32 exec_hi, 0")
            t = c.vm(f"buffer_load_dwordx4 v2, {SRC}, s57 offen offset:{k * 1024} nt lds")
        c.e("s_mov_b32 exec_hi, -1")
    stamp(c, 'start')
    c.sm(f"s_load_dwordx2 s[62:63], {sp(P_LDT)}, s59\ns_load_dwordx2 s[64:65], {sp(P_DSK)}, s59")
    c.e("s_branch L_conv")
    b.e(f"""L_help:
        s_cmp_lg_u32 s2, 0
        s_cbranch_scc1 L_noinit
        s_cmp_lg_u32 s{sW}, 3
        s_cbranch_scc1 L_noinit
        v_mov_b32 v4, 0
        s_mov_b32 s56, {EPOCH}
        buffer_load_dwordx2 v[8:9], v4, {WS}, s56 offen sc1
        v_lshlrev_b32 v10, 4, v1
        s_waitcnt vmcnt(0)
        v_add_co_u32 v12, vcc, 1, v8
        v_addc_co_u32 v13, vcc, 0, v9, vcc
        v_not_b32 v14, v12
        v_not_b32 v15, v13
        buffer_store_dwordx4 v[12:15], v10, {OUT}, 0 offen sc1
        s_mov_b64 exec, 1
        buffer_store_dwordx2 v[12:13], v4, {WS}, s56 offen sc1
        s_mov_b64 exec, -1
        L_noinit:""")
    return t, c, pt

def ln1_a(b, xtok, R):
    b.e(f"""v_and_b32 v2, 7, v1
        v_lshrrev_b32 v3, 3, v1
        v_mul_u32_u24 v16, 2592, v2
        v_lshl_add_u32 v16, v3, 3, v16
        s_lshl_b32 s3, s{sW}, 6
        s_add_u32 s3, s3, {LNB}
        v_add_u32 v16, s3, v16
        v_lshlrev_b32 v17, 8, v3
        v_lshl_add_u32 v17, v2, 4, v17
        s_lshl_b32 s3, s{sW}, 11
        s_add_u32 s3, s3, s60
        v_add_u32 v17, s3, v17
        v_lshrrev_b32 v2, 5, v1
        v_bfe_u32 v3, v1, 4, 1
        v_mul_u32_u24 v18, 2592, v2
        v_mul_u32_u24 v3, 1280, v3
        v_and_b32 v2, 15, v1
        v_lshl_add_u32 v18, v2, 4, v18
        v_add3_u32 v18, v18, v3, s58
        s_lshl_b32 s3, s{sW}, 4
        s_add_u32 s3, s3, {LNS}
        v_lshrrev_b32 v2, 4, v1
        v_lshl_add_u32 v19, v2, 2, s3
        s_lshr_b32 s57, s50, 1
        s_mul_i32 s57, s57, 40960
        s_and_b32 s3, s50, 1
        s_lshl_b32 s3, s3, 7
        s_add_u32 s57, s57, s3
        s_add_u32 s57, s57, {XT}
        s_mov_b32 s56, 0x3f803f80""")
    b.wait(vm=xtok)
    b.e("s_barrier")
    stamp(b, 'ln_x')
    tk = []
    for k in range(5):
        b.lg(f"ds_read_b64 {vr(R + 4 * k, 2)}, v16 offset:{256 * k}")
        tk.append(b.lg(f"ds_read_b64 {vr(R + 4 * k + 2, 2)}, v16 offset:{256 * k + 1280}"))
    st = [b.lg(f"ds_read_b128 {vr(R + 20 + 4 * k, 4)}, v18 offset:{256 * k}") for k in range(5)]
    for k in range(5):
        b.wait(lg=tk[k])
        last = b.vm(f"buffer_store_dwordx4 {vr(R + 4 * k, 4)}, v17, {WS}, s57 offen sc1")
        if k < 4: b.e("s_addk_i32 s57, 8192")
    ld_ready(b)
    for k in range(20):
        r = R + 20 + k
        if k % 4 == 0: b.wait(lg=st[k // 4])
        b.e(f"v_dot2_f32_bf16 v{20 + (k & 1)}, v{r}, s56, {'0' if k < 2 else f'v{20 + (k & 1)}'}")
        b.e(f"v_dot2_f32_bf16 v{22 + (k & 1)}, v{r}, v{r}, {'0' if k < 2 else f'v{22 + (k & 1)}'}")
    b.e("v_add_f32 v20, v20, v21\nv_add_f32 v22, v22, v23")
    for m in ("quad_perm:[1,0,3,2]", "quad_perm:[2,3,0,1]", "row_half_mirror", "row_mirror"):
        b.e(f"v_add_f32_dpp v20, v20, v20 {m} row_mask:0xf bank_mask:0xf\nv_add_f32_dpp v22, v22, v22 {m} row_mask:0xf bank_mask:0xf")
    stats_finish(b, 20, 22, 21)
    b.e("s_mov_b32 exec_lo, 0x10001\ns_mov_b32 exec_hi, 0x10001")
    b.lg("ds_write_b32 v19, v21")
    b.e("s_mov_b64 exec, -1")
    stamp(b, 'ln_a')
    return last

def ln1_b(b, last):
    last = last + 1
    sk0 = lab("l0")
    b.wait(vm=last, lg=b.li - 1)
    stamp(b, 'ln_drain')
    b.e(f"s_cmp_lg_u32 s{sW}, 0\ns_cbranch_scc1 {sk0}")
    f = b.fork()
    poll(f, ld_ready, COND_READY, last)
    f.e(f"v_mov_b32 v2, {LNS + 64}\nds_write_b64 v2, v[28:29]\ns_waitcnt lgkmcnt(0)")
    b.e(f"{sk0}:\ns_barrier")
    b.e(f"""v_mov_b32 v2, {LNS + 64}
        v_and_b32 v26, 7, v1
        v_lshlrev_b32 v26, 3, v26
        v_add_u32 v26, {LNS}, v26""")
    b.lg("ds_read_b64 v[28:29], v2")
    t = b.lg("ds_read_b64 v[2:3], v26")
    b.e(f"""s_lshl_b32 s3, s{sW}, 30
        s_or_b32 s3, s3, s60
        v_lshl_add_u32 v27, v1, 4, s3
        s_lshl_b32 s56, s50, 7""")
    b.wait(lg=t)
    b.e(f"""v_readfirstlane_b32 s0, v28
        v_readfirstlane_b32 s1, v29
        v_mov_b32 v31, v29
        v_mov_b32 v29, v28
        v_mov_b32 v28, v2
        v_mov_b32 v30, v3
        s_mov_b64 exec, 0xff""")
    b.vm(f"buffer_store_dwordx4 v[28:31], v27, {WS}, s56 offen sc1")
    b.e("s_mov_b64 exec, -1")
    stamp(b, 'ln_done')

def w_prefetch(b):
    b.e(f"""s_lshl_b32 s3, s50, 2
        s_add_u32 s3, s3, s{sW}
        s_mul_i32 s3, s3, {27 * 128}
        v_min_u32 v2, 26, v1
        v_lshl_add_u32 v2, v2, 7, s3""")
    for k, p in enumerate((P_WG, P_WU, P_WD)):
        b.vm(f"global_load_dword a{251 + k}, v2, {sp(p)}")

def stats_finish(b, vs, vq, vo):
    b.e(f"""s_mov_b32 s3, 0x3acccccd
        v_mul_f32 v{vs}, s3, v{vs}
        v_mul_f32 v{vq}, s3, v{vq}
        v_fma_f32 v{vq}, -v{vs}, v{vs}, v{vq}
        v_max_f32 v{vq}, 0, v{vq}
        v_cvt_pk_bf16_f32 v{vq}, v{vq}, v{vq}
        v_lshlrev_b32 v{vq}, 16, v{vq}
        v_add_f32 v{vq}, 0x3727c5ac, v{vq}
        v_cvt_pk_bf16_f32 v{vq}, v{vq}, v{vq}
        v_lshlrev_b32 v{vq}, 16, v{vq}
        v_sqrt_f32 v{vq}, v{vq}
        v_cvt_pk_bf16_f32 v{vo}, v{vs}, v{vq}""")

def pack(b):
    mk_srd(b, 4, P_WD, 2211840)
    b.e(f"""s_mul_i32 s50, s{sW}, 20480
        s_mul_i32 s56, s2, 3
        s_add_u32 s56, s56, s{sW}
        s_cmp_lt_u32 s{sW}, 3
        s_cselect_b32 s56, s56, 999
        s_cmp_lt_u32 s56, 270
        s_cselect_b32 s76, 0, {OOB}
        s_cmp_lt_u32 s56, 280
        s_cselect_b32 s66, 0, {OOB}
        s_cselect_b32 s56, s56, 0
        s_mul_i32 s60, s56, 13108
        s_lshr_b32 s60, s60, 16
        s_mul_i32 s59, s60, 5
        s_sub_u32 s59, s56, s59
        s_cmp_ge_u32 s60, 31
        s_cbranch_scc1 L_w2late
        s_lshr_b32 s61, s60, 1
        s_mul_i32 s61, s61, 112
        s_and_b32 s62, s60, 1
        s_lshl_b32 s62, s62, 5
        s_add_u32 s61, s61, s62
        s_add_u32 s62, s61, 16
        s_and_b32 s63, s60, 3
        s_lshr_b32 s64, s60, 2
        s_branch L_w2go
        L_w2late:
        s_sub_u32 s60, s60, 31
        s_mul_i32 s61, s60, 112
        s_add_u32 s61, s61, 64
        s_add_u32 s62, s61, 16
        s_sub_u32 s64, s60, 15
        s_mul_i32 s64, s64, 224
        s_add_u32 s64, s64, 96
        s_add_u32 s65, s64, 112
        s_min_u32 s65, s65, 1712
        s_cmp_lt_u32 s60, 15
        s_cselect_b32 s61, s61, s64
        s_cselect_b32 s62, s62, s65
        s_and_b32 s63, s60, 3
        s_lshr_b32 s64, s63, 1
        s_xor_b32 s63, s63, s64
        s_lshr_b32 s64, s60, 2
        s_add_u32 s64, s64, 8
        s_cmp_eq_u32 s60, 24
        s_cselect_b32 s63, 3, s63
        s_cselect_b32 s64, 7, s64
        L_w2go:
        v_lshrrev_b32 v4, 4, v1
        v_and_b32 v5, 15, v1
        v_lshlrev_b32 v6, 1, v4
        v_xor_b32 v6, v6, v5
        v_mul_u32_u24 v7, 1280, v4
        v_lshl_add_u32 v24, v6, 4, v7
        v_add_u32 v24, s76, v24
        v_xor_b32 v25, 0x80, v24
        s_lshl_b32 s65, s59, 8
        s_mul_i32 s61, s61, 1280
        s_mul_i32 s62, s62, 1280
        s_add_u32 s61, s61, s65
        s_add_u32 s62, s62, s65""")
    for m in range(8):
        b.e(f"s_add_u32 m0, s50, {m * 1024}" + (f"\ns_addk_i32 s{61 + (m >> 2)}, 5120" if m & 3 else ""))
        ta = b.vm(f"buffer_load_dwordx4 v{24 + (m & 1)}, {SRC}, s{61 + (m >> 2)} offen nt lds")
    b.e(f"""s_lshl_b32 s56, s2, 2
        s_add_u32 s56, s56, s{sW}
        s_cmp_lt_u32 s56, 378
        s_cselect_b32 s67, 0, {OOB}
        s_cselect_b32 s56, s56, 0
        s_mul_i32 s60, s56, 9363
        s_lshr_b32 s60, s60, 16
        s_mul_i32 s68, s60, 7
        s_sub_u32 s68, s56, s68
        s_and_b32 s69, s60, 1
        s_lshr_b32 s60, s60, 1
        s_cmp_eq_u32 s69, 0
        s_cselect_b32 s4, s{P_WG}, s{P_WU}
        s_cselect_b32 s5, s{P_WG+1}, s{P_WU+1}
        v_lshrrev_b32 v6, 3, v1
        v_and_b32 v7, 7, v1
        v_bfe_u32 v8, v1, 4, 1
        v_lshlrev_b32 v8, 1, v8
        v_xor_b32 v7, v7, v8
        v_mul_u32_u24 v6, 3456, v6
        v_lshl_add_u32 v12, v7, 4, v6
        v_add_u32 v12, s67, v12
        v_xor_b32 v13, 0x40, v12
        s_cmp_eq_u32 s68, 6
        s_cselect_b32 s56, {OOB}, 0
        v_or_b32 v14, s56, v12
        v_or_b32 v15, s56, v13
        s_mul_i32 s61, s68, {96 * 3456}
        s_lshl_b32 s62, s60, 7
        s_add_u32 s61, s61, s62""")
    tb = []
    def bdma(m):
        b.e(f"s_add_u32 m0, s50, {8192 + m * 1024}" + ("\ns_addk_i32 s61, 27648" if m else "\ns_nop 0"))
        tb.append(b.vm(f"buffer_load_dwordx4 v{(14 if m >= 8 else 12) + (m & 1)}, {SRC}, s61 offen nt lds"))
    NB1 = OPT.get('nb1', 0)
    for m in range(NB1): bdma(m)
    b.e("""s_mul_i32 s63, s63, 14
        s_lshl_b32 s56, s59, 3
        s_mul_i32 s57, s56, 205
        s_lshr_b32 s57, s57, 10
        s_mul_i32 s62, s57, 5
        s_sub_u32 s56, s56, s62""")
    for i3 in range(3):
        b.e(f"""s_mul_i32 s62, s57, {OPT.get('hrot', 1)}
            s_sub_u32 s70, s64, s62
            s_and_b32 s70, s70, 7
            s_mul_i32 s62, s62, 3
            s_lshr_b32 s62, s62, 2
            s_sub_u32 s71, s64, s62
            s_add_u32 s72, s71, 6
            s_cmp_lt_u32 s71, 8
            s_cselect_b32 s71, s72, s71
            s_cmp_lt_u32 s64, 8
            s_cselect_b32 s70, s70, s71
            s_mul_i32 s71, s57, 56
            s_add_u32 s71, s71, s63
            s_add_u32 s71, s71, s70
            s_mul_i32 s71, s71, 5
            s_add_u32 s71, s71, s56
            s_lshl_b32 s71, s71, 10
            s_add_u32 s{73 + i3}, s71, {W2P - 5 * i3 * 1024}
            s_add_u32 s57, s57, 1""")
    for t in range(8):
        b.e(f"""s_cmp_ge_u32 s56, {max(5 - t, 0)}
            s_cselect_b32 s71, s74, s73
            s_cmp_ge_u32 s56, {10 - t}
            s_cselect_b32 s71, s75, s71
            s_add_u32 s{16 + t}, s71, {t * 1024}""")
    b.e(f"""v_bfe_u32 v6, v1, 2, 2
        v_and_b32 v11, 1, v4
        v_lshl_add_u32 v11, v11, 2, v6
        v_lshlrev_b32 v11, 5, v11
        v_lshl_add_u32 v11, v6, 8, v11
        v_lshl_add_u32 v11, v4, 10, v11
        v_and_b32 v6, 3, v1
        v_lshl_add_u32 v11, v6, 3, v11
        v_add_u32 v11, s50, v11
        v_lshlrev_b32 v9, 4, v1
        v_add_u32 v10, s66, v9
        """)
    b.wait(vm=ta)
    stamp(b, 'pkA_loaded')
    tk = []
    for t in range(8):
        b.e(f"v_xor_b32 v{98 + t}, {t << 5}, v11")
        b.lg(f"ds_read_b64_tr_b16 {vr(64 + 4 * t, 2)}, v{98 + t}")
        tk.append(b.lg(f"ds_read_b64_tr_b16 {vr(66 + 4 * t, 2)}, v{98 + t} offset:4096"))
    for t in range(8):
        b.wait(lg=tk[t])
        sa = b.vm(f"buffer_store_dwordx4 {vr(64 + 4 * t, 4)}, v10, {WS}, s{16 + t} offen sc1")
    rt = ld_ready(b, True)
    NB2 = OPT.get('nb2', 6)
    for m in range(NB1, NB2): bdma(m)
    for t in range(4):
        T, J, TA, BS, STR = 62, 63, 64, 24 + 2 * t, 25 + 2 * t
        b.e(f"""s_lshl_b32 s{T}, s60, 2
            s_add_u32 s{T}, s{T}, {t}
            s_mul_i32 s{J}, s{T}, 9363
            s_lshr_b32 s{J}, s{J}, 16
            s_mul_i32 s{TA}, s{J}, 7
            s_sub_u32 s{TA}, s{T}, s{TA}
            s_cmp_eq_u32 s{J}, 15
            s_cselect_b32 s65, 2, 4
            s_cselect_b32 s56, 1, 3
            s_mul_i32 s57, s65, 40
            s_cmp_lt_u32 s{TA}, s65
            s_cselect_b32 s{STR}, s65, s56
            s_cselect_b32 s57, 0, s57
            s_cselect_b32 s65, 0, s65
            s_sub_u32 s{TA}, s{TA}, s65
            s_lshl_b32 s{TA}, s{TA}, 1
            s_add_u32 s{TA}, s{TA}, s69
            s_add_u32 s{TA}, s{TA}, s57
            s_lshl_b32 s{STR}, s{STR}, 11
            s_lshl_b32 s{TA}, s{TA}, 10
            s_and_b32 s56, s{J}, 3
            s_mul_i32 s56, s56, {5 if OPT.get('krot', 0) else 0}
            s_and_b32 s56, s56, -2
            s_mul_i32 s57, s68, 3
            s_add_u32 s57, s57, 20
            s_sub_u32 s{70 + t}, s57, s56
            s_mul_i32 s{J}, s{J}, {JSTR}
            s_add_u32 s{BS}, s{J}, s{TA}
            s_add_u32 s{BS}, s{BS}, {W1P}""")
    b.e(f"""v_bfe_u32 v6, v1, 2, 2
        v_bfe_u32 v7, v1, 3, 1
        v_and_b32 v8, 1, v4
        v_lshl_add_u32 v7, v8, 1, v7
        v_lshlrev_b32 v7, 5, v7
        v_lshl_add_u32 v7, v6, 7, v7
        v_lshl_add_u32 v7, v4, 10, v7
        v_and_b32 v6, 3, v1
        v_lshl_add_u32 v7, v6, 3, v7
        s_add_u32 s56, s50, 8192
        v_add_u32 v56, s56, v7
        v_xor_b32 v57, 32, v56
        v_xor_b32 v58, 64, v56
        v_xor_b32 v59, 0x60, v56
        v_add_u32 v96, s67, v9
        s_cmp_eq_u32 s68, 6
        s_cselect_b32 s56, {OOB}, s67
        v_add_u32 v97, s56, v9
        s_mov_b32 s3, 0x3f803f80
        v_mov_b32 v60, s3
        v_mov_b32 v61, s3
        v_mov_b32 v62, s3
        v_mov_b32 v63, s3""")
    poll(b, lambda bb: ld_ready(bb, True), COND_READY, rt)
    b.e("v_readfirstlane_b32 s0, v28\nv_readfirstlane_b32 s1, v29")
    b.e("s_barrier")
    arrive(b, FLP2, "s2")
    stamp(b, 'pkA_done')
    for m in range(NB2, 12): bdma(m)
    for k in range(3):
        b.wait(vm=tb[4 * k + 3])
        if k == 2: stamp(b, 'pk_loaded')
        tk = []
        for t in range(4):
            r = 128 + (k * 4 + t) * 4
            b.lg(f"ds_read_b64_tr_b16 {vr(r, 2)}, v{56 + t} offset:{k * 4096}")
            tk.append(b.lg(f"ds_read_b64_tr_b16 {vr(r + 2, 2)}, v{56 + t} offset:{k * 4096 + 512}"))
        for t in range(4):
            r = 128 + (k * 4 + t) * 4
            b.e(f"""s_add_u32 s56, s{70 + t}, {k}
                s_sub_u32 s57, s56, 20
                s_cmp_ge_u32 s56, 20
                s_cselect_b32 s56, s57, s56
                s_sub_u32 s57, s56, 20
                s_cmp_ge_u32 s56, 20
                s_cselect_b32 s56, s57, s56
                s_mul_i32 s56, s56, s{25 + 2 * t}
                s_add_u32 s57, s56, s{24 + 2 * t}""")
            b.wait(lg=tk[t])
            b.vm(f"buffer_store_dwordx4 {vr(r, 4)}, v{97 if k == 2 else 96}, {WS}, s57 offen sc1")
            b.e(f"v_mfma_f32_16x16x32_bf16 {vr(112 + 4 * t, 4)}, {vr(r, 4)}, v[60:63], {'0' if k == 0 else vr(112 + 4 * t, 4)}")
    b.e(f"""v_lshlrev_b32 v2, 4, v4
        v_add_u32 v2, s67, v2
        s_lshl_b32 s56, s68, 1
        s_add_u32 s56, s56, s69
        s_mul_i32 s56, s56, 7168
        s_lshl_b32 s57, s60, 8
        s_add_u32 s56, s56, s57
        s_add_u32 s56, s56, {CSP}
        s_mov_b32 exec_lo, 0x10001
        s_mov_b32 exec_hi, 0x10001""")
    for t in range(4):
        b.vm(f"buffer_store_dwordx4 {vr(112 + 4 * t, 4)}, v2, {WS}, s56 offen offset:{t * 64} sc1")
    b.e("s_mov_b64 exec, -1")
    stamp(b, 'pk_stored')
    b.wait_all()
    b.e("s_barrier")
    arrive(b, FLP, "s2")
    stamp(b, 'pack_done')

def arrive(b, base, idx):
    b.e(f"""s_lshl_b32 s3, {idx}, 7
        s_add_u32 s3, s3, {base}
        s_lshl_b32 s55, s{sW}, 30
        v_lshl_add_u32 v26, v1, 3, s55
        v_mov_b32 v28, s0
        v_mov_b32 v29, s1
        s_mov_b64 exec, 0xff""")
    t = b.vm(f"buffer_store_dwordx2 v[28:29], v26, {WS}, s3 offen sc1")
    b.e("s_mov_b64 exec, -1")
    return t

def ld_lines(base, n, R=28):
    def f(b):
        b.e(f"s_mov_b32 s55, {base}" if isinstance(base, int) else base)
        for k in range((n + 63) // 64):
            lim = n - 1 - 64 * k
            b.e((f"v_min_u32 v26, {lim}, v1\nv_lshlrev_b32 v26, 7, v26" if lim < 63 else "v_lshlrev_b32 v26, 7, v1") + (f"\nv_add_u32 v26, {8192 * k}, v26" if k else ""))
            t = b.vm(f"buffer_load_dwordx2 {vr(R + 2 * k, 2)}, v26, {WS}, s55 offen sc1")
        return t
    return f
def ld_quarter(base):
    return ld_lines(f"s_mul_i32 s55, s{sW}, {24 * 128}\ns_add_u32 s55, s55, {base}", 24)
def cond_lines(n, R=28):
    t = []
    for k in range((n + 63) // 64):
        t.append(f"v_xor_b32 v{R + 2 * k}, s0, v{R + 2 * k}\nv_xor_b32 v{R + 1 + 2 * k}, s1, v{R + 1 + 2 * k}")
        t.append(f"v_or3_b32 v26, v26, v{R + 2 * k}, v{R + 1 + 2 * k}" if k else f"v_or_b32 v26, v{R}, v{R + 1}")
    return "\n".join(t) + "\nv_cmp_ne_u32 vcc, 0, v26"

L2E, L2E_LO, LN2 = 0x3FB8AA3B, 0x32A57060, 0x3F317218
def cmul(b, o, x, w, t):
    b.e(f"v_pk_mul_f32 {vr(t,2)}, {vr(x,2)}, {vr(w,2)} op_sel_hi:[1,0]")
    b.e(f"v_pk_fma_f32 {vr(o,2)}, {vr(x,2)}, {vr(w,2)}, {vr(t,2)} op_sel:[1,1,0] op_sel_hi:[0,1,1] neg_lo:[0,1,0]")

def conv(b, xtok, pt):
    b.e("L_conv:")
    b.e(f"""s_mul_i32 s61, s{sW}, {RSTR}
        v_lshl_add_u32 v10, v1, 3, s61
        v_and_b32 v2, 31, v1
        v_lshrrev_b32 v3, 5, v1
        v_lshl_add_u32 v3, v3, 4, s61
        v_lshrrev_b32 v11, 3, v2
        v_lshlrev_b32 v11, 2, v11
        v_and_b32 v12, 3, v2
        v_add_u32 v11, v11, v12
        v_bfe_u32 v12, v2, 2, 1
        v_lshl_add_u32 v11, v12, 4, v11
        v_and_b32 v13, 1, v2
        v_lshl_add_u32 v12, v12, 1, v13
        v_add_u32 v12, 32, v12
        v_add_u32 v13, 36, v2
        s_movk_i32 s3, 528
        v_mad_u32_u24 v11, v11, s3, v3
        v_mad_u32_u24 v12, v12, s3, v3
        v_mad_u32_u24 v13, v13, s3, v3""")
    b.wait_all(vm=False)
    if OPT.get('wpf', 0) == 1: w_prefetch(b)
    b.e(f"""s_lshr_b32 s3, s{sW}, 1
        s_cmp_eq_u32 s3, 0
        s_cselect_b32 s62, s62, s63
        s_and_b32 s3, s{sW}, 1
        s_lshl_b32 s3, s3, 4
        s_lshr_b32 s62, s62, s3
        s_lshl_b32 s62, s62, 16
        s_mov_b32 s63, 0x{L2E:x}
        v_mov_b32 v14, s62
        v_mul_f32 v15, s63, v14
        v_fma_f32 v16, v14, s63, -v15
        v_fmac_f32 v16, 0x{L2E_LO:x}, v14
        v_exp_f32 v15, v15
        v_mul_f32 v16, 0x{LN2:x}, v16
        v_fmac_f32 v15, v15, v16
        v_cvt_pk_bf16_f32 v15, v15, v15
        v_lshlrev_b32 v14, 16, v15
        s_lshl_b32 s66, s64, 16
        s_and_b32 s67, s64, 0xffff0000
        s_lshl_b32 s68, s65, 16
        s_and_b32 s69, s65, 0xffff0000""")
    AL, BE, CC, Z1, Z8, Z256, T, DB, X, X2, X4, X6, X8, X10, Y = range(0, 30, 2)
    R = lambda n, k: 32 + n * 32 + k
    b.wait(vm=pt[5])
    stamp(b, 'kg_par')
    for n in range(2):
        un = (lambda d, s: f"v_lshlrev_b32 v{d}, 16, v{s}") if n == 0 else (lambda d, s: f"v_and_b32 v{d}, 0xffff0000, v{s}")
        b.e("\n".join([un(R(n, AL), 4), un(R(n, BE), 5), un(R(n, DB), 6), un(R(n, DB) + 1, 7), un(R(n, CC), 8), un(R(n, CC) + 1, 9)]))
    for n in range(2):
        b.e(f"""v_mul_f32 v{R(n,AL)}, v14, v{R(n,AL)}
            v_mul_f32 v{R(n,BE)}, v14, v{R(n,BE)}
            v_mul_f32 v{R(n,DB)}, v14, v{R(n,DB)}
            v_mul_f32 v{R(n,DB)+1}, v14, v{R(n,DB)+1}
            v_mul_f32 v{R(n,AL)}, s63, v{R(n,AL)}
            v_mul_f32 v{R(n,BE)}, 0.15915494, v{R(n,BE)}""")
    for n in range(2): cmul(b, R(n, X), R(n, CC), R(n, DB), R(n, T))
    for (z, p) in ((Z1, None), (Z8, 0x41000000), (Z256, 0x43800000)):
        for n in range(2):
            e, ph = R(n, T), R(n, T) + 1
            if p is None: b.e(f"v_exp_f32 v{e}, v{R(n,AL)}\nv_fract_f32 v{ph}, v{R(n,BE)}")
            else: b.e(f"v_mul_f32 v{e}, 0x{p:x}, v{R(n,AL)}\nv_mul_f32 v{ph}, 0x{p:x}, v{R(n,BE)}\nv_exp_f32 v{e}, v{e}\nv_fract_f32 v{ph}, v{ph}")
        for n in range(2):
            b.e(f"v_cos_f32 v{R(n,z)}, v{R(n,T)+1}\nv_sin_f32 v{R(n,z)+1}, v{R(n,T)+1}")
        for n in range(2):
            b.e(f"v_pk_mul_f32 {vr(R(n,z),2)}, {vr(R(n,z),2)}, {vr(R(n,T),2)} op_sel_hi:[1,0]")
    pk = [0]
    def put(src, rows, neg=False):
        d = 16 + 2 * (pk[0] & 3); pk[0] += 1
        for n in range(2):
            b.e(f"v_cvt_pk_bf16_f32 v{d + n}, v{R(n,src)}, {'-' if neg else ''}v{R(n,src)+1}")
        for r in rows: b.lg(f"ds_write_b64 v10, {vr(d,2)} offset:{r * 528}")
    def mul(o, x, w):
        for n in range(2): b.e(f"v_pk_mul_f32 {vr(R(n,T),2)}, {vr(R(n,x),2)}, {vr(R(n,w),2)} op_sel_hi:[1,0]")
        for n in range(2): b.e(f"v_pk_fma_f32 {vr(R(n,o),2)}, {vr(R(n,x),2)}, {vr(R(n,w),2)}, {vr(R(n,T),2)} op_sel:[1,1,0] op_sel_hi:[0,1,1] neg_lo:[0,1,0]")
    stamp(b, 'kg_base')
    b.e("v_mov_b32 v24, 0x3f80\nv_mov_b32 v25, 0x3f80")
    b.lg(f"ds_write_b64 v10, v[24:25] offset:{36 * 528}")
    put(Z8, [37], True)
    cur = Z8
    for j in range(2, 32):
        mul(Y, cur, Z8); cur = Y; put(Y, [36 + j], True)
        if j == OPT.get('lna_at', 10): b.wait_all(vm=False, force=False); xlast = ln1_a(b, xtok, 96)
        if j == OPT.get('lnb_at', 26): ln1_b(b, xlast)
    put(X, [0])
    keep = {2: X2, 4: X4, 6: X6, 8: X8, 10: X10}
    cur = X
    for o in range(1, 11):
        d = keep.get(o, Y)
        mul(d, cur, Z1); cur = d; put(d, [o])
    for src, rows in ((X, [16, 17]), (X2, [18]), (X4, [19, 20, 21]), (X6, [22]), (X8, [23, 24, 25]), (X10, [26])):
        mul(src, src, Z256); put(src, rows)
    for r0 in (11, 27):
        for k, src in enumerate((X, X4, X8)):
            mul(src, src, Z256); put(src, [r0 + k])
    for r0 in (14, 30, 32, 34):
        for k, src in enumerate((X, X8)):
            mul(src, src, Z256); put(src, [r0 + k])
    VX, VS, VU, SG, XR, RR = 192, 193, 194, 196, 212, 228
    b.e(f"""v_lshrrev_b32 v2, 4, v0
        v_mul_u32_u24 v2, 40960, v2
        v_and_b32 v3, 15, v0
        v_lshl_add_u32 v{VX}, v3, 4, v2
        v_lshlrev_b32 v{VS}, 4, v0
        s_movk_i32 s72, 4096
        s_movk_i32 s73, 8192
        s_movk_i32 s14, 12288
        v_lshlrev_b32 v{VU}, 2, v0
        v_add_u32 v{VU}, {16896 + 512}, v{VU}
        v_add_u32 v{VU + 1}, {2 * RSTR}, v{VU}
        s_lshl_b32 s74, s50, 8
        s_add_u32 s75, s74, {XT}
        s_add_u32 s74, s74, {HT}""")
    def ld_st(bb):
        for q in range(4):
            t = bb.vm(f"buffer_load_dwordx4 {vr(SG + 4 * q, 4)}, v{VS}, {WS}, {('0', 's72', 's73', 's14')[q]} offen sc1")
        return t
    stok = ld_st(b)
    b.wait_all(vm=False)
    stamp(b, 'kg_pow')
    tk = {}
    def rd(ks):
        r = 32 + (ks % 4) * 12
        b.lg(f"ds_read_b128 {vr(r,4)}, v11 offset:{32 * ks}")
        b.lg(f"ds_read_b128 {vr(r+4,4)}, v13 offset:{32 * ks}")
        tk[ks] = b.lg(f"ds_read_b128 {vr(r+8,4)}, v12 offset:{32 * ks}")
    fill = [l.strip() for l in f"""v_sub_u32 v2, 63, v1
        v_lshl_add_u32 v27, v2, 4, s61
        v_lshl_add_u32 v16, v1, 4, s61
        v_lshl_add_u32 v17, v1, 3, s61
        v_and_b32 v2, 15, v1
        v_lshrrev_b32 v3, 4, v1
        v_sub_u32 v4, 2, v2
        v_and_b32 v4, 3, v4
        v_add_u32 v5, v2, v4
        v_sub_u32 v5, 18, v5
        v_lshlrev_b32 v5, 1, v5
        v_mul_u32_u24 v4, 4160, v4
        v_add3_u32 v5, v5, v4, s61
        v_lshl_add_u32 v6, v3, 4, v5
        v_lshlrev_b32 v5, 5, v2
        v_lshl_add_u32 v5, v3, 4, v5
        s_add_u32 s3, s61, 16896
        v_add_u32 v7, s3, v5
        v_lshlrev_b32 v5, 4, v2
        v_lshl_add_u32 v5, v3, 2, v5
        v_add_u32 v8, s61, v5
        v_lshrrev_b32 v5, 2, v2
        v_mul_u32_u24 v5, {RSTR}, v5
        v_lshl_add_u32 v5, v3, 5, v5
        v_and_b32 v4, 3, v2
        v_lshl_add_u32 v5, v4, 3, v5
        s_lshl_b32 s3, s{sW}, 7
        v_add_u32 v9, s3, v5
        v_mov_b32 v20, 0
        v_mov_b32 v21, 0
        v_mov_b32 v22, 0
        v_mov_b32 v23, 0
        v_and_b32 v2, 1, v1
        v_cmp_eq_u32 s[70:71], 0, v2
        v_cmp_eq_u32 s[56:57], 0, v1""".split("\n")]
    fill += [l.strip() for l in ffn_map(False).split("\n")]
    for ks in range(3): rd(ks)
    for ks in range(16):
        r = 32 + (ks % 4) * 12
        b.wait(lg=tk[ks])
        b.e(f"v_mfma_f32_32x32x16_bf16 v[96:111], {vr(r,4)}, {vr(r+4,4)}, {'0' if ks == 0 else 'v[96:111]'}")
        if ks + 3 < 16: rd(ks + 3)
        b.e(f"v_mfma_f32_32x32x16_bf16 v[112:127], {vr(r+8,4)}, {vr(r+4,4)}, {'0' if ks == 0 else 'v[112:127]'}")
        for _ in range(5):
            if fill: b.e(fill.pop(0))
    for l in fill: b.e(l)
    stamp(b, 'kg_mfma')
    cond = "\n".join(f"v_xor_b32 v2, s0, v{SG + 1 + 4 * q}\nv_xor_b32 v3, s1, v{SG + 3 + 4 * q}\n" + (f"v_or3_b32 v5, v2, v3, v5" if q else "v_or_b32 v5, v2, v3") for q in range(4))
    poll(b, ld_st, cond + "\nv_cmp_ne_u32 vcc, 0, v5", stok)
    xt = []
    for q in range(4):
        xt.append(b.vm(f"buffer_load_dwordx4 {vr(XR + 4 * q, 4)}, v{VX}, {WS}, s75 offen sc1"))
        b.e("s_add_u32 s75, s75, 655360")
    p2tok = ld_quarter(FLP2)(b)
    b.e("s_barrier")
    stamp(b, 'st1_seen')
    for k in range(8):
        b.e(f"v_and_b32 v{RR + 2 * k}, 0xffff0000, v{SG + 2 * k}\nv_lshlrev_b32 v{RR + 1 + 2 * k}, 16, v{SG + 2 * k}")
    for k in range(8): b.e(f"v_rcp_f32 v{RR + 2 * k}, v{RR + 2 * k}")
    for k in range(8): b.e(f"v_mul_f32 v{RR + 1 + 2 * k}, -v{RR + 1 + 2 * k}, v{RR + 2 * k}")
    b.e("""v_cmp_eq_u32 vcc, 31, v1
        v_cndmask_b32 v24, 0, v96, s[56:57]
        v_cndmask_b32 v25, 0, v97, s[56:57]
        v_cndmask_b32 v18, 0, v98, s[56:57]
        v_cndmask_b32 v105, v105, v104, vcc
        v_cmp_eq_u32 vcc, 63, v1
        v_cndmask_b32 v14, v111, v110, s[70:71]
        v_cndmask_b32 v15, v113, v112, s[70:71]
        v_cndmask_b32 v106, v106, v104, vcc""")
    pats = [list(range(96, 107)),
            [107] * 3 + [108] * 3 + [109] * 5,
            [110] * 4 + [14] + [111] * 6,
            [112] * 4 + [15] + [113] * 6]
    for rnd, w in enumerate(pats):
        for c in range(4):
            d = 32 + ((rnd * 4 + c) % 8) * 4
            for k in range(4):
                b.e(f"v_cvt_pk_bf16_f32 v{d + k}, v{w[10 - c - 2 * k]}, v{w[9 - c - 2 * k]}")
            b.lg(f"ds_write_b128 v27, {vr(d,4)} offset:{c * 4160 + (3 - rnd) * 1024}")
    b.e("""v_cvt_pk_bf16_f32 v72, v18, v25
        v_cvt_pk_bf16_f32 v73, v24, 0
        v_mov_b32 v74, 0
        v_mov_b32 v75, 0
        v_cvt_pk_bf16_f32 v64, v25, v24
        v_mov_b32 v65, 0
        v_mov_b32 v66, 0
        v_mov_b32 v67, 0
        v_mov_b32 v68, v73
        v_mov_b32 v69, 0
        v_mov_b32 v70, 0
        v_mov_b32 v71, 0""")
    b.lg("ds_write_b64 v17, v[20:21] offset:16896")
    b.e("s_mov_b64 exec, 3")
    for c, d in enumerate((72, 64, 68, 20)):
        b.lg(f"ds_write_b128 v16, {vr(d,4)} offset:{c * 4160 + 4096}")
    b.e("s_mov_b64 exec, -1")
    stamp(b, 'kgen_done')
    b.e("L_stage2:")
    XF, UF = 128, 160
    for q in range(4):
        b.wait(vm=xt[q])
        for k in range(4):
            b.e(f"v_lshlrev_b32 v{XF + 8 * q + 2 * k}, 16, v{XR + 4 * q + k}\nv_and_b32 v{XF + 8 * q + 2 * k + 1}, 0xffff0000, v{XR + 4 * q + k}")
        for k in range(4):
            rr = RR + 2 * (2 * q + (k >> 1))
            b.e(f"v_pk_fma_f32 {vr(UF + 8 * q + 2 * k, 2)}, {vr(XF + 8 * q + 2 * k, 2)}, {vr(rr, 2)}, {vr(rr, 2)} op_sel:[0,0,1] op_sel_hi:[1,0,1]")
        for c in range(4):
            b.e(f"v_cvt_pk_bf16_f32 v{SG + 4 * q + c}, v{UF + 8 * q + c}, v{UF + 8 * q + 4 + c}")
        for c in range(4):
            b.lg(f"ds_write_b32 v{VU + (c >> 1)}, v{SG + 4 * q + c} offset:{(c & 1) * RSTR + q * 1024}")
    if OPT.get('w2t', 1): w2_touch(b, False)
    poll(b, ld_quarter(FLP2), cond_lines(24), p2tok)
    for q in range(4):
        for k in range(4):
            b.e(f"v_pk_fma_f32 {vr(XF + 8 * q + 2 * k, 2)}, {vr(UF + 8 * q + 2 * k, 2)}, s[{66 + 2 * (k & 1)}:{67 + 2 * (k & 1)}], {vr(XF + 8 * q + 2 * k, 2)}")
    b.wait_all(vm=False)
    b.e("s_barrier")
    stamp(b, 'conv_start')
    ACC, VB = 32, 64
    rtok = {}
    def f_rd(it, k):
        d = 2 * it + 1 + 16 * k; r = (it & 1) * 32 + 4 * k
        b.lg(f"ds_read_b64 {ar(r, 2)}, v6 offset:{4064 - 32 * d}")
        rtok[(it, 'f', k)] = b.lg(f"ds_read_b64 {ar(r + 2, 2)}, v6 offset:{4064 - 32 * d + 8}")
    def v_rd(it, k):
        rtok[(it, 'v', k)] = b.lg(f"ds_read_b128 {vr(VB + (it & 1) * 32 + 4 * k, 4)}, v7 offset:{512 + 512 * k - 32 * (2 * it + 1)}")
    f_rd(0, 0)
    for k in range(8): v_rd(0, k)
    f_rd(0, 1); f_rd(0, 2)
    G = Gaps(b)
    for k in range(3, 8): G.add(lambda k=k: f_rd(0, k), 2)
    w2n = 0; W1AT = OPT.get('w1at', 99); W2AT = OPT.get('w2at', 1)
    tok = {}
    for it in range(8):
        par = it & 1
        stamp(b, f'cv_{it}')
        if it < 7:
            for k in range(8):
                G.add(lambda k=k, it=it: f_rd(it + 1, k), 2); G.add(lambda k=k, it=it: v_rd(it + 1, k), 1)
        if it == W1AT:
            G.add(f"v_lshlrev_b32 v2, 7, v0\nv_min_u32 v2, {230 * 128}, v2"); G.add(f"s_mul_i32 s3, s{sSI}, {231 * 128}\ns_add_u32 s3, s3, s{sDMA}")
            G.add(lambda: (b.e(f"s_sub_u32 s3, s3, s{sM0}"), b.vm(f"buffer_load_dword a252, v2, {WS}, s3 offen sc1")), 2)
        if it >= W2AT:
            for _ in range(-(-(40 - w2n) // (8 - it))):
                G.add(lambda m=w2n: w2_load(b, m), 2); w2n += 1
        if it == 6: G.add(lambda: tok.__setitem__('p1', ld_quarter(FLP)(b)), 2)
        for i in range(8):
            for ct in range(i, 8):
                c = '0' if (it == 0 and i == 0) else vr(ACC + 4 * ct, 4)
                G.now(lambda: b.wait(lg=max(rtok[(it, 'f', i)], rtok[(it, 'v', ct - i)])), 1)
                G.mfma(f"v_mfma_f32_16x16x32_bf16 {vr(ACC + 4 * ct, 4)}, {ar(par * 32 + 4 * i, 4)}, {vr(VB + par * 32 + 4 * (ct - i), 4)}, {c}")
                G.fill()
        G.flush()
        if it < 7: b.wait(lg=rtok[(it + 1, 'v', 7)])
    stamp(b, 'conv_end')
    for ct in range(8):
        b.e(f"v_cvt_pk_bf16_f32 v{64 + 2 * ct}, v{ACC + 4 * ct}, v{ACC + 4 * ct + 2}\nv_cvt_pk_bf16_f32 v{65 + 2 * ct}, v{ACC + 4 * ct + 1}, v{ACC + 4 * ct + 3}")
        b.lg(f"ds_write2st64_b32 v8, v{64 + 2 * ct}, v{65 + 2 * ct} offset0:{ct} offset1:{ct + 8}")
    poll(b, ld_quarter(FLP), cond_lines(24), tok['p1'])
    b.wait_all(vm=False)
    stamp(b, 'y_written')
    b.e("s_barrier")
    stamp(b, 'y_bar')
    yt = []
    for q in range(4):
        b.lg(f"ds_read_b64_tr_b16 {vr(80 + 4 * q, 2)}, v9 offset:{512 * q}")
        yt.append(b.lg(f"ds_read_b64_tr_b16 {vr(82 + 4 * q, 2)}, v9 offset:{512 * q + 2048}"))
    for q in range(4):
        b.wait(lg=yt[q])
        for k in range(4):
            b.e(f"v_lshlrev_b32 v{UF + 8 * q + 2 * k}, 16, v{80 + 4 * q + k}\nv_and_b32 v{UF + 8 * q + 2 * k + 1}, 0xffff0000, v{80 + 4 * q + k}")
        for k in range(4):
            b.e(f"v_pk_add_f32 {vr(UF + 8 * q + 2 * k, 2)}, {vr(UF + 8 * q + 2 * k, 2)}, {vr(XF + 8 * q + 2 * k, 2)}")
        for k in range(4):
            b.e(f"v_cvt_pk_bf16_f32 v{96 + 4 * q + k}, v{UF + 8 * q + 2 * k}, v{UF + 8 * q + 2 * k + 1}")
        hs = b.vm(f"buffer_store_dwordx4 {vr(96 + 4 * q, 4)}, v{VX}, {WS}, s74 offen sc1")
        b.e("s_add_u32 s74, s74, 655360")
    stamp(b, 'h_stored')
    return None, hs

from ffn import ffn_map, preload, ffn

def build():
    _lab[0] = 0
    b = B()
    xtok, b3, pt = entry(b)
    b2 = b.fork()
    pack(b2)
    if OPT['stop'] in ('pack', 'conv'): (stamp_dump(b2), b2.e("s_endpgm"))
    b2.e(ffn_map(True))
    poll(b2, ld_lines(FLP2, 96), cond_lines(96))
    w2_touch(b2, False)
    b2.wait_all(lg=False)
    HW = OPT.get('hw2', 20)
    for m in range(HW): w2_load(b2, m)
    stamp(b2, 'w2_issued')
    poll(b2, ld_lines(FLP, 96), cond_lines(96))
    stamp(b2, 'p1_seen')
    preload(b2, 0, 36)
    for m in range(HW, 40): w2_load(b2, m)
    if OPT.get('buddy', 1):
        sk = lab("bd")
        b2.e(f"s_cmp_lg_u32 s{sW}, 0\ns_cbranch_scc1 {sk}")
        poll(b2.fork(), ld_lines(f"s_lshl_b32 s55, s2, 7\ns_add_u32 s55, s55, {FLH}", 1), cond_lines(1), sleep=2)
        b2.e(f"{sk}:")
    b2.e("s_branch L_g1")
    packtok, hs = conv(b3, xtok, pt)
    if OPT['stop'] in ('pack', 'conv'): (stamp_dump(b3), b3.e("s_endpgm"))
    b3.e("s_barrier")
    preload(b3, 0, OPT.get('pre1', 4))
    b3.wait(vm=hs)
    b3.e("s_barrier")
    arrive(b3, FLH, "s50")
    stamp(b3, 'h_arrive')
    preload(b3, OPT.get('pre1', 4), 36)
    b3.e(f"s_add_u32 s{sSI}, s{sSI}, 3\nL_g1:")
    b4 = B(); b4.L = b.L; b4.vi = 100
    ffn(b4)
    b.e("L_exit:\ns_endpgm\nL_code_end:")
    lines, nn = hazard_pass(b.L, verbose=OPT.get('verbose', False))
    if OPT.get('align', 1):
        lines = align_pass([KN + ':'] + lines, nop_cost=OPT.get('nopc', 4.0))[0][1:]
    hdr = open(os.path.join(os.path.dirname(os.path.abspath(__file__)), "header.txt")).read()
    out = hdr + (f"; stamps: {','.join(OPT['stamps'])}\n" if OPT['stamps'] else "") + "; @launch grid=(256,1,1) block=(256,1,1) lds=163840\n"
    out += f'.amdgcn_target "amdgcn-amd-amdhsa--gfx950"\n.text\n.globl {KN}\n.p2align 8\n.type {KN},@function\n{KN}:\n'
    out += "\n".join(("" if l.endswith(":") else "    ") + l for l in lines)
    out += f"""
.section .rodata,"a"
.p2align 6
.amdhsa_kernel {KN}
  .amdhsa_next_free_vgpr 512
  .amdhsa_next_free_sgpr 102
  .amdhsa_accum_offset 256
  .amdhsa_group_segment_fixed_size 0
  .amdhsa_kernarg_size 128
  .amdhsa_user_sgpr_count 2
  .amdhsa_user_sgpr_kernarg_segment_ptr 1
  .amdhsa_system_sgpr_workgroup_id_x 1
.end_amdhsa_kernel
"""
    return out, nn, len(lines)

if __name__ == "__main__":
    import ffn as _f
    for a in sys.argv[2:]:
        k, v = a.split("=")
        OPT[k] = eval(v)
    out, nn, nl = build()
    open(sys.argv[1], "w").write(out)
    print(f"wrote {sys.argv[1]}: {nl} lines, {nn} hazard nops")
```

```python
sPAN, sDMA, sM0, sW2, sH0 = 60, 61, 62, 63, 64
sROT = 59
sHP, sSTK = 68, 72
CSB = 147456
A_PAN, A_RING, A_W2 = 0, 48, 80
V_ACC1, V_ACC2, V_PAN = 32, 96, 144
V_G2, V_HR = 144, 32

def ffn_map(helper):
    if helper:
        t = f"""s_lshr_b32 s76, s2, 3
            s_mul_i32 s{sJ}, s76, 43
            s_lshr_b32 s{sJ}, s{sJ}, 7
            s_mul_i32 s58, s{sJ}, 3
            s_sub_u32 s{sSI}, s76, s58
            s_and_b32 s58, s{sXCD}, 1
            s_mul_i32 s58, s58, 3
            s_add_u32 s{sI}, s{sSI}, s58
            s_mul_i32 s{sROT}, s{sSI}, 3
            s_lshr_b32 s{sC}, s76, 2
            """
    else:
        t = f"""s_lshr_b32 s76, s50, 3
            s_mul_i32 s{sJ}, s76, 52
            s_lshr_b32 s{sJ}, s{sJ}, 8
            s_mul_i32 s58, s{sJ}, 5
            s_sub_u32 s{sSI}, s76, s58
            s_and_b32 s58, s{sXCD}, 1
            s_mul_i32 s58, s58, 5
            s_add_u32 s58, s58, s{sSI}
            s_add_u32 s{sI}, s58, 6
            s_mov_b32 s{sROT}, 0
            s_lshr_b32 s{sC}, s76, 2
            s_add_u32 s{sC}, s{sC}, 3
            """
    return t + f"""s_lshr_b32 s58, s{sXCD}, 1
        s_lshl_b32 s58, s58, 2
        s_add_u32 s{sJ}, s{sJ}, s58
        s_and_b32 s76, s76, 3
        s_lshl_b32 s{sRHO}, s{sXCD}, 2
        s_add_u32 s{sRHO}, s{sRHO}, s76
        v_lshlrev_b32 v4, 4, v1
        s_lshl_b32 s{sM0}, s{sW}, 12
        s_mul_i32 s{sDMA}, s{sJ}, {JSTR}
        s_add_u32 s{sDMA}, s{sDMA}, s{sM0}
        s_add_u32 s{sDMA}, s{sDMA}, {W1P}
        s_mul_i32 s58, s{sC}, 56
        s_mul_i32 s{sW2}, s{sW}, 14
        s_add_u32 s58, s58, s{sW2}
        s_mul_i32 s{sW2}, s58, 5120
        s_add_u32 s{sW2}, s{sW2}, {W2P}"""

def w2_touch(b, late):
    nl = 60 if late else 80
    b.e(f"""s_and_b32 s3, s{sRHO}, 3
        s_mul_i32 s3, s3, {nl * 128}
        s_add_u32 s3, s3, s{sW2}
        v_lshlrev_b32 v2, 7, v1""")
    if late:
        b.e(f"s_add_u32 s3, s3, 4096\nv_min_u32 v2, {59 * 128}, v2")
        b.vm(f"buffer_load_dword a253, v2, {WS}, s3 offen sc1")
    else:
        b.e(f"v_add_u32 v3, 0x2000, v2\nv_min_u32 v3, {79 * 128}, v3")
        b.vm(f"buffer_load_dword a253, v2, {WS}, s3 offen sc1")
        b.vm(f"buffer_load_dword a254, v3, {WS}, s3 offen sc1")

def dma_w1(b, n):
    blk, k = n >> 2, n & 3
    if k == 0:
        b.e(f"s_add_u32 m0, s{sM0}, {(blk % 9) * 16384}\ns_addk_i32 s{sDMA}, 16384")
    return b.vm(f"buffer_load_dwordx4 v4, {WS}, s{sDMA} offen offset:{k * 1024} sc1 lds")

def w2_load(b, m):
    n, dt = divmod(m, 5)
    if m and m % 4 == 0: b.e(f"s_addk_i32 s{sW2}, 4096")
    return b.vm(f"buffer_load_dwordx4 {ar(A_W2 + (n % 8) * 20 + dt * 4, 4)}, v4, {WS}, s{sW2} offen offset:{(m % 4) * 1024} sc1")

def preload(b, lo, hi):
    for n in range(lo, hi):
        if n % 4 == 0:
            b.e(f"""s_lshl_b32 s56, s{sROT}, 14
                s_add_u32 m0, s{sM0}, s56
                s_add_u32 s57, s{sDMA}, s56
                s_add_u32 s{sROT}, s{sROT}, 1
                s_cmp_eq_u32 s{sROT}, 9
                s_cselect_b32 s{sROT}, 0, s{sROT}""")
        b.vm(f"buffer_load_dwordx4 v4, {WS}, s57 offen offset:{(n & 3) * 1024} sc1 lds")
    if hi == 36:
        b.e(f"""s_add_u32 s{sDMA}, s{sDMA}, {8 * 16384}
            v_cmp_lt_u32 vcc, 111, v0
            v_mov_b32 v2, 0
            v_mov_b32 v3, {7168 - 448}
            v_cndmask_b32 v2, v2, v3, vcc
            v_lshl_add_u32 v2, v0, 2, v2
            s_mul_i32 s56, s{sJ}, 448
            s_add_u32 s56, s56, {CSP}""")
        for k in range(7):
            b.vm(f"buffer_load_dword v{16 + k}, v2, {WS}, s56 offen sc1")
            b.e("s_addk_i32 s56, 14336")

def ffn(b):
    b.e(f"""v_add_u32 v5, 0x10000, v4
        v_add_u32 v6, 0x20000, v4
        v_and_b32 v2, 15, v1
        v_lshrrev_b32 v3, 4, v1
        v_lshlrev_b32 v7, 4, v2
        v_lshl_add_u32 v7, v3, 9, v7
        v_lshlrev_b32 v8, 4, v3
        v_add_u32 v8, {CSB}, v8
        v_lshlrev_b32 v9, 4, v2
        s_lshl_b32 s56, s{sI}, 2
        s_add_u32 s56, s56, s{sW}
        s_mul_i32 s{sPAN}, s56, 40960
        s_add_u32 s74, s{sPAN}, {HT}
        s_add_u32 s75, s74, 40960
        s_and_b32 s57, s{sJ}, 3
        s_mul_i32 s57, s57, {5 if OPT.get('krot', 0) else 0}
        s_lshr_b32 s57, s57, 1
        s_lshl_b32 s57, s57, 12
        s_add_u32 s{sPAN}, s74, s57
        s_lshl_b32 s{sSTK}, s56, 8
        s_add_u32 s{sSTK}, s{sSTK}, {ST2}
        s_mul_i32 s56, s56, {2 * 56 * 1024}
        s_add_u32 s56, s56, {HP}""")
    for k in range(2):
        b.e(f"""s_lshl_b32 s57, s{sJ}, 1
            s_add_u32 s57, s57, {k}
            s_and_b32 s58, s57, 3
            s_mul_i32 s58, s58, 14
            s_lshr_b32 s57, s57, 2
            s_add_u32 s57, s57, s58
            s_lshl_b32 s57, s57, 10
            s_add_u32 s{sHP + k}, s56, s57""")
    for k in range(2):
        b.e(f"s_mov_b32 s57, s{sJ}" if k == 0 else f"s_lshr_b32 s57, s{sJ}, 1")
        b.e(f"""s_and_b32 s58, s57, 3
            s_mul_i32 s58, s58, 14
            s_lshr_b32 s57, s57, 2
            s_add_u32 s57, s57, s58
            s_add_u32 s57, s57, {8 + 4 * k}
            s_lshl_b32 s57, s57, 10
            s_add_u32 s{sHP + 2 + k}, s56, s57""")
    b.e(f"""s_and_b32 s57, s{sJ}, 1
        s_mul_i32 s57, s57, {56 * 1024}
        s_add_u32 s{sHP + 3}, s{sHP + 3}, s57""")
    for k in range(4):
        b.e(f"""s_xor_b32 s57, s{sW}, {k}
            s_lshl_b32 s58, s{sRHO}, 2
            s_add_u32 s57, s57, s58
            s_mul_i32 s57, s57, 56
            s_mul_i32 s58, s{sW}, 14
            s_add_u32 s57, s57, s58
            s_lshl_b32 s57, s57, 10
            s_add_u32 s{sH0 + k}, s57, {HP}""")
    mk_srd(b, 12, P_OUT, 2621440)
    stamp(b, 'pre_issued')
    sk = lab("np")
    b.e(f"s_cmp_lg_u32 s{sW}, 0\ns_cbranch_scc1 {sk}")
    poll(b.fork(), ld_lines(FLH, 160, 10), cond_lines(160, 10))
    b.e(f"{sk}:")
    b.wait_all()
    b.e(f"""v_add_f32 v16, v16, v17
        v_add_f32 v18, v18, v19
        v_add_f32 v20, v20, v21
        v_add_f32 v16, v16, v22
        v_add_f32 v18, v18, v20
        v_lshlrev_b32 v2, 2, v0
        v_add_u32 v2, {CSB}, v2
        v_add_f32 v16, v16, v18
        ds_write_b32 v2, v16
        s_waitcnt lgkmcnt(0)""")
    b.e("s_barrier")
    stamp(b, 'g1_start')
    if OPT['stop'] == 'pre': stamp_dump(b); b.e("s_endpgm")
    b.e(f"s_cmp_eq_u32 s{sJ}, 15\ns_cbranch_scc1 L_j15")
    g12(b.fork(), 4, 3, False)
    b.e("L_j15:")
    g12(b.fork(), 2, 1, True)

def flag_store(b, base):
    b.e(f"s_lshl_b32 s56, s{sI}, 4\ns_add_u32 s56, s56, s{sJ}")
    arrive(b, base, "s56")
def ld_flags(base):
    return ld_lines(f"s_lshr_b32 s55, s{sRHO}, 1\ns_lshl_b32 s55, s55, 11\ns_add_u32 s55, s55, {base}", 16)
COND_FLAG = cond_lines(16)
def ld_st2(b):
    return b.vm(f"buffer_load_dwordx4 v[28:31], v9, {WS}, s{sSTK} offen sc1")
COND_ST2 = "v_xor_b32 v26, s0, v29\nv_xor_b32 v27, s1, v31\nv_or_b32 v26, v26, v27\nv_cmp_ne_u32 vcc, 0, v26"

def g12(b, np1, np2, stats):
    NK = 20
    ptok = {}
    VT = V_ACC1 if stats else V_ACC2
    VS_ = 112
    def preg(k): return V_PAN + 8 * k if k < 14 else VT + 8 * (k - 14)
    def pan(k, s, first):
        return vr(preg(k) + 4 * s, 4) if (k < 14 or first) else ar(A_PAN + 8 * (k - 14) + 4 * s, 4)
    def pan_load(k):
        if k and k % 2 == 0:
            b.e(f"s_addk_i32 s{sPAN}, 4096")
            if OPT.get('krot', 0): b.e(f"s_cmp_eq_u32 s{sPAN}, s75\ns_cselect_b32 s{sPAN}, s74, s{sPAN}")
        for p in range(2):
            ptok[k] = b.vm(f"buffer_load_dwordx4 {vr(preg(k) + 4 * p, 4)}, v7, {WS}, s{sPAN} offen offset:{(k & 1) * 2048 + p * 256} sc1")
    def pan_fix(k):
        b.wait(vm=ptok[k])
        r = preg(k)
        b.e(f"v_swap_b32 v{r + 2}, v{r + 4}\nv_swap_b32 v{r + 3}, v{r + 5}")
        return [f"v_accvgpr_write_b32 a{A_PAN + 8 * (k - 14) + q}, v{r + q}" for q in range(8)] if k >= 14 else []
    def pan_load_ops(k):
        L = []
        if k and k % 2 == 0:
            L.append((f"s_addk_i32 s{sPAN}, 4096" + (f"\ns_cmp_eq_u32 s{sPAN}, s75\ns_cselect_b32 s{sPAN}, s74, s{sPAN}" if OPT.get('krot', 0) else ""), 1))
        for p in range(2):
            if OPT.get('nopan'): ptok[k] = 0; continue
            L.append((lambda p=p: ptok.__setitem__(k, b.vm(f"buffer_load_dwordx4 {vr(preg(k) + 4 * p, 4)}, v7, {WS}, s{sPAN} offen offset:{(k & 1) * 2048 + p * 256} sc1")), 2))
        return L
    def pan_fix_ops(k):
        r = preg(k)
        L = [(lambda: b.wait(vm=ptok[k]), 1), (f"v_swap_b32 v{r + 2}, v{r + 4}", 2), (f"v_swap_b32 v{r + 3}, v{r + 5}", 2)]
        return L
    def pan_copy_ops(k):
        return [(f"v_accvgpr_write_b32 a{A_PAN + 8 * (k - 14) + q}, v{preg(k) + q}", 1) for q in range(8)] if k >= 14 else []
    LA = OPT.get('la', 5)
    for k in range(LA): pan_load(k)
    nslot1, nslot2 = 2 * np1 * NK, 2 * np2 * NK
    ftok = {}
    ring = dict(vis=9, free=0, rd=-1, used=-1)
    def frag_read(n):
        if n >= nslot1 + nslot2: return
        assert n // 16 < ring['vis'], ("ring RAW", n)
        pos = (n % 144) * 1024
        ftok[n] = b.lg(f"ds_read_b128 {ar(A_RING + (n % 8) * 4, 4)}, v{4 + (pos >> 16)} offset:{pos & 0xffff}")
    FA = OPT.get('fa', 7); WG_ = OPT.get('wg', 4)
    b.e(f"v_add_u32 v24, {56 * 1024}, v4")
    if stats:
        b.e("s_mov_b32 s3, 0x3f803f80\nv_mov_b32 v12, s3\nv_mov_b32 v13, s3\nv_mov_b32 v14, s3\nv_mov_b32 v15, s3")
        pan_fix(0)
        for k in range(NK):
            if k + LA < NK: pan_load(k + LA)
            cp = pan_fix(k + 1) if k + 1 < NK else []
            for s in range(2):
                b.e(f"v_mfma_f32_16x16x32_bf16 {vr(VS_ + 4 * s, 4)}, v[12:15], {pan(k, s, True)}, {'0' if k == 0 else vr(VS_ + 4 * s, 4)}")
                b.e(f"v_mfma_f32_16x16x32_bf16 {vr(VS_ + 8 + 4 * s, 4)}, {pan(k, s, True)}, {pan(k, s, True)}, {'0' if k == 0 else vr(VS_ + 8 + 4 * s, 4)}")
            for c in cp: b.e(c)
        b.e("""v_and_b32 v2, 3, v1
            v_cmp_eq_u32 s[56:57], 1, v2
            v_cmp_eq_u32 s[58:59], 2, v2
            v_cmp_eq_u32 s[74:75], 3, v2
            v_bfe_u32 v2, v1, 2, 2
            v_lshrrev_b32 v3, 4, v1
            v_cmp_eq_u32 s[76:77], v2, v3""")
        for s in range(2):
            g = VS_ + 8 + 4 * s
            b.e(f"v_cndmask_b32 v{g}, v{g}, v{g+1}, s[56:57]\nv_cndmask_b32 v{g}, v{g}, v{g+2}, s[58:59]\nv_cndmask_b32 v{g}, v{g}, v{g+3}, s[74:75]")
            stats_finish(b, VS_ + 4 * s, g, 16 + 2 * s)
        b.e("v_mov_b32 v17, s0\nv_mov_b32 v19, s1\ns_mov_b64 exec, s[76:77]")
        b.vm(f"buffer_store_dwordx4 v[16:19], v9, {WS}, s{sSTK} offen sc1")
        b.e("s_mov_b64 exec, -1")
    for n in range(FA): frag_read(n)
    if not stats: pan_fix(0)
    dman = [36]
    dtok = {}
    def dma_next():
        if dman[0] < 72 and not stats:
            assert (dman[0] // 4 - 9 + 1) * 16 <= ring['free'], ("ring WAR", dman[0])
            dtok[dman[0]] = dma_w1(b, dman[0]); dman[0] += 1
    dq = [36]
    def dma_ops():
        m = dq[0]
        if m >= 72 or stats: return []
        dq[0] += 1
        L = []
        if m % 4 == 0: L.append((f"s_add_u32 m0, s{sM0}, {((m >> 2) % 9) * 16384}\ns_addk_i32 s{sDMA}, 16384", 2))
        def go():
            assert (m // 4 - 9 + 1) * 16 <= ring['free'], ("ring WAR", m)
            dtok[m] = b.vm(f"buffer_load_dwordx4 v4, {WS}, s{sDMA} offen offset:{(m & 3) * 1024} sc1 lds") if not OPT.get('nodma') else b.vi - 1; dman[0] = m + 1
        L.append((go, 2))
        return L
    def ring_barrier(upto):
        if upto - 1 in dtok: b.wait(vm=dtok[upto - 1])
        else: assert upto == 36 or stats
        if not OPT.get('nobar'): b.e("s_barrier")
        ring['vis'] = max(ring['vis'], upto // 4); ring['free'] = ring['used'] + 1
    def epi_ops(acc, tau0, taus, dsts, pk, CA, CB):
        ops = []; st = {}
        def rd(ti):
            if ti >= len(taus): return
            c = (CA, CB)[ti & 1]
            b.lg(f"ds_read_b128 {vr(c, 4)}, v8 offset:{(tau0 + taus[ti]) * 64}")
            st[ti] = b.lg(f"ds_read_b128 {vr(c + 4, 4)}, v8 offset:{448 + (tau0 + taus[ti]) * 64}")
        st['rd'] = rd
        for ti, t in enumerate(taus):
            c0 = (CA, CB)[ti & 1]
            ops.append(lambda ti=ti: (b.wait(lg=st[ti]), rd(ti + 1) if CA != CB else None))
            for s in range(2):
                g = acc + ((t * 2 + 0) * 2 + s) * 4; u = acc + ((t * 2 + 1) * 2 + s) * 4
                if pk:
                    for (r, c) in ((g, c0), (g + 2, c0 + 2), (u, c0 + 4), (u + 2, c0 + 6)):
                        ops.append(lambda r=r, c=c, s=s: b.e(f"v_pk_fma_f32 {vr(r,2)}, {vr(c,2)}, v[12:13], {vr(r,2)} op_sel:[0,{s},0] op_sel_hi:[1,{s},1]"))
                else:
                    for q in range(4):
                        ops.append(lambda r=g + q, c=c0 + q, s=s: b.e(f"v_fmac_f32 v{r}, v{c}, v{12 + s}"))
                    for q in range(4):
                        ops.append(lambda r=u + q, c=c0 + 4 + q, s=s: b.e(f"v_fmac_f32 v{r}, v{c}, v{12 + s}"))
                if s == 1 and CA == CB: ops.append(lambda ti=ti: rd(ti + 1))
                for q in range(4):
                    ops.append(lambda r=g + q: b.e(f"v_max_f32 v{r}, 0, v{r}"))
                if pk:
                    for q in (0, 2):
                        ops.append(lambda r=g + q, u=u + q: b.e(f"v_pk_mul_f32 {vr(r,2)}, {vr(r,2)}, {vr(u,2)}"))
                else:
                    for q in range(4):
                        ops.append(lambda r=g + q, u=u + q: b.e(f"v_mul_f32 v{r}, v{r}, v{u}"))
                d, half, sreg, last = dsts[ti](s)
                for q in range(2):
                    ops.append(lambda d=d + q, r=g + 2 * q: b.e(f"v_cvt_pk_bf16_f32 v{d}, v{r}, v{r + 1}"))
                if last == 4:
                    ops.append(lambda d=d - 2, s=s, sreg=sreg: st.__setitem__('last', b.vm(f"buffer_store_dwordx4 {vr(d,4)}, v{4 if s == 0 else 24}, {WS}, s{sreg} offen sc1")))
                elif last == 2:
                    def hst(d=d - 2, sreg=sreg):
                        l = lab("hs")
                        b.e(f"s_bitcmp0_b32 s{sJ}, 1\ns_cbranch_scc1 {l}\nv_swap_b32 v{d}, v{d + 2}\nv_swap_b32 v{d + 1}, v{d + 3}\n{l}:")
                        st['last'] = b.vm(f"buffer_store_dwordx4 {vr(d,4)}, v4, {WS}, s{sreg} offen sc1")
                    ops.append(hst)
                if last: ops[-1].vm = True
        return [(o, 2 if getattr(o, 'vm', False) else 1) for o in ops], st
    def dst_pair(acc, ta, second, sreg):
        def f(s):
            base = acc + ((ta * 2 + 1) * 2 + s) * 4
            return (base + (2 if second else 0), second, sreg, 4 if second else 0)
        return f
    def dst_half(acc, t, sreg):
        def f(s): return (acc + (t * 2 + 1) * 8 + 2 * s, 0, sreg, 2 * s)
        return f
    d1 = [dst_pair(V_ACC1, 0, False, sHP), dst_pair(V_ACC1, 0, True, sHP), dst_pair(V_ACC1, 2, False, sHP + 1), dst_pair(V_ACC1, 2, True, sHP + 1)]
    ops, est = epi_ops(V_ACC1, 0, list(range(np1)), d1, OPT.get('pk1', 0), 16, 16)
    G = Gaps(b)
    n = 0
    tok = {}
    DS = OPT.get('ds', [0, 0, 0, 0, 1, 2, 1, 2, 1, 2, 1, 2, 1, 1, 1, 2, 2, 2, 2, 2])
    NT = nslot1 + nslot2
    def slot(n, k, accb, t, mat, cap=None, first=False):
        if n % WG_ == 0: G.now(lambda: b.wait(lg=ftok[min(n + WG_ - 1, NT - 1)]), 1)
        for s in range(2):
            a = accb + ((t * 2 + mat) * 2 + s) * 4
            G.mfma(f"v_mfma_f32_16x16x32_bf16 {vr(a,4)}, {ar(A_RING + (n % 8) * 4, 4)}, {pan(k, s, first)}, {'0' if k == 0 else vr(a,4)}")
            if s == 0: G.now(lambda: frag_read(n + FA), 1)
            G.fill(reserve=1 if (s == 1 and (n + 1) % WG_ == 0) else 0, cap=cap)
        ring['used'] = n
    for k in range(NK):
        if not stats:
            if k + LA < NK:
                for it in pan_load_ops(k + LA): G.add(*it)
            if k + 1 < NK:
                for it in pan_fix_ops(k + 1): G.add(*it)
            for _ in range(DS[k]):
                for it in dma_ops(): G.add(*it)
            for it in pan_copy_ops(k): G.add(*it)
        T0 = OPT.get('t2at', 99)
        if k == T0 - 1:
            G.add(f"s_and_b32 s73, s{sRHO}, 3\ns_mul_i32 s73, s73, {60 * 128}"); G.add(f"s_add_u32 s73, s73, s{sW2}\nv_min_u32 v11, 5, v1")
            G.add(f"s_add_u32 s73, s73, {4096 - 768}\nv_lshlrev_b32 v11, 7, v11")
        if T0 <= k < T0 + 10:
            G.add("s_addk_i32 s73, 768"); G.add(lambda: b.vm(f"buffer_load_dword a253, v11, {WS}, s73 offen sc1"), 2)
        if k == OPT.get('t1at', 99) and not stats:
            G.add(f"s_mul_i32 s3, s{sSI}, {136 * 128}\ns_add_u32 s3, s3, s{sDMA}")
            G.add(f"s_sub_u32 s3, s3, s{sM0}\nv_lshlrev_b32 v2, 7, v0"); G.add(f"s_add_u32 s3, s3, 16384\nv_min_u32 v2, {135 * 128}, v2")
            G.add(lambda: b.vm(f"buffer_load_dword a252, v2, {WS}, s3 offen sc1"), 2)
        if k == NK - 2: G.add(lambda: tok.__setitem__('st2', ld_st2(b)), 2)
        if k == NK - 1: G.add(lambda: est['rd'](0), 2)
        for t in range(np1):
            for mat in range(2):
                slot(n, k, V_ACC1, t, mat, first=not stats); n += 1
        G.flush()
        stamp(b, f'p1_{k}')
        if not stats and k in (3, 7, 11, 15, 19):
            ring_barrier(max(36, (dman[0] - 3) // 4 * 4))
    st2tok = tok['st2']
    stamp(b, 'p1_end')
    poll(b, ld_st2, COND_ST2, st2tok)
    b.e("v_lshlrev_b32 v12, 16, v28\nv_lshlrev_b32 v13, 16, v30\nv_xor_b32 v12, 0x80000000, v12\nv_xor_b32 v13, 0x80000000, v13")
    htok = {}; wtok = {}
    def g2_setup():
        return [l.strip().replace('|', '\n') for l in f"""s_mul_i32 s50, s{sC}, {1024 * OPT.get('hrot', 1)}
        s_cmp_eq_u32 s{sW}, 3|s_cselect_b32 s59, {7 * 1024}, -1|s_cselect_b32 s73, {3 * 1024}, -1
        v_and_b32 v2, 15, v1
        v_lshrrev_b32 v3, 4, v1
        v_lshlrev_b32 v14, 4, v2
        v_lshl_add_u32 v14, v3, 8, v14
        s_lshr_b32 s56, s{sW}, 1
        s_lshl_b32 s57, s{sRHO}, 1
        s_add_u32 s56, s56, s57
        s_and_b32 s57, s{sW}, 1
        s_mul_i32 s58, s56, 40960
        s_mul_i32 s3, s{sC}, 5120
        s_add_u32 s58, s58, s3
        s_lshl_b32 s3, s57, 3
        s_add_u32 s58, s58, s3
        s_add_u32 s74, s58, {HT}
        s_add_u32 s75, s74, 4096
        s_lshl_b32 s56, s56, 5
        s_add_u32 s56, s56, s57
        s_lshl_b32 s76, s56, 3
        s_add_u32 s76, s76, {ST2}
        s_mul_i32 s77, s56, 1280
        s_mul_i32 s3, s{sC}, 160
        s_add_u32 s77, s77, s3
        v_mul_u32_u24 v15, 2560, v2
        v_lshl_add_u32 v15, v3, 3, v15""".split("\n")]
    def h_ops(nn):
        if nn >= 14: return []
        def addr():
            msk, base, dm = (7168, 0, 59) if nn < 8 else (3072, 8192, 73) if nn < 12 else (1024, 12288, None)
            b.e(f"s_add_u32 s56, s50, {nn * 1024}\ns_and_b32 s56, s56, {msk}")
            if dm: b.e(f"s_cmp_eq_u32 s56, s{dm}\ns_cselect_b32 s56, {OOB}, s56")
            if base: b.e(f"s_add_u32 s56, s56, {base}")
            b.e(f"v_add_u32 v{25 + (nn & 1) * 2}, s56, v4")
        L = [(addr, 2)]
        for tt in range(4):
            if OPT.get('noh'): htok[nn] = 0; continue
            L.append((lambda tt=tt: htok.__setitem__(nn, b.vm(f"buffer_load_dwordx4 {vr(V_HR + (nn % 4) * 16 + tt * 4, 4)}, v{25 + (nn & 1) * 2}, {WS}, s{sH0 + tt} offen sc1")), 2))
        return L
    stg = [40]; stok = {}
    def stage_ops():
        m = stg[0]
        if m >= 60: return []
        stg[0] += 1
        L = []
        if m % 4 == 0: L.append((f"s_add_u32 m0, s{sM0}, {(m - 40) * 1024}\ns_addk_i32 s{sW2}, 4096", 2))
        if OPT.get('nostage'): stok[m] = 0; return L
        L.append((lambda: stok.__setitem__(m, b.vm(f"buffer_load_dwordx4 v4, {WS}, s{sW2} offen offset:{(m % 4) * 1024} sc1 lds")), 2))
        return L
    KE = OPT.get('ke', 15); KF = OPT.get('kflag', 9); KD = OPT.get('kdone', 6); KS = 10; KR = OPT.get('kr', 0)
    if np2 == 3: d2 = [dst_pair(V_ACC2, 0, False, sHP + 2), dst_pair(V_ACC2, 0, True, sHP + 2), dst_half(V_ACC2, 2, sHP + 3)]
    else: d2 = [dst_half(V_ACC2, 0, sHP + 3)]
    ops2, est2 = epi_ops(V_ACC2, np1, list(range(np2)), d2, True, 16, 224)
    oi = 0; setup = g2_setup(); hpre = 0
    for k in range(NK):
        if k >= KR:
            for _ in range(2):
                for it in dma_ops(): G.add(*it)
        if k < KD:
            hi = (len(ops) * (k + 1)) // KD
            for it in ops[oi:hi]: G.add(*it)
            oi = hi
        else:
            for _ in range(8):
                if setup: G.add(setup.pop(0))
        if k > KS:
            for _ in range(-(-(60 - stg[0]) // max(1, OPT.get('ksend', 15) - k + 1))):
                for it in stage_ops(): G.add(*it)
        if k == KE - 1: G.add(lambda: tok.__setitem__('e', ld_flags(FLE)(b)), 4, front=True)
        if k > KE and hpre < 3:
            assert not setup
            for it in reversed(h_ops(hpre)): G.add(*it, front=True)
            hpre += 1
        if k == NK - 1: G.add(lambda: est2['rd'](0), 2)
        ng = 4 * np2
        free2 = 2 * ng - 2 * np2 - (2 * np2 + WG_ - 1) // WG_
        for t in range(np2):
            for mat in range(2):
                left = ng - 2 * (t * 2 + mat)
                need = sum(c for c, _ in G.q)
                cap = 2 if need <= free2 * left / ng else (3 if need <= (free2 + ng) * left / ng + 1 else 4 + need // left)
                slot(n, k, V_ACC2, t, mat, cap); n += 1
        G.flush()
        stamp(b, f'p2_{k}')
        if k == 7 and KF > 8 and not stats and ring['vis'] < 15: ring_barrier(72 if dman[0] == 72 else (dman[0] - 3) // 4 * 4)
        if k == KF:
            b.wait(vm=est['last'])
            ring_barrier(dman[0] // 4 * 4 if dman[0] == 72 else (dman[0] - 3) // 4 * 4)
            flag_store(b, FLE)
        if k == KS:
            if KF != KS: ring_barrier(72)
            assert stats or (ring['free'] >= 224 and dman[0] == 72)
            b.e(f"s_mul_i32 s{sM0}, s{sW}, 20480\nv_add_u32 v10, s{sM0}, v4")
        if k == KE:
            poll(b, ld_flags(FLE), COND_FLAG, tok['e'])
            stamp(b, 'early_seen')
    assert stg[0] == 60
    G.flush()
    stamp(b, 'p2_end')
    for o, _ in ops2: o()
    for q in range(hpre, 3):
        for o, _ in h_ops(q): o()
    stamp(b, 'epi2_end')
    lseen = False; hnext = 3
    NF, NL = OPT.get('nf', 1), OPT.get('nl', 5)
    wl = {}
    if NF < 0:
        b.wait(vm=est2['last'])
        b.e("s_barrier")
        flag_store(b, FLL)
        stamp(b, 'late_flag')
    for nn in range(14):
        if hnext <= nn + 3 and (hnext < 8 or lseen):
            while hnext <= min(nn + 3, 13):
                for it in h_ops(hnext): G.add(*it)
                hnext += 1
        if 1 <= nn <= 4:
            G.add(lambda: b.wait(vm=stok[59]), 1)
            for dt in range(5):
                G.add(lambda dt=dt, nn=nn: wl.__setitem__(nn + 7, b.lg(f"ds_read_b128 {ar(A_W2 + (nn - 1) * 20 + dt * 4, 4)}, v10 offset:{((nn - 1) * 5 + dt) * 1024}")), 1)
        if nn in (5, 6):
            for dt in range(5): G.add(lambda dt=dt, nn=nn: wtok.__setitem__(nn + 7, w2_load(b, (nn + 7) * 5 + dt)), 2)
        if nn == max(NF + 1, 1):
            for dt in range(5):
                G.add(lambda dt=dt: b.vm(f"buffer_load_dwordx2 {vr(96 + 2 * dt, 2)}, v14, {WS}, s{74 if dt < 4 else 75} offen offset:{(dt % 4) * 1024} sc1"), 2)
            G.add(lambda: wtok.__setitem__('res', b.vm(f"buffer_load_dword v106, v9, {WS}, s76 offen sc1")), 2)
        if nn == NL - 1: G.add(lambda: wtok.__setitem__('late', ld_flags(FLL)(b)), 4)
        if nn == 10:
            G.add(lambda: (b.wait(vm=wtok['res']), b.e("v_and_b32 v106, 0xffff0000, v106")), 2)
            G.add("v_rcp_f32 v106, v106")
            for dt in range(5):
                for k in range(2):
                    G.add(f"v_lshlrev_b32 v{108 + 4 * dt + 2 * k}, 16, v{96 + 2 * dt + k}\nv_and_b32 v{109 + 4 * dt + 2 * k}, 0xffff0000, v{96 + 2 * dt + k}")
            G.add("v_mul_f32 v106, v106, v106")
        if nn == 11:
            for k in range(3): G.add(f"s_xor_b32 s56, s{sW}, {k + 1}\ns_mul_i32 s56, s56, 15360"); G.add(f"s_add_u32 s56, s56, 81920\nv_add_u32 v{16 + k}, s56, v4")
            G.add(f"s_mul_i32 s56, s{sW}, 15360\ns_add_u32 s56, s56, 81920"); G.add("v_add_u32 v19, s56, v4")
        def g2m(nn, tt, dt):
            a = V_G2 + (tt * 5 + dt) * 4
            G.mfma(f"v_mfma_f32_16x16x32_bf16 {vr(a,4)}, {ar(A_W2 + (nn % 8) * 20 + dt * 4, 4)}, {vr(V_HR + (nn % 4) * 16 + tt * 4, 4)}, {'0' if nn == 0 else vr(a,4)}")
        if nn == 12 and OPT.get('ttail', 1):
            b.wait(vm=max(htok[13], wtok.get(13, -1)))
            for r in (0, 8, 16, 24): b.e(f"v_swap_b32 v{V_HR + r + 2}, v{V_HR + r + 4}\nv_swap_b32 v{V_HR + r + 3}, v{V_HR + r + 5}")
            cnt = 0; pend = []
            for tt in (1, 2, 3, 0):
                for q in (12, 13):
                    for dt in range(5):
                        g2m(q, tt, dt); cnt += 1
                        if pend and cnt >= pend[0][0] and cnt % 2 == 0:
                            _, t2, d2_ = pend.pop(0)
                            b.lg(f"ds_write_b128 v{15 + t2}, {vr(V_G2 + (t2 * 5 + d2_) * 4, 4)} offset:{(t2 - 1) * 5120 + d2_ * 1024}")
                        if q == 13 and tt: pend.append((cnt + 5, tt, dt))
            for _, t2, d2_ in pend: b.lg(f"ds_write_b128 v{15 + t2}, {vr(V_G2 + (t2 * 5 + d2_) * 4, 4)} offset:{(t2 - 1) * 5120 + d2_ * 1024}")
            break
        b.wait(vm=max(htok[nn], wtok.get(nn, -1)), lg=wl.get(nn))
        for dt in range(5):
            for tt in range(4):
                g2m(nn, tt, dt)
                G.fill()
        G.flush()
        stamp(b, f'g2_{nn}')
        if nn == NF:
            b.wait(vm=est2['last'])
            b.e("s_barrier")
            flag_store(b, FLL)
        if nn == NL:
            poll(b, ld_flags(FLL), COND_FLAG, wtok['late']); lseen = True
            stamp(b, 'late_seen')
    stamp(b, 'g2_end')
    if not OPT.get('ttail', 1):
        for tt in range(1, 4):
            for dt in range(5):
                b.lg(f"ds_write_b128 v{15 + tt}, {vr(V_G2 + (tt * 5 + dt) * 4, 4)} offset:{(tt - 1) * 5120 + dt * 1024}")
    b.wait_all(vm=False)
    b.e("s_barrier")
    rk = {}
    for dt in range(5):
        for k in range(3):
            rk[dt] = b.lg(f"ds_read_b128 {vr(32 + (dt * 3 + k) * 4, 4)}, v19 offset:{k * 5120 + dt * 1024}")
    for dt in range(5):
        b.wait(lg=rk[dt])
        a = V_G2 + dt * 4; r = 32 + dt * 12
        for h in (0, 2):
            b.e(f"v_pk_add_f32 {vr(a + h, 2)}, {vr(a + h, 2)}, {vr(r + h, 2)}")
            b.e(f"v_pk_add_f32 {vr(r + 4 + h, 2)}, {vr(r + 4 + h, 2)}, {vr(r + 8 + h, 2)}")
        for h in (0, 2):
            b.e(f"v_pk_add_f32 {vr(a + h, 2)}, {vr(a + h, 2)}, {vr(r + 4 + h, 2)}")
        for h in (0, 2):
            b.e(f"v_pk_fma_f32 {vr(a + h, 2)}, {vr(a + h, 2)}, v[106:107], {vr(108 + 4 * dt + h, 2)} op_sel_hi:[1,0,1]")
        b.e(f"v_cvt_pk_bf16_f32 v{a}, v{a}, v{a + 1}\nv_cvt_pk_bf16_f32 v{a + 1}, v{a + 2}, v{a + 3}")
        b.vm(f"buffer_store_dwordx2 {vr(a, 2)}, v15, {OUT}, s77 offen offset:{dt * 32} {OPT.get('outaux', '')}")
    stamp(b, 'end')
    stamp_dump(b)
    b.e("s_endpgm")
```

```python
import sys, os
from asmlib import B, hazard_pass, align_pass, Gaps
KN = "sequential_preLN__ssm_conv_s4__glu_gated_reglu__prompt_kernel"
OPT = dict(stamps=False, stop=None, spin=2000000)

ST1, ST2 = 0, 16384
EPOCH = 32768
FLP2, FLP, FLH, FLE, FLL = 0x1520000, 0x1524000, 0x1528000, 0x1530000, 0x1538000
CSP = 0x1500000
STAMP = 0xC000
XT, HT, W1P, W2P, HP = 0x10000, 0x300000, 0x600000, 0xB00000, 0xE00000
WS_STAMP = 0x1600000
WS_SIZE = 0x1700000
JSTR = 286720
P_X, P_ARE, P_AIM, P_BRE, P_BIM, P_CRE, P_CIM, P_LDT, P_DSK, P_BX, P_WG, P_WU, P_WD, P_OUT, P_DBG, P_WS = [16 + 2 * k for k in range(16)]
sW, sXCD, sI, sJ, sRHO, sC = 48, 49, 51, 52, 53, 54
sSI = 77
SRC = "s[4:7]"; WS = "s[8:11]"; OUT = "s[12:15]"
def sp(r): return f"s[{r}:{r+1}]"
def vr(r, n): return f"v[{r}:{r+n-1}]" if n > 1 else f"v{r}"
def ar(r, n): return f"a[{r}:{r+n-1}]" if n > 1 else f"a{r}"
RSTR = 33856
_lab = [0]
def lab(p):
    _lab[0] += 1; return f"L_{p}{_lab[0]}"

def stamp(b, name):
    st = OPT['stamps']
    if not st or name not in st: return
    r = 78 + 2 * st.index(name)
    b.sm(f"{'s_memtime' if OPT.get('cyc') else 's_memrealtime'} s[{r}:{r+1}]")
def stamp_init(b):
    if OPT['stamps']:
        for r in range(78, 102, 2): b.e(f"s_mov_b64 s[{r}:{r+1}], 0")
def stamp_dump(b):
    if not OPT['stamps']: return
    if OPT.get('amplify'):
        sk = lab("am"); lo = lab("al")
        b.e(f"""s_waitcnt lgkmcnt(0)
            s_cmp_lg_u32 s2, 100
            s_cbranch_scc1 {sk}
            s_sub_u32 s56, s80, s78
            s_mul_i32 s56, s56, 10
            s_min_u32 s56, s56, 100000
            s_memrealtime s[58:59]
            s_waitcnt lgkmcnt(0)
            {lo}:
            s_memrealtime s[60:61]
            s_waitcnt lgkmcnt(0)
            s_sub_u32 s57, s60, s58
            s_cmp_lt_u32 s57, s56
            s_cbranch_scc1 {lo}
            {sk}:""")
        return
    if OPT.get('dbgdump'):
        sk = lab("dd")
        b.e(f"s_waitcnt lgkmcnt(0)\ns_cmp_lg_u32 s{sW}, 0\ns_cbranch_scc1 {sk}\ns_mov_b64 exec, 1\nv_mov_b32 v30, 0\ns_not_b32 s78, s78")
        for k in range(12):
            b.e(f"v_mov_b32 v31, s{78 + 2 * k}\nglobal_atomic_umax v30, v31, {sp(P_DBG)} offset:{4 * k + 4} sc1")
        b.e(f"{sk}:")
        return
    b.e(f"s_waitcnt lgkmcnt(0)\ns_lshl_b32 s3, s2, 2\ns_add_u32 s3, s3, s{sW}\ns_lshl_b32 s3, s3, 7\ns_add_u32 s3, s3, {WS_STAMP}\nv_mov_b32 v30, 0")
    for k in range(12):
        b.e(f"v_mov_b32 v31, s{78 + 2 * k}\nbuffer_store_dword v31, v30, {WS}, s3 offen offset:{4 * k}")

def poll(b, load, cond, tok=None, sleep=0):
    if tok is None: tok = load(b)
    b.wait(vm=tok)
    lo, ok = lab("poll"), lab("ok")
    b.e(cond)
    b.e(f"s_cbranch_vccz {ok}\ns_mov_b32 s3, 0\n{lo}:")
    if sleep or OPT.get('backoff', 0): b.e(f"s_sleep {sleep or OPT['backoff']}")
    f = b.fork(); load(f); f.wait_all(lg=False)
    b.e(cond)
    b.e(f"s_add_u32 s3, s3, 1\ns_cmp_gt_u32 s3, {OPT['spin']}\ns_cbranch_scc1 {ok}\ns_cbranch_vccnz {lo}\n{ok}:")

def ld_ready(b, every=False):
    b.e("v_mov_b32 v26, 0" if every else f"s_lshl_b32 s55, s{sW}, 8\nv_mov_b32 v26, s55")
    return b.vm(f"buffer_load_dwordx4 v[28:31], v26, {OUT}, 0 offen sc1")
COND_READY = "v_xor_b32 v26, v28, v30\nv_xor_b32 v27, v29, v31\nv_and_b32 v26, v26, v27\nv_cmp_ne_u32 vcc, -1, v26"

def code_prefetch(b, stage):
    if stage == 1:
        b.e(f"""s_getpc_b64 s[76:77]
            L_pc:
            s_sub_u32 s76, s76, L_pc-{KN}
            s_subb_u32 s77, s77, 0
            s_lshr_b32 s55, s2, 3
            s_lshl_b32 s55, s55, 2
            s_add_u32 s55, s55, s{sW}
            s_and_b32 s55, s55, 31""")
    lo, hi = (KN, "L_stage2") if stage == 1 else ("L_stage2", "L_code_end")
    if OPT.get('cpf1', 1):
        if stage == 2: return
        hi = "L_code_end"
    nl = f"((({hi}-{lo})+4095)/4096)"
    b.e(f"""s_mul_i32 s3, s55, {nl}*128
        s_add_u32 s3, s3, {lo}-{KN}
        v_min_u32 v26, {nl}-1, v1
        v_lshl_add_u32 v26, v26, 7, s3
        s_mov_b32 s3, L_code_end-{KN}-4
        v_min_u32 v26, s3, v26""")
    b.vm(f"global_load_dword a{253 + stage}, v26, s[76:77]")

def mk_srd(b, r, ptr, size):
    b.e(f"s_mov_b32 s{r}, s{ptr}\ns_mov_b32 s{r+1}, s{ptr+1}\ns_mov_b32 s{r+2}, {size}\ns_mov_b32 s{r+3}, 0x20000")

LNB = 143104
LNS = LNB - 128
OOB = 0x40000000
def entry(b):
    stamp_init(b)
    stamp(b, 'top')
    b.e(f"s_load_dwordx16 s[16:31], s[0:1], 0\ns_load_dwordx16 s[32:47], s[0:1], 64")
    b.e("s_cmp_ge_u32 s2, 256\ns_cbranch_scc1 L_exit")
    b.e(f"""v_lshrrev_b32 v2, 6, v0
        v_and_b32 v1, 63, v0
        v_readfirstlane_b32 s{sW}, v2
        s_and_b32 s{sXCD}, s2, 7""")
    code_prefetch(b, 1)
    b.e(f"""s_mov_b32 s50, s2
        s_cmp_lt_u32 s50, 128
        s_cselect_b32 s60, 0, {OOB}
        v_lshl_add_u32 v2, v1, 4, s60
        s_mul_i32 s57, s50, 20480
        s_mul_i32 s58, s{sW}, 5120
        s_add_u32 s57, s57, s58
        s_mul_i32 s58, s{sW}, 5184
        s_add_u32 s58, s58, {LNB}
        s_mov_b32 m0, s58
        s_mov_b32 s6, 2621440
        s_mov_b32 s7, 0x20000
        s_mov_b32 s10, {WS_SIZE}
        s_mov_b32 s11, 0x20000
        s_mov_b32 s14, 128
        s_mov_b32 s15, 0x20000
        s_waitcnt lgkmcnt(0)
        s_mov_b32 s4, s{P_X}
        s_mov_b32 s5, s{P_X + 1}
        s_add_u32 s8, s{P_WS}, {OPT.get('wsoff', 0)}
        s_addc_u32 s9, s{P_WS + 1}, 0
        s_mov_b32 s12, s{P_DBG}
        s_mov_b32 s13, s{P_DBG + 1}
        s_cmp_ge_u32 s2, 160
        s_cbranch_scc1 L_help""")
    c = b.fork()
    c.e(f"""s_lshl_b32 s59, s50, 3
        s_lshl_b32 s61, s50, 10
        s_lshl_b32 s56, s{sW}, 8
        s_add_u32 s61, s61, s56
        v_lshl_add_u32 v3, v1, 2, s61""")
    pt = []
    for k, p in enumerate((P_ARE, P_AIM, P_BRE, P_BIM, P_CRE, P_CIM)):
        pt.append(c.vm(f"global_load_dword v{4 + k}, v3, {sp(p)} nt"))
    for p in range(2):
        if p: c.e("s_add_u32 m0, s58, 2592\ns_addk_i32 s57, 2560")
        for k in range(3):
            if k == 2: c.e("s_mov_b32 exec_hi, 0")
            t = c.vm(f"buffer_load_dwordx4 v2, {SRC}, s57 offen offset:{k * 1024} nt lds")
        c.e("s_mov_b32 exec_hi, -1")
    stamp(c, 'start')
    c.sm(f"s_load_dwordx2 s[62:63], {sp(P_LDT)}, s59\ns_load_dwordx2 s[64:65], {sp(P_DSK)}, s59")
    c.e("s_branch L_conv")
    b.e(f"""L_help:
        s_sub_u32 s2, s2, 160
        s_cmp_lg_u32 s2, 0
        s_cbranch_scc1 L_noinit
        s_cmp_lg_u32 s{sW}, 3
        s_cbranch_scc1 L_noinit
        v_mov_b32 v4, 0
        s_mov_b32 s56, {EPOCH}
        buffer_load_dwordx2 v[8:9], v4, {WS}, s56 offen sc1
        v_lshlrev_b32 v10, 4, v1
        s_waitcnt vmcnt(0)
        v_add_co_u32 v12, vcc, 1, v8
        v_addc_co_u32 v13, vcc, 0, v9, vcc
        v_not_b32 v14, v12
        v_not_b32 v15, v13
        buffer_store_dwordx4 v[12:15], v10, {OUT}, 0 offen sc1
        s_mov_b64 exec, 1
        buffer_store_dwordx2 v[12:13], v4, {WS}, s56 offen sc1
        s_mov_b64 exec, -1
        L_noinit:""")
    return t, c, pt

def ln1_addr(b):
    b.e(f"""v_and_b32 v2, 7, v1
        v_lshrrev_b32 v3, 3, v1
        v_mul_u32_u24 v240, 2592, v2
        v_lshl_add_u32 v240, v3, 3, v240
        s_lshl_b32 s3, s{sW}, 6
        s_add_u32 s3, s3, {LNB}
        v_add_u32 v240, s3, v240
        v_lshlrev_b32 v241, 8, v3
        v_lshl_add_u32 v241, v2, 4, v241
        s_lshl_b32 s3, s{sW}, 11
        s_add_u32 s3, s3, s60
        v_add_u32 v241, s3, v241
        v_lshrrev_b32 v2, 5, v1
        v_bfe_u32 v3, v1, 4, 1
        v_mul_u32_u24 v242, 2592, v2
        v_mul_u32_u24 v3, 1280, v3
        v_and_b32 v2, 15, v1
        v_lshl_add_u32 v242, v2, 4, v242
        v_add3_u32 v242, v242, v3, s58
        s_lshl_b32 s3, s{sW}, 4
        s_add_u32 s3, s3, {LNS}
        v_lshrrev_b32 v2, 4, v1
        v_lshl_add_u32 v243, v2, 2, s3
        s_lshr_b32 s57, s50, 1
        s_mul_i32 s57, s57, 40960
        s_and_b32 s3, s50, 1
        s_lshl_b32 s3, s3, 7
        s_add_u32 s57, s57, s3
        s_add_u32 s57, s57, {XT}""")

def ln1_a(b, xtok, R):
    b.e("s_mov_b32 s56, 0x3f803f80")
    b.wait(vm=xtok)
    b.e("s_barrier")
    stamp(b, 'ln_x')
    tk = []
    for k in range(5):
        b.lg(f"ds_read_b64 {vr(R + 4 * k, 2)}, v240 offset:{256 * k}")
        tk.append(b.lg(f"ds_read_b64 {vr(R + 4 * k + 2, 2)}, v240 offset:{256 * k + 1280}"))
    st = [b.lg(f"ds_read_b128 {vr(R + 20 + 4 * k, 4)}, v242 offset:{256 * k}") for k in range(5)]
    for k in range(5):
        b.wait(lg=tk[k])
        last = b.vm(f"buffer_store_dwordx4 {vr(R + 4 * k, 4)}, v241, {WS}, s57 offen sc1")
        if k < 4: b.e("s_addk_i32 s57, 8192")
    ld_ready(b)
    for k in range(20):
        r = R + 20 + k
        if k % 4 == 0: b.wait(lg=st[k // 4])
        b.e(f"v_dot2_f32_bf16 v{20 + (k & 1)}, v{r}, s56, {'0' if k < 2 else f'v{20 + (k & 1)}'}")
        b.e(f"v_dot2_f32_bf16 v{22 + (k & 1)}, v{r}, v{r}, {'0' if k < 2 else f'v{22 + (k & 1)}'}")
    b.e("v_add_f32 v20, v20, v21\nv_add_f32 v22, v22, v23")
    for m in ("quad_perm:[1,0,3,2]", "quad_perm:[2,3,0,1]", "row_half_mirror", "row_mirror"):
        b.e(f"v_add_f32_dpp v20, v20, v20 {m} row_mask:0xf bank_mask:0xf\nv_add_f32_dpp v22, v22, v22 {m} row_mask:0xf bank_mask:0xf")
    stats_finish(b, 20, 22, 21)
    b.e("s_mov_b32 exec_lo, 0x10001\ns_mov_b32 exec_hi, 0x10001")
    b.lg("ds_write_b32 v243, v21")
    b.e("s_mov_b64 exec, -1")
    stamp(b, 'ln_a')
    return last

def ln1_b(b, last):
    last = last + 1
    sk0 = lab("l0")
    b.wait(vm=last, lg=b.li - 1)
    stamp(b, 'ln_drain')
    b.e(f"s_cmp_lg_u32 s{sW}, 0\ns_cbranch_scc1 {sk0}")
    f = b.fork()
    poll(f, ld_ready, COND_READY, last)
    f.e(f"v_mov_b32 v2, {LNS + 64}\nds_write_b64 v2, v[28:29]\ns_waitcnt lgkmcnt(0)")
    b.e(f"{sk0}:\ns_barrier")
    b.e(f"""v_mov_b32 v2, {LNS + 64}
        v_and_b32 v26, 7, v1
        v_lshlrev_b32 v26, 3, v26
        v_add_u32 v26, {LNS}, v26""")
    b.lg("ds_read_b64 v[28:29], v2")
    t = b.lg("ds_read_b64 v[2:3], v26")
    b.e(f"""s_lshl_b32 s3, s{sW}, 30
        s_or_b32 s3, s3, s60
        v_lshl_add_u32 v27, v1, 4, s3
        s_lshl_b32 s56, s50, 7""")
    b.wait(lg=t)
    b.e(f"""v_readfirstlane_b32 s0, v28
        v_readfirstlane_b32 s1, v29
        v_mov_b32 v31, v29
        v_mov_b32 v29, v28
        v_mov_b32 v28, v2
        v_mov_b32 v30, v3
        s_mov_b64 exec, 0xff""")
    b.vm(f"buffer_store_dwordx4 v[28:31], v27, {WS}, s56 offen sc1")
    b.e("s_mov_b64 exec, -1")
    stamp(b, 'ln_done')

def w_prefetch(b):
    b.e(f"""s_lshr_b32 s3, s50, 3
        s_lshl_b32 s3, s3, 2
        s_add_u32 s3, s3, s{sW}
        s_min_u32 s3, s3, 71
        s_lshl_b32 s3, s3, 6
        v_add_u32 v16, s3, v1
        v_mul_u32_u24 v17, 683, v16
        v_lshrrev_b32 v17, 16, v17
        v_mul_u32_u24 v18, 96, v17
        v_sub_u32 v16, v16, v18
        v_lshrrev_b32 v18, 2, v17
        v_and_b32 v17, 3, v17
        v_lshl_add_u32 v17, v18, 5, v17
        s_lshl_b32 s3, s{sXCD}, 2
        v_add_u32 v17, s3, v17
        v_min_u32 v17, 377, v17
        v_mul_u32_u24 v18, 9363, v17
        v_lshrrev_b32 v18, 16, v18
        v_mul_u32_u24 v19, 7, v18
        v_sub_u32 v17, v17, v19
        v_mad_u32_u24 v16, v17, 48, v16
        v_mad_u32_u24 v16, v17, 48, v16
        v_min_u32 v16, 639, v16
        v_mul_u32_u24 v16, 3456, v16
        v_lshrrev_b32 v19, 1, v18
        v_lshl_add_u32 v16, v19, 7, v16
        v_and_b32 v18, 1, v18
        v_cmp_eq_u32 vcc, 0, v18
        v_mov_b32 v18, s{P_WU}
        v_mov_b32 v19, s{P_WG}
        v_cndmask_b32 v18, v18, v19, vcc
        v_mov_b32 v17, s{P_WU + 1}
        v_mov_b32 v19, s{P_WG + 1}
        v_cndmask_b32 v19, v17, v19, vcc
        v_add_co_u32 v18, vcc, v18, v16
        v_addc_co_u32 v19, vcc, 0, v19, vcc""")
    b.vm("global_load_dword a251, v[18:19], off nt")

def stats_finish(b, vs, vq, vo):
    b.e(f"""s_mov_b32 s3, 0x3acccccd
        v_mul_f32 v{vs}, s3, v{vs}
        v_mul_f32 v{vq}, s3, v{vq}
        v_fma_f32 v{vq}, -v{vs}, v{vs}, v{vq}
        v_max_f32 v{vq}, 0, v{vq}
        v_cvt_pk_bf16_f32 v{vq}, v{vq}, v{vq}
        v_lshlrev_b32 v{vq}, 16, v{vq}
        v_add_f32 v{vq}, 0x3727c5ac, v{vq}
        v_cvt_pk_bf16_f32 v{vq}, v{vq}, v{vq}
        v_lshlrev_b32 v{vq}, 16, v{vq}
        v_sqrt_f32 v{vq}, v{vq}
        v_cvt_pk_bf16_f32 v{vo}, v{vs}, v{vq}""")

def pack(b):
    mk_srd(b, 4, P_WD, 2211840)
    b.e(f"""s_mul_i32 s50, s{sW}, 20480
        s_mul_i32 s56, s2, 3
        s_add_u32 s56, s56, s{sW}
        s_cmp_lt_u32 s{sW}, 3
        s_cselect_b32 s56, s56, 999
        s_cmp_lt_u32 s56, 270
        s_cselect_b32 s76, 0, {OOB}
        s_cmp_lt_u32 s56, 280
        s_cselect_b32 s66, 0, {OOB}
        s_cselect_b32 s56, s56, 0
        s_mul_i32 s60, s56, 13108
        s_lshr_b32 s60, s60, 16
        s_mul_i32 s59, s60, 5
        s_sub_u32 s59, s56, s59
        s_cmp_ge_u32 s60, 31
        s_cbranch_scc1 L_w2late
        s_lshr_b32 s61, s60, 1
        s_mul_i32 s61, s61, 112
        s_and_b32 s62, s60, 1
        s_lshl_b32 s62, s62, 5
        s_add_u32 s61, s61, s62
        s_add_u32 s62, s61, 16
        s_and_b32 s63, s60, 3
        s_lshr_b32 s64, s60, 2
        s_branch L_w2go
        L_w2late:
        s_sub_u32 s60, s60, 31
        s_mul_i32 s61, s60, 112
        s_add_u32 s61, s61, 64
        s_add_u32 s62, s61, 16
        s_sub_u32 s70, s60, 15
        s_mul_i32 s64, s70, 224
        s_add_u32 s64, s64, 96
        s_add_u32 s65, s64, 112
        s_min_u32 s65, s65, 1712
        s_bitcmp1_b32 s70, 0
        s_cselect_b32 s71, s65, s64
        s_cselect_b32 s65, s64, s65
        s_add_u32 s70, s70, 16
        s_cmp_lt_u32 s60, 15
        s_cselect_b32 s61, s61, s71
        s_cselect_b32 s62, s62, s65
        s_cselect_b32 s70, s60, s70
        s_and_b32 s63, s70, 3
        s_lshr_b32 s64, s70, 2
        s_add_u32 s64, s64, 8
        s_cmp_eq_u32 s60, 23
        s_cselect_b32 s63, 3, s63
        s_cselect_b32 s64, 11, s64
        s_cmp_eq_u32 s60, 24
        s_cselect_b32 s63, 3, s63
        s_cselect_b32 s64, 7, s64
        L_w2go:
        v_lshrrev_b32 v4, 4, v1
        v_and_b32 v5, 15, v1
        v_lshlrev_b32 v6, 1, v4
        v_xor_b32 v6, v6, v5
        v_mul_u32_u24 v7, 1280, v4
        v_lshl_add_u32 v24, v6, 4, v7
        v_add_u32 v24, s76, v24
        v_xor_b32 v25, 0x80, v24
        s_lshl_b32 s65, s59, 8
        s_mul_i32 s61, s61, 1280
        s_mul_i32 s62, s62, 1280
        s_add_u32 s61, s61, s65
        s_add_u32 s62, s62, s65""")
    for m in range(8):
        b.e(f"s_add_u32 m0, s50, {m * 1024}" + (f"\ns_addk_i32 s{61 + (m >> 2)}, 5120" if m & 3 else ""))
        ta = b.vm(f"buffer_load_dwordx4 v{24 + (m & 1)}, {SRC}, s{61 + (m >> 2)} offen nt lds")
    b.e(f"""s_lshl_b32 s56, s2, 2
        s_add_u32 s56, s56, s{sW}
        s_cmp_lt_u32 s56, 378
        s_cselect_b32 s67, 0, {OOB}
        s_cselect_b32 s56, s56, 0
        s_mul_i32 s60, s56, 9363
        s_lshr_b32 s60, s60, 16
        s_mul_i32 s68, s60, 7
        s_sub_u32 s68, s56, s68
        s_and_b32 s69, s60, 1
        s_lshr_b32 s60, s60, 1
        s_cmp_eq_u32 s69, 0
        s_cselect_b32 s4, s{P_WG}, s{P_WU}
        s_cselect_b32 s5, s{P_WG+1}, s{P_WU+1}
        v_lshrrev_b32 v6, 3, v1
        v_and_b32 v7, 7, v1
        v_bfe_u32 v8, v1, 4, 1
        v_lshlrev_b32 v8, 1, v8
        v_xor_b32 v7, v7, v8
        v_mul_u32_u24 v6, 3456, v6
        v_lshl_add_u32 v12, v7, 4, v6
        v_add_u32 v12, s67, v12
        v_xor_b32 v13, 0x40, v12
        s_cmp_eq_u32 s68, 6
        s_cselect_b32 s56, {OOB}, 0
        v_or_b32 v14, s56, v12
        v_or_b32 v15, s56, v13
        s_mul_i32 s61, s68, {96 * 3456}
        s_lshl_b32 s62, s60, 7
        s_add_u32 s61, s61, s62""")
    tb = []
    def bdma(m):
        b.e(f"s_add_u32 m0, s50, {8192 + m * 1024}" + ("\ns_addk_i32 s61, 27648" if m else "\ns_nop 0"))
        tb.append(b.vm(f"buffer_load_dwordx4 v{(14 if m >= 8 else 12) + (m & 1)}, {SRC}, s61 offen nt lds"))
    NB1 = OPT.get('nb1', 0)
    for m in range(NB1): bdma(m)
    b.e("""s_mul_i32 s63, s63, 14
        s_lshl_b32 s56, s59, 3
        s_mul_i32 s57, s56, 205
        s_lshr_b32 s57, s57, 10
        s_mul_i32 s62, s57, 5
        s_sub_u32 s56, s56, s62
        s_cmp_lt_u32 s64, 12
        s_cselect_b32 s77, 3, 1
        s_cmp_lt_u32 s64, 8
        s_cselect_b32 s77, 7, s77""")
    for i3 in range(3):
        b.e(f"""s_mul_i32 s62, s57, {OPT.get('hrot', 1)}
            s_sub_u32 s70, s64, s62
            s_and_b32 s70, s70, s77
            s_andn2_b32 s71, s64, s77
            s_or_b32 s70, s70, s71
            s_mul_i32 s71, s57, 56
            s_add_u32 s71, s71, s63
            s_add_u32 s71, s71, s70
            s_mul_i32 s71, s71, 5
            s_add_u32 s71, s71, s56
            s_lshl_b32 s71, s71, 10
            s_add_u32 s{73 + i3}, s71, {W2P - 5 * i3 * 1024}
            s_add_u32 s57, s57, 1""")
    for t in range(8):
        b.e(f"""s_cmp_ge_u32 s56, {max(5 - t, 0)}
            s_cselect_b32 s71, s74, s73
            s_cmp_ge_u32 s56, {10 - t}
            s_cselect_b32 s71, s75, s71
            s_add_u32 s{16 + t}, s71, {t * 1024}""")
    b.e(f"""v_bfe_u32 v6, v1, 2, 2
        v_and_b32 v11, 1, v4
        v_lshl_add_u32 v11, v11, 2, v6
        v_lshlrev_b32 v11, 5, v11
        v_lshl_add_u32 v11, v6, 8, v11
        v_lshl_add_u32 v11, v4, 10, v11
        v_and_b32 v6, 3, v1
        v_lshl_add_u32 v11, v6, 3, v11
        v_add_u32 v11, s50, v11
        v_lshlrev_b32 v9, 4, v1
        v_add_u32 v10, s66, v9
        """)
    b.wait(vm=ta)
    stamp(b, 'pkA_loaded')
    tk = []
    for t in range(8):
        b.e(f"v_xor_b32 v{98 + t}, {t << 5}, v11")
        b.lg(f"ds_read_b64_tr_b16 {vr(64 + 4 * t, 2)}, v{98 + t}")
        tk.append(b.lg(f"ds_read_b64_tr_b16 {vr(66 + 4 * t, 2)}, v{98 + t} offset:4096"))
    for t in range(8):
        b.wait(lg=tk[t])
        sa = b.vm(f"buffer_store_dwordx4 {vr(64 + 4 * t, 4)}, v10, {WS}, s{16 + t} offen sc1")
    rt = ld_ready(b, True)
    NB2 = OPT.get('nb2', 6)
    for m in range(NB1, NB2): bdma(m)
    for t in range(4):
        T, J, TA, BS, STR = 62, 63, 64, 24 + 2 * t, 25 + 2 * t
        b.e(f"""s_lshl_b32 s{T}, s60, 2
            s_add_u32 s{T}, s{T}, {t}
            s_mul_i32 s{J}, s{T}, 9363
            s_lshr_b32 s{J}, s{J}, 16
            s_mul_i32 s{TA}, s{J}, 7
            s_sub_u32 s{TA}, s{T}, s{TA}
            s_cmp_eq_u32 s{J}, 15
            s_cselect_b32 s65, 2, 4
            s_cselect_b32 s56, 1, 3
            s_mul_i32 s57, s65, 40
            s_cmp_lt_u32 s{TA}, s65
            s_cselect_b32 s{STR}, s65, s56
            s_cselect_b32 s57, 0, s57
            s_cselect_b32 s65, 0, s65
            s_sub_u32 s{TA}, s{TA}, s65
            s_lshl_b32 s{TA}, s{TA}, 1
            s_add_u32 s{TA}, s{TA}, s69
            s_add_u32 s{TA}, s{TA}, s57
            s_lshl_b32 s{STR}, s{STR}, 11
            s_lshl_b32 s{TA}, s{TA}, 10
            s_and_b32 s56, s{J}, 3
            s_mul_i32 s56, s56, {5 if OPT.get('krot', 0) else 0}
            s_and_b32 s56, s56, -2
            s_mul_i32 s57, s68, 3
            s_add_u32 s57, s57, 20
            s_sub_u32 s{70 + t}, s57, s56
            s_mul_i32 s{J}, s{J}, {JSTR}
            s_add_u32 s{BS}, s{J}, s{TA}
            s_add_u32 s{BS}, s{BS}, {W1P}""")
    b.e(f"""v_bfe_u32 v6, v1, 2, 2
        v_bfe_u32 v7, v1, 3, 1
        v_and_b32 v8, 1, v4
        v_lshl_add_u32 v7, v8, 1, v7
        v_lshlrev_b32 v7, 5, v7
        v_lshl_add_u32 v7, v6, 7, v7
        v_lshl_add_u32 v7, v4, 10, v7
        v_and_b32 v6, 3, v1
        v_lshl_add_u32 v7, v6, 3, v7
        s_add_u32 s56, s50, 8192
        v_add_u32 v56, s56, v7
        v_xor_b32 v57, 32, v56
        v_xor_b32 v58, 64, v56
        v_xor_b32 v59, 0x60, v56
        v_add_u32 v96, s67, v9
        s_cmp_eq_u32 s68, 6
        s_cselect_b32 s56, {OOB}, s67
        v_add_u32 v97, s56, v9
        s_mov_b32 s3, 0x3f803f80
        v_mov_b32 v60, s3
        v_mov_b32 v61, s3
        v_mov_b32 v62, s3
        v_mov_b32 v63, s3""")
    poll(b, lambda bb: ld_ready(bb, True), COND_READY, rt)
    b.e("v_readfirstlane_b32 s0, v28\nv_readfirstlane_b32 s1, v29")
    b.e("s_barrier")
    arrive(b, FLP2, "s2")
    stamp(b, 'pkA_done')
    for m in range(NB2, 12): bdma(m)
    for k in range(3):
        b.wait(vm=tb[4 * k + 3])
        if k == 2: stamp(b, 'pk_loaded')
        tk = []
        for t in range(4):
            r = 128 + (k * 4 + t) * 4
            b.lg(f"ds_read_b64_tr_b16 {vr(r, 2)}, v{56 + t} offset:{k * 4096}")
            tk.append(b.lg(f"ds_read_b64_tr_b16 {vr(r + 2, 2)}, v{56 + t} offset:{k * 4096 + 512}"))
        for t in range(4):
            r = 128 + (k * 4 + t) * 4
            b.e(f"""s_add_u32 s56, s{70 + t}, {k}
                s_sub_u32 s57, s56, 20
                s_cmp_ge_u32 s56, 20
                s_cselect_b32 s56, s57, s56
                s_sub_u32 s57, s56, 20
                s_cmp_ge_u32 s56, 20
                s_cselect_b32 s56, s57, s56
                s_mul_i32 s56, s56, s{25 + 2 * t}
                s_add_u32 s57, s56, s{24 + 2 * t}""")
            b.wait(lg=tk[t])
            b.vm(f"buffer_store_dwordx4 {vr(r, 4)}, v{97 if k == 2 else 96}, {WS}, s57 offen sc1")
            b.e(f"v_mfma_f32_16x16x32_bf16 {vr(112 + 4 * t, 4)}, {vr(r, 4)}, v[60:63], {'0' if k == 0 else vr(112 + 4 * t, 4)}")
    b.e(f"""v_and_b32 v3, 3, v1
        v_cmp_eq_u32 s[62:63], 1, v3
        v_cmp_eq_u32 s[64:65], 2, v3
        v_cmp_eq_u32 vcc, 3, v3
        v_lshlrev_b32 v2, 4, v4
        v_lshl_add_u32 v2, v3, 6, v2
        v_add_u32 v2, s67, v2
        s_lshl_b32 s56, s68, 1
        s_add_u32 s56, s56, s69
        s_mul_i32 s56, s56, 7168
        s_lshl_b32 s57, s60, 8
        s_add_u32 s56, s56, s57
        s_add_u32 s56, s56, {CSP}""")
    for q in range(4):
        b.e(f"v_cndmask_b32 v{112 + q}, v{112 + q}, v{116 + q}, s[62:63]\nv_cndmask_b32 v{112 + q}, v{112 + q}, v{120 + q}, s[64:65]\nv_cndmask_b32 v{112 + q}, v{112 + q}, v{124 + q}, vcc")
    b.e("s_mov_b32 exec_lo, 0xf000f\ns_mov_b32 exec_hi, 0xf000f")
    b.vm(f"buffer_store_dwordx4 v[112:115], v2, {WS}, s56 offen sc1")
    b.e("s_mov_b64 exec, -1")
    stamp(b, 'pk_stored')
    b.wait_all()
    b.e("s_barrier")
    arrive(b, FLP, "s2")
    stamp(b, 'pack_done')

def arrive(b, base, idx):
    b.e(f"""s_lshl_b32 s3, {idx}, 7
        s_add_u32 s3, s3, {base}
        s_lshl_b32 s55, s{sW}, 30
        v_lshl_add_u32 v26, v1, 3, s55
        v_mov_b32 v28, s0
        v_mov_b32 v29, s1
        s_mov_b64 exec, 0xffff""")
    t = b.vm(f"buffer_store_dwordx2 v[28:29], v26, {WS}, s3 offen sc1")
    b.e("s_mov_b64 exec, -1")
    return t

def ld_lines(base, n, R=28):
    def f(b):
        b.e(f"s_mov_b32 s55, {base}" if isinstance(base, int) else base)
        for k in range((n + 63) // 64):
            lim = n - 1 - 64 * k
            b.e((f"v_min_u32 v26, {lim}, v1\nv_lshlrev_b32 v26, 7, v26" if lim < 63 else "v_lshlrev_b32 v26, 7, v1") + (f"\nv_add_u32 v26, {8192 * k}, v26" if k else ""))
            t = b.vm(f"buffer_load_dwordx2 {vr(R + 2 * k, 2)}, v26, {WS}, s55 offen sc1")
        return t
    return f
def ld_quarter(base):
    return ld_lines(f"s_mul_i32 s55, s{sW}, {24 * 128}\ns_add_u32 s55, s55, {base}", 24)
def cond_lines(n, R=28):
    t = []
    for k in range((n + 63) // 64):
        t.append(f"v_xor_b32 v{R + 2 * k}, s0, v{R + 2 * k}\nv_xor_b32 v{R + 1 + 2 * k}, s1, v{R + 1 + 2 * k}")
        t.append(f"v_or3_b32 v26, v26, v{R + 2 * k}, v{R + 1 + 2 * k}" if k else f"v_or_b32 v26, v{R}, v{R + 1}")
    return "\n".join(t) + "\nv_cmp_ne_u32 vcc, 0, v26"

L2E, L2E_LO, LN2 = 0x3FB8AA3B, 0x32A57060, 0x3F317218
def cmul(b, o, x, w, t):
    b.e(f"v_pk_mul_f32 {vr(t,2)}, {vr(x,2)}, {vr(w,2)} op_sel_hi:[1,0]")
    b.e(f"v_pk_fma_f32 {vr(o,2)}, {vr(x,2)}, {vr(w,2)}, {vr(t,2)} op_sel:[1,1,0] op_sel_hi:[0,1,1] neg_lo:[0,1,0]")

CSTR, SPB, UB = 2368, 9472, 11008
def conv(b, xtok, pt):
    b.e("L_conv:")
    VX, VS, VU, SG, XR, RR, BND = 192, 193, 194, 196, 212, 228, 244
    RB = "s76"
    if OPT.get('wpf', 0) == 1: w_prefetch(b)
    ln1_addr(b)
    b.e(f"""s_mul_i32 {RB}, s{sW}, {RSTR}
        v_lshl_add_u32 v10, v1, 3, {RB}
        v_and_b32 v2, 31, v1
        v_lshrrev_b32 v3, 5, v1
        v_lshl_add_u32 v3, v3, 4, {RB}
        v_lshrrev_b32 v11, 3, v2
        v_lshlrev_b32 v11, 2, v11
        v_and_b32 v12, 3, v2
        v_add_u32 v11, v11, v12
        v_bfe_u32 v12, v2, 2, 1
        v_lshl_add_u32 v11, v12, 4, v11
        v_add_u32 v13, 32, v2
        s_movk_i32 s3, 528
        v_mad_u32_u24 v11, v11, s3, v3
        v_mad_u32_u24 v13, v13, s3, v3
        v_sub_u32 v2, 63, v1
        v_lshl_add_u32 v12, v2, 4, {RB}
        v_lshl_add_u32 v253, v1, 4, {RB}
        v_and_b32 v2, 15, v1
        v_lshrrev_b32 v3, 4, v1
        v_sub_u32 v16, 2, v2
        v_and_b32 v16, 3, v16
        v_add_u32 v17, v2, v16
        v_sub_u32 v17, 18, v17
        v_lshlrev_b32 v17, 1, v17
        v_mul_u32_u24 v16, {CSTR}, v16
        v_add3_u32 v17, v17, v16, {RB}
        v_lshl_add_u32 v236, v3, 4, v17
        v_lshlrev_b32 v17, 5, v2
        v_lshl_add_u32 v17, v3, 4, v17
        s_add_u32 s3, {RB}, {UB}
        v_add_u32 v237, s3, v17
        v_lshlrev_b32 v17, 4, v2
        v_lshl_add_u32 v17, v3, 2, v17
        v_add_u32 v238, {RB}, v17
        v_lshrrev_b32 v17, 2, v2
        v_mul_u32_u24 v17, {RSTR}, v17
        v_lshl_add_u32 v17, v3, 5, v17
        v_and_b32 v16, 3, v2
        v_lshl_add_u32 v17, v16, 3, v17
        s_lshl_b32 s3, s{sW}, 7
        v_add_u32 v239, s3, v17
        v_sub_u32 v16, 3, v2
        v_and_b32 v16, 3, v16
        v_add_u32 v17, v2, v16
        v_sub_u32 v17, 15, v17
        v_lshl_add_u32 v17, v3, 2, v17
        v_lshlrev_b32 v17, 1, v17
        v_mul_u32_u24 v16, 192, v16
        s_add_u32 s3, {RB}, {SPB}
        v_add3_u32 v235, v17, v16, s3
        v_subrev_u32 v16, 1, v1
        v_lshrrev_b32 v16, 1, v16
        v_lshlrev_b32 v16, 1, v16
        v_and_b32 v17, 1, v1
        v_mul_u32_u24 v17, 768, v17
        v_sub_u32 v17, v17, v16
        s_add_u32 s3, s3, 126
        v_add_u32 v254, s3, v17
        v_subrev_u32 v255, 64, v254
        v_cmp_eq_u32 s[70:71], 0, v1
        s_sub_u32 s3, s3, 126
        v_mov_b32 v16, s3
        s_add_u32 s3, s3, 64
        v_mov_b32 v17, s3
        v_cndmask_b32 v254, v254, v16, s[70:71]
        v_cndmask_b32 v255, v255, v17, s[70:71]
        s_mov_b32 s72, 0x01028403
        s_mov_b32 s73, 0x8500
        v_lshlrev_b32 v16, 3, v1
        v_lshrrev_b64 v[16:17], v16, s[72:73]
        v_and_b32 v16, 0xff, v16
        v_lshl_add_u32 v252, v16, 4, {RB}
        v_lshlrev_b32 v16, 3, v3
        v_sub_u32 v16, v2, v16
        v_add_u32 v18, 36, v16
        s_mov_b32 s72, 0x1ff
        s_mov_b32 s73, 0
        v_lshlrev_b64 v[20:21], v18, s[72:73]
        v_add_u32 v18, 37, v16
        s_mov_b32 s72, 0x7f
        v_lshlrev_b64 v[22:23], v18, s[72:73]
        s_movk_i32 s3, 0x3f80""")
    for cl in range(2):
        for k in range(4):
            d = BND + 4 * cl + k
            b.e(f"v_bfe_u32 v{d}, v{21 + 2 * cl}, {2 * k}, 2\nv_lshl_or_b32 v{d}, v{d}, 15, v{d}\nv_and_b32 v{d}, 0x10001, v{d}\nv_mul_u32_u24 v{d}, s3, v{d}")
    b.e(f"""v_lshrrev_b32 v2, 4, v0
        v_mul_u32_u24 v2, 40960, v2
        v_and_b32 v3, 15, v0
        v_lshl_add_u32 v{VX}, v3, 4, v2
        v_lshlrev_b32 v{VS}, 4, v0
        s_movk_i32 s72, 4096
        s_movk_i32 s73, 8192
        v_lshlrev_b32 v{VU}, 2, v0
        v_add_u32 v{VU}, {UB + 512}, v{VU}
        v_add_u32 v{VU + 1}, {2 * RSTR}, v{VU}
        s_lshl_b32 s74, s50, 8
        s_add_u32 s75, s74, {XT}
        s_add_u32 s74, s74, {HT}""")
    b.wait_all(vm=False)
    b.e(f"""s_lshr_b32 s3, s{sW}, 1
        s_cmp_eq_u32 s3, 0
        s_cselect_b32 s62, s62, s63
        s_and_b32 s3, s{sW}, 1
        s_lshl_b32 s3, s3, 4
        s_lshr_b32 s62, s62, s3
        s_lshl_b32 s62, s62, 16
        s_mov_b32 s65, s65
        v_mov_b32 v14, s62
        s_lshl_b32 s66, s64, 16
        s_and_b32 s67, s64, 0xffff0000
        s_lshl_b32 s68, s65, 16
        s_and_b32 s69, s65, 0xffff0000
        s_mov_b32 s64, 0x{L2E:x}
        v_mul_f32 v15, s64, v14
        v_fma_f32 v16, v14, s64, -v15
        v_fmac_f32 v16, 0x{L2E_LO:x}, v14
        v_exp_f32 v15, v15
        v_mul_f32 v16, 0x{LN2:x}, v16
        v_fmac_f32 v15, v15, v16
        v_cvt_pk_bf16_f32 v15, v15, v15
        v_lshlrev_b32 v14, 16, v15""".replace("        s_mov_b32 s65, s65\n", ""))
    b.e(ffn_map(False).replace("v_lshlrev_b32 v4, 4, v1", "s_nop 0"))
    if OPT.get('wpf', 0) == 2: w_prefetch(b)
    AL, BE, CC, Z1, Z8, Z256, T, DB, X, X2, X4, X6, X8, X10, Y = range(0, 30, 2)
    R = lambda n, k: 32 + n * 32 + k
    b.wait(vm=pt[5])
    stamp(b, 'kg_par')
    for n in range(2):
        un = (lambda d, s: f"v_lshlrev_b32 v{d}, 16, v{s}") if n == 0 else (lambda d, s: f"v_and_b32 v{d}, 0xffff0000, v{s}")
        b.e("\n".join([un(R(n, AL), 4), un(R(n, BE), 5), un(R(n, DB), 6), un(R(n, DB) + 1, 7), un(R(n, CC), 8), un(R(n, CC) + 1, 9)]))
    for n in range(2):
        b.e(f"""v_mul_f32 v{R(n,AL)}, v14, v{R(n,AL)}
            v_mul_f32 v{R(n,BE)}, v14, v{R(n,BE)}
            v_pk_mul_f32 {vr(R(n,DB),2)}, {vr(R(n,DB),2)}, v[14:15] op_sel_hi:[1,0]
            v_mul_f32 v{R(n,AL)}, s64, v{R(n,AL)}
            v_mul_f32 v{R(n,BE)}, 0.15915494, v{R(n,BE)}""")
    b.e("v_lshlrev_b32 v4, 4, v1\nv_mov_b32 v5, v235\nv_mov_b32 v6, v236\nv_mov_b32 v7, v237\nv_mov_b32 v8, v238\nv_mov_b32 v9, v239")
    for n in range(2): cmul(b, R(n, X), R(n, CC), R(n, DB), R(n, T))
    for (z, p) in ((Z8, 0x41000000), (Z1, None), (Z256, 0x43800000)):
        for n in range(2):
            e, ph = R(n, T), R(n, T) + 1
            if p is None: b.e(f"v_exp_f32 v{e}, v{R(n,AL)}\nv_fract_f32 v{ph}, v{R(n,BE)}")
            else: b.e(f"v_mul_f32 v{e}, 0x{p:x}, v{R(n,AL)}\nv_mul_f32 v{ph}, 0x{p:x}, v{R(n,BE)}\nv_exp_f32 v{e}, v{e}\nv_fract_f32 v{ph}, v{ph}")
        for n in range(2):
            b.e(f"v_cos_f32 v{R(n,z)}, v{R(n,T)+1}\nv_sin_f32 v{R(n,z)+1}, v{R(n,T)+1}")
        for n in range(2):
            b.e(f"v_pk_mul_f32 {vr(R(n,z),2)}, {vr(R(n,z),2)}, {vr(R(n,T),2)} op_sel_hi:[1,0]")
    pk = [0]
    def put(src, rows, neg=False):
        d = 16 + 2 * (pk[0] & 3); pk[0] += 1
        for n in range(2):
            b.e(f"v_cvt_pk_bf16_f32 v{d + n}, v{R(n,src)}, {'-' if neg else ''}v{R(n,src)+1}")
        for r in rows: b.lg(f"ds_write_b64 v10, {vr(d,2)} offset:{r * 528}")
    def mul(o, x, w):
        for n in range(2): b.e(f"v_pk_mul_f32 {vr(R(n,T),2)}, {vr(R(n,x),2)}, {vr(R(n,w),2)} op_sel_hi:[1,0]")
        for n in range(2): b.e(f"v_pk_fma_f32 {vr(R(n,o),2)}, {vr(R(n,x),2)}, {vr(R(n,w),2)}, {vr(R(n,T),2)} op_sel:[1,1,0] op_sel_hi:[0,1,1] neg_lo:[0,1,0]")
    stamp(b, 'kg_base')
    b.e("v_mov_b32 v24, 0x3f80\nv_mov_b32 v25, 0x3f80")
    b.lg(f"ds_write_b64 v10, v[24:25] offset:{32 * 528}")
    put(Z8, [33], True)
    cur = Z8
    for j in range(2, 32):
        mul(Y, cur, Z8); cur = Y; put(Y, [32 + j], True)
        if j == OPT.get('lna_at', 10): b.wait_all(vm=False, force=False); xlast = ln1_a(b, xtok, 96)
        if j == OPT.get('lnb_at', 26): ln1_b(b, xlast); b.e("s_movk_i32 s14, 12288")
    put(X, [0])
    keep = {2: X2, 4: X4, 6: X6, 8: X8, 10: X10}
    cur = X
    for o in range(1, 11):
        d = keep.get(o, Y)
        mul(d, cur, Z1); cur = d; put(d, [o])
    def ld_st(bb):
        for q in range(4):
            t = bb.vm(f"buffer_load_dwordx4 {vr(SG + 4 * q, 4)}, v{VS}, {WS}, {('0', 's72', 's73', 's14')[q]} offen sc1")
        return t
    for src, rows in ((X, [16, 17]), (X2, [18]), (X4, [19, 20, 21]), (X6, [22]), (X8, [23, 24, 25]), (X10, [26])):
        mul(src, src, Z256); put(src, rows)
    for r0 in (11, 27):
        for k, src in enumerate((X, X4, X8)):
            mul(src, src, Z256); put(src, [r0 + k])
    stok = ld_st(b)
    for r0 in (14, 30, 15, 31):
        mul(X, X, Z256); put(X, [r0])
    mul(X, X, Z256)
    b.wait_all(vm=False)
    stamp(b, 'kg_pow')
    tk = {}
    def rd(ks):
        r = 112 + (ks % 4) * 8
        b.lg(f"ds_read_b128 {vr(r,4)}, v11 offset:{32 * ks}")
        tk[ks] = b.lg(f"ds_read_b128 {vr(r+4,4)}, v13 offset:{32 * ks}")
    fill = [f"v_add_f32 v14, v{R(0,X)}, v{R(1,X)}"]
    for m in ("quad_perm:[1,0,3,2] row_mask:0xf", "quad_perm:[2,3,0,1] row_mask:0xf", "row_half_mirror row_mask:0xf", "row_mirror row_mask:0xf", "row_bcast:15 row_mask:0xa", "row_bcast:31 row_mask:0xc"):
        fill.append(f"v_add_f32_dpp v14, v14, v14 {m} bank_mask:0xf")
    fill += ["v_readlane_b32 s56, v14, 63", "v_mov_b32 v20, 0\nv_mov_b32 v21, 0", "v_mov_b32 v22, 0\nv_mov_b32 v23, 0"]
    for ks in range(3): rd(ks)
    for ks in range(16):
        r = 112 + (ks % 4) * 8
        b.wait(lg=tk[ks])
        b.e(f"v_mfma_f32_32x32x16_bf16 v[96:111], {vr(r,4)}, {vr(r+4,4)}, {'0' if ks == 0 else 'v[96:111]'}")
        if ks + 3 < 16: rd(ks + 3)
        if fill: b.e(fill.pop(0))
    stamp(b, 'kg_mfma')
    cond = "\n".join(f"v_xor_b32 v2, s0, v{SG + 1 + 4 * q}\nv_xor_b32 v3, s1, v{SG + 3 + 4 * q}\n" + (f"v_or3_b32 v15, v2, v3, v15" if q else "v_or_b32 v15, v2, v3") for q in range(4))
    poll(b, ld_st, cond + "\nv_cmp_ne_u32 vcc, 0, v15", stok)
    xt = []
    for q in range(4):
        xt.append(b.vm(f"buffer_load_dwordx4 {vr(XR + 4 * q, 4)}, v{VX}, {WS}, s75 offen sc1"))
        b.e("s_add_u32 s75, s75, 655360")
    p2tok = ld_quarter(FLP2)(b)
    b.lg(f"ds_write_b128 v253, v[20:23] offset:{SPB}")
    b.lg(f"ds_write_b128 v253, v[20:23] offset:{SPB + 1024}")
    b.e("s_barrier")
    stamp(b, 'st1_seen')
    b.e("""v_cmp_eq_u32 vcc, 31, v1
        v_cndmask_b32 v24, 0, v96, s[70:71]
        v_cndmask_b32 v25, 0, v97, s[70:71]
        v_cndmask_b32 v18, 0, v98, s[70:71]
        v_cndmask_b32 v105, v105, v104, vcc
        v_cmp_eq_u32 vcc, 63, v1
        v_cndmask_b32 v19, 0, v110, s[70:71]
        v_writelane_b32 v110, s56, 0
        v_cndmask_b32 v106, v106, v104, vcc
        v_mov_b32_dpp v24, v24 row_shr:1 row_mask:0xf bank_mask:0xf bound_ctrl:1
        v_mov_b32_dpp v25, v25 row_shr:1 row_mask:0xf bank_mask:0xf bound_ctrl:1
        v_mov_b32_dpp v18, v18 row_shr:1 row_mask:0xf bank_mask:0xf bound_ctrl:1
        v_cvt_pk_bf16_f32 v14, v110, v111""")
    pats = [list(range(96, 107)), [107] * 3 + [108] * 3 + [109] * 5, [19] * 5 + [20] * 3 + [24, 25, 18]]
    for rnd, w in enumerate(pats):
        for c in range(4):
            d = 32 + ((rnd * 4 + c) % 8) * 4
            for k in range(4):
                b.e(f"v_cvt_pk_bf16_f32 v{d + k}, v{w[10 - c - 2 * k]}, v{w[9 - c - 2 * k]}")
            if rnd < 2: b.lg(f"ds_write_b128 v12, {vr(d,4)} offset:{c * CSTR + 64 + (1 - rnd) * 1024}")
        if rnd == 0:
            for c in range(4): b.lg(f"ds_write_b16 v254, v14 offset:{c * 190}")
        if rnd == 1:
            for c in range(4): b.lg(f"ds_write_b16_d16_hi v255, v14 offset:{c * 190}")
    b.e("s_mov_b64 exec, 63")
    for c in range(4): b.lg(f"ds_write_b128 v252, {vr(32 + c * 4, 4)} offset:{c * CSTR}")
    b.e("s_mov_b64 exec, -1")
    stamp(b, 'kgen_done')
    b.e("L_stage2:")
    for k in range(8):
        b.e(f"v_and_b32 v{RR + 2 * k}, 0xffff0000, v{SG + 2 * k}\nv_lshlrev_b32 v{RR + 1 + 2 * k}, 16, v{SG + 2 * k}")
    for k in range(8): b.e(f"v_rcp_f32 v{RR + 2 * k}, v{RR + 2 * k}")
    for k in range(8): b.e(f"v_mul_f32 v{RR + 1 + 2 * k}, -v{RR + 1 + 2 * k}, v{RR + 2 * k}")
    XF, UF = 128, 160
    for q in range(4):
        b.wait(vm=xt[q])
        for k in range(4):
            b.e(f"v_lshlrev_b32 v{XF + 8 * q + 2 * k}, 16, v{XR + 4 * q + k}\nv_and_b32 v{XF + 8 * q + 2 * k + 1}, 0xffff0000, v{XR + 4 * q + k}")
        for k in range(4):
            rr = RR + 2 * (2 * q + (k >> 1))
            b.e(f"v_pk_fma_f32 {vr(UF + 8 * q + 2 * k, 2)}, {vr(XF + 8 * q + 2 * k, 2)}, {vr(rr, 2)}, {vr(rr, 2)} op_sel:[0,0,1] op_sel_hi:[1,0,1]")
        for c in range(4):
            b.e(f"v_cvt_pk_bf16_f32 v{SG + 4 * q + c}, v{UF + 8 * q + c}, v{UF + 8 * q + 4 + c}")
        for c in range(4):
            b.lg(f"ds_write_b32 v{VU + (c >> 1)}, v{SG + 4 * q + c} offset:{(c & 1) * RSTR + q * 1024}")
    rtok = {}
    ACC, VB, UA, DW, WF = 32, 64, 36, 196, 228
    def f_rd(it, k, r=None):
        d = 2 * it + 1 + 16 * k; r = (it & 1) * 16 + 4 * k if r is None else r
        b.lg(f"ds_read_b64 {ar(r, 2)}, v6 offset:{2080 - 32 * d}")
        rtok[(it, 'f', k)] = b.lg(f"ds_read_b64 {ar(r + 2, 2)}, v6 offset:{2080 - 32 * d + 8}")
    def v_rd(it, k):
        rtok[(it, 'v', k)] = b.lg(f"ds_read_b128 {vr(VB + (it & 1) * 32 + 4 * k, 4)}, v7 offset:{512 + 512 * k - 32 * (2 * it + 1)}")
    ulast = b.li - 1
    for k in range(4): f_rd(0, k)
    f_rd(0, 4, 32)
    if OPT.get('w2t', 0): w2_touch(b, False)
    poll(b, ld_quarter(FLP2), cond_lines(24), p2tok)
    for q in range(4):
        for k in range(4):
            b.e(f"v_pk_fma_f32 {vr(XF + 8 * q + 2 * k, 2)}, {vr(UF + 8 * q + 2 * k, 2)}, s[{66 + 2 * (k & 1)}:{67 + 2 * (k & 1)}], {vr(XF + 8 * q + 2 * k, 2)}")
    b.wait(lg=ulast)
    b.e("s_barrier")
    stamp(b, 'conv_start')
    for k in range(8): v_rd(0, k)
    G = Gaps(b)
    w2n = 0; W1AT = OPT.get('w1at', 99); W2AT = OPT.get('w2at', 0)
    tok = {}
    for it in range(8):
        par = it & 1
        stamp(b, f'cv_{it}')
        if it < 7:
            for k in range(8):
                if k < 4: G.add(lambda k=k, it=it: f_rd(it + 1, k), 2)
                G.add(lambda k=k, it=it: v_rd(it + 1, k), 1)
        ex = []
        if it == 0:
            for cl in range(2):
                for t in range(4):
                    G.add(lambda cl=cl, t=t: tok.__setitem__('u', b.lg(f"ds_read_b128 {ar(UA + 16 * cl + 4 * t, 4)}, v7 offset:{512 + 512 * t - (48 if cl == 0 else 32)}")), 1)
            ex = [(vr(ACC + 4 * ct, 4), ar(32, 4), vr(VB + 4 * (ct - 4), 4), vr(ACC + 4 * ct, 4)) for ct in range(4, 8)]
        if it == 1:
            ex = [(vr(DW + 16 * cl + 4 * t, 4), ar(UA + 16 * cl + 4 * t, 4), vr(BND + 4 * cl, 4), '0') for cl in range(2) for t in range(4)]
        if it == 2:
            for cl in range(2):
                for d in range(3, -1, -1):
                    G.add(lambda cl=cl, d=d: tok.__setitem__('t', b.lg(f"ds_read_b64 {ar(UA + 10 * cl + 2 * (3 - d), 2)}, v5 offset:{768 * cl + 96 - 32 * d}")), 1)
                G.add(f"v_accvgpr_write_b32 a{UA + 10 * cl + 8}, 0\nv_accvgpr_write_b32 a{UA + 10 * cl + 9}, 0")
            for cl in range(2):
                for t in range(4):
                    G.add(f"v_cvt_pk_bf16_f32 v{WF + 8 * cl + 2 * t}, v{DW + 16 * cl + 4 * t}, v{DW + 16 * cl + 4 * t + 1}\nv_cvt_pk_bf16_f32 v{WF + 8 * cl + 2 * t + 1}, v{DW + 16 * cl + 4 * t + 2}, v{DW + 16 * cl + 4 * t + 3}")
        if it in (3, 4):
            cl = it - 3
            ex = [(vr(ACC + 4 * ct, 4), vr(WF + 8 * cl + 4 * kk, 4), ar(UA + 10 * cl + 2 * (3 - (ct - 4 - 2 * kk)), 4), vr(ACC + 4 * ct, 4)) for kk in range(2) for ct in range(4 + 2 * kk, 8)]
        if it == W1AT:
            G.add(f"v_lshlrev_b32 v2, 7, v0\nv_min_u32 v2, {230 * 128}, v2"); G.add(f"s_mul_i32 s3, s{sSI}, {231 * 128}\ns_add_u32 s3, s3, s{sDMA}")
            G.add(lambda: (b.e(f"s_sub_u32 s3, s3, s{sM0}"), b.vm(f"buffer_load_dword a252, v2, {WS}, s3 offen sc1")), 2)
        if it >= W2AT:
            for _ in range(-(-(OPT.get('w2n', 40) - w2n) // (8 - it))):
                G.add(lambda m=w2n: w2_load(b, m), 2); w2n += 1
        if it == 6: G.add(lambda: tok.__setitem__('p1', ld_quarter(FLP)(b)), 2)
        for i in range(4):
            for ct in range(i, 8):
                c = '0' if (it == 0 and i == 0) else vr(ACC + 4 * ct, 4)
                G.now(lambda: b.wait(lg=max(rtok[(it, 'f', i)], rtok[(it, 'v', ct - i)])), 1)
                G.mfma(f"v_mfma_f32_16x16x32_bf16 {vr(ACC + 4 * ct, 4)}, {ar(par * 16 + 4 * i, 4)}, {vr(VB + par * 32 + 4 * (ct - i), 4)}, {c}")
                G.fill()
        for x in ex:
            G.mfma("v_mfma_f32_16x16x32_bf16 %s, %s, %s, %s" % x)
            G.fill()
        G.flush()
        if it < 7: b.wait(lg=b.li - 1)
    stamp(b, 'conv_end')
    for ct in range(8):
        b.e(f"v_cvt_pk_bf16_f32 v{64 + 2 * ct}, v{ACC + 4 * ct}, v{ACC + 4 * ct + 2}\nv_cvt_pk_bf16_f32 v{65 + 2 * ct}, v{ACC + 4 * ct + 1}, v{ACC + 4 * ct + 3}")
        b.lg(f"ds_write2st64_b32 v8, v{64 + 2 * ct}, v{65 + 2 * ct} offset0:{ct} offset1:{ct + 8}")
    poll(b, ld_quarter(FLP), cond_lines(24), tok['p1'])
    b.wait_all(vm=False)
    stamp(b, 'y_written')
    b.e("s_barrier")
    stamp(b, 'y_bar')
    yt = []
    for q in range(4):
        b.lg(f"ds_read_b64_tr_b16 {vr(80 + 4 * q, 2)}, v9 offset:{512 * q}")
        yt.append(b.lg(f"ds_read_b64_tr_b16 {vr(82 + 4 * q, 2)}, v9 offset:{512 * q + 2048}"))
    for q in range(4):
        b.wait(lg=yt[q])
        for k in range(4):
            b.e(f"v_lshlrev_b32 v{UF + 8 * q + 2 * k}, 16, v{80 + 4 * q + k}\nv_and_b32 v{UF + 8 * q + 2 * k + 1}, 0xffff0000, v{80 + 4 * q + k}")
        for k in range(4):
            b.e(f"v_pk_add_f32 {vr(UF + 8 * q + 2 * k, 2)}, {vr(UF + 8 * q + 2 * k, 2)}, {vr(XF + 8 * q + 2 * k, 2)}")
        for k in range(4):
            b.e(f"v_cvt_pk_bf16_f32 v{96 + 4 * q + k}, v{UF + 8 * q + 2 * k}, v{UF + 8 * q + 2 * k + 1}")
        hs = b.vm(f"buffer_store_dwordx4 {vr(96 + 4 * q, 4)}, v{VX}, {WS}, s74 offen sc1")
        b.e("s_add_u32 s74, s74, 655360")
    stamp(b, 'h_stored')
    return None, hs

from ffn import ffn_map, preload, ffn

def build():
    _lab[0] = 0
    b = B()
    xtok, b3, pt = entry(b)
    b2 = b.fork()
    pack(b2)
    if OPT['stop'] in ('pack', 'conv'): (b2.e("s_add_u32 s2, s2, 160"), stamp_dump(b2), b2.e("s_endpgm"))
    b2.e(ffn_map(True))
    poll(b2, ld_quarter(FLP2), cond_lines(24))
    b2.e("s_barrier")
    if OPT.get('hw2t', 0):
        w2_touch(b2, False)
        b2.wait_all(lg=False)
    HW = OPT.get('hw2', 28)
    for m in range(HW): w2_load(b2, m)
    stamp(b2, 'w2_issued')
    poll(b2, ld_quarter(FLP), cond_lines(24), sleep=OPT.get('psl', 4))
    b2.e("s_barrier")
    stamp(b2, 'p1_seen')
    preload(b2, 0, 36)
    for m in range(HW, 40): w2_load(b2, m)
    if OPT.get('buddy', 1):
        sk = lab("bd")
        b2.e(f"s_cmp_lg_u32 s{sW}, 0\ns_cbranch_scc1 {sk}")
        poll(b2.fork(), ld_lines(f"s_lshl_b32 s55, s2, 7\ns_add_u32 s55, s55, {FLH}", 1), cond_lines(1), sleep=2)
        b2.e(f"{sk}:")
    b2.e("s_add_u32 s2, s2, 160\ns_branch L_g1")
    packtok, hs = conv(b3, xtok, pt)
    if OPT['stop'] in ('pack', 'conv'): (stamp_dump(b3), b3.e("s_endpgm"))
    b3.e("s_barrier")
    preload(b3, 0, OPT.get('pre1', 8))
    b3.wait(vm=hs)
    b3.e("s_barrier")
    arrive(b3, FLH, "s50")
    stamp(b3, 'h_arrive')
    preload(b3, OPT.get('pre1', 8), 36)
    for m in range(OPT.get('w2n', 40), 40): w2_load(b3, m)
    b3.e(f"s_add_u32 s{sSI}, s{sSI}, 3\nL_g1:")
    b4 = B(); b4.L = b.L; b4.vi = 100
    ffn(b4)
    b.e("L_exit:\ns_endpgm\nL_code_end:")
    lines, nn = hazard_pass(b.L, verbose=OPT.get('verbose', False))
    if OPT.get('align', 1):
        lines = align_pass([KN + ':'] + lines, nop_cost=OPT.get('nopc', 4.0))[0][1:]
    hdr = open(os.path.join(os.path.dirname(os.path.abspath(__file__)), "header.txt")).read()
    out = hdr + (f"; stamps: {','.join(OPT['stamps'])}\n" if OPT['stamps'] else "") + "; @launch grid=(256,1,1) block=(256,1,1) lds=163840\n"
    out += f'.amdgcn_target "amdgcn-amd-amdhsa--gfx950"\n.text\n.globl {KN}\n.p2align 8\n.type {KN},@function\n{KN}:\n'
    out += "\n".join(("" if l.endswith(":") else "    ") + l for l in lines)
    out += f"""
.section .rodata,"a"
.p2align 6
.amdhsa_kernel {KN}
  .amdhsa_next_free_vgpr 512
  .amdhsa_next_free_sgpr 102
  .amdhsa_accum_offset 256
  .amdhsa_group_segment_fixed_size 0
  .amdhsa_kernarg_size 128
  .amdhsa_user_sgpr_count 2
  .amdhsa_user_sgpr_kernarg_segment_ptr 1
  .amdhsa_system_sgpr_workgroup_id_x 1
.end_amdhsa_kernel
"""
    return out, nn, len(lines)

if __name__ == "__main__":
    import ffn as _f
    for a in sys.argv[2:]:
        k, v = a.split("=")
        OPT[k] = eval(v)
    out, nn, nl = build()
    open(sys.argv[1], "w").write(out)
    print(f"wrote {sys.argv[1]}: {nl} lines, {nn} hazard nops")
```

```python
import re
REG = re.compile(r'^(-|abs\()?([vas])(\d+|\[(\d+):(\d+)\])\)?$')
def regs(op):
    op = op.strip()
    if op in ('vcc', 'vcc_lo', 'vcc_hi'): return ['vcc']
    if op in ('exec', 'exec_lo', 'exec_hi'): return ['exec']
    if op == 'm0': return ['m0']
    m = REG.match(op)
    if not m: return []
    k = m.group(2)
    if m.group(4) is not None: return [k + str(i) for i in range(int(m.group(4)), int(m.group(5)) + 1)]
    return [k + m.group(3)]
TRANS = ('v_exp_', 'v_log_', 'v_rcp_', 'v_rsq_', 'v_sqrt_', 'v_sin_', 'v_cos_')
class Ins:
    __slots__ = ('txt', 'op', 'cls', 'd', 'u', 'A', 'B', 'C', 'passes', 'label', 'target', 'ws', 'data', 'dpp', 'wide', 'lanesel', 'opsel_dst', 'constsrc')
    def __init__(s, txt):
        s.txt = txt; s.label = None; s.target = None; s.ws = 1; s.A = s.B = s.C = (); s.passes = 0; s.data = (); s.dpp = False
        s.wide = False; s.lanesel = (); s.opsel_dst = False; s.d = set(); s.u = set(); s.constsrc = ()
        t = txt.split(';')[0].strip()
        if t.endswith(':'):
            s.cls = 'label'; s.label = t[:-1]; s.op = ''; s.ws = 0; return
        if t.startswith('.') or not t:
            s.cls = 'dir'; s.op = ''; s.ws = 0; return
        parts = t.split(None, 1); op = parts[0]; s.op = op
        rest = parts[1] if len(parts) > 1 else ''
        ops = []
        for x in rest.split(','):
            x = x.strip()
            if not x: continue
            ops.append(x)
        mods = ''
        joined = []; depth = 0
        for x in ops:
            if depth > 0: joined[-1] += ',' + x
            else: joined.append(x)
            depth += x.count('[') - x.count(']')
        ops = joined
        if ops:
            w = ops[-1].split(None, 1)
            ops[-1] = w[0]; mods = w[1] if len(w) > 1 else ''
        R = [regs(o) for o in ops]
        fl = lambda L: set(r for l in L for r in l)
        if op.startswith('v_mfma'):
            s.cls = 'mfma'; s.d = set(R[0]); s.A, s.B, s.C = R[1], R[2], R[3]; s.u = fl(R[1:]) | {'exec'}
            s.passes = 8 if '32x32' in op else 4
        elif op.startswith('v_'):
            s.cls = 'valu'
            s.dpp = '_dpp' in op or 'quad_perm' in mods or 'row_' in mods or 'wave_' in mods
            if op.startswith('v_cmp'):
                s.d = set(R[0]); s.u = fl(R[1:])
                if op.startswith('v_cmpx'): s.d.add('exec')
            elif op.startswith(('v_swap', 'v_permlane16_swap', 'v_permlane32_swap')):
                s.d = fl(R[:2]); s.u = fl(R[:2])
            elif op.startswith(('v_add_co', 'v_sub_co', 'v_addc_co', 'v_subb_co', 'v_subrev_co')):
                s.d = fl(R[:2]); s.u = fl(R[2:])
            elif op.startswith('v_readlane') or op.startswith('v_writelane'):
                s.d = set(R[0]); s.u = fl(R[1:]); s.lanesel = R[2]
                if op.startswith('v_writelane'): s.u |= s.d
            else:
                s.d = set(R[0]); s.u = fl(R[1:])
                if op.startswith(('v_fmac', 'v_dot2c', 'v_pk_fmac')) or s.dpp or ('sdwa' in op and 'UNUSED_PRESERVE' in mods): s.u |= s.d
                if op.startswith('v_cndmask') and len(ops) == 3: s.u.add('vcc')
            if 'sdwa' in op and 'dst_sel:DWORD' not in mods: s.opsel_dst = True
            s.constsrc = [r for r in s.u if r[0] == 's' or r == 'vcc']
            s.u.add('exec_implicit')
        elif op.startswith('ds_'):
            s.cls = 'ds'
            if op.startswith(('ds_read', 'ds_bpermute', 'ds_permute', 'ds_swizzle')): s.d = set(R[0]); s.u = fl(R[1:])
            else: s.u = fl(R)
        elif op.startswith('buffer_') or op.startswith('global_'):
            s.cls = 'vmem'
            lds = ' lds' in (' ' + mods) or 'load_lds' in op
            if op in ('buffer_wbl2', 'buffer_inv'): pass
            elif lds: s.u = fl(R) | {'m0'}
            elif '_load' in op: s.d = set(R[0]); s.u = fl(R[1:])
            elif '_store' in op or '_atomic' in op:
                s.u = fl(R)
                s.data = R[0] if op.startswith('buffer_') else R[1]
                s.wide = op.endswith('x3') or op.endswith('x4')
                if '_atomic' in op and 'sc0' in mods:
                    s.d = set(R[0])
        elif op.startswith('s_'):
            if op == 's_nop': s.cls = 'nop'; s.ws = int(ops[0], 0) + 1
            elif op in ('s_waitcnt', 's_barrier', 's_sleep', 's_setprio', 's_endpgm'): s.cls = 'sopp'
            elif op.startswith('s_cbranch') or op == 's_branch':
                s.cls = 'br'; s.target = ops[0]
                if 'vcc' in op: s.u = {'vcc'}
                if 'exec' in op: s.u = {'exec'}
            elif op.startswith(('s_load', 's_memtime', 's_memrealtime', 's_buffer_load')): s.cls = 'smem'; s.d = set(R[0]); s.u = fl(R[1:])
            elif op.startswith('s_cmp') or op.startswith('s_bitcmp'): s.cls = 'salu'; s.u = fl(R)
            else:
                s.cls = 'salu'; s.d = set(R[0]); s.u = fl(R[1:])
                if 'saveexec' in op: s.d.add('exec'); s.u.add('exec')
                if op in ('s_addk_i32', 's_mulk_i32'): s.u |= s.d
        else:
            raise ValueError("unknown instr: " + txt)

def need(p, c):
    n = 0
    if p.cls == 'mfma':
        big = p.passes == 8
        if c.cls == 'mfma':
            if p.d & (set(c.A) | set(c.B)): n = max(n, 12 if big else 8)
            if p.d & set(c.C) and not (set(c.C) == p.d and c.passes == p.passes): n = max(n, 10 if big else 6)
            if p.d & c.d and not (set(c.C) == p.d and c.passes == p.passes): n = max(n, 10 if big else 6)
        elif c.cls in ('valu', 'vmem', 'ds'):
            if p.d & (c.u | c.d): n = max(n, 12 if big else 8)
            if c.cls == 'valu' and set(p.C) & c.d: n = max(n, 7 if big else 3)
        return n
    if p.cls == 'valu':
        vd = set(r for r in p.d if r[0] in 'va' and r != 'vcc')
        sd = set(r for r in p.d if r[0] == 's' or r == 'vcc')
        if c.cls == 'mfma':
            if vd & c.u: n = max(n, 3 if p.op.startswith('v_dot') else 2)
            if 'exec' in p.d: n = max(n, 4)
        if c.cls == 'vmem' and sd & c.u: n = max(n, 5)
        if c.cls == 'valu':
            if sd & set(c.lanesel): n = max(n, 4)
            if sd & set(c.constsrc): n = max(n, 2)
            if c.dpp and vd & c.u: n = max(n, 2)
            if c.dpp and 'exec' in p.d: n = max(n, 5)
            if c.op.startswith(('v_readlane', 'v_readfirstlane')) and vd & c.u: n = max(n, 1)
            if c.op.startswith(('v_readlane', 'v_readfirstlane', 'v_writelane', 'v_permlane')) and 'exec' in p.d: n = max(n, 4)
            if c.op.startswith('v_permlane') and vd & c.u: n = max(n, 2)
            if p.op.startswith(TRANS) and not c.op.startswith(TRANS) and vd & c.u: n = max(n, 1)
            if p.opsel_dst and vd & (c.u | c.d): n = max(n, 1)
            if p.op.startswith('v_dot') and vd & (c.u | c.d):
                same = c.op == p.op
                srcs = c.txt.split(';')[0].split(None, 1)[1].split(',')
                ab = set(regs(srcs[1].strip()) + regs(srcs[2].strip().split()[0])) if len(srcs) > 2 else set()
                if not (same and not (vd & ab)): n = max(n, 3)
        if c.cls in ('vmem', 'ds') and p.op.startswith('v_dot') and vd & c.u: n = max(n, 3)
        if c.cls == 'br' and ('vcc' in sd and 'vcc' in c.u): n = max(n, 0)
        if c.cls == 'salu' and sd & c.u: n = max(n, 1)
        return n
    if p.cls == 'salu':
        if 'm0' in p.d and c.cls == 'vmem' and 'm0' in c.u: n = max(n, 1)
        return n
    if p.cls == 'vmem' and p.wide:
        if set(p.data) & c.d: n = max(n, 2 if c.cls == 'valu' else 1)
    return n

def hazard_pass(lines, verbose=False):
    ins = [Ins(l) for l in lines]
    total = 0
    for rnd in range(4):
        labels = {x.label: i for i, x in enumerate(ins) if x.cls == 'label'}
        srcs = {}
        for i, x in enumerate(ins):
            if x.cls == 'br': srcs.setdefault(labels[x.target], []).append(i)
        out = []; added = 0
        ins_n = {}
        for j, c in enumerate(ins):
            if c.cls in ('label', 'dir', 'nop', 'sopp'): continue
            worst = 0
            stack = [(j, 0)]; seen = set()
            while stack:
                k, dist = stack.pop()
                preds = []
                if k > 0:
                    q = ins[k - 1]
                    if not (q.op in ('s_branch', 's_endpgm')): preds.append(k - 1)
                if ins[k].cls == 'label': preds += srcs.get(k, [])
                for p in preds:
                    if (p, dist) in seen: continue
                    seen.add((p, dist))
                    x = ins[p]
                    r = need(x, c) if x.cls in ('mfma', 'valu', 'salu', 'vmem') else 0
                    if r - dist > worst: worst = r - dist
                    nd = dist + x.ws + ins_n.get(p, 0)
                    if nd < 13: stack.append((p, nd))
            if worst > 0:
                ins_n[j] = worst; added += 1
                if verbose: print(f"  nop {worst} before: {c.txt}")
        if not ins_n: break
        new = []
        for j, c in enumerate(ins):
            if j in ins_n: new.append(Ins(f"s_nop {ins_n[j] - 1}"))
            new.append(c)
        ins = new; total += added
    return [x.txt for x in ins], total

class B:
    def __init__(s):
        s.L = []; s.vi = 0; s.vd = 0; s.li = 0; s.ld = 0; s.smem_out = False
    def e(s, txt):
        for l in txt.split('\n'):
            l = l.strip()
            if l: s.L.append(l)
    def vm(s, txt):
        s.e(txt); s.vi += 1; return s.vi - 1
    def lg(s, txt):
        s.e(txt); s.li += 1; return s.li - 1
    def sm(s, txt):
        s.e(txt); s.smem_out = True
    def wait(s, vm=None, lg=None):
        p = []
        if vm is not None and vm >= s.vd:
            n = min(62, s.vi - vm - 1); p.append(f"vmcnt({n})"); s.vd = s.vi - n
        if lg is not None and lg >= s.ld:
            n = 0 if s.smem_out else min(14, s.li - lg - 1)
            p.append(f"lgkmcnt({n})"); s.ld = s.li - n
            if n == 0: s.smem_out = False
        if p: s.e("s_waitcnt " + " ".join(p))
    def wait_all(s, vm=True, lg=True, force=True):
        p = []
        if vm and (force or s.vd < s.vi): p.append("vmcnt(0)"); s.vd = s.vi
        if lg and (force or s.ld < s.li or s.smem_out): p.append("lgkmcnt(0)"); s.ld = s.li; s.smem_out = False
        if p: s.e("s_waitcnt " + " ".join(p))
    def fork(s):
        o = B(); o.L = s.L; o.vi, o.vd, o.li, o.ld, o.smem_out = s.vi, s.vd, s.li, s.ld, s.smem_out; return o

import subprocess, tempfile, os
def sizes_of(lines):
    src = ".amdgcn_target \"amdgcn-amd-amdhsa--gfx950\"\n.text\n" + "\n".join(lines) + "\n"
    r = subprocess.run(["llvm-mc", "-triple", "amdgcn-amd-amdhsa", "-mcpu=gfx950", "-show-encoding"], input=src, capture_output=True, text=True)
    if r.returncode: raise RuntimeError(r.stderr[:3000])
    out = []
    for l in r.stdout.split("\n"):
        m = re.search(r"; encoding: \[(.*)\]", l)
        if m: out.append((len(m.group(1).split(",")), l.split(";")[0].strip()))
    return out
NO64 = ('v_swap', 'v_readfirstlane', 'v_permlane', 'v_fmaak', 'v_fmamk', 'v_accvgpr', 'v_nop', 'v_dot2c')
def align_pass(lines, mis_cost=1.33, nop_cost=4.0, start_par=0):
    idx = [i for i, l in enumerate(lines) if not (l.endswith(':') or l.startswith('.'))]
    sz = sizes_of(lines)
    assert len(sz) == len(idx), (len(sz), len(idx))
    opts = {}
    for i, (n, canon) in zip(idx, sz):
        o = [(lines[i], n)]
        op = canon.split()[0]
        if n == 4 and op.endswith('_e32') and not op.startswith(NO64):
            t = lines[i].split(None, 1); base = t[0][:-4] if t[0].endswith('_e32') else t[0]
            o.append((base + '_e64 ' + t[1], 8))
        if n == 4 and op == 's_addk_i32':
            a = [x.strip() for x in lines[i].split(None, 1)[1].split(',')]
            o.append((f"s_add_u32 {a[0]}, {a[0]}, {a[1]}", 8))
        opts[i] = o
    near = set()
    for p, i in enumerate(idx):
        if lines[i].startswith('v_mfma'):
            for q in range(max(0, p - 5), min(len(idx), p + 6)): near.add(idx[q])
    INF = 1e18
    cost = [0 if start_par == 0 else INF, 0 if start_par == 1 else INF]
    back = []
    for i in idx:
        nc = [INF, INF]; bk = [None, None]
        for p in (0, 1):
            if cost[p] >= INF: continue
            for pad in (0, 1):
                q = p ^ pad
                for k, (t, n) in enumerate(opts[i]):
                    c = cost[p] + pad * nop_cost + ((0.1 if i in near else mis_cost) if (n >= 8 and q == 1) else 0) + (0.01 * k)
                    r = q ^ ((n // 4) & 1)
                    if c < nc[r]: nc[r] = c; bk[r] = (p, pad, k)
        cost = nc; back.append(bk)
    p = 0 if cost[0] <= cost[1] else 1
    choice = {}
    for i, bk in zip(reversed(idx), reversed(back)):
        pp, pad, k = bk[p]; choice[i] = (pad, k); p = pp
    out = []; npad = nprom = 0
    for i, l in enumerate(lines):
        if i in choice:
            pad, k = choice[i]
            if pad: out.append("s_nop 0"); npad += 1
            out.append(opts[i][k][0]); nprom += k > 0
        else: out.append(l)
    return out, npad, nprom, min(cost)


class Gaps:
    def __init__(s, b, cap=2, spread=True):
        s.b = b; s.cap = cap; s.q = []; s.v = []; s.used = 0; s.left = 0; s.next = 0.0; s.pos = 0; s.step = 0.0; s.spread = spread
    @staticmethod
    def cost(txt):
        c = 0
        for l in txt.split('\n'):
            l = l.strip()
            if not l: continue
            c += 2 if l.startswith(('buffer_', 'global_', 'v_swap', 'v_rcp', 'v_exp', 'v_sqrt', 'v_permlane')) else 1
        return c
    def add(s, item, cost=None, front=False):
        if cost is None: cost = s.cost(item)
        (s.q.insert(0, (cost, item)) if front else s.q.append((cost, item)))
    def addv(s, item, cost=2, mem=True, front=False):
        if not s.spread: return s.add(item, cost, front)
        (s.v.insert(0, (cost, item, mem)) if front else s.v.append((cost, item, mem)))
    def begin(s, ngaps):
        n = sum(1 for x in s.v if x[2])
        s.pos = 0; s.step = ngaps / n if n else 0.0; s.next = 0.0
    def need(s): return sum(x[0] for x in s.q) + sum(x[0] for x in s.v)
    def now(s, item, cost=None):
        if cost is None: cost = s.cost(item)
        n0 = len(s.b.L)
        s.b.e(item) if isinstance(item, str) else item()
        if len(s.b.L) > n0: s.used += cost
    def fill(s, reserve=0, cap=None):
        cap = (s.cap if cap is None else cap) - reserve
        fits = lambda c: s.used + c <= cap or (s.used == 0 and reserve == 0)
        while s.v and fits(s.v[0][0]) and (not s.v[0][2] or s.pos >= int(s.next)):
            c, it, mem = s.v.pop(0); s.now(it, c)
            if mem: s.next += s.step
        while s.q and fits(s.q[0][0]):
            c, it = s.q.pop(0); s.now(it, c)
        s.pos += 1
    def mfma(s, txt):
        s.b.e(txt); s.used = 0
    def flush(s):
        while s.v:
            c, it, _ = s.v.pop(0); s.now(it, c)
        while s.q:
            c, it = s.q.pop(0); s.now(it, c)
```

```python
sPAN, sDMA, sM0, sW2, sH0 = 60, 61, 62, 63, 64
sROT = 59
sHP, sSTK = 68, 72
CSB = 162816
A_PAN, A_RING, A_W2 = 0, 48, 80
V_ACC1, V_ACC2, V_PAN = 32, 96, 144
V_G2, V_HR = 144, 32

def ffn_map(helper):
    if helper:
        t = f"""s_lshr_b32 s76, s2, 3
            s_mul_i32 s{sJ}, s76, 43
            s_lshr_b32 s{sJ}, s{sJ}, 7
            s_mul_i32 s58, s{sJ}, 3
            s_sub_u32 s{sSI}, s76, s58
            s_and_b32 s58, s{sXCD}, 1
            s_mul_i32 s58, s58, 3
            s_add_u32 s{sI}, s{sSI}, s58
            s_mul_i32 s{sROT}, s{sSI}, 3
            s_lshr_b32 s{sC}, s76, 2
            """
    else:
        t = f"""s_lshr_b32 s76, s50, 3
            s_mul_i32 s{sJ}, s76, 52
            s_lshr_b32 s{sJ}, s{sJ}, 8
            s_mul_i32 s58, s{sJ}, 5
            s_sub_u32 s{sSI}, s76, s58
            s_and_b32 s58, s{sXCD}, 1
            s_mul_i32 s58, s58, 5
            s_add_u32 s58, s58, s{sSI}
            s_add_u32 s{sI}, s58, 6
            s_mov_b32 s{sROT}, 0
            s_lshr_b32 s{sC}, s76, 2
            s_add_u32 s{sC}, s{sC}, 3
            """
    return t + f"""s_lshr_b32 s58, s{sXCD}, 1
        s_lshl_b32 s58, s58, 2
        s_add_u32 s{sJ}, s{sJ}, s58
        s_and_b32 s76, s76, 3
        s_lshl_b32 s{sRHO}, s{sXCD}, 2
        s_add_u32 s{sRHO}, s{sRHO}, s76
        v_lshlrev_b32 v4, 4, v1
        s_lshl_b32 s{sM0}, s{sW}, 12
        s_mul_i32 s{sDMA}, s{sJ}, {JSTR}
        s_add_u32 s{sDMA}, s{sDMA}, s{sM0}
        s_add_u32 s{sDMA}, s{sDMA}, {W1P}
        s_mul_i32 s58, s{sC}, 56
        s_mul_i32 s{sW2}, s{sW}, 14
        s_add_u32 s58, s58, s{sW2}
        s_mul_i32 s{sW2}, s58, 5120
        s_add_u32 s{sW2}, s{sW2}, {W2P}"""

def w2_touch(b, late):
    nl = 60 if late else 80
    b.e(f"""s_and_b32 s3, s{sRHO}, 3
        s_mul_i32 s3, s3, {nl * 128}
        s_add_u32 s3, s3, s{sW2}
        v_lshlrev_b32 v2, 7, v1""")
    if late:
        b.e(f"s_add_u32 s3, s3, 4096\nv_min_u32 v2, {59 * 128}, v2")
        b.vm(f"buffer_load_dword a253, v2, {WS}, s3 offen sc1")
    else:
        b.e(f"v_add_u32 v3, 0x2000, v2\nv_min_u32 v3, {79 * 128}, v3")
        b.vm(f"buffer_load_dword a253, v2, {WS}, s3 offen sc1")
        b.vm(f"buffer_load_dword a254, v3, {WS}, s3 offen sc1")

def dma_w1(b, n):
    blk, k = n >> 2, n & 3
    if k == 0:
        b.e(f"s_add_u32 m0, s{sM0}, {(blk % 9) * 16384}\ns_addk_i32 s{sDMA}, 16384")
    return b.vm(f"buffer_load_dwordx4 v4, {WS}, s{sDMA} offen offset:{k * 1024} sc1 lds")

def w2_load(b, m):
    n, dt = divmod(m, 5)
    if m and m % 4 == 0: b.e(f"s_addk_i32 s{sW2}, 4096")
    return b.vm(f"buffer_load_dwordx4 {ar(A_W2 + (n % 8) * 20 + dt * 4, 4)}, v4, {WS}, s{sW2} offen offset:{(m % 4) * 1024} sc1")

def preload(b, lo, hi):
    for n in range(lo, hi):
        if n % 4 == 0:
            b.e(f"""s_lshl_b32 s56, s{sROT}, 14
                s_add_u32 m0, s{sM0}, s56
                s_add_u32 s57, s{sDMA}, s56
                s_add_u32 s{sROT}, s{sROT}, 1
                s_cmp_eq_u32 s{sROT}, 9
                s_cselect_b32 s{sROT}, 0, s{sROT}""")
        b.vm(f"buffer_load_dwordx4 v4, {WS}, s57 offen offset:{(n & 3) * 1024} sc1 lds")
    if hi == 36:
        b.e(f"""s_add_u32 s{sDMA}, s{sDMA}, {8 * 16384}
            v_cmp_lt_u32 vcc, 111, v0
            v_mov_b32 v2, 0
            v_mov_b32 v3, {7168 - 448}
            v_cndmask_b32 v2, v2, v3, vcc
            v_lshl_add_u32 v2, v0, 2, v2
            s_mul_i32 s56, s{sJ}, 448
            s_add_u32 s56, s56, {CSP}""")
        for k in range(7):
            b.vm(f"buffer_load_dword v{16 + k}, v2, {WS}, s56 offen sc1")
            b.e("s_addk_i32 s56, 14336")

def ffn(b):
    b.e(f"""v_add_u32 v5, 0x10000, v4
        v_add_u32 v6, 0x20000, v4
        v_and_b32 v2, 15, v1
        v_lshrrev_b32 v3, 4, v1
        v_lshlrev_b32 v7, 4, v2
        v_lshl_add_u32 v7, v3, 9, v7
        v_lshlrev_b32 v8, 4, v3
        v_add_u32 v8, {CSB}, v8
        v_lshlrev_b32 v9, 4, v2
        s_lshl_b32 s56, s{sI}, 2
        s_add_u32 s56, s56, s{sW}
        s_mul_i32 s{sPAN}, s56, 40960
        s_add_u32 s74, s{sPAN}, {HT}
        s_add_u32 s75, s74, 40960
        s_and_b32 s57, s{sJ}, 3
        s_mul_i32 s57, s57, {5 if OPT.get('krot', 0) else 0}
        s_lshr_b32 s57, s57, 1
        s_lshl_b32 s57, s57, 12
        s_add_u32 s{sPAN}, s74, s57
        s_lshl_b32 s{sSTK}, s56, 8
        s_add_u32 s{sSTK}, s{sSTK}, {ST2}
        s_mul_i32 s56, s56, {2 * 56 * 1024}
        s_add_u32 s56, s56, {HP}""")
    for k in range(2):
        b.e(f"""s_lshl_b32 s57, s{sJ}, 1
            s_add_u32 s57, s57, {k}
            s_and_b32 s58, s57, 3
            s_mul_i32 s58, s58, 14
            s_lshr_b32 s57, s57, 2
            s_add_u32 s57, s57, s58
            s_lshl_b32 s57, s57, 10
            s_add_u32 s{sHP + k}, s56, s57""")
    for k in range(2):
        b.e(f"s_mov_b32 s57, s{sJ}" if k == 0 else f"s_lshr_b32 s57, s{sJ}, 1")
        b.e(f"""s_and_b32 s58, s57, 3
            s_mul_i32 s58, s58, 14
            s_lshr_b32 s57, s57, 2
            s_add_u32 s57, s57, s58
            s_add_u32 s57, s57, {8 + 4 * k}
            s_lshl_b32 s57, s57, 10
            s_add_u32 s{sHP + 2 + k}, s56, s57""")
    b.e(f"""s_and_b32 s57, s{sJ}, 1
        s_mul_i32 s57, s57, {56 * 1024}
        s_add_u32 s{sHP + 3}, s{sHP + 3}, s57""")
    for k in range(4):
        b.e(f"""s_xor_b32 s57, s{sW}, {k}
            s_lshl_b32 s58, s{sRHO}, 2
            s_add_u32 s57, s57, s58
            s_mul_i32 s57, s57, 56
            s_mul_i32 s58, s{sW}, 14
            s_add_u32 s57, s57, s58
            s_lshl_b32 s57, s57, 10
            s_add_u32 s{sH0 + k}, s57, {HP}""")
    stamp(b, 'pre_issued')
    sk = lab("np")
    b.e(f"s_cmp_lg_u32 s{sW}, 0\ns_cbranch_scc1 {sk}")
    poll(b.fork(), ld_lines(FLH, 160, 10), cond_lines(160, 10))
    b.e(f"{sk}:")
    b.wait_all()
    b.e(f"""v_add_f32 v16, v16, v17
        v_add_f32 v18, v18, v19
        v_add_f32 v20, v20, v21
        v_add_f32 v16, v16, v22
        v_add_f32 v18, v18, v20
        v_lshlrev_b32 v2, 2, v0
        v_add_u32 v2, {CSB}, v2
        v_add_f32 v16, v16, v18
        ds_write_b32 v2, v16
        s_waitcnt lgkmcnt(0)""")
    b.e("s_barrier")
    stamp(b, 'g1_start')
    sk = lab("dz")
    b.e(f"""s_cmp_lg_u32 s2, 255
        s_cbranch_scc1 {sk}
        s_mov_b32 s14, 128
        v_mov_b32 v16, 0
        v_lshlrev_b32 v17, 2, v0
        buffer_store_dword v16, v17, {OUT}, 0 offen sc1
        {sk}:""")
    mk_srd(b, 12, P_OUT, 2621440)
    if OPT['stop'] == 'pre': stamp_dump(b); b.e("s_endpgm")
    b.e(f"s_cmp_eq_u32 s{sJ}, 15\ns_cbranch_scc1 L_j15")
    g12(b.fork(), 4, 3, False)
    b.e("L_j15:")
    g12(b.fork(), 2, 1, True)

def flag_store(b, base):
    b.e(f"s_lshl_b32 s56, s{sI}, 4\ns_add_u32 s56, s56, s{sJ}")
    arrive(b, base, "s56")
def ld_flags(base):
    return ld_lines(f"s_lshr_b32 s55, s{sRHO}, 1\ns_lshl_b32 s55, s55, 11\ns_add_u32 s55, s55, {base}", 16)
COND_FLAG = cond_lines(16)
def ld_st2(b):
    return b.vm(f"buffer_load_dwordx4 v[28:31], v9, {WS}, s{sSTK} offen sc1")
COND_ST2 = "v_xor_b32 v26, s0, v29\nv_xor_b32 v27, s1, v31\nv_or_b32 v26, v26, v27\nv_cmp_ne_u32 vcc, 0, v26"

def M(fn):
    fn.mem = True; return fn

def g12(b, np1, np2, stats):
    NK = 20
    ptok = {}
    VT = V_ACC1 if stats else V_ACC2
    VS_ = 112
    def preg(k): return V_PAN + 8 * k if k < 14 else VT + 8 * (k - 14)
    def pan(k, s, first):
        return vr(preg(k) + 4 * s, 4) if (k < 14 or first) else ar(A_PAN + 8 * (k - 14) + 4 * s, 4)
    def pan_load(k):
        if k and k % 2 == 0:
            b.e(f"s_addk_i32 s{sPAN}, 4096")
            if OPT.get('krot', 0): b.e(f"s_cmp_eq_u32 s{sPAN}, s75\ns_cselect_b32 s{sPAN}, s74, s{sPAN}")
        for p in range(2):
            ptok[k] = b.vm(f"buffer_load_dwordx4 {vr(preg(k) + 4 * p, 4)}, v7, {WS}, s{sPAN} offen offset:{(k & 1) * 2048 + p * 256} sc1")
    def pan_fix(k):
        b.wait(vm=ptok[k])
        r = preg(k)
        b.e(f"v_swap_b32 v{r + 2}, v{r + 4}\nv_swap_b32 v{r + 3}, v{r + 5}")
        return [f"v_accvgpr_write_b32 a{A_PAN + 8 * (k - 14) + q}, v{r + q}" for q in range(8)] if k >= 14 else []
    def pan_load_ops(k):
        L = []
        if k and k % 2 == 0:
            L.append((f"s_addk_i32 s{sPAN}, 4096" + (f"\ns_cmp_eq_u32 s{sPAN}, s75\ns_cselect_b32 s{sPAN}, s74, s{sPAN}" if OPT.get('krot', 0) else ""), 1))
        for p in range(2):
            if OPT.get('nopan'): ptok[k] = 0; continue
            L.append((M(lambda p=p: ptok.__setitem__(k, b.vm(f"buffer_load_dwordx4 {vr(preg(k) + 4 * p, 4)}, v7, {WS}, s{sPAN} offen offset:{(k & 1) * 2048 + p * 256} sc1"))), 2))
        return L
    def pan_fix_ops(k):
        r = preg(k)
        L = [(lambda: b.wait(vm=ptok[k]), 1), (f"v_swap_b32 v{r + 2}, v{r + 4}", 2), (f"v_swap_b32 v{r + 3}, v{r + 5}", 2)]
        return L
    def pan_copy_ops(k):
        return [(f"v_accvgpr_write_b32 a{A_PAN + 8 * (k - 14) + q}, v{preg(k) + q}", 1) for q in range(8)] if k >= 14 else []
    LA = OPT.get('la', 5)
    for k in range(LA): pan_load(k)
    nslot1, nslot2 = 2 * np1 * NK, 2 * np2 * NK
    ftok = {}
    ring = dict(vis=9, free=0, rd=-1, used=-1)
    def frag_read(n):
        if n >= nslot1 + nslot2: return
        assert n // 16 < ring['vis'], ("ring RAW", n)
        pos = (n % 144) * 1024
        ftok[n] = b.lg(f"ds_read_b128 {ar(A_RING + (n % 8) * 4, 4)}, v{4 + (pos >> 16)} offset:{pos & 0xffff}")
    FA = OPT.get('fa', 7); WG_ = OPT.get('wg', 4)
    b.e(f"v_add_u32 v24, {56 * 1024}, v4")
    if stats:
        b.e("s_mov_b32 s3, 0x3f803f80\nv_mov_b32 v12, s3\nv_mov_b32 v13, s3\nv_mov_b32 v14, s3\nv_mov_b32 v15, s3")
        pan_fix(0)
        for k in range(NK):
            if k + LA < NK: pan_load(k + LA)
            cp = pan_fix(k + 1) if k + 1 < NK else []
            for s in range(2):
                b.e(f"v_mfma_f32_16x16x32_bf16 {vr(VS_ + 4 * s, 4)}, v[12:15], {pan(k, s, True)}, {'0' if k == 0 else vr(VS_ + 4 * s, 4)}")
                b.e(f"v_mfma_f32_16x16x32_bf16 {vr(VS_ + 8 + 4 * s, 4)}, {pan(k, s, True)}, {pan(k, s, True)}, {'0' if k == 0 else vr(VS_ + 8 + 4 * s, 4)}")
            for c in cp: b.e(c)
        b.e("""v_and_b32 v2, 3, v1
            v_cmp_eq_u32 s[56:57], 1, v2
            v_cmp_eq_u32 s[58:59], 2, v2
            v_cmp_eq_u32 s[74:75], 3, v2
            v_bfe_u32 v2, v1, 2, 2
            v_lshrrev_b32 v3, 4, v1
            v_cmp_eq_u32 s[76:77], v2, v3""")
        for s in range(2):
            g = VS_ + 8 + 4 * s
            b.e(f"v_cndmask_b32 v{g}, v{g}, v{g+1}, s[56:57]\nv_cndmask_b32 v{g}, v{g}, v{g+2}, s[58:59]\nv_cndmask_b32 v{g}, v{g}, v{g+3}, s[74:75]")
            stats_finish(b, VS_ + 4 * s, g, 16 + 2 * s)
        b.e("v_mov_b32 v17, s0\nv_mov_b32 v19, s1\ns_mov_b64 exec, s[76:77]")
        b.vm(f"buffer_store_dwordx4 v[16:19], v9, {WS}, s{sSTK} offen sc1")
        b.e("s_mov_b64 exec, -1")
    for n in range(FA): frag_read(n)
    if not stats: pan_fix(0)
    dman = [36]
    dtok = {}
    def dma_next():
        if dman[0] < 72 and not stats:
            assert (dman[0] // 4 - 9 + 1) * 16 <= ring['free'], ("ring WAR", dman[0])
            dtok[dman[0]] = dma_w1(b, dman[0]); dman[0] += 1
    dq = [36]; m0cur = [None]
    def set_m0(want):
        if m0cur[0] != want: b.e(f"s_add_u32 m0, s{sM0}, {want & 0xffffffff}"); m0cur[0] = want
    def dma_ops():
        m = dq[0]
        if m >= 72 or stats: return []
        dq[0] += 1
        L = []
        want = ((m >> 2) % 9) * 16384
        if m % 4 == 0: L.append((lambda: (set_m0(want), b.e(f"s_addk_i32 s{sDMA}, 16384")), 2))
        def go():
            assert (m // 4 - 9 + 1) * 16 <= ring['free'], ("ring WAR", m)
            set_m0(want)
            dtok[m] = b.vm(f"buffer_load_dwordx4 v4, {WS}, s{sDMA} offen offset:{(m & 3) * 1024} sc1 lds") if not OPT.get('nodma') else b.vi - 1; dman[0] = m + 1
        L.append((M(go), 2))
        return L
    def ring_barrier(upto):
        if upto - 1 in dtok: b.wait(vm=dtok[upto - 1])
        else: assert upto == 36 or stats
        if not OPT.get('nobar'): b.e("s_barrier")
        ring['vis'] = max(ring['vis'], upto // 4); ring['free'] = ring['used'] + 1
    def epi_ops(acc, tau0, taus, dsts, pk, CA, CB):
        ops = []; st = {}
        def rd(ti):
            if ti >= len(taus): return
            c = (CA, CB)[ti & 1]
            b.lg(f"ds_read_b128 {vr(c, 4)}, v8 offset:{(tau0 + taus[ti]) * 64}")
            st[ti] = b.lg(f"ds_read_b128 {vr(c + 4, 4)}, v8 offset:{448 + (tau0 + taus[ti]) * 64}")
        st['rd'] = rd
        for ti, t in enumerate(taus):
            c0 = (CA, CB)[ti & 1]
            ops.append(lambda ti=ti: (b.wait(lg=st[ti]), rd(ti + 1) if CA != CB else None))
            for s in range(2):
                g = acc + ((t * 2 + 0) * 2 + s) * 4; u = acc + ((t * 2 + 1) * 2 + s) * 4
                if pk:
                    for (r, c) in ((g, c0), (g + 2, c0 + 2), (u, c0 + 4), (u + 2, c0 + 6)):
                        ops.append(lambda r=r, c=c, s=s: b.e(f"v_pk_fma_f32 {vr(r,2)}, {vr(c,2)}, v[12:13], {vr(r,2)} op_sel:[0,{s},0] op_sel_hi:[1,{s},1]"))
                else:
                    for q in range(4):
                        ops.append(lambda r=g + q, c=c0 + q, s=s: b.e(f"v_fmac_f32 v{r}, v{c}, v{12 + s}"))
                    for q in range(4):
                        ops.append(lambda r=u + q, c=c0 + 4 + q, s=s: b.e(f"v_fmac_f32 v{r}, v{c}, v{12 + s}"))
                if s == 1 and CA == CB: ops.append(lambda ti=ti: rd(ti + 1))
                for q in range(4):
                    ops.append(lambda r=g + q: b.e(f"v_max_f32 v{r}, 0, v{r}"))
                if pk:
                    for q in (0, 2):
                        ops.append(lambda r=g + q, u=u + q: b.e(f"v_pk_mul_f32 {vr(r,2)}, {vr(r,2)}, {vr(u,2)}"))
                else:
                    for q in range(4):
                        ops.append(lambda r=g + q, u=u + q: b.e(f"v_mul_f32 v{r}, v{r}, v{u}"))
                d, half, sreg, last = dsts[ti](s)
                for q in range(2):
                    ops.append(lambda d=d + q, r=g + 2 * q: b.e(f"v_cvt_pk_bf16_f32 v{d}, v{r}, v{r + 1}"))
                if last == 4:
                    ops.append(lambda d=d - 2, s=s, sreg=sreg: st.__setitem__('last', b.vm(f"buffer_store_dwordx4 {vr(d,4)}, v{4 if s == 0 else 24}, {WS}, s{sreg} offen sc1")))
                elif last == 2:
                    def hst(d=d - 2, sreg=sreg):
                        l = lab("hs")
                        b.e(f"s_bitcmp0_b32 s{sJ}, 1\ns_cbranch_scc1 {l}\nv_swap_b32 v{d}, v{d + 2}\nv_swap_b32 v{d + 1}, v{d + 3}\n{l}:")
                        st['last'] = b.vm(f"buffer_store_dwordx4 {vr(d,4)}, v4, {WS}, s{sreg} offen sc1")
                    ops.append(hst)
                if last: ops[-1].vm = True
        return [(o, 2 if getattr(o, 'vm', False) else 1) for o in ops], st
    def dst_pair(acc, ta, second, sreg):
        def f(s):
            base = acc + ((ta * 2 + 1) * 2 + s) * 4
            return (base + (2 if second else 0), second, sreg, 4 if second else 0)
        return f
    def dst_half(acc, t, sreg):
        def f(s): return (acc + (t * 2 + 1) * 8 + 2 * s, 0, sreg, 2 * s)
        return f
    d1 = [dst_pair(V_ACC1, 0, False, sHP), dst_pair(V_ACC1, 0, True, sHP), dst_pair(V_ACC1, 2, False, sHP + 1), dst_pair(V_ACC1, 2, True, sHP + 1)]
    ops, est = epi_ops(V_ACC1, 0, list(range(np1)), d1, OPT.get('pk1', 0), 16, 16)
    G = Gaps(b, spread=OPT.get('spread', 1))
    def addv(L, front=False):
        for it, c in (reversed(L) if front else L): G.addv(it, c, getattr(it, 'mem', False), front)
    n = 0
    tok = {}
    DS = OPT.get('ds', [0, 0, 0, 0, 1, 2, 1, 2, 1, 2, 1, 2, 1, 1, 1, 2, 2, 2, 2, 2])
    NT = nslot1 + nslot2
    pn = [LA]
    def slot(n, k, accb, t, mat, cap=None, first=False):
        if n % WG_ == 0: G.now(lambda: b.wait(lg=ftok[min(n + WG_ - 1, NT - 1)]), 1)
        for s in range(2):
            a = accb + ((t * 2 + mat) * 2 + s) * 4
            G.mfma(f"v_mfma_f32_16x16x32_bf16 {vr(a,4)}, {ar(A_RING + (n % 8) * 4, 4)}, {pan(k, s, first)}, {'0' if k == 0 else vr(a,4)}")
            if s == 0: G.now(lambda: frag_read(n + FA), 1)
            G.fill(reserve=1 if (s == 1 and (n + 1) % WG_ == 0) else 0, cap=cap)
        ring['used'] = n
    for k in range(NK):
        if not stats:
            for _ in range(OPT.get('pr', [1] * 20)[k]):
                if pn[0] < NK:
                    addv(pan_load_ops(pn[0]))
                    pn[0] += 1
            if k + 1 < NK:
                fx = pan_fix_ops(k + 1)
                pos = min(len(G.q), 3)
                G.q[pos:pos] = [(c, it) for it, c in fx]
            for _ in range(DS[k]):
                addv(dma_ops())
            for it in pan_copy_ops(k): G.add(*it)
        T0 = OPT.get('t2at', 99)
        if k == T0 - 1:
            G.add(f"s_and_b32 s73, s{sRHO}, 3\ns_mul_i32 s73, s73, {60 * 128}"); G.add(f"s_add_u32 s73, s73, s{sW2}\nv_min_u32 v11, 5, v1")
            G.add(f"s_add_u32 s73, s73, {4096 - 768}\nv_lshlrev_b32 v11, 7, v11")
        if T0 <= k < T0 + 10:
            G.add("s_addk_i32 s73, 768"); G.add(lambda: b.vm(f"buffer_load_dword a253, v11, {WS}, s73 offen sc1"), 2)
        if k == OPT.get('t1at', 99) and not stats:
            G.add(f"s_mul_i32 s3, s{sSI}, {136 * 128}\ns_add_u32 s3, s3, s{sDMA}")
            G.add(f"s_sub_u32 s3, s3, s{sM0}\nv_lshlrev_b32 v2, 7, v0"); G.add(f"s_add_u32 s3, s3, 16384\nv_min_u32 v2, {135 * 128}, v2")
            G.add(lambda: b.vm(f"buffer_load_dword a252, v2, {WS}, s3 offen sc1"), 2)
        if k == NK - 2: G.add(lambda: tok.__setitem__('st2', ld_st2(b)), 2)
        if k == NK - 1: G.add(lambda: est['rd'](0), 2)
        G.begin(4 * np1)
        for t in range(np1):
            for mat in range(2):
                slot(n, k, V_ACC1, t, mat, first=not stats); n += 1
        G.flush()
        stamp(b, f'p1_{k}')
        if not stats and k in (3, 7, 11, 15, 19):
            ring_barrier(max(36, (dman[0] - 3) // 4 * 4))
    st2tok = tok['st2']
    stamp(b, 'p1_end')
    poll(b, ld_st2, COND_ST2, st2tok)
    b.e("v_lshlrev_b32 v12, 16, v28\nv_lshlrev_b32 v13, 16, v30\nv_xor_b32 v12, 0x80000000, v12\nv_xor_b32 v13, 0x80000000, v13")
    htok = {}; wtok = {}
    def g2_setup():
        return [l.strip().replace('|', '\n') for l in f"""s_mul_i32 s50, s{sC}, {1024 * OPT.get('hrot', 1)}
        s_cmp_eq_u32 s{sW}, 3|s_cselect_b32 s59, {7 * 1024}, -1|s_cselect_b32 s73, {3 * 1024}, -1
        v_and_b32 v2, 15, v1
        v_lshrrev_b32 v3, 4, v1
        v_lshlrev_b32 v14, 4, v2
        v_lshl_add_u32 v14, v3, 8, v14
        s_lshr_b32 s56, s{sW}, 1
        s_lshl_b32 s57, s{sRHO}, 1
        s_add_u32 s56, s56, s57
        s_and_b32 s57, s{sW}, 1
        s_mul_i32 s58, s56, 40960
        s_mul_i32 s3, s{sC}, 5120
        s_add_u32 s58, s58, s3
        s_lshl_b32 s3, s57, 3
        s_add_u32 s58, s58, s3
        s_add_u32 s74, s58, {HT}
        s_add_u32 s75, s74, 4096
        s_lshl_b32 s56, s56, 5
        s_add_u32 s56, s56, s57
        s_lshl_b32 s76, s56, 3
        s_add_u32 s76, s76, {ST2}
        s_mul_i32 s77, s56, 1280
        s_mul_i32 s3, s{sC}, 160
        s_add_u32 s77, s77, s3
        v_mul_u32_u24 v15, 2560, v2
        v_lshl_add_u32 v15, v3, 3, v15""".split("\n")]
    HD = OPT.get('hd', 4)
    def hreg(nn): return (32, 48, 64, 80, 224, 240)[nn % HD]
    def h_ops(nn):
        if nn >= 14: return []
        def addr():
            msk, base, dm = (7168, 0, 59) if nn < 8 else (3072, 8192, 73) if nn < 12 else (1024, 12288, None)
            b.e(f"s_add_u32 s56, s50, {nn * 1024}\ns_and_b32 s56, s56, {msk}")
            if dm: b.e(f"s_cmp_eq_u32 s56, s{dm}\ns_cselect_b32 s56, {OOB}, s56")
            if base: b.e(f"s_add_u32 s56, s56, {base}")
            b.e(f"v_add_u32 v{25 + (nn & 1) * 2}, s56, v4")
        L = [(addr, 2)]
        for tt in range(4):
            if OPT.get('noh'): htok[nn] = 0; continue
            L.append((M(lambda tt=tt: htok.__setitem__(nn, b.vm(f"buffer_load_dwordx4 {vr(hreg(nn) + tt * 4, 4)}, v{25 + (nn & 1) * 2}, {WS}, s{sH0 + tt} offen sc1"))), 2))
        return L
    stg = [40]; stok = {}; spos = {}; avail = []; freed = set(); NS = OPT.get('ns', 19)
    def release():
        for blk in range(0 if stats else 9, 14 if not stats else 5):
            if blk not in freed and 16 * (blk + 1) <= ring['free']:
                freed.add(blk); avail.extend((blk % 9) * 16384 + 1024 * q for q in range(4))
                if len(freed) == 1: avail.extend(147456 + 1024 * q for q in range(3))
    def stage_ops():
        m = stg[0]
        if m >= 40 + NS or not avail: return []
        stg[0] += 1
        a = avail.pop(0); spos[m] = a
        want = a - (m % 4) * 1024
        L = [(lambda: (set_m0(want), b.e(f"s_addk_i32 s{sW2}, 4096") if m % 4 == 0 else None), 1)]
        def go():
            set_m0(want)
            stok[m] = b.vm(f"buffer_load_dwordx4 v4, {WS}, s{sW2} offen offset:{(m % 4) * 1024} sc1 lds") if not OPT.get('nostage') else 0
        L.append((M(go), 2))
        return L
    KE = OPT.get('ke', 15); KF = OPT.get('kflag', 9); KD = OPT.get('kdone', 6); KB = OPT.get('kb', 7); KR = OPT.get('kr', 0)
    if np2 == 3: d2 = [dst_pair(V_ACC2, 0, False, sHP + 2), dst_pair(V_ACC2, 0, True, sHP + 2), dst_half(V_ACC2, 2, sHP + 3)]
    else: d2 = [dst_half(V_ACC2, 0, sHP + 3)]
    ops2, est2 = epi_ops(V_ACC2, np1, list(range(np2)), d2, True, 16, 144)
    oi = 0; setup = g2_setup(); hpre = 0
    if stats: ring_barrier(36)
    release()
    for k in range(NK):
        if k >= KR:
            for _ in range(2):
                addv(dma_ops())
        if k < KD:
            hi = (len(ops) * (k + 1)) // KD
            for it in ops[oi:hi]: G.add(*it)
            oi = hi
        else:
            for _ in range(8):
                if setup: G.add(setup.pop(0))
        if dq[0] >= 72 or stats or k >= OPT.get('ss', 99):
            for _ in range(OPT.get('sr', 1) + (OPT.get('sr2', 3) if k >= KD else 0)):
                addv(stage_ops())
        if k == KD + 5:
            assert not setup
            for dt in range(5):
                G.addv(lambda dt=dt: b.vm(f"buffer_load_dwordx2 {ar(240 + 2 * dt, 2)}, v14, {WS}, s{74 if dt < 4 else 75} offen offset:{(dt % 4) * 1024} sc1"))
        if k == KE - 1: G.add(lambda: tok.__setitem__('e', ld_flags(FLE)(b)), 4, front=True)
        if k > KE and hpre < HD - 1:
            assert not setup
            addv(h_ops(hpre), front=True)
            hpre += 1
        if k == NK - 1: G.add(lambda: est2['rd'](0), 2)
        ng = 4 * np2
        G.begin(ng)
        free2 = 2 * ng - 2 * np2 - (2 * np2 + WG_ - 1) // WG_
        for t in range(np2):
            for mat in range(2):
                left = ng - 2 * (t * 2 + mat)
                need = G.need()
                cap = 2 if need <= free2 * left / ng else (3 if need <= (free2 + ng) * left / ng + 1 else 4 + need // left)
                slot(n, k, V_ACC2, t, mat, cap); n += 1
        G.flush()
        stamp(b, f'p2_{k}')
        if k == KB and not stats:
            ring_barrier(72 if dman[0] == 72 else (dman[0] - 3) // 4 * 4); release()
        if k == KF:
            b.wait(vm=est['last'])
            ring_barrier(72)
            flag_store(b, FLE); release()
        if k == 10 and KF < 10 and not stats and NS > 19:
            ring_barrier(72); release()
        if k == KE:
            if not OPT.get('noep'): poll(b, ld_flags(FLE), COND_FLAG, tok['e'])
            stamp(b, 'early_seen')
    assert stg[0] == 40 + NS, stg
    G.flush()
    stamp(b, 'p2_end')
    b.e(f"v_add_u32 v10, s{sM0}, v4\nv_add_u32 v5, s{sM0}, v5\nv_add_u32 v6, s{sM0}, v6")
    for o, _ in ops2: o()
    for q in range(hpre, min(hpre + 1, HD - 1)):
        for o, _ in h_ops(q): o()
    stamp(b, 'epi2_end')
    lseen = False; hnext = min(hpre + 1, HD - 1)
    NF, NL = OPT.get('nf', 2), OPT.get('nl', 6)
    wl = {}
    if NF < 0:
        b.wait(vm=est2['last'])
        b.e("s_barrier")
        flag_store(b, FLL)
        stamp(b, 'late_flag')
    for nn in range(14):
        if hnext < 8 or lseen:
            lim = min(nn + HD - 1, 13 if lseen else 7, hnext + OPT.get('hb', 2) - 1)
            while hnext <= lim:
                addv(h_ops(hnext))
                hnext += 1
        if 1 <= nn <= 6:
            for dt in range(5):
                m = (nn + 7) * 5 + dt
                if m in spos:
                    G.add(lambda m=m, nn=nn, dt=dt: (b.wait(vm=stok[39 + NS]), wl.__setitem__(nn + 7, b.lg(f"ds_read_b128 {ar(A_W2 + (nn - 1) * 20 + dt * 4, 4)}, v{(10, 5, 6)[spos[m] >> 16]} offset:{spos[m] & 0xffff}"))), 1)
                else: G.addv(lambda m=m, nn=nn: wtok.__setitem__(nn + 7, w2_load(b, m)))
        if nn == 3: G.add(lambda: wtok.__setitem__('res', b.vm(f"buffer_load_dword v106, v9, {WS}, s76 offen sc1")), 2)
        if nn == NL - 1: G.add(lambda: wtok.__setitem__('late', ld_flags(FLL)(b)), 4)
        if nn == 10:
            G.add(lambda: (b.wait(vm=wtok['res']), b.e("v_and_b32 v106, 0xffff0000, v106")), 2)
            G.add("v_rcp_f32 v106, v106")
            for dt in range(5):
                for k in range(2):
                    G.add(f"v_accvgpr_read_b32 v{96 + 2 * dt + k}, a{240 + 2 * dt + k}")
                    G.add(f"v_lshlrev_b32 v{108 + 4 * dt + 2 * k}, 16, v{96 + 2 * dt + k}\nv_and_b32 v{109 + 4 * dt + 2 * k}, 0xffff0000, v{96 + 2 * dt + k}")
            G.add("v_mul_f32 v106, v106, v106")
        if nn == 11:
            for k in range(3): G.add(f"s_xor_b32 s56, s{sW}, {k + 1}\ns_mul_i32 s56, s56, 15360"); G.add(f"s_add_u32 s56, s56, 81920\nv_add_u32 v{16 + k}, s56, v4")
            G.add(f"s_mul_i32 s56, s{sW}, 15360\ns_add_u32 s56, s56, 81920"); G.add("v_add_u32 v19, s56, v4")
        def g2m(nn, tt, dt):
            a = V_G2 + (tt * 5 + dt) * 4
            G.mfma(f"v_mfma_f32_16x16x32_bf16 {vr(a,4)}, {ar(A_W2 + (nn % 8) * 20 + dt * 4, 4)}, {vr(hreg(nn) + tt * 4, 4)}, {'0' if nn == 0 else vr(a,4)}")
        if nn == 12 and OPT.get('ttail', 1):
            b.wait(vm=max(htok[13], wtok.get(13, -1)), lg=max(wl.values()))
            for r in (hreg(12), hreg(12) + 8, hreg(13), hreg(13) + 8): b.e(f"v_swap_b32 v{r + 2}, v{r + 4}\nv_swap_b32 v{r + 3}, v{r + 5}")
            cnt = 0; pend = []
            for tt in (1, 2, 3, 0):
                for q in (12, 13):
                    for dt in range(5):
                        g2m(q, tt, dt); cnt += 1
                        if pend and cnt >= pend[0][0] and cnt % 2 == 0:
                            _, t2, d2_ = pend.pop(0)
                            b.lg(f"ds_write_b128 v{15 + t2}, {vr(V_G2 + (t2 * 5 + d2_) * 4, 4)} offset:{(t2 - 1) * 5120 + d2_ * 1024}")
                        if q == 13 and tt: pend.append((cnt + 5, tt, dt))
            for _, t2, d2_ in pend: b.lg(f"ds_write_b128 v{15 + t2}, {vr(V_G2 + (t2 * 5 + d2_) * 4, 4)} offset:{(t2 - 1) * 5120 + d2_ * 1024}")
            break
        b.wait(vm=max(htok[nn], wtok.get(nn, -1)), lg=wl.get(nn))
        G.begin(20)
        for dt in range(5):
            for tt in range(4):
                g2m(nn, tt, dt)
                G.fill()
        G.flush()
        stamp(b, f'g2_{nn}')
        if nn == NF:
            b.wait(vm=est2['last'])
            b.e("s_barrier")
            flag_store(b, FLL)
        if nn == NL:
            poll(b, ld_flags(FLL), COND_FLAG, wtok['late']); lseen = True
            stamp(b, 'late_seen')
    stamp(b, 'g2_end')
    if not OPT.get('ttail', 1):
        for tt in range(1, 4):
            for dt in range(5):
                b.lg(f"ds_write_b128 v{15 + tt}, {vr(V_G2 + (tt * 5 + dt) * 4, 4)} offset:{(tt - 1) * 5120 + dt * 1024}")
    b.wait_all(vm=False)
    b.e("s_barrier")
    rk = {}
    for dt in range(5):
        for k in range(3):
            rk[dt] = b.lg(f"ds_read_b128 {vr(32 + (dt * 3 + k) * 4, 4)}, v19 offset:{k * 5120 + dt * 1024}")
    for dt in range(5):
        b.wait(lg=rk[dt])
        a = V_G2 + dt * 4; r = 32 + dt * 12
        for h in (0, 2):
            b.e(f"v_pk_add_f32 {vr(a + h, 2)}, {vr(a + h, 2)}, {vr(r + h, 2)}")
            b.e(f"v_pk_add_f32 {vr(r + 4 + h, 2)}, {vr(r + 4 + h, 2)}, {vr(r + 8 + h, 2)}")
        for h in (0, 2):
            b.e(f"v_pk_add_f32 {vr(a + h, 2)}, {vr(a + h, 2)}, {vr(r + 4 + h, 2)}")
        for h in (0, 2):
            b.e(f"v_pk_fma_f32 {vr(a + h, 2)}, {vr(a + h, 2)}, v[106:107], {vr(108 + 4 * dt + h, 2)} op_sel_hi:[1,0,1]")
        b.e(f"v_cvt_pk_bf16_f32 v{a}, v{a}, v{a + 1}\nv_cvt_pk_bf16_f32 v{a + 1}, v{a + 2}, v{a + 3}")
        b.vm(f"buffer_store_dwordx2 {vr(a, 2)}, v15, {OUT}, s77 offen offset:{dt * 32} {OPT.get('outaux', '')}")
    stamp(b, 'end')
    stamp_dump(b)
    b.e("s_endpgm")
```

```python
import sys, os
from asmlib import B, hazard_pass, align_pass, Gaps
KN = "sequential_preLN__ssm_conv_s4__glu_gated_reglu__prompt_kernel"
OPT = dict(stamps=False, stop=None, spin=1000000)

ST1, ST2 = 0, 16384
EPOCH = 32768
FLP2, FLP, FLH, FLE, FLL = 0x1520000, 0x1524000, 0x1528000, 0x1530000, 0x1538000
CSP = 0x1500000
STAMP = 0xC000
XT, HT, W1P, W2P, HP = 0x10000, 0x300000, 0x600000, 0xB00000, 0xE00000
WS_STAMP = 0x1600000
WS_SIZE = 0x1700000
JSTR = 286720
P_X, P_ARE, P_AIM, P_BRE, P_BIM, P_CRE, P_CIM, P_LDT, P_DSK, P_BX, P_WG, P_WU, P_WD, P_OUT, P_DBG, P_WS = [16 + 2 * k for k in range(16)]
sW, sXCD, sI, sJ, sRHO, sC = 48, 49, 51, 52, 53, 54
sSI = 77
SRC = "s[4:7]"; WS = "s[8:11]"; OUT = "s[12:15]"
def sp(r): return f"s[{r}:{r+1}]"
def vr(r, n): return f"v[{r}:{r+n-1}]" if n > 1 else f"v{r}"
def ar(r, n): return f"a[{r}:{r+n-1}]" if n > 1 else f"a{r}"
RSTR = 33856
_lab = [0]
def lab(p):
    _lab[0] += 1; return f"L_{p}{_lab[0]}"

def stamp(b, name):
    st = OPT['stamps']
    if not st or name not in st: return
    r = 78 + 2 * st.index(name)
    b.sm(f"{'s_memtime' if OPT.get('cyc') else 's_memrealtime'} s[{r}:{r+1}]")
def stamp_init(b):
    if OPT['stamps']:
        for r in range(78, 102, 2): b.e(f"s_mov_b64 s[{r}:{r+1}], 0")
def stamp_dump(b):
    if not OPT['stamps']: return
    if OPT.get('amplify'):
        sk = lab("am"); lo = lab("al")
        b.e(f"""s_waitcnt lgkmcnt(0)
            s_cmp_lg_u32 s2, 100
            s_cbranch_scc1 {sk}
            s_sub_u32 s56, s80, s78
            s_mul_i32 s56, s56, 10
            s_min_u32 s56, s56, 100000
            s_memrealtime s[58:59]
            s_waitcnt lgkmcnt(0)
            {lo}:
            s_memrealtime s[60:61]
            s_waitcnt lgkmcnt(0)
            s_sub_u32 s57, s60, s58
            s_cmp_lt_u32 s57, s56
            s_cbranch_scc1 {lo}
            {sk}:""")
        return
    if OPT.get('dbgdump'):
        sk = lab("dd")
        b.e(f"s_waitcnt lgkmcnt(0)\ns_cmp_lg_u32 s{sW}, 0\ns_cbranch_scc1 {sk}\ns_mov_b64 exec, 1\nv_mov_b32 v30, 0\ns_not_b32 s78, s78")
        for k in range(12):
            b.e(f"v_mov_b32 v31, s{78 + 2 * k}\nglobal_atomic_umax v30, v31, {sp(P_DBG)} offset:{4 * k + 4} sc1")
        b.e(f"{sk}:")
        return
    b.e(f"s_waitcnt lgkmcnt(0)\ns_lshl_b32 s3, s2, 2\ns_add_u32 s3, s3, s{sW}\ns_lshl_b32 s3, s3, 7\ns_add_u32 s3, s3, {WS_STAMP}\nv_mov_b32 v30, 0")
    for k in range(12):
        b.e(f"v_mov_b32 v31, s{78 + 2 * k}\nbuffer_store_dword v31, v30, {WS}, s3 offen offset:{4 * k}")

def poll(b, load, cond, tok=None, sleep=0):
    if tok is None: tok = load(b)
    b.wait(vm=tok)
    lo, ok = lab("poll"), lab("ok")
    b.e(cond)
    b.e(f"s_cbranch_vccz {ok}\ns_mov_b32 s3, 0\n{lo}:")
    if sleep or OPT.get('backoff', 0): b.e(f"s_sleep {sleep or OPT['backoff']}")
    f = b.fork(); load(f); f.wait_all(lg=False)
    b.e(cond)
    b.e(f"s_add_u32 s3, s3, 1\ns_cmp_gt_u32 s3, {OPT['spin']}\ns_cbranch_scc1 {ok}\ns_cbranch_vccnz {lo}\n{ok}:")

def ld_ready(b, every=False):
    b.e("v_mov_b32 v26, 0" if every else f"s_lshl_b32 s55, s{sW}, 8\nv_mov_b32 v26, s55")
    return b.vm(f"buffer_load_dwordx4 v[28:31], v26, {OUT}, 0 offen sc1")
COND_READY = "v_xor_b32 v26, v28, v30\nv_xor_b32 v27, v29, v31\nv_and_b32 v26, v26, v27\nv_cmp_ne_u32 vcc, -1, v26"

def code_prefetch(b, stage):
    if stage == 1:
        b.e(f"""s_getpc_b64 s[76:77]
            L_pc:
            s_sub_u32 s76, s76, L_pc-{KN}
            s_subb_u32 s77, s77, 0
            s_lshr_b32 s55, s2, 3
            s_lshl_b32 s55, s55, 2
            s_add_u32 s55, s55, s{sW}
            s_and_b32 s55, s55, 31""")
    lo, hi = (KN, "L_stage2") if stage == 1 else ("L_stage2", "L_code_end")
    if OPT.get('cpf1', 1):
        if stage == 2: return
        hi = "L_code_end"
    nl = f"((({hi}-{lo})+4095)/4096)"
    b.e(f"""s_mul_i32 s3, s55, {nl}*128
        s_add_u32 s3, s3, {lo}-{KN}
        v_min_u32 v26, {nl}-1, v1
        v_lshl_add_u32 v26, v26, 7, s3
        s_mov_b32 s3, L_code_end-{KN}-4
        v_min_u32 v26, s3, v26""")
    b.vm(f"global_load_dword a{253 + stage}, v26, s[76:77]")

def mk_srd(b, r, ptr, size):
    b.e(f"s_mov_b32 s{r}, s{ptr}\ns_mov_b32 s{r+1}, s{ptr+1}\ns_mov_b32 s{r+2}, {size}\ns_mov_b32 s{r+3}, 0x20000")

LNB = 143104
LNS = LNB - 128
OOB = 0x40000000
def x_dma(c, late=False):
    so = "s59" if late else "s57"
    if late: c.e(f"v_lshl_add_u32 v26, v1, 4, s60\ns_mul_i32 s59, s50, 20480\ns_mul_i32 s3, s{sW}, 5120\ns_add_u32 s59, s59, s3")
    for p in range(2):
        if p: c.e(f"s_add_u32 m0, s58, 2592\ns_addk_i32 {so}, 2560")
        for k in range(3):
            if k == 2: c.e("s_mov_b32 exec_hi, 0")
            t = c.vm(f"buffer_load_dwordx4 {'v26' if late else 'v2'}, {SRC}, {so} offen offset:{k * 1024} nt lds")
        c.e("s_mov_b32 exec_hi, -1")
    return t
def entry(b):
    stamp_init(b)
    stamp(b, 'top')
    b.e(f"s_load_dwordx16 s[16:31], s[0:1], 0\ns_load_dwordx16 s[32:47], s[0:1], 64")
    b.e("s_cmp_ge_u32 s2, 256\ns_cbranch_scc1 L_exit")
    b.e(f"""v_lshrrev_b32 v2, 6, v0
        v_and_b32 v1, 63, v0
        v_readfirstlane_b32 s{sW}, v2
        s_and_b32 s{sXCD}, s2, 7""")
    code_prefetch(b, 1)
    b.e(f"""s_mov_b32 s50, s2
        s_cmp_lt_u32 s50, 128
        s_cselect_b32 s60, 0, {OOB}
        v_lshl_add_u32 v2, v1, 4, s60
        s_mul_i32 s57, s50, 20480
        s_mul_i32 s58, s{sW}, 5120
        s_add_u32 s57, s57, s58
        s_mul_i32 s58, s{sW}, 5184
        s_add_u32 s58, s58, {LNB}
        s_mov_b32 m0, s58
        s_mov_b32 s6, 2621440
        s_mov_b32 s7, 0x20000
        s_mov_b32 s10, {WS_SIZE}
        s_mov_b32 s11, 0x20000
        s_mov_b32 s14, 128
        s_mov_b32 s15, 0x20000
        s_lshl_b32 s59, s50, 3
        s_lshl_b32 s61, s50, 10
        s_lshl_b32 s56, s{sW}, 8
        s_add_u32 s61, s61, s56
        v_lshl_add_u32 v3, v1, 2, s61
        s_cmp_ge_u32 s2, 160
        s_waitcnt lgkmcnt(0)
        s_cbranch_scc1 L_help""")
    srd = f"""s_mov_b32 s4, s{P_X}
        s_mov_b32 s5, s{P_X + 1}
        s_add_u32 s8, s{P_WS}, {OPT.get('wsoff', 0)}
        s_addc_u32 s9, s{P_WS + 1}, 0
        s_mov_b32 s12, s{P_DBG}
        s_mov_b32 s13, s{P_DBG + 1}"""
    c = b.fork()
    pt = []
    def par():
        for k, p in enumerate((P_ARE, P_AIM, P_BRE, P_BIM, P_CRE, P_CIM)):
            pt.append(c.vm(f"global_load_dword v{4 + k}, v3, {sp(p)} nt"))
    par()
    c.e(srd)
    t = x_dma(c) if OPT.get('xat', 0) == 0 else None
    stamp(c, 'start')
    c.sm(f"s_load_dwordx2 s[62:63], {sp(P_LDT)}, s59\ns_load_dwordx2 s[64:65], {sp(P_DSK)}, s59")
    c.e("s_branch L_conv")
    b.e(f"""L_help:
        {srd}
        s_sub_u32 s2, s2, 160
        s_cmp_lg_u32 s2, 0
        s_cbranch_scc1 L_noinit
        s_cmp_lg_u32 s{sW}, 3
        s_cbranch_scc1 L_noinit
        v_mov_b32 v4, 0
        s_mov_b32 s56, {EPOCH}
        buffer_load_dwordx2 v[8:9], v4, {WS}, s56 offen sc1
        v_lshlrev_b32 v10, 4, v1
        s_waitcnt vmcnt(0)
        v_add_co_u32 v12, vcc, 1, v8
        v_addc_co_u32 v13, vcc, 0, v9, vcc
        v_not_b32 v14, v12
        v_not_b32 v15, v13
        buffer_store_dwordx4 v[12:15], v10, {OUT}, 0 offen sc1
        s_mov_b64 exec, 1
        buffer_store_dwordx2 v[12:13], v4, {WS}, s56 offen sc1
        s_mov_b64 exec, -1
        L_noinit:""")
    return t, c, pt

def ln1_addr(b):
    b.e(f"""v_and_b32 v2, 7, v1
        v_lshrrev_b32 v3, 3, v1
        v_mul_u32_u24 v240, 2592, v2
        v_lshl_add_u32 v240, v3, 3, v240
        s_lshl_b32 s3, s{sW}, 6
        s_add_u32 s3, s3, {LNB}
        v_add_u32 v240, s3, v240
        v_lshlrev_b32 v241, 8, v3
        v_lshl_add_u32 v241, v2, 4, v241
        s_lshl_b32 s3, s{sW}, 11
        s_add_u32 s3, s3, s60
        v_add_u32 v241, s3, v241
        v_lshrrev_b32 v2, 5, v1
        v_bfe_u32 v3, v1, 4, 1
        v_mul_u32_u24 v242, 2592, v2
        v_mul_u32_u24 v3, 1280, v3
        v_and_b32 v2, 15, v1
        v_lshl_add_u32 v242, v2, 4, v242
        v_add3_u32 v242, v242, v3, s58
        s_lshl_b32 s3, s{sW}, 4
        s_add_u32 s3, s3, {LNS}
        v_lshrrev_b32 v2, 4, v1
        v_lshl_add_u32 v243, v2, 2, s3
        s_lshr_b32 s57, s50, 1
        s_mul_i32 s57, s57, 40960
        s_and_b32 s3, s50, 1
        s_lshl_b32 s3, s3, 7
        s_add_u32 s57, s57, s3
        s_add_u32 s57, s57, {XT}""")

def ln1_a(b, xtok, R, out):
    A0 = R + 40
    tk = []; st = []; C = []
    def c0():
        b.e("s_mov_b32 s56, 0x3f803f80")
        b.wait(vm=xtok)
        b.e("s_barrier")
        stamp(b, 'ln_x')
        for k in range(5):
            b.lg(f"ds_read_b64 {vr(R + 4 * k, 2)}, v240 offset:{256 * k}")
            tk.append(b.lg(f"ds_read_b64 {vr(R + 4 * k + 2, 2)}, v240 offset:{256 * k + 1280}"))
    C.append(c0)
    def stores(ks):
        def f():
            for k in ks:
                b.wait(lg=tk[k])
                out['last'] = b.vm(f"buffer_store_dwordx4 {vr(R + 4 * k, 4)}, v241, {WS}, s57 offen sc1")
                b.e("s_addk_i32 s57, 8192")
                st.append(b.lg(f"ds_read_b128 {vr(R + 20 + 4 * k, 4)}, v242 offset:{256 * k}"))
            if 4 in ks: ld_ready(b)
        return f
    C += [stores([0, 1]), stores([2, 3]), stores([4])]
    def dots(g):
        def f():
            b.wait(lg=st[g])
            for k in range(4 * g, 4 * g + 4):
                r = R + 20 + k
                b.e(f"v_dot2_f32_bf16 v{A0 + (k & 1)}, v{r}, s56, {'0' if k < 2 else f'v{A0 + (k & 1)}'}")
                b.e(f"v_dot2_f32_bf16 v{A0 + 2 + (k & 1)}, v{r}, v{r}, {'0' if k < 2 else f'v{A0 + 2 + (k & 1)}'}")
        return f
    C += [dots(g) for g in range(5)]
    C.append(lambda: b.e(f"v_add_f32 v{A0}, v{A0}, v{A0 + 1}\nv_add_f32 v{A0 + 2}, v{A0 + 2}, v{A0 + 3}"))
    for m in ("quad_perm:[1,0,3,2]", "quad_perm:[2,3,0,1]", "row_half_mirror", "row_mirror"):
        C.append(lambda m=m: b.e(f"v_add_f32_dpp v{A0}, v{A0}, v{A0} {m} row_mask:0xf bank_mask:0xf\nv_add_f32_dpp v{A0 + 2}, v{A0 + 2}, v{A0 + 2} {m} row_mask:0xf bank_mask:0xf"))
    def fin():
        stats_finish(b, A0, A0 + 2, A0 + 1)
        b.e("s_mov_b32 exec_lo, 0x10001\ns_mov_b32 exec_hi, 0x10001")
        b.lg(f"ds_write_b32 v243, v{A0 + 1}")
        b.e("s_mov_b64 exec, -1")
        stamp(b, 'ln_a')
    C.append(fin)
    return C

def ln1_b(b, last):
    last = last + 1
    sk0 = lab("l0")
    b.wait(vm=last, lg=b.li - 1)
    stamp(b, 'ln_drain')
    b.e(f"s_cmp_lg_u32 s{sW}, 0\ns_cbranch_scc1 {sk0}")
    f = b.fork()
    poll(f, ld_ready, COND_READY, last)
    f.e(f"v_mov_b32 v2, {LNS + 64}\nds_write_b64 v2, v[28:29]\ns_waitcnt lgkmcnt(0)")
    b.e(f"{sk0}:\ns_barrier")
    b.e(f"""v_mov_b32 v2, {LNS + 64}
        v_and_b32 v26, 7, v1
        v_lshlrev_b32 v26, 3, v26
        v_add_u32 v26, {LNS}, v26""")
    b.lg("ds_read_b64 v[28:29], v2")
    t = b.lg("ds_read_b64 v[2:3], v26")
    b.e(f"""s_lshl_b32 s3, s{sW}, 30
        s_or_b32 s3, s3, s60
        v_lshl_add_u32 v27, v1, 4, s3
        s_lshl_b32 s56, s50, 7""")
    b.wait(lg=t)
    b.e(f"""v_readfirstlane_b32 s0, v28
        v_readfirstlane_b32 s1, v29
        v_mov_b32 v31, v29
        v_mov_b32 v29, v28
        v_mov_b32 v28, v2
        v_mov_b32 v30, v3
        s_mov_b64 exec, 0xff""")
    b.vm(f"buffer_store_dwordx4 v[28:31], v27, {WS}, s56 offen sc1")
    b.e("s_mov_b64 exec, -1")
    stamp(b, 'ln_done')

def w_prefetch(b):
    b.e(f"""s_lshr_b32 s3, s50, 3
        s_lshl_b32 s3, s3, 2
        s_add_u32 s3, s3, s{sW}
        s_min_u32 s3, s3, 71
        s_lshl_b32 s3, s3, 6
        v_add_u32 v16, s3, v1
        v_mul_u32_u24 v17, 683, v16
        v_lshrrev_b32 v17, 16, v17
        v_mul_u32_u24 v18, 96, v17
        v_sub_u32 v16, v16, v18
        v_lshrrev_b32 v18, 2, v17
        v_and_b32 v17, 3, v17
        v_lshl_add_u32 v17, v18, 5, v17
        s_lshl_b32 s3, s{sXCD}, 2
        v_add_u32 v17, s3, v17
        v_min_u32 v17, 377, v17
        v_mul_u32_u24 v18, 9363, v17
        v_lshrrev_b32 v18, 16, v18
        v_mul_u32_u24 v19, 7, v18
        v_sub_u32 v17, v17, v19
        v_mad_u32_u24 v16, v17, 48, v16
        v_mad_u32_u24 v16, v17, 48, v16
        v_min_u32 v16, 639, v16
        v_mul_u32_u24 v16, 3456, v16
        v_lshrrev_b32 v19, 1, v18
        v_lshl_add_u32 v16, v19, 7, v16
        v_and_b32 v18, 1, v18
        v_cmp_eq_u32 vcc, 0, v18
        v_mov_b32 v18, s{P_WU}
        v_mov_b32 v19, s{P_WG}
        v_cndmask_b32 v18, v18, v19, vcc
        v_mov_b32 v17, s{P_WU + 1}
        v_mov_b32 v19, s{P_WG + 1}
        v_cndmask_b32 v19, v17, v19, vcc
        v_add_co_u32 v18, vcc, v18, v16
        v_addc_co_u32 v19, vcc, 0, v19, vcc""")
    b.vm("global_load_dword a251, v[18:19], off nt")

def stats_finish(b, vs, vq, vo):
    b.e(f"""s_mov_b32 s3, 0x3acccccd
        v_mul_f32 v{vs}, s3, v{vs}
        v_mul_f32 v{vq}, s3, v{vq}
        v_fma_f32 v{vq}, -v{vs}, v{vs}, v{vq}
        v_max_f32 v{vq}, 0, v{vq}
        v_cvt_pk_bf16_f32 v{vq}, v{vq}, v{vq}
        v_lshlrev_b32 v{vq}, 16, v{vq}
        v_add_f32 v{vq}, 0x3727c5ac, v{vq}
        v_cvt_pk_bf16_f32 v{vq}, v{vq}, v{vq}
        v_lshlrev_b32 v{vq}, 16, v{vq}
        v_sqrt_f32 v{vq}, v{vq}
        v_cvt_pk_bf16_f32 v{vo}, v{vs}, v{vq}""")

def pack(b):
    mk_srd(b, 4, P_WD, 2211840)
    b.e(f"""s_mul_i32 s50, s{sW}, 20480
        s_mul_i32 s56, s2, 3
        s_add_u32 s56, s56, s{sW}
        s_cmp_lt_u32 s{sW}, 3
        s_cselect_b32 s56, s56, 999
        s_cmp_lt_u32 s56, 270
        s_cselect_b32 s76, 0, {OOB}
        s_cmp_lt_u32 s56, 280
        s_cselect_b32 s66, 0, {OOB}
        s_cselect_b32 s56, s56, 0
        s_mul_i32 s60, s56, 13108
        s_lshr_b32 s60, s60, 16
        s_mul_i32 s59, s60, 5
        s_sub_u32 s59, s56, s59
        s_cmp_ge_u32 s60, 31
        s_cbranch_scc1 L_w2late
        s_lshr_b32 s61, s60, 1
        s_mul_i32 s61, s61, 112
        s_and_b32 s62, s60, 1
        s_lshl_b32 s62, s62, 5
        s_add_u32 s61, s61, s62
        s_add_u32 s62, s61, 16
        s_and_b32 s63, s60, 3
        s_lshr_b32 s64, s60, 2
        s_branch L_w2go
        L_w2late:
        s_sub_u32 s60, s60, 31
        s_mul_i32 s61, s60, 112
        s_add_u32 s61, s61, 64
        s_add_u32 s62, s61, 16
        s_sub_u32 s70, s60, 15
        s_mul_i32 s64, s70, 224
        s_add_u32 s64, s64, 96
        s_add_u32 s65, s64, 112
        s_min_u32 s65, s65, 1712
        s_bitcmp1_b32 s70, 0
        s_cselect_b32 s71, s65, s64
        s_cselect_b32 s65, s64, s65
        s_add_u32 s70, s70, 16
        s_cmp_lt_u32 s60, 15
        s_cselect_b32 s61, s61, s71
        s_cselect_b32 s62, s62, s65
        s_cselect_b32 s70, s60, s70
        s_and_b32 s63, s70, 3
        s_lshr_b32 s64, s70, 2
        s_add_u32 s64, s64, 8
        s_cmp_eq_u32 s60, 23
        s_cselect_b32 s63, 3, s63
        s_cselect_b32 s64, 11, s64
        s_cmp_eq_u32 s60, 24
        s_cselect_b32 s63, 3, s63
        s_cselect_b32 s64, 7, s64
        L_w2go:
        v_lshrrev_b32 v4, 4, v1
        v_and_b32 v5, 15, v1
        v_lshlrev_b32 v6, 1, v4
        v_xor_b32 v6, v6, v5
        v_mul_u32_u24 v7, 1280, v4
        v_lshl_add_u32 v24, v6, 4, v7
        v_add_u32 v24, s76, v24
        v_xor_b32 v25, 0x80, v24
        s_lshl_b32 s65, s59, 8
        s_mul_i32 s61, s61, 1280
        s_mul_i32 s62, s62, 1280
        s_add_u32 s61, s61, s65
        s_add_u32 s62, s62, s65""")
    def a_dma():
        for m in range(8):
            b.e(f"s_add_u32 m0, s50, {m * 1024}" + (f"\ns_addk_i32 s{61 + (m >> 2)}, 5120" if m & 3 else ""))
            ta = b.vm(f"buffer_load_dwordx4 v{24 + (m & 1)}, {SRC}, s{61 + (m >> 2)} offen nt lds")
        return ta
    if not OPT.get('alate'): ta = a_dma()
    else: b.e('s_mov_b32 s54, s61\ns_mov_b32 s53, s62\ns_mov_b32 s52, s4\ns_mov_b32 s51, s5')
    b.e(f"""s_lshl_b32 s56, s2, 2
        s_add_u32 s56, s56, s{sW}
        s_cmp_lt_u32 s56, 378
        s_cselect_b32 s67, 0, {OOB}
        s_cselect_b32 s56, s56, 0
        s_mul_i32 s60, s56, 9363
        s_lshr_b32 s60, s60, 16
        s_mul_i32 s68, s60, 7
        s_sub_u32 s68, s56, s68
        s_and_b32 s69, s60, 1
        s_lshr_b32 s60, s60, 1
        s_cmp_eq_u32 s69, 0
        s_cselect_b32 s4, s{P_WG}, s{P_WU}
        s_cselect_b32 s5, s{P_WG+1}, s{P_WU+1}
        v_lshrrev_b32 v6, 3, v1
        v_and_b32 v7, 7, v1
        v_bfe_u32 v8, v1, 4, 1
        v_lshlrev_b32 v8, 1, v8
        v_xor_b32 v7, v7, v8
        v_mul_u32_u24 v6, 3456, v6
        v_lshl_add_u32 v12, v7, 4, v6
        v_add_u32 v12, s67, v12
        v_xor_b32 v13, 0x40, v12
        s_cmp_eq_u32 s68, 6
        s_cselect_b32 s56, {OOB}, 0
        v_or_b32 v14, s56, v12
        v_or_b32 v15, s56, v13
        s_mul_i32 s61, s68, {96 * 3456}
        s_lshl_b32 s62, s60, 7
        s_add_u32 s61, s61, s62""")
    tb = []
    def bdma(m):
        b.e(f"s_add_u32 m0, s50, {8192 + m * 1024}" + ("\ns_addk_i32 s61, 27648" if m else "\ns_nop 0"))
        tb.append(b.vm(f"buffer_load_dwordx4 v{(14 if m >= 8 else 12) + (m & 1)}, {SRC}, s61 offen nt lds"))
    NB1 = OPT.get('nb1', 0)
    for m in range(NB1): bdma(m)
    b.e("""s_mul_i32 s63, s63, 14
        s_lshl_b32 s56, s59, 3
        s_mul_i32 s57, s56, 205
        s_lshr_b32 s57, s57, 10
        s_mul_i32 s62, s57, 5
        s_sub_u32 s56, s56, s62
        s_cmp_lt_u32 s64, 12
        s_cselect_b32 s77, 3, 1
        s_cmp_lt_u32 s64, 8
        s_cselect_b32 s77, 7, s77""")
    for i3 in range(3):
        b.e(f"""s_mul_i32 s62, s57, {OPT.get('hrot', 1)}
            s_sub_u32 s70, s64, s62
            s_and_b32 s70, s70, s77
            s_andn2_b32 s71, s64, s77
            s_or_b32 s70, s70, s71
            s_mul_i32 s71, s57, 56
            s_add_u32 s71, s71, s63
            s_add_u32 s71, s71, s70
            s_mul_i32 s71, s71, 5
            s_add_u32 s71, s71, s56
            s_lshl_b32 s71, s71, 10
            s_add_u32 s{73 + i3}, s71, {W2P - 5 * i3 * 1024}
            s_add_u32 s57, s57, 1""")
    for t in range(8):
        b.e(f"""s_cmp_ge_u32 s56, {max(5 - t, 0)}
            s_cselect_b32 s71, s74, s73
            s_cmp_ge_u32 s56, {10 - t}
            s_cselect_b32 s71, s75, s71
            s_add_u32 s{16 + t}, s71, {t * 1024}""")
    b.e(f"""v_bfe_u32 v6, v1, 2, 2
        v_and_b32 v11, 1, v4
        v_lshl_add_u32 v11, v11, 2, v6
        v_lshlrev_b32 v11, 5, v11
        v_lshl_add_u32 v11, v6, 8, v11
        v_lshl_add_u32 v11, v4, 10, v11
        v_and_b32 v6, 3, v1
        v_lshl_add_u32 v11, v6, 3, v11
        v_add_u32 v11, s50, v11
        v_lshlrev_b32 v9, 4, v1
        v_add_u32 v10, s66, v9
        """)
    if OPT.get('alate'):
        b.e('s_mov_b32 s70, s61\ns_mov_b32 s71, s4\ns_mov_b32 s72, s5\ns_mov_b32 s61, s54\ns_mov_b32 s62, s53\ns_mov_b32 s4, s52\ns_mov_b32 s5, s51')
        ta = a_dma()
        b.e('s_mov_b32 s61, s70\ns_mov_b32 s4, s71\ns_mov_b32 s5, s72')
    b.wait(vm=ta)
    stamp(b, 'pkA_loaded')
    tk = []
    for t in range(8):
        b.e(f"v_xor_b32 v{98 + t}, {t << 5}, v11")
        b.lg(f"ds_read_b64_tr_b16 {vr(64 + 4 * t, 2)}, v{98 + t}")
        tk.append(b.lg(f"ds_read_b64_tr_b16 {vr(66 + 4 * t, 2)}, v{98 + t} offset:4096"))
    for t in range(8):
        b.wait(lg=tk[t])
        sa = b.vm(f"buffer_store_dwordx4 {vr(64 + 4 * t, 4)}, v10, {WS}, s{16 + t} offen sc1")
    rt = ld_ready(b, True)
    NB2 = OPT.get('nb2', 6)
    for m in range(NB1, NB2): bdma(m)
    for t in range(4):
        T, J, TA, BS, STR = 62, 63, 64, 24 + 2 * t, 25 + 2 * t
        b.e(f"""s_lshl_b32 s{T}, s60, 2
            s_add_u32 s{T}, s{T}, {t}
            s_mul_i32 s{J}, s{T}, 9363
            s_lshr_b32 s{J}, s{J}, 16
            s_mul_i32 s{TA}, s{J}, 7
            s_sub_u32 s{TA}, s{T}, s{TA}
            s_cmp_eq_u32 s{J}, 15
            s_cselect_b32 s65, 2, 4
            s_cselect_b32 s56, 1, 3
            s_mul_i32 s57, s65, 40
            s_cmp_lt_u32 s{TA}, s65
            s_cselect_b32 s{STR}, s65, s56
            s_cselect_b32 s57, 0, s57
            s_cselect_b32 s65, 0, s65
            s_sub_u32 s{TA}, s{TA}, s65
            s_lshl_b32 s{TA}, s{TA}, 1
            s_add_u32 s{TA}, s{TA}, s69
            s_add_u32 s{TA}, s{TA}, s57
            s_lshl_b32 s{STR}, s{STR}, 11
            s_lshl_b32 s{TA}, s{TA}, 10
            s_and_b32 s56, s{J}, 3
            s_mul_i32 s56, s56, {5 if OPT.get('krot', 0) else 0}
            s_and_b32 s56, s56, -2
            s_mul_i32 s57, s68, 3
            s_add_u32 s57, s57, 20
            s_sub_u32 s{70 + t}, s57, s56
            s_mul_i32 s{J}, s{J}, {JSTR}
            s_add_u32 s{BS}, s{J}, s{TA}
            s_add_u32 s{BS}, s{BS}, {W1P}""")
    b.e(f"""v_bfe_u32 v6, v1, 2, 2
        v_bfe_u32 v7, v1, 3, 1
        v_and_b32 v8, 1, v4
        v_lshl_add_u32 v7, v8, 1, v7
        v_lshlrev_b32 v7, 5, v7
        v_lshl_add_u32 v7, v6, 7, v7
        v_lshl_add_u32 v7, v4, 10, v7
        v_and_b32 v6, 3, v1
        v_lshl_add_u32 v7, v6, 3, v7
        s_add_u32 s56, s50, 8192
        v_add_u32 v56, s56, v7
        v_xor_b32 v57, 32, v56
        v_xor_b32 v58, 64, v56
        v_xor_b32 v59, 0x60, v56
        v_add_u32 v96, s67, v9
        s_cmp_eq_u32 s68, 6
        s_cselect_b32 s56, {OOB}, s67
        v_add_u32 v97, s56, v9
        s_mov_b32 s3, 0x3f803f80
        v_mov_b32 v60, s3
        v_mov_b32 v61, s3
        v_mov_b32 v62, s3
        v_mov_b32 v63, s3""")
    poll(b, lambda bb: ld_ready(bb, True), COND_READY, rt)
    b.e("v_readfirstlane_b32 s0, v28\nv_readfirstlane_b32 s1, v29")
    b.e("s_barrier")
    arrive(b, FLP2, "s2")
    stamp(b, 'pkA_done')
    for m in range(NB2, 12): bdma(m)
    for k in range(3):
        b.wait(vm=tb[4 * k + 3])
        if k == 2: stamp(b, 'pk_loaded')
        tk = []
        for t in range(4):
            r = 128 + (k * 4 + t) * 4
            b.lg(f"ds_read_b64_tr_b16 {vr(r, 2)}, v{56 + t} offset:{k * 4096}")
            tk.append(b.lg(f"ds_read_b64_tr_b16 {vr(r + 2, 2)}, v{56 + t} offset:{k * 4096 + 512}"))
        for t in range(4):
            r = 128 + (k * 4 + t) * 4
            b.e(f"""s_add_u32 s56, s{70 + t}, {k}
                s_sub_u32 s57, s56, 20
                s_cmp_ge_u32 s56, 20
                s_cselect_b32 s56, s57, s56
                s_sub_u32 s57, s56, 20
                s_cmp_ge_u32 s56, 20
                s_cselect_b32 s56, s57, s56
                s_mul_i32 s56, s56, s{25 + 2 * t}
                s_add_u32 s57, s56, s{24 + 2 * t}""")
            b.wait(lg=tk[t])
            b.vm(f"buffer_store_dwordx4 {vr(r, 4)}, v{97 if k == 2 else 96}, {WS}, s57 offen sc1")
            b.e(f"v_mfma_f32_16x16x32_bf16 {vr(112 + 4 * t, 4)}, {vr(r, 4)}, v[60:63], {'0' if k == 0 else vr(112 + 4 * t, 4)}")
    b.e(f"""v_and_b32 v3, 3, v1
        v_cmp_eq_u32 s[62:63], 1, v3
        v_cmp_eq_u32 s[64:65], 2, v3
        v_cmp_eq_u32 vcc, 3, v3
        v_lshlrev_b32 v2, 4, v4
        v_lshl_add_u32 v2, v3, 6, v2
        v_add_u32 v2, s67, v2
        s_lshl_b32 s56, s68, 1
        s_add_u32 s56, s56, s69
        s_mul_i32 s56, s56, 7168
        s_lshl_b32 s57, s60, 8
        s_add_u32 s56, s56, s57
        s_add_u32 s56, s56, {CSP}""")
    for q in range(4):
        b.e(f"v_cndmask_b32 v{112 + q}, v{112 + q}, v{116 + q}, s[62:63]\nv_cndmask_b32 v{112 + q}, v{112 + q}, v{120 + q}, s[64:65]\nv_cndmask_b32 v{112 + q}, v{112 + q}, v{124 + q}, vcc")
    b.e("s_mov_b32 exec_lo, 0xf000f\ns_mov_b32 exec_hi, 0xf000f")
    b.vm(f"buffer_store_dwordx4 v[112:115], v2, {WS}, s56 offen sc1")
    b.e("s_mov_b64 exec, -1")
    stamp(b, 'pk_stored')
    b.wait_all()
    b.e("s_barrier")
    arrive(b, FLP, "s2")
    stamp(b, 'pack_done')

def arrive(b, base, idx):
    b.e(f"""s_lshl_b32 s3, {idx}, 7
        s_add_u32 s3, s3, {base}
        s_lshl_b32 s55, s{sW}, 30
        v_lshl_add_u32 v26, v1, 3, s55
        v_mov_b32 v28, s0
        v_mov_b32 v29, s1
        s_mov_b64 exec, 0xffff""")
    t = b.vm(f"buffer_store_dwordx2 v[28:29], v26, {WS}, s3 offen sc1")
    b.e("s_mov_b64 exec, -1")
    return t

def ld_lines(base, n, R=28):
    def f(b):
        b.e(f"s_mov_b32 s55, {base}" if isinstance(base, int) else base)
        for k in range((n + 63) // 64):
            lim = n - 1 - 64 * k
            b.e((f"v_min_u32 v26, {lim}, v1\nv_lshlrev_b32 v26, 7, v26" if lim < 63 else "v_lshlrev_b32 v26, 7, v1") + (f"\nv_add_u32 v26, {8192 * k}, v26" if k else ""))
            t = b.vm(f"buffer_load_dwordx2 {vr(R + 2 * k, 2)}, v26, {WS}, s55 offen sc1")
        return t
    return f
def ld_quarter(base):
    return ld_lines(f"s_mul_i32 s55, s{sW}, {24 * 128}\ns_add_u32 s55, s55, {base}", 24)
def cond_lines(n, R=28):
    t = []
    for k in range((n + 63) // 64):
        t.append(f"v_xor_b32 v{R + 2 * k}, s0, v{R + 2 * k}\nv_xor_b32 v{R + 1 + 2 * k}, s1, v{R + 1 + 2 * k}")
        t.append(f"v_or3_b32 v26, v26, v{R + 2 * k}, v{R + 1 + 2 * k}" if k else f"v_or_b32 v26, v{R}, v{R + 1}")
    return "\n".join(t) + "\nv_cmp_ne_u32 vcc, 0, v26"

L2E, L2E_LO, LN2 = 0x3FB8AA3B, 0x32A57060, 0x3F317218
def cmul(b, o, x, w, t):
    b.e(f"v_pk_mul_f32 {vr(t,2)}, {vr(x,2)}, {vr(w,2)} op_sel_hi:[1,0]")
    b.e(f"v_pk_fma_f32 {vr(o,2)}, {vr(x,2)}, {vr(w,2)}, {vr(t,2)} op_sel:[1,1,0] op_sel_hi:[0,1,1] neg_lo:[0,1,0]")

CSTR, SPB, UB = 2368, 9472, 11008
def conv(b, xtok, pt):
    b.e("L_conv:")
    VX, VS, VU, SG, XR, RR, BND = 192, 193, 194, 196, 212, 228, 244
    RB = "s76"
    if OPT.get('wpf', 0) == 1: w_prefetch(b)
    ln1_addr(b)
    if OPT.get('xat', 0) == 1: xtok = x_dma(b, True)
    b.e(f"""s_mul_i32 {RB}, s{sW}, {RSTR}
        v_lshl_add_u32 v10, v1, 3, {RB}
        v_and_b32 v2, 31, v1
        v_lshrrev_b32 v3, 5, v1
        v_lshl_add_u32 v3, v3, 4, {RB}
        v_lshrrev_b32 v11, 3, v2
        v_lshlrev_b32 v11, 2, v11
        v_and_b32 v12, 3, v2
        v_add_u32 v11, v11, v12
        v_bfe_u32 v12, v2, 2, 1
        s_mov_b32 s72, 0x86444200
        s_mov_b32 s73, 0xfedcba88
        v_lshlrev_b32 v16, 2, v11
        v_lshrrev_b64 v[16:17], v16, s[72:73]
        v_and_b32 v16, 15, v16
        v_add_u32 v16, 16, v16
        v_cmp_eq_u32 vcc, 1, v12
        v_cndmask_b32 v11, v11, v16, vcc
        v_add_u32 v13, 32, v2
        s_movk_i32 s3, 528
        v_mad_u32_u24 v11, v11, s3, v3
        v_mad_u32_u24 v13, v13, s3, v3
        v_sub_u32 v2, 63, v1
        v_lshl_add_u32 v12, v2, 4, {RB}
        v_lshl_add_u32 v253, v1, 4, {RB}
        v_and_b32 v2, 15, v1
        v_lshrrev_b32 v3, 4, v1
        v_sub_u32 v16, 2, v2
        v_and_b32 v16, 3, v16
        v_add_u32 v17, v2, v16
        v_sub_u32 v17, 18, v17
        v_lshlrev_b32 v17, 1, v17
        v_mul_u32_u24 v16, {CSTR}, v16
        v_add3_u32 v17, v17, v16, {RB}
        v_lshl_add_u32 v236, v3, 4, v17
        v_lshlrev_b32 v17, 5, v2
        v_lshl_add_u32 v17, v3, 4, v17
        s_add_u32 s3, {RB}, {UB}
        v_add_u32 v237, s3, v17
        v_lshlrev_b32 v17, 4, v2
        v_lshl_add_u32 v17, v3, 2, v17
        v_add_u32 v238, {RB}, v17
        v_lshrrev_b32 v17, 2, v2
        v_mul_u32_u24 v17, {RSTR}, v17
        v_lshl_add_u32 v17, v3, 5, v17
        v_and_b32 v16, 3, v2
        v_lshl_add_u32 v17, v16, 3, v17
        s_lshl_b32 s3, s{sW}, 7
        v_add_u32 v239, s3, v17
        v_sub_u32 v16, 3, v2
        v_and_b32 v16, 3, v16
        v_add_u32 v17, v2, v16
        v_sub_u32 v17, 15, v17
        v_lshl_add_u32 v17, v3, 2, v17
        v_lshlrev_b32 v17, 1, v17
        v_mul_u32_u24 v16, 192, v16
        s_add_u32 s3, {RB}, {SPB}
        v_add3_u32 v235, v17, v16, s3
        v_subrev_u32 v16, 1, v1
        v_lshrrev_b32 v16, 1, v16
        v_lshlrev_b32 v16, 1, v16
        v_and_b32 v17, 1, v1
        v_mul_u32_u24 v17, 768, v17
        v_sub_u32 v17, v17, v16
        s_add_u32 s3, s3, 126
        v_add_u32 v254, s3, v17
        v_subrev_u32 v255, 64, v254
        v_cmp_eq_u32 s[70:71], 0, v1
        s_sub_u32 s3, s3, 126
        v_mov_b32 v16, s3
        s_add_u32 s3, s3, 64
        v_mov_b32 v17, s3
        v_cndmask_b32 v254, v254, v16, s[70:71]
        v_cndmask_b32 v255, v255, v17, s[70:71]
        s_mov_b32 s72, 0x01028403
        s_mov_b32 s73, 0x8500
        v_lshlrev_b32 v16, 3, v1
        v_lshrrev_b64 v[16:17], v16, s[72:73]
        v_and_b32 v16, 0xff, v16
        v_lshl_add_u32 v252, v16, 4, {RB}
        v_lshlrev_b32 v16, 3, v3
        v_sub_u32 v16, v2, v16
        v_add_u32 v18, 36, v16
        s_mov_b32 s72, 0x1ff
        s_mov_b32 s73, 0
        v_lshlrev_b64 v[20:21], v18, s[72:73]
        v_add_u32 v18, 37, v16
        s_mov_b32 s72, 0x7f
        v_lshlrev_b64 v[22:23], v18, s[72:73]
        s_movk_i32 s3, 0x3f80""")
    if OPT.get('xat', 0) == 2: xtok = x_dma(b, True); b.e("s_movk_i32 s3, 0x3f80")
    for cl in range(2):
        for k in range(4):
            d = BND + 4 * cl + k
            b.e(f"v_bfe_u32 v{d}, v{21 + 2 * cl}, {2 * k}, 2\nv_lshl_or_b32 v{d}, v{d}, 15, v{d}\nv_and_b32 v{d}, 0x10001, v{d}\nv_mul_u32_u24 v{d}, s3, v{d}")
    b.e(f"""v_lshrrev_b32 v2, 4, v0
        v_mul_u32_u24 v2, 40960, v2
        v_and_b32 v3, 15, v0
        v_lshl_add_u32 v{VX}, v3, 4, v2
        v_lshlrev_b32 v{VS}, 4, v0
        s_movk_i32 s72, 4096
        s_movk_i32 s73, 8192
        v_lshlrev_b32 v{VU}, 2, v0
        v_add_u32 v{VU}, {UB + 512}, v{VU}
        v_add_u32 v{VU + 1}, {2 * RSTR}, v{VU}
        s_lshl_b32 s74, s50, 8
        s_add_u32 s75, s74, {XT}
        s_add_u32 s74, s74, {HT}""")
    if OPT.get('xat', 0) == 3: xtok = x_dma(b, True)
    b.wait_all(vm=False)
    b.e(f"""s_lshr_b32 s3, s{sW}, 1
        s_cmp_eq_u32 s3, 0
        s_cselect_b32 s62, s62, s63
        s_and_b32 s3, s{sW}, 1
        s_lshl_b32 s3, s3, 4
        s_lshr_b32 s62, s62, s3
        s_lshl_b32 s62, s62, 16
        s_mov_b32 s65, s65
        v_mov_b32 v14, s62
        s_lshl_b32 s66, s64, 16
        s_and_b32 s67, s64, 0xffff0000
        s_lshl_b32 s68, s65, 16
        s_and_b32 s69, s65, 0xffff0000
        s_mov_b32 s64, 0x{L2E:x}
        v_mul_f32 v15, s64, v14
        v_fma_f32 v16, v14, s64, -v15
        v_fmac_f32 v16, 0x{L2E_LO:x}, v14
        v_exp_f32 v15, v15
        v_mul_f32 v16, 0x{LN2:x}, v16
        v_fmac_f32 v15, v15, v16
        v_cvt_pk_bf16_f32 v15, v15, v15
        v_lshlrev_b32 v14, 16, v15""".replace("        s_mov_b32 s65, s65\n", ""))
    b.e(ffn_map(False).replace("v_lshlrev_b32 v4, 4, v1", "s_nop 0"))
    if OPT.get('wpf', 0) == 2: w_prefetch(b)
    AL, BE, CC, Z1, Z8, Z256, T, DB, X, X2, X4, X6, X8, X10, Y = range(0, 30, 2)
    R = lambda n, k: 32 + n * 32 + k
    b.wait(vm=pt[5])
    stamp(b, 'kg_par')
    for n in range(2):
        un = (lambda d, s: f"v_lshlrev_b32 v{d}, 16, v{s}") if n == 0 else (lambda d, s: f"v_and_b32 v{d}, 0xffff0000, v{s}")
        b.e("\n".join([un(R(n, AL), 4), un(R(n, BE), 5), un(R(n, DB), 6), un(R(n, DB) + 1, 7), un(R(n, CC), 8), un(R(n, CC) + 1, 9)]))
    for n in range(2):
        b.e(f"""v_mul_f32 v{R(n,AL)}, v14, v{R(n,AL)}
            v_mul_f32 v{R(n,BE)}, v14, v{R(n,BE)}
            v_pk_mul_f32 {vr(R(n,DB),2)}, {vr(R(n,DB),2)}, v[14:15] op_sel_hi:[1,0]
            v_mul_f32 v{R(n,AL)}, s64, v{R(n,AL)}
            v_mul_f32 v{R(n,BE)}, 0.15915494, v{R(n,BE)}""")
    b.e("v_lshlrev_b32 v4, 4, v1\nv_mov_b32 v5, v235\nv_mov_b32 v6, v236\nv_mov_b32 v7, v237\nv_mov_b32 v8, v238\nv_mov_b32 v9, v239")
    for n in range(2): cmul(b, R(n, X), R(n, CC), R(n, DB), R(n, T))
    for (z, p) in ((Z8, 0x41000000), (Z1, None), (Z256, 0x43800000)):
        for n in range(2):
            e, ph = R(n, T), R(n, T) + 1
            if p is None: b.e(f"v_exp_f32 v{e}, v{R(n,AL)}\nv_fract_f32 v{ph}, v{R(n,BE)}")
            else: b.e(f"v_mul_f32 v{e}, 0x{p:x}, v{R(n,AL)}\nv_mul_f32 v{ph}, 0x{p:x}, v{R(n,BE)}\nv_exp_f32 v{e}, v{e}\nv_fract_f32 v{ph}, v{ph}")
        for n in range(2):
            b.e(f"v_cos_f32 v{R(n,z)}, v{R(n,T)+1}\nv_sin_f32 v{R(n,z)+1}, v{R(n,T)+1}")
        for n in range(2):
            b.e(f"v_pk_mul_f32 {vr(R(n,z),2)}, {vr(R(n,z),2)}, {vr(R(n,T),2)} op_sel_hi:[1,0]")
    pk = [0]
    def put(src, rows, neg=False):
        d = 16 + 2 * (pk[0] & 3); pk[0] += 1
        for n in range(2):
            b.e(f"v_cvt_pk_bf16_f32 v{d + n}, v{R(n,src)}, {'-' if neg else ''}v{R(n,src)+1}")
        for r in rows: b.lg(f"ds_write_b64 v10, {vr(d,2)} offset:{r * 528}")
    def mul(o, x, w):
        for n in range(2): b.e(f"v_pk_mul_f32 {vr(R(n,T),2)}, {vr(R(n,x),2)}, {vr(R(n,w),2)} op_sel_hi:[1,0]")
        for n in range(2): b.e(f"v_pk_fma_f32 {vr(R(n,o),2)}, {vr(R(n,x),2)}, {vr(R(n,w),2)}, {vr(R(n,T),2)} op_sel:[1,1,0] op_sel_hi:[0,1,1] neg_lo:[0,1,0]")
    stamp(b, 'kg_base')
    b.e("v_mov_b32 v24, 0x3f80\nv_mov_b32 v25, 0x3f80")
    b.lg(f"ds_write_b64 v10, v[24:25] offset:{32 * 528}")
    put(Z8, [33], True)
    lo = {}; chunks = ln1_a(b, xtok, 96, lo); step = [0]
    LNA, LNB_ = OPT.get('lna_at', 4), OPT.get('lnb_at', 18)
    def ld_st(bb):
        for q in range(4):
            t = bb.vm(f"buffer_load_dwordx4 {vr(SG + 4 * q, 4)}, v{VS}, {WS}, {('0', 's72', 's73', 's14')[q]} offen sc1")
        return t
    def nxt(o, x, w, rows, neg=False):
        mul(o, x, w); put(o, rows, neg); step[0] += 1
        for _ in range(OPT.get('lnr', 2)):
            if step[0] >= LNA and chunks: chunks.pop(0)()
        if step[0] == LNB_:
            assert not chunks
            ln1_b(b, lo['last']); b.e("s_movk_i32 s14, 12288")
        if step[0] == OPT.get('st_at', 56): lo['st'] = ld_st(b)
    cur = Z8
    for j in range(2, 32):
        nxt(Y, cur, Z8, [32 + j], True); cur = Y
    put(X, [0])
    keep = {2: X2, 4: X4, 6: X6, 8: X8, 10: X10}
    cur = X
    for o in range(1, 11):
        d = keep.get(o, Y)
        nxt(d, cur, Z1, [o]); cur = d
    for src, row in ((X, 16), (X2, 18), (X4, 20), (X6, 22), (X8, 24), (X10, 26)):
        nxt(src, src, Z256, [row])
    for r0 in (11, 27):
        for k, src in enumerate((X, X4, X8)):
            nxt(src, src, Z256, [r0 + k])
    for r0 in (14, 30, 15, 31):
        nxt(X, X, Z256, [r0])
    stok = lo['st']
    mul(X, X, Z256)
    b.wait_all(vm=False)
    stamp(b, 'kg_pow')
    tk = {}
    def rd(ks):
        r = 112 + (ks % 4) * 8
        b.lg(f"ds_read_b128 {vr(r,4)}, v11 offset:{32 * ks}")
        tk[ks] = b.lg(f"ds_read_b128 {vr(r+4,4)}, v13 offset:{32 * ks}")
    fill = [f"v_add_f32 v14, v{R(0,X)}, v{R(1,X)}"]
    for m in ("quad_perm:[1,0,3,2] row_mask:0xf", "quad_perm:[2,3,0,1] row_mask:0xf", "row_half_mirror row_mask:0xf", "row_mirror row_mask:0xf", "row_bcast:15 row_mask:0xa", "row_bcast:31 row_mask:0xc"):
        fill.append(f"v_add_f32_dpp v14, v14, v14 {m} bank_mask:0xf")
    fill += ["v_readlane_b32 s56, v14, 63", "v_mov_b32 v20, 0\nv_mov_b32 v21, 0", "v_mov_b32 v22, 0\nv_mov_b32 v23, 0"]
    for ks in range(3): rd(ks)
    cond = "\n".join(f"v_xor_b32 v2, s0, v{SG + 1 + 4 * q}\nv_xor_b32 v3, s1, v{SG + 3 + 4 * q}\n" + (f"v_or3_b32 v15, v2, v3, v15" if q else "v_or_b32 v15, v2, v3") for q in range(4))
    xt = []
    KC = OPT.get('kc', 11)
    for ks in range(16):
        r = 112 + (ks % 4) * 8
        b.wait(lg=tk[ks])
        b.e(f"v_mfma_f32_32x32x16_bf16 v[96:111], {vr(r,4)}, {vr(r+4,4)}, {'0' if ks == 0 else 'v[96:111]'}")
        if ks + 3 < 16: rd(ks + 3)
        if ks == KC:
            stamp(b, 'st_chk')
            poll(b, ld_st, cond + "\nv_cmp_ne_u32 vcc, 0, v15", stok)
            stamp(b, 'st_ok')
            for k in range(8):
                fill.append(f"v_and_b32 v{RR + 2 * k}, 0xffff0000, v{SG + 2 * k}\nv_lshlrev_b32 v{RR + 1 + 2 * k}, 16, v{SG + 2 * k}\nv_rcp_f32 v{RR + 2 * k}, v{RR + 2 * k}" + (f"\nv_mul_f32 v{RR - 1 + 2 * k}, -v{RR - 1 + 2 * k}, v{RR - 2 + 2 * k}" if k else ""))
            fill.append(f"v_mul_f32 v{RR + 15}, -v{RR + 15}, v{RR + 14}")
        if KC < ks <= KC + 4:
            q = ks - KC - 1
            xt.append(b.vm(f"buffer_load_dwordx4 {vr(XR + 4 * q, 4)}, v{VX}, {WS}, s75 offen sc1"))
            b.e("s_add_u32 s75, s75, 655360")
        if fill: b.e(fill.pop(0))
        if fill and ks > KC + 4: b.e(fill.pop(0))
    for x in fill: b.e(x)
    stamp(b, 'kg_mfma')
    p2tok = ld_quarter(FLP2)(b)
    b.lg(f"ds_write_b128 v253, v[20:23] offset:{SPB}")
    b.lg(f"ds_write_b128 v253, v[20:23] offset:{SPB + 1024}")
    b.e("s_barrier")
    stamp(b, 'st1_seen')
    b.e("""v_cmp_eq_u32 vcc, 31, v1
        v_cndmask_b32 v24, 0, v96, s[70:71]
        v_cndmask_b32 v25, 0, v97, s[70:71]
        v_cndmask_b32 v18, 0, v98, s[70:71]
        v_cndmask_b32 v105, v105, v104, vcc
        v_cmp_eq_u32 vcc, 63, v1
        v_cndmask_b32 v19, 0, v110, s[70:71]
        v_writelane_b32 v110, s56, 0
        v_cndmask_b32 v106, v106, v104, vcc
        v_mov_b32_dpp v24, v24 row_shr:1 row_mask:0xf bank_mask:0xf bound_ctrl:1
        v_mov_b32_dpp v25, v25 row_shr:1 row_mask:0xf bank_mask:0xf bound_ctrl:1
        v_mov_b32_dpp v18, v18 row_shr:1 row_mask:0xf bank_mask:0xf bound_ctrl:1
        v_cvt_pk_bf16_f32 v14, v110, v111""")
    pats = [list(range(96, 107)), [107] * 3 + [108] * 3 + [109] * 5, [19] * 5 + [20] * 3 + [24, 25, 18]]
    for rnd, w in enumerate(pats):
        for c in range(4):
            d = 32 + ((rnd * 4 + c) % 8) * 4
            for k in range(4):
                b.e(f"v_cvt_pk_bf16_f32 v{d + k}, v{w[10 - c - 2 * k]}, v{w[9 - c - 2 * k]}")
            if rnd < 2: b.lg(f"ds_write_b128 v12, {vr(d,4)} offset:{c * CSTR + 64 + (1 - rnd) * 1024}")
        if rnd == 0:
            for c in range(4): b.lg(f"ds_write_b16 v254, v14 offset:{c * 190}")
        if rnd == 1:
            for c in range(4): b.lg(f"ds_write_b16_d16_hi v255, v14 offset:{c * 190}")
    b.e("s_mov_b64 exec, 63")
    for c in range(4): b.lg(f"ds_write_b128 v252, {vr(32 + c * 4, 4)} offset:{c * CSTR}")
    b.e("s_mov_b64 exec, -1")
    stamp(b, 'kgen_done')
    b.e("L_stage2:")
    XF, UF = 128, 160
    for q in range(4):
        b.wait(vm=xt[q])
        for k in range(4):
            b.e(f"v_lshlrev_b32 v{XF + 8 * q + 2 * k}, 16, v{XR + 4 * q + k}\nv_and_b32 v{XF + 8 * q + 2 * k + 1}, 0xffff0000, v{XR + 4 * q + k}")
        for k in range(4):
            rr = RR + 2 * (2 * q + (k >> 1))
            b.e(f"v_pk_fma_f32 {vr(UF + 8 * q + 2 * k, 2)}, {vr(XF + 8 * q + 2 * k, 2)}, {vr(rr, 2)}, {vr(rr, 2)} op_sel:[0,0,1] op_sel_hi:[1,0,1]")
        for c in range(4):
            b.e(f"v_cvt_pk_bf16_f32 v{SG + 4 * q + c}, v{UF + 8 * q + c}, v{UF + 8 * q + 4 + c}")
        for c in range(4):
            b.lg(f"ds_write_b32 v{VU + (c >> 1)}, v{SG + 4 * q + c} offset:{(c & 1) * RSTR + q * 1024}")
    rtok = {}
    ACC, VB, UA, DW, WF = 32, 64, 36, 196, 228
    def f_rd(it, k, r=None):
        d = 2 * it + 1 + 16 * k; r = (it & 1) * 16 + 4 * k if r is None else r
        b.lg(f"ds_read_b64 {ar(r, 2)}, v6 offset:{2080 - 32 * d}")
        rtok[(it, 'f', k)] = b.lg(f"ds_read_b64 {ar(r + 2, 2)}, v6 offset:{2080 - 32 * d + 8}")
    def v_rd(it, k):
        rtok[(it, 'v', k)] = b.lg(f"ds_read_b128 {vr(VB + (it & 1) * 32 + 4 * k, 4)}, v7 offset:{512 + 512 * k - 32 * (2 * it + 1)}")
    ulast = b.li - 1
    for k in range(4): f_rd(0, k)
    f_rd(0, 4, 32)
    if OPT.get('w2t', 0): w2_touch(b, False)
    poll(b, ld_quarter(FLP2), cond_lines(24), p2tok)
    b.wait(lg=ulast)
    b.e("s_barrier")
    stamp(b, 'conv_start')
    for k in range(8): v_rd(0, k)
    G = Gaps(b, spread=OPT.get('spread', 1))
    w2n = 0; W1AT = OPT.get('w1at', 99); W2AT = OPT.get('w2at', 0)
    tok = {}
    for it in range(8):
        par = it & 1
        stamp(b, f'cv_{it}')
        if it < 7:
            for k in range(8):
                if k < 4: G.add(lambda k=k, it=it: f_rd(it + 1, k), 2)
                G.add(lambda k=k, it=it: v_rd(it + 1, k), 1)
        ex = []
        if it == 0:
            for cl in range(2):
                for t in range(4):
                    G.add(lambda cl=cl, t=t: tok.__setitem__('u', b.lg(f"ds_read_b128 {ar(UA + 16 * cl + 4 * t, 4)}, v7 offset:{512 + 512 * t - (48 if cl == 0 else 32)}")), 1)
            ex = [(vr(ACC + 4 * ct, 4), ar(32, 4), vr(VB + 4 * (ct - 4), 4), vr(ACC + 4 * ct, 4)) for ct in range(4, 8)]
        if it == 1:
            ex = [(vr(DW + 16 * cl + 4 * t, 4), ar(UA + 16 * cl + 4 * t, 4), vr(BND + 4 * cl, 4), '0') for cl in range(2) for t in range(4)]
        if it == 2:
            for cl in range(2):
                for d in range(3, -1, -1):
                    G.add(lambda cl=cl, d=d: tok.__setitem__('t', b.lg(f"ds_read_b64 {ar(UA + 10 * cl + 2 * (3 - d), 2)}, v5 offset:{768 * cl + 96 - 32 * d}")), 1)
                G.add(f"v_accvgpr_write_b32 a{UA + 10 * cl + 8}, 0\nv_accvgpr_write_b32 a{UA + 10 * cl + 9}, 0")
            for cl in range(2):
                for t in range(4):
                    G.add(f"v_cvt_pk_bf16_f32 v{WF + 8 * cl + 2 * t}, v{DW + 16 * cl + 4 * t}, v{DW + 16 * cl + 4 * t + 1}\nv_cvt_pk_bf16_f32 v{WF + 8 * cl + 2 * t + 1}, v{DW + 16 * cl + 4 * t + 2}, v{DW + 16 * cl + 4 * t + 3}")
        if it in (3, 4):
            cl = it - 3
            ex = [(vr(ACC + 4 * ct, 4), vr(WF + 8 * cl + 4 * kk, 4), ar(UA + 10 * cl + 2 * (3 - (ct - 4 - 2 * kk)), 4), vr(ACC + 4 * ct, 4)) for kk in range(2) for ct in range(4 + 2 * kk, 8)]
        if it >= 4:
            q = it - 4
            for k in range(8): G.add(f"v_fma_f32 v{XF + 8 * q + k}, v{UF + 8 * q + k}, s{66 + (k & 3)}, v{XF + 8 * q + k}")
        if it == W1AT:
            G.add(f"v_lshlrev_b32 v2, 7, v0\nv_min_u32 v2, {230 * 128}, v2"); G.add(f"s_mul_i32 s3, s{sSI}, {231 * 128}\ns_add_u32 s3, s3, s{sDMA}")
            G.add(lambda: (b.e(f"s_sub_u32 s3, s3, s{sM0}"), b.vm(f"buffer_load_dword a252, v2, {WS}, s3 offen sc1")), 2)
        if it >= W2AT:
            for _ in range(-(-(OPT.get('w2n', 40) - w2n) // (8 - it))):
                G.addv(lambda m=w2n: w2_load(b, m)); w2n += 1
        if it == 6: G.add(lambda: tok.__setitem__('p1', ld_quarter(FLP)(b)), 2)
        G.begin(26 + len(ex))
        for i in range(4):
            for ct in range(i, 8):
                c = '0' if (it == 0 and i == 0) else vr(ACC + 4 * ct, 4)
                G.now(lambda: b.wait(lg=max(rtok[(it, 'f', i)], rtok[(it, 'v', ct - i)])), 1)
                G.mfma(f"v_mfma_f32_16x16x32_bf16 {vr(ACC + 4 * ct, 4)}, {ar(par * 16 + 4 * i, 4)}, {vr(VB + par * 32 + 4 * (ct - i), 4)}, {c}")
                G.fill()
        for x in ex:
            G.mfma("v_mfma_f32_16x16x32_bf16 %s, %s, %s, %s" % x)
            G.fill()
        G.flush()
        if it < 7: b.wait(lg=b.li - 1)
    stamp(b, 'conv_end')
    for ct in range(8):
        b.e(f"v_cvt_pk_bf16_f32 v{64 + 2 * ct}, v{ACC + 4 * ct}, v{ACC + 4 * ct + 2}\nv_cvt_pk_bf16_f32 v{65 + 2 * ct}, v{ACC + 4 * ct + 1}, v{ACC + 4 * ct + 3}")
        b.lg(f"ds_write2st64_b32 v8, v{64 + 2 * ct}, v{65 + 2 * ct} offset0:{ct} offset1:{ct + 8}")
    poll(b, ld_quarter(FLP), cond_lines(24), tok['p1'])
    b.wait_all(vm=False)
    stamp(b, 'y_written')
    b.e("s_barrier")
    stamp(b, 'y_bar')
    yt = []
    for q in range(4):
        b.lg(f"ds_read_b64_tr_b16 {vr(80 + 4 * q, 2)}, v9 offset:{512 * q}")
        yt.append(b.lg(f"ds_read_b64_tr_b16 {vr(82 + 4 * q, 2)}, v9 offset:{512 * q + 2048}"))
    for q in range(4):
        b.wait(lg=yt[q])
        for k in range(4):
            b.e(f"v_lshlrev_b32 v{UF + 8 * q + 2 * k}, 16, v{80 + 4 * q + k}\nv_and_b32 v{UF + 8 * q + 2 * k + 1}, 0xffff0000, v{80 + 4 * q + k}")
        for k in range(4):
            b.e(f"v_pk_add_f32 {vr(UF + 8 * q + 2 * k, 2)}, {vr(UF + 8 * q + 2 * k, 2)}, {vr(XF + 8 * q + 2 * k, 2)}")
        for k in range(4):
            b.e(f"v_cvt_pk_bf16_f32 v{96 + 4 * q + k}, v{UF + 8 * q + 2 * k}, v{UF + 8 * q + 2 * k + 1}")
        hs = b.vm(f"buffer_store_dwordx4 {vr(96 + 4 * q, 4)}, v{VX}, {WS}, s74 offen sc1")
        b.e("s_add_u32 s74, s74, 655360")
    stamp(b, 'h_stored')
    return None, hs

from ffn import ffn_map, preload, ffn

def build():
    _lab[0] = 0
    b = B()
    xtok, b3, pt = entry(b)
    b2 = b.fork()
    pack(b2)
    if OPT['stop'] in ('pack', 'conv'): (b2.e("s_add_u32 s2, s2, 160"), stamp_dump(b2), b2.e("s_endpgm"))
    b2.e(ffn_map(True))
    poll(b2, ld_quarter(FLP2), cond_lines(24))
    b2.e("s_barrier")
    if OPT.get('hw2t', 0):
        w2_touch(b2, False)
        b2.wait_all(lg=False)
    HW = OPT.get('hw2', 28)
    for m in range(HW): w2_load(b2, m)
    stamp(b2, 'w2_issued')
    poll(b2, ld_quarter(FLP), cond_lines(24), sleep=OPT.get('psl', 4))
    b2.e("s_barrier")
    stamp(b2, 'p1_seen')
    preload(b2, 0, 36)
    for m in range(HW, 40): w2_load(b2, m)
    if OPT.get('buddy', 1):
        sk = lab("bd")
        b2.e(f"s_cmp_lg_u32 s{sW}, 0\ns_cbranch_scc1 {sk}")
        poll(b2.fork(), ld_lines(f"s_lshl_b32 s55, s2, 7\ns_add_u32 s55, s55, {FLH}", 1), cond_lines(1), sleep=2)
        b2.e(f"{sk}:")
    b2.e("s_add_u32 s2, s2, 160\ns_branch L_g1")
    packtok, hs = conv(b3, xtok, pt)
    if OPT['stop'] in ('pack', 'conv'): (stamp_dump(b3), b3.e("s_endpgm"))
    b3.e("s_barrier")
    preload(b3, 0, OPT.get('pre1', 8))
    b3.wait(vm=hs)
    b3.e("s_barrier")
    arrive(b3, FLH, "s50")
    stamp(b3, 'h_arrive')
    preload(b3, OPT.get('pre1', 8), 36)
    for m in range(OPT.get('w2n', 40), 40): w2_load(b3, m)
    b3.e(f"s_add_u32 s{sSI}, s{sSI}, 3\nL_g1:")
    b4 = B(); b4.L = b.L; b4.vi = 100
    ffn(b4)
    b.e("L_exit:\ns_endpgm\nL_code_end:")
    lines, nn = hazard_pass(b.L, verbose=OPT.get('verbose', False))
    if OPT.get('align', 1):
        lines = align_pass([KN + ':'] + lines, nop_cost=OPT.get('nopc', 4.0))[0][1:]
    hdr = open(os.path.join(os.path.dirname(os.path.abspath(__file__)), "header.txt")).read()
    out = hdr + (f"; stamps: {','.join(OPT['stamps'])}\n" if OPT['stamps'] else "") + "; @launch grid=(256,1,1) block=(256,1,1) lds=163840\n"
    out += f'.amdgcn_target "amdgcn-amd-amdhsa--gfx950"\n.text\n.globl {KN}\n.p2align 8\n.type {KN},@function\n{KN}:\n'
    out += "\n".join(("" if l.endswith(":") else "    ") + l for l in lines)
    out += f"""
.section .rodata,"a"
.p2align 6
.amdhsa_kernel {KN}
  .amdhsa_next_free_vgpr 512
  .amdhsa_next_free_sgpr 102
  .amdhsa_accum_offset 256
  .amdhsa_group_segment_fixed_size 0
  .amdhsa_kernarg_size 128
  .amdhsa_user_sgpr_count 2
  .amdhsa_user_sgpr_kernarg_segment_ptr 1
  .amdhsa_system_sgpr_workgroup_id_x 1
.end_amdhsa_kernel
"""
    return out, nn, len(lines)

if __name__ == "__main__":
    import ffn as _f
    for a in sys.argv[2:]:
        k, v = a.split("=")
        OPT[k] = eval(v)
    out, nn, nl = build()
    open(sys.argv[1], "w").write(out)
    print(f"wrote {sys.argv[1]}: {nl} lines, {nn} hazard nops")
```

```python
sPAN, sDMA, sM0, sW2, sH0 = 60, 61, 62, 63, 64
sROT = 59
sHP, sSTK = 68, 72
CSB = 162816
A_PAN, A_RING, A_W2 = 0, 48, 80
V_ACC1, V_ACC2, V_ACC3, V_PAN = 32, 96, 128, 144
V_G2, V_HR = 144, 32

def ffn_map(helper):
    if helper:
        t = f"""s_lshr_b32 s76, s2, 3
            s_mul_i32 s{sJ}, s76, 43
            s_lshr_b32 s{sJ}, s{sJ}, 7
            s_mul_i32 s58, s{sJ}, 3
            s_sub_u32 s{sSI}, s76, s58
            s_and_b32 s58, s{sXCD}, 1
            s_mul_i32 s58, s58, 3
            s_add_u32 s{sI}, s{sSI}, s58
            s_mul_i32 s{sROT}, s{sSI}, 3
            s_lshr_b32 s{sC}, s76, 2
            """
    else:
        t = f"""s_lshr_b32 s76, s50, 3
            s_mul_i32 s{sJ}, s76, 52
            s_lshr_b32 s{sJ}, s{sJ}, 8
            s_mul_i32 s58, s{sJ}, 5
            s_sub_u32 s{sSI}, s76, s58
            s_and_b32 s58, s{sXCD}, 1
            s_mul_i32 s58, s58, 5
            s_add_u32 s58, s58, s{sSI}
            s_add_u32 s{sI}, s58, 6
            s_mov_b32 s{sROT}, 0
            s_lshr_b32 s{sC}, s76, 2
            s_add_u32 s{sC}, s{sC}, 3
            """
    return t + f"""s_lshr_b32 s58, s{sXCD}, 1
        s_lshl_b32 s58, s58, 2
        s_add_u32 s{sJ}, s{sJ}, s58
        s_and_b32 s76, s76, 3
        s_lshl_b32 s{sRHO}, s{sXCD}, 2
        s_add_u32 s{sRHO}, s{sRHO}, s76
        v_lshlrev_b32 v4, 4, v1
        s_lshl_b32 s{sM0}, s{sW}, 12
        s_mul_i32 s{sDMA}, s{sJ}, {JSTR}
        s_add_u32 s{sDMA}, s{sDMA}, s{sM0}
        s_add_u32 s{sDMA}, s{sDMA}, {W1P}
        s_mul_i32 s58, s{sC}, 56
        s_mul_i32 s{sW2}, s{sW}, 14
        s_add_u32 s58, s58, s{sW2}
        s_mul_i32 s{sW2}, s58, 5120
        s_add_u32 s{sW2}, s{sW2}, {W2P}"""

def w2_touch(b, late):
    nl = 60 if late else 80
    b.e(f"""s_and_b32 s3, s{sRHO}, 3
        s_mul_i32 s3, s3, {nl * 128}
        s_add_u32 s3, s3, s{sW2}
        v_lshlrev_b32 v2, 7, v1""")
    if late:
        b.e(f"s_add_u32 s3, s3, 4096\nv_min_u32 v2, {59 * 128}, v2")
        b.vm(f"buffer_load_dword a253, v2, {WS}, s3 offen sc1")
    else:
        b.e(f"v_add_u32 v3, 0x2000, v2\nv_min_u32 v3, {79 * 128}, v3")
        b.vm(f"buffer_load_dword a253, v2, {WS}, s3 offen sc1")
        b.vm(f"buffer_load_dword a254, v3, {WS}, s3 offen sc1")

def dma_w1(b, n):
    blk, k = n >> 2, n & 3
    if k == 0:
        b.e(f"s_add_u32 m0, s{sM0}, {(blk % 9) * 16384}\ns_addk_i32 s{sDMA}, 16384")
    return b.vm(f"buffer_load_dwordx4 v4, {WS}, s{sDMA} offen offset:{k * 1024} sc1 lds")

def w2_load(b, m):
    n, dt = divmod(m, 5)
    if m and m % 4 == 0: b.e(f"s_addk_i32 s{sW2}, 4096")
    return b.vm(f"buffer_load_dwordx4 {ar(A_W2 + (n % 8) * 20 + dt * 4, 4)}, v4, {WS}, s{sW2} offen offset:{(m % 4) * 1024} sc1")

def preload(b, lo, hi):
    for n in range(lo, hi):
        if n % 4 == 0:
            b.e(f"""s_lshl_b32 s56, s{sROT}, 14
                s_add_u32 m0, s{sM0}, s56
                s_add_u32 s57, s{sDMA}, s56
                s_add_u32 s{sROT}, s{sROT}, 1
                s_cmp_eq_u32 s{sROT}, 9
                s_cselect_b32 s{sROT}, 0, s{sROT}""")
        b.vm(f"buffer_load_dwordx4 v4, {WS}, s57 offen offset:{(n & 3) * 1024} sc1 lds")
    if hi == 36:
        b.e(f"""s_add_u32 s{sDMA}, s{sDMA}, {8 * 16384}
            v_cmp_lt_u32 vcc, 111, v0
            v_mov_b32 v2, 0
            v_mov_b32 v3, {7168 - 448}
            v_cndmask_b32 v2, v2, v3, vcc
            v_lshl_add_u32 v2, v0, 2, v2
            s_mul_i32 s56, s{sJ}, 448
            s_add_u32 s56, s56, {CSP}""")
        for k in range(7):
            b.vm(f"buffer_load_dword v{16 + k}, v2, {WS}, s56 offen sc1")
            b.e("s_addk_i32 s56, 14336")

def ffn(b):
    b.e(f"""v_add_u32 v5, 0x10000, v4
        v_add_u32 v6, 0x20000, v4
        v_and_b32 v2, 15, v1
        v_lshrrev_b32 v3, 4, v1
        v_lshlrev_b32 v7, 4, v2
        v_lshl_add_u32 v7, v3, 9, v7
        v_lshlrev_b32 v8, 4, v3
        v_add_u32 v8, {CSB}, v8
        v_lshlrev_b32 v9, 4, v2
        s_lshl_b32 s56, s{sI}, 2
        s_add_u32 s56, s56, s{sW}
        s_mul_i32 s{sPAN}, s56, 40960
        s_add_u32 s74, s{sPAN}, {HT}
        s_add_u32 s75, s74, 40960
        s_and_b32 s57, s{sJ}, {1 if OPT.get('krot', 0) >= 2 else 3}
        s_mul_i32 s57, s57, {(0, 5, 10, 4, 2)[OPT.get('krot', 0)]}
        s_lshr_b32 s57, s57, 1
        s_lshl_b32 s57, s57, 12
        s_add_u32 s{sPAN}, s74, s57
        s_lshl_b32 s{sSTK}, s56, 8
        s_add_u32 s{sSTK}, s{sSTK}, {ST2}
        s_mul_i32 s56, s56, {2 * 56 * 1024}
        s_add_u32 s56, s56, {HP}""")
    for k in range(2):
        b.e(f"""s_lshl_b32 s57, s{sJ}, 1
            s_add_u32 s57, s57, {k}
            s_and_b32 s58, s57, 3
            s_mul_i32 s58, s58, 14
            s_lshr_b32 s57, s57, 2
            s_add_u32 s57, s57, s58
            s_lshl_b32 s57, s57, 10
            s_add_u32 s{sHP + k}, s56, s57""")
    for k in range(2):
        b.e(f"s_mov_b32 s57, s{sJ}" if k == 0 else f"s_lshr_b32 s57, s{sJ}, 1")
        b.e(f"""s_and_b32 s58, s57, 3
            s_mul_i32 s58, s58, 14
            s_lshr_b32 s57, s57, 2
            s_add_u32 s57, s57, s58
            s_add_u32 s57, s57, {8 + 4 * k}
            s_lshl_b32 s57, s57, 10
            s_add_u32 s{sHP + 2 + k}, s56, s57""")
    b.e(f"""s_and_b32 s57, s{sJ}, 1
        s_mul_i32 s57, s57, {56 * 1024}
        s_add_u32 s{sHP + 3}, s{sHP + 3}, s57""")
    for k in range(4):
        b.e(f"""s_xor_b32 s57, s{sW}, {k}
            s_lshl_b32 s58, s{sRHO}, 2
            s_add_u32 s57, s57, s58
            s_mul_i32 s57, s57, 56
            s_mul_i32 s58, s{sW}, 14
            s_add_u32 s57, s57, s58
            s_lshl_b32 s57, s57, 10
            s_add_u32 s{sH0 + k}, s57, {HP}""")
    stamp(b, 'pre_issued')
    sk = lab("np")
    b.e(f"s_cmp_lg_u32 s{sW}, 0\ns_cbranch_scc1 {sk}")
    poll(b.fork(), ld_lines(FLH, 160, 10), cond_lines(160, 10))
    b.e(f"{sk}:")
    b.wait_all()
    b.e(f"""v_add_f32 v16, v16, v17
        v_add_f32 v18, v18, v19
        v_add_f32 v20, v20, v21
        v_add_f32 v16, v16, v22
        v_add_f32 v18, v18, v20
        v_lshlrev_b32 v2, 2, v0
        v_add_u32 v2, {CSB}, v2
        v_add_f32 v16, v16, v18
        ds_write_b32 v2, v16
        s_waitcnt lgkmcnt(0)""")
    b.e("s_barrier")
    stamp(b, 'g1_start')
    sk = lab("dz")
    b.e(f"""s_cmp_lg_u32 s2, 255
        s_cbranch_scc1 {sk}
        s_mov_b32 s14, 128
        v_mov_b32 v16, 0
        v_lshlrev_b32 v17, 2, v0
        buffer_store_dword v16, v17, {OUT}, 0 offen sc1
        {sk}:""")
    mk_srd(b, 12, P_OUT, 2621440)
    if OPT['stop'] == 'pre': stamp_dump(b); b.e("s_endpgm")
    b.e(f"s_cmp_eq_u32 s{sJ}, 15\ns_cbranch_scc1 L_j15")
    g12(b.fork(), 4, 2, False)
    b.e("L_j15:")
    g12(b.fork(), 2, 0, True)

def flag_store(b, base):
    b.e(f"s_lshl_b32 s16, s{sI}, 4\ns_add_u32 s16, s16, s{sJ}")
    arrive(b, base, "s16", "s16")
def ld_flags(base):
    return ld_lines(f"s_lshr_b32 s55, s{sRHO}, 1\ns_lshl_b32 s55, s55, 11\ns_add_u32 s55, s55, {base}", 16)
COND_FLAG = cond_lines(16)
def ld_st2(b):
    return b.vm(f"buffer_load_dwordx4 v[28:31], v9, {WS}, s{sSTK} offen sc1")
COND_ST2 = "v_xor_b32 v26, s0, v29\nv_xor_b32 v27, s1, v31\nv_or_b32 v26, v26, v27\nv_cmp_ne_u32 vcc, 0, v26"

def M(fn):
    fn.mem = True; return fn

def g12(b, np1, np2, stats):
    NK = 20
    ptok = {}
    VT = V_ACC1 if stats else V_ACC2
    VS_ = 96
    def preg(k): return V_PAN + 8 * k if k < 14 else VT + 8 * (k - 14)
    def pan(k, s, first):
        return vr(preg(k) + 4 * s, 4) if (k < 14 or first) else ar(A_PAN + 8 * (k - 14) + 4 * s, 4)
    def pan_load(k):
        if k and k % 2 == 0:
            b.e(f"s_addk_i32 s{sPAN}, 4096")
            if OPT.get('krot', 0): b.e(f"s_cmp_eq_u32 s{sPAN}, s75\ns_cselect_b32 s{sPAN}, s74, s{sPAN}")
        for p in range(2):
            ptok[k] = b.vm(f"buffer_load_dwordx4 {vr(preg(k) + 4 * p, 4)}, v7, {WS}, s{sPAN} offen offset:{(k & 1) * 2048 + p * 256} sc1")
    def pan_fix(k):
        b.wait(vm=ptok[k])
        r = preg(k)
        b.e(f"v_swap_b32 v{r + 2}, v{r + 4}\nv_swap_b32 v{r + 3}, v{r + 5}")
        return [f"v_accvgpr_write_b32 a{A_PAN + 8 * (k - 14) + q}, v{r + q}" for q in range(8)] if k >= 14 else []
    def pan_load_ops(k):
        L = []
        if k and k % 2 == 0:
            L.append((f"s_addk_i32 s{sPAN}, 4096" + (f"\ns_cmp_eq_u32 s{sPAN}, s75\ns_cselect_b32 s{sPAN}, s74, s{sPAN}" if OPT.get('krot', 0) else ""), 1))
        for p in range(2):
            if OPT.get('nopan'): ptok[k] = 0; continue
            L.append((M(lambda p=p: ptok.__setitem__(k, b.vm(f"buffer_load_dwordx4 {vr(preg(k) + 4 * p, 4)}, v7, {WS}, s{sPAN} offen offset:{(k & 1) * 2048 + p * 256} sc1"))), 2))
        return L
    def pan_fix_ops(k):
        r = preg(k)
        L = [(lambda: b.wait(vm=ptok[k]), 1), (f"v_swap_b32 v{r + 2}, v{r + 4}", 2), (f"v_swap_b32 v{r + 3}, v{r + 5}", 2)]
        return L
    def pan_copy_ops(k):
        return [(f"v_accvgpr_write_b32 a{A_PAN + 8 * (k - 14) + q}, v{preg(k) + q}", 1) for q in range(8)] if k >= 14 else []
    LA = OPT.get('la', 5)
    for k in range(LA): pan_load(k)
    nslot1, nslot2 = 2 * np1 * NK, 2 * (np2 + 1) * NK
    ftok = {}
    ring = dict(vis=9, free=0, rd=-1, used=-1)
    def frag_read(n):
        if n >= nslot1 + nslot2: return
        assert n // 16 < ring['vis'], ("ring RAW", n)
        pos = (n % 144) * 1024
        ftok[n] = b.lg(f"ds_read_b128 {ar(A_RING + (n % 8) * 4, 4)}, v{4 + (pos >> 16)} offset:{pos & 0xffff}")
    FA = OPT.get('fa', 7); WG_ = OPT.get('wg', 4)
    b.e(f"v_add_u32 v24, {56 * 1024}, v4")
    if stats:
        b.e("s_mov_b32 s3, 0x3f803f80\nv_mov_b32 v12, s3\nv_mov_b32 v13, s3\nv_mov_b32 v14, s3\nv_mov_b32 v15, s3")
        pan_fix(0)
        for k in range(NK):
            if k + LA < NK: pan_load(k + LA)
            cp = pan_fix(k + 1) if k + 1 < NK else []
            for s in range(2):
                b.e(f"v_mfma_f32_16x16x32_bf16 {vr(VS_ + 4 * s, 4)}, v[12:15], {pan(k, s, True)}, {'0' if k == 0 else vr(VS_ + 4 * s, 4)}")
                b.e(f"v_mfma_f32_16x16x32_bf16 {vr(VS_ + 8 + 4 * s, 4)}, {pan(k, s, True)}, {pan(k, s, True)}, {'0' if k == 0 else vr(VS_ + 8 + 4 * s, 4)}")
            for c in cp: b.e(c)
        b.e("""v_and_b32 v2, 3, v1
            v_cmp_eq_u32 s[56:57], 1, v2
            v_cmp_eq_u32 s[58:59], 2, v2
            v_cmp_eq_u32 s[74:75], 3, v2
            v_bfe_u32 v2, v1, 2, 2
            v_lshrrev_b32 v3, 4, v1
            v_cmp_eq_u32 s[76:77], v2, v3""")
        for s in range(2):
            g = VS_ + 8 + 4 * s
            b.e(f"v_cndmask_b32 v{g}, v{g}, v{g+1}, s[56:57]\nv_cndmask_b32 v{g}, v{g}, v{g+2}, s[58:59]\nv_cndmask_b32 v{g}, v{g}, v{g+3}, s[74:75]")
            stats_finish(b, VS_ + 4 * s, g, 16 + 2 * s)
        b.e("v_mov_b32 v17, s0\nv_mov_b32 v19, s1\ns_mov_b64 exec, s[76:77]")
        b.vm(f"buffer_store_dwordx4 v[16:19], v9, {WS}, s{sSTK} offen sc1")
        b.e("s_mov_b64 exec, -1")
    for n in range(FA): frag_read(n)
    if not stats: pan_fix(0)
    dman = [36]
    dtok = {}
    def dma_next():
        if dman[0] < 72 and not stats:
            assert (dman[0] // 4 - 9 + 1) * 16 <= ring['free'], ("ring WAR", dman[0])
            dtok[dman[0]] = dma_w1(b, dman[0]); dman[0] += 1
    dq = [36]; m0cur = [None]
    def set_m0(want):
        if m0cur[0] != want: b.e(f"s_add_u32 m0, s{sM0}, {want & 0xffffffff}"); m0cur[0] = want
    def dma_ops():
        m = dq[0]
        if m >= 72 or stats: return []
        dq[0] += 1
        L = []
        want = ((m >> 2) % 9) * 16384
        if m % 4 == 0: L.append((lambda: (set_m0(want), b.e(f"s_addk_i32 s{sDMA}, 16384")), 2))
        def go():
            assert (m // 4 - 9 + 1) * 16 <= ring['free'], ("ring WAR", m)
            set_m0(want)
            dtok[m] = b.vm(f"buffer_load_dwordx4 v4, {WS}, s{sDMA} offen offset:{(m & 3) * 1024} sc1 lds") if not OPT.get('nodma') else b.vi - 1; dman[0] = m + 1
        L.append((M(go), 2))
        return L
    def ring_barrier(upto):
        if upto - 1 in dtok: b.wait(vm=dtok[upto - 1])
        else: assert upto == 36 or stats
        if not OPT.get('nobar'): b.e("s_barrier")
        ring['vis'] = max(ring['vis'], upto // 4); ring['free'] = ring['used'] + 1
    def epi_ops(acc, tau0, taus, dsts, pk, CA, CB):
        ops = []; st = {}
        def rd(ti):
            if ti >= len(taus): return
            c = (CA, CB)[ti & 1]
            b.lg(f"ds_read_b128 {vr(c, 4)}, v8 offset:{(tau0 + taus[ti]) * 64}")
            st[ti] = b.lg(f"ds_read_b128 {vr(c + 4, 4)}, v8 offset:{448 + (tau0 + taus[ti]) * 64}")
        st['rd'] = rd
        for ti, t in enumerate(taus):
            c0 = (CA, CB)[ti & 1]
            ops.append(lambda ti=ti: (b.wait(lg=st[ti]), rd(ti + 1) if CA != CB else None))
            for s in range(2):
                g = acc + ((t * 2 + 0) * 2 + s) * 4; u = acc + ((t * 2 + 1) * 2 + s) * 4
                if pk:
                    for (r, c) in ((g, c0), (g + 2, c0 + 2), (u, c0 + 4), (u + 2, c0 + 6)):
                        ops.append(lambda r=r, c=c, s=s: b.e(f"v_pk_fma_f32 {vr(r,2)}, {vr(c,2)}, v[12:13], {vr(r,2)} op_sel:[0,{s},0] op_sel_hi:[1,{s},1]"))
                else:
                    for q in range(4):
                        ops.append(lambda r=g + q, c=c0 + q, s=s: b.e(f"v_fmac_f32 v{r}, v{c}, v{12 + s}"))
                    for q in range(4):
                        ops.append(lambda r=u + q, c=c0 + 4 + q, s=s: b.e(f"v_fmac_f32 v{r}, v{c}, v{12 + s}"))
                if s == 1 and CA == CB: ops.append(lambda ti=ti: rd(ti + 1))
                for q in range(4):
                    ops.append(lambda r=g + q: b.e(f"v_max_f32 v{r}, 0, v{r}"))
                if pk:
                    for q in (0, 2):
                        ops.append(lambda r=g + q, u=u + q: b.e(f"v_pk_mul_f32 {vr(r,2)}, {vr(r,2)}, {vr(u,2)}"))
                else:
                    for q in range(4):
                        ops.append(lambda r=g + q, u=u + q: b.e(f"v_mul_f32 v{r}, v{r}, v{u}"))
                d, half, sreg, last = dsts[ti](s)
                for q in range(2):
                    ops.append(lambda d=d + q, r=g + 2 * q: b.e(f"v_cvt_pk_bf16_f32 v{d}, v{r}, v{r + 1}"))
                if last == 4:
                    ops.append(lambda d=d - 2, s=s, sreg=sreg: st.__setitem__('last', b.vm(f"buffer_store_dwordx4 {vr(d,4)}, v{4 if s == 0 else 24}, {WS}, s{sreg} offen sc1")))
                elif last == 2:
                    def hst(d=d - 2, sreg=sreg):
                        l = lab("hs")
                        b.e(f"s_bitcmp0_b32 s{sJ}, 1\ns_cbranch_scc1 {l}\nv_swap_b32 v{d}, v{d + 2}\nv_swap_b32 v{d + 1}, v{d + 3}\n{l}:")
                        st['last'] = b.vm(f"buffer_store_dwordx4 {vr(d,4)}, v4, {WS}, s{sreg} offen sc1")
                    ops.append(hst)
                if last: ops[-1].vm = True
        return [(o, 2 if getattr(o, 'vm', False) else 1) for o in ops], st
    def dst_pair(acc, ta, second, sreg):
        def f(s):
            base = acc + ((ta * 2 + 1) * 2 + s) * 4
            return (base + (2 if second else 0), second, sreg, 4 if second else 0)
        return f
    def dst_half(acc, t, sreg):
        def f(s): return (acc + (t * 2 + 1) * 8 + 2 * s, 0, sreg, 2 * s)
        return f
    d1 = [dst_pair(V_ACC1, 0, False, sHP), dst_pair(V_ACC1, 0, True, sHP), dst_pair(V_ACC1, 2, False, sHP + 1), dst_pair(V_ACC1, 2, True, sHP + 1)]
    ops, est = epi_ops(V_ACC1, 0, list(range(np1)), d1, OPT.get('pk1', 0), 16, 16)
    G = Gaps(b, spread=OPT.get('spread', 1))
    def addv(L, front=False):
        for it, c in (reversed(L) if front else L): G.addv(it, c, getattr(it, 'mem', False), front)
    n = 0
    tok = {}
    DS = OPT.get('ds', [0, 0, 0, 0, 1, 2, 1, 2, 1, 2, 1, 2, 1, 1, 1, 2, 2, 2, 2, 2])
    NT = nslot1 + nslot2
    pn = [LA]
    def slot(n, k, accb, t, mat, cap=None, first=False):
        if n % WG_ == 0: G.now(lambda: b.wait(lg=ftok[min(n + WG_ - 1, NT - 1)]), 1)
        for s in range(2):
            a = accb + ((t * 2 + mat) * 2 + s) * 4
            G.mfma(f"v_mfma_f32_16x16x32_bf16 {vr(a,4)}, {ar(A_RING + (n % 8) * 4, 4)}, {pan(k, s, first)}, {'0' if k == 0 else vr(a,4)}")
            if s == 0: G.now(lambda: frag_read(n + FA), 1)
            G.fill(reserve=1 if (s == 1 and (n + 1) % WG_ == 0) else 0, cap=cap)
        ring['used'] = n
    for k in range(NK):
        if not stats:
            for _ in range(OPT.get('pr', [1] * 20)[k]):
                if pn[0] < NK:
                    addv(pan_load_ops(pn[0]))
                    pn[0] += 1
            if k + 1 < NK:
                fx = pan_fix_ops(k + 1)
                pos = min(len(G.q), 3)
                G.q[pos:pos] = [(c, it) for it, c in fx]
            for _ in range(DS[k]):
                addv(dma_ops())
            for it in pan_copy_ops(k): G.add(*it)
        T0 = OPT.get('t2at', 99)
        if k == T0 - 1:
            G.add(f"s_and_b32 s73, s{sRHO}, 3\ns_mul_i32 s73, s73, {60 * 128}"); G.add(f"s_add_u32 s73, s73, s{sW2}\nv_min_u32 v11, 5, v1")
            G.add(f"s_add_u32 s73, s73, {4096 - 768}\nv_lshlrev_b32 v11, 7, v11")
        if T0 <= k < T0 + 10:
            G.add("s_addk_i32 s73, 768"); G.add(lambda: b.vm(f"buffer_load_dword a253, v11, {WS}, s73 offen sc1"), 2)
        if k == OPT.get('t1at', 99) and not stats:
            G.add(f"s_mul_i32 s3, s{sSI}, {136 * 128}\ns_add_u32 s3, s3, s{sDMA}")
            G.add(f"s_sub_u32 s3, s3, s{sM0}\nv_lshlrev_b32 v2, 7, v0"); G.add(f"s_add_u32 s3, s3, 16384\nv_min_u32 v2, {135 * 128}, v2")
            G.add(lambda: b.vm(f"buffer_load_dword a252, v2, {WS}, s3 offen sc1"), 2)
        if k == NK - 2: G.add(lambda: tok.__setitem__('st2', ld_st2(b)), 2)
        if k == NK - 1: G.add(lambda: est['rd'](0), 2)
        G.begin(4 * np1)
        for t in range(np1):
            for mat in range(2):
                slot(n, k, V_ACC1, t, mat, first=not stats); n += 1
        G.flush()
        stamp(b, f'p1_{k}')
        if not stats and k in (3, 7, 11, 15, 19):
            ring_barrier(max(36, (dman[0] - 3) // 4 * 4))
    st2tok = tok['st2']
    stamp(b, 'p1_end')
    poll(b, ld_st2, COND_ST2, st2tok)
    b.e("v_lshlrev_b32 v12, 16, v28\nv_lshlrev_b32 v13, 16, v30\nv_xor_b32 v12, 0x80000000, v12\nv_xor_b32 v13, 0x80000000, v13")
    htok = {}; wtok = {}
    def g2_setup():
        return [l.strip().replace('|', '\n') for l in f"""s_mul_i32 s50, s{sC}, {1024 * OPT.get('hrot', 1)}
        s_cmp_eq_u32 s{sW}, 3|s_cselect_b32 s59, {7 * 1024}, -1|s_cselect_b32 s73, {3 * 1024}, -1
        v_and_b32 v2, 15, v1
        v_lshrrev_b32 v3, 4, v1
        v_lshlrev_b32 v14, 4, v2
        v_lshl_add_u32 v14, v3, 8, v14
        s_lshr_b32 s56, s{sW}, 1
        s_lshl_b32 s57, s{sRHO}, 1
        s_add_u32 s56, s56, s57
        s_and_b32 s57, s{sW}, 1
        s_mul_i32 s58, s56, 40960
        s_mul_i32 s3, s{sC}, 5120
        s_add_u32 s58, s58, s3
        s_lshl_b32 s3, s57, 3
        s_add_u32 s58, s58, s3
        s_add_u32 s74, s58, {HT}
        s_add_u32 s75, s74, 4096
        s_lshl_b32 s56, s56, 5
        s_add_u32 s56, s56, s57
        s_lshl_b32 s76, s56, 3
        s_add_u32 s76, s76, {ST2}
        s_mul_i32 s77, s56, 1280
        s_mul_i32 s3, s{sC}, 160
        s_add_u32 s77, s77, s3
        v_mul_u32_u24 v15, 2560, v2
        v_lshl_add_u32 v15, v3, 3, v15""".split("\n")]
    HD = OPT.get('hd', 4)
    def hreg(nn): return (32, 48, 64, 80, 224, 240)[nn % HD]
    def h_ops(nn):
        if nn >= 14: return []
        def addr():
            msk, base, dm = (7168, 0, 59) if nn < 8 else (3072, 8192, 73) if nn < 12 else (1024, 12288, None)
            b.e(f"s_add_u32 s56, s50, {nn * 1024}\ns_and_b32 s56, s56, {msk}")
            if dm: b.e(f"s_cmp_eq_u32 s56, s{dm}\ns_cselect_b32 s56, {OOB}, s56")
            if base: b.e(f"s_add_u32 s56, s56, {base}")
            b.e(f"v_add_u32 v{25 + (nn & 1) * 2}, s56, v4")
        L = [(addr, 2)]
        for tt in range(4):
            if OPT.get('noh'): htok[nn] = 0; continue
            L.append((M(lambda tt=tt: htok.__setitem__(nn, b.vm(f"buffer_load_dwordx4 {vr(hreg(nn) + tt * 4, 4)}, v{25 + (nn & 1) * 2}, {WS}, s{sH0 + tt} offen sc1"))), 2))
        return L
    stg = [40]; stok = {}; spos = {}; avail = []; freed = set(); NS = OPT.get('ns', 19)
    def release():
        for blk in range(0 if stats else 9, 14 if not stats else 5):
            if blk not in freed and 16 * (blk + 1) <= ring['free']:
                freed.add(blk); avail.extend((blk % 9) * 16384 + 1024 * q for q in range(4))
                if len(freed) == 1: avail.extend(147456 + 1024 * q for q in range(3))
    def stage_ops():
        m = stg[0]
        if m >= 40 + NS or not avail: return []
        stg[0] += 1
        a = avail.pop(0); spos[m] = a
        want = a - (m % 4) * 1024
        L = [(lambda: (set_m0(want), b.e(f"s_addk_i32 s{sW2}, 4096") if m % 4 == 0 else None), 1)]
        def go():
            set_m0(want)
            stok[m] = b.vm(f"buffer_load_dwordx4 v4, {WS}, s{sW2} offen offset:{(m % 4) * 1024} sc1 lds") if not OPT.get('nostage') else 0
        L.append((M(go), 2))
        return L
    P = dict(e1=36, xf=56, send=100, e2=102, xe=92, xr=84) if not stats else dict(e1=16, xf=26, send=38, e2=0, xe=38, xr=30)
    if not stats: P.update({k_: OPT[k_] for k_ in P if k_ in OPT})
    d2 = [dst_pair(V_ACC2, 0, False, sHP + 2), dst_pair(V_ACC2, 0, True, sHP + 2)]
    ops2, est2 = epi_ops(V_ACC2, np1, list(range(np2)), d2, False, 16, 16)
    ops3, est3 = epi_ops(V_ACC3, np1 + np2, [0], [dst_half(V_ACC3, 0, sHP + 3)], True, 16, 16)
    steps = [(2, k, np2, V_ACC2) for k in range(NK if np2 else 0)] + [(3, k, 1, V_ACC3) for k in range(NK)]
    XT_ = nslot2; X3 = XT_ - 2 * NK
    oi = o2 = 0; setup = g2_setup(); x = 0; hq = []; done = set()
    if stats: ring_barrier(36)
    release()
    def once(name, cond):
        if cond and name not in done: done.add(name); return True
        return False
    for (ps, k, npp, accb) in steps:
        x1 = x + 2 * npp
        if k % OPT.get('rk', 1) == 0 or ps == 3: addv(dma_ops())
        if k < 8: addv(dma_ops())
        hi = min(len(ops), -(-len(ops) * x1 // P['e1']))
        for it in ops[oi:hi]: G.add(*it)
        oi = hi
        setup_done = not setup
        if x >= P['e1']:
            for _ in range(6 if stats else 3 * npp):
                if setup: G.add(setup.pop(0))
        if np2 and once('rd2', x1 >= X3): G.add(lambda: est2['rd'](0), 2)
        if np2 and x >= X3:
            hi = min(len(ops2), -(-len(ops2) * (x1 - X3) // (P['e2'] - X3)))
            for it in ops2[o2:hi]: G.add(*it)
            o2 = hi
        if dq[0] >= 72 or stats:
            togo = min(40 + NS - stg[0], len(avail))
            for _ in range(-(-togo * 2 * npp // max(2 * npp, P['send'] - x))): addv(stage_ops())
        if once('res', x >= P['xr'] and setup_done):
            for dt in range(5):
                G.addv(lambda dt=dt: b.vm(f"buffer_load_dwordx2 {ar(240 + 2 * dt, 2)}, v14, {WS}, s{74 if dt < 4 else 75} offen offset:{(dt % 4) * 1024} sc1"))
        if once('eld', x1 >= P['xe'] - OPT.get('xel', 6)): G.add(lambda: tok.__setitem__('e', ld_flags(FLE)(b)), 4, front=True)
        if hq:
            for _ in range(-(-len(hq) * 2 * npp // (XT_ - x))):
                it = hq.pop(0); addv([it])
                if not getattr(it[0], 'mem', False) and hq: addv([hq.pop(0)])
                if not hq: break
        if x1 == XT_: G.add(lambda: est3['rd'](0), 2)
        ng = 4 * npp
        G.begin(ng)
        free2 = 2 * ng - 2 * npp - 2 * npp / WG_
        for t in range(npp):
            for mat in range(2):
                left = ng - 2 * (t * 2 + mat)
                need = G.need()
                cap = 2 if need <= free2 * left / ng else (3 if need <= (free2 + ng) * left / ng + 1 else 4 + need // left)
                slot(n, k, accb, t, mat, cap); n += 1
        G.flush()
        x = x1
        stamp(b, f'p{ps}_{k}')
        if once('fle', x >= P['xf']):
            b.wait(vm=est['last'])
            ring_barrier(72)
            flag_store(b, FLE); release()
            if stats: flag_store(b, FLM)
        if once('echk', x >= P['xe']):
            assert not setup
            poll(b, ld_flags(FLE), COND_FLAG, tok['e'])
            stamp(b, 'early_seen')
            hq = h_ops(0) + h_ops(1) + h_ops(2)
    assert 'res' in done and stg[0] == 40 + NS and oi == len(ops) and o2 == len(ops2), stg
    for it, _ in hq: it()
    stamp(b, 'p2_end')
    b.e(f"v_add_u32 v10, s{sM0}, v4\nv_add_u32 v5, s{sM0}, v5\nv_add_u32 v6, s{sM0}, v6")
    for o, _ in ops3: o()
    stamp(b, 'epi2_end')
    hmax = 7; hnext = 3
    NMF, NM, NF, NL = OPT.get('nmf', 0), OPT.get('nm', 5), OPT.get('nf', 2), OPT.get('nl', 8)
    wl = {}; direct = []; PL = OPT.get('pl', 2)
    def mid_flag():
        if not stats:
            b.wait(vm=est2['last'])
            b.e("s_barrier")
            flag_store(b, FLM)
    if NMF < 0: mid_flag()
    for nn in range(14):
        lim = min(nn + HD - 1, hmax, hnext + OPT.get('hb', 2) - 1)
        while hnext <= lim:
            addv(h_ops(hnext))
            hnext += 1
        if nn == max(NM - PL + 1, NF + 1): G.add(lambda: wtok.__setitem__('mid', ld_flags(FLM)(b)), 4, front=True)
        if 1 <= nn <= 6:
            for dt in range(5):
                m = (nn + 7) * 5 + dt
                if m in spos:
                    G.add(lambda m=m, nn=nn, dt=dt: (b.wait(vm=stok[39 + NS]), wl.__setitem__(nn + 7, b.lg(f"ds_read_b128 {ar(A_W2 + (nn - 1) * 20 + dt * 4, 4)}, v{(10, 5, 6)[spos[m] >> 16]} offset:{spos[m] & 0xffff}"))), 1)
                else: direct.append(m)
        D0 = OPT.get('d0', 7)
        if nn >= D0 and direct:
            for _ in range(-(-len(direct) // (11 - nn))):
                m = direct.pop(0); G.addv(lambda m=m: wtok.__setitem__(m // 5, w2_load(b, m)))
        if nn == 3: G.add(lambda: wtok.__setitem__('res', b.vm(f"buffer_load_dword v106, v9, {WS}, s76 offen sc1")), 2)
        if nn == max(NL - PL + 1, NM + 1): G.add(lambda: wtok.__setitem__('late', ld_flags(FLL)(b)), 4, front=True)
        if nn == 10:
            G.add(lambda: (b.wait(vm=wtok['res']), b.e("v_and_b32 v106, 0xffff0000, v106")), 2)
            G.add("v_rcp_f32 v106, v106")
            for dt in range(5):
                for k in range(2):
                    G.add(f"v_accvgpr_read_b32 v{96 + 2 * dt + k}, a{240 + 2 * dt + k}")
                    G.add(f"v_lshlrev_b32 v{108 + 4 * dt + 2 * k}, 16, v{96 + 2 * dt + k}\nv_and_b32 v{109 + 4 * dt + 2 * k}, 0xffff0000, v{96 + 2 * dt + k}")
            G.add("v_mul_f32 v106, v106, v106")
        if nn == 11:
            for q in (12, 13):
                G.add(lambda q=q: b.wait(vm=htok[q]), 1)
                for r in (hreg(q), hreg(q) + 8): G.add(f"v_swap_b32 v{r + 2}, v{r + 4}"); G.add(f"v_swap_b32 v{r + 3}, v{r + 5}")
        if nn == 9:
            for k in range(3): G.add(f"s_xor_b32 s56, s{sW}, {k + 1}\ns_mul_i32 s56, s56, 15360"); G.add(f"s_add_u32 s56, s56, 81920\nv_add_u32 v{16 + k}, s56, v4")
            G.add(f"s_mul_i32 s56, s{sW}, 15360\ns_add_u32 s56, s56, 81920"); G.add("v_add_u32 v19, s56, v4")
        def g2m(nn, tt, dt):
            a = V_G2 + (tt * 5 + dt) * 4
            G.mfma(f"v_mfma_f32_16x16x32_bf16 {vr(a,4)}, {ar(A_W2 + (nn % 8) * 20 + dt * 4, 4)}, {vr(hreg(nn) + tt * 4, 4)}, {'0' if nn == 0 else vr(a,4)}")
        if nn == 12 and OPT.get('ttail', 1):
            b.wait(vm=max(htok[13], wtok.get(13, -1)), lg=max(wl.values()))
            cnt = 0; pend = []
            for tt in (1, 2, 3, 0):
                for q in (12, 13):
                    for dt in range(5):
                        g2m(q, tt, dt); cnt += 1
                        if pend and cnt >= pend[0][0] and cnt % 2 == 0:
                            _, t2, d2_ = pend.pop(0)
                            b.lg(f"ds_write_b128 v{15 + t2}, {vr(V_G2 + (t2 * 5 + d2_) * 4, 4)} offset:{(t2 - 1) * 5120 + d2_ * 1024}")
                        if q == 13 and tt: pend.append((cnt + 5, tt, dt))
            for _, t2, d2_ in pend: b.lg(f"ds_write_b128 v{15 + t2}, {vr(V_G2 + (t2 * 5 + d2_) * 4, 4)} offset:{(t2 - 1) * 5120 + d2_ * 1024}")
            break
        b.wait(vm=max(htok[nn], wtok.get(nn, -1)), lg=wl.get(nn))
        G.begin(20)
        for dt in range(5):
            for tt in range(4):
                g2m(nn, tt, dt)
                G.fill()
        G.flush()
        stamp(b, f'g2_{nn}')
        if nn == NMF: mid_flag()
        if nn == NF:
            b.wait(vm=est3['last'])
            b.e("s_barrier")
            flag_store(b, FLL)
        if nn == NM:
            poll(b, ld_flags(FLM), COND_FLAG, wtok['mid']); hmax = 11
            stamp(b, 'mid_seen')
        if nn == NL:
            poll(b, ld_flags(FLL), COND_FLAG, wtok['late']); hmax = 13
            stamp(b, 'late_seen')
    stamp(b, 'g2_end')
    if not OPT.get('ttail', 1):
        for tt in range(1, 4):
            for dt in range(5):
                b.lg(f"ds_write_b128 v{15 + tt}, {vr(V_G2 + (tt * 5 + dt) * 4, 4)} offset:{(tt - 1) * 5120 + dt * 1024}")
    b.wait_all(vm=False)
    b.e("s_barrier")
    rk = {}
    for dt in range(5):
        for k in range(3):
            rk[dt] = b.lg(f"ds_read_b128 {vr(32 + (dt * 3 + k) * 4, 4)}, v19 offset:{k * 5120 + dt * 1024}")
    for dt in range(5):
        b.wait(lg=rk[dt])
        a = V_G2 + dt * 4; r = 32 + dt * 12
        for h in (0, 2):
            b.e(f"v_pk_add_f32 {vr(a + h, 2)}, {vr(a + h, 2)}, {vr(r + h, 2)}")
            b.e(f"v_pk_add_f32 {vr(r + 4 + h, 2)}, {vr(r + 4 + h, 2)}, {vr(r + 8 + h, 2)}")
        for h in (0, 2):
            b.e(f"v_pk_add_f32 {vr(a + h, 2)}, {vr(a + h, 2)}, {vr(r + 4 + h, 2)}")
        for h in (0, 2):
            b.e(f"v_pk_fma_f32 {vr(a + h, 2)}, {vr(a + h, 2)}, v[106:107], {vr(108 + 4 * dt + h, 2)} op_sel_hi:[1,0,1]")
        b.e(f"v_cvt_pk_bf16_f32 v{a}, v{a}, v{a + 1}\nv_cvt_pk_bf16_f32 v{a + 1}, v{a + 2}, v{a + 3}")
        b.vm(f"buffer_store_dwordx2 {vr(a, 2)}, v15, {OUT}, s77 offen offset:{dt * 32} {OPT.get('outaux', '')}")
    if OPT.get('endwb'): b.e("s_waitcnt vmcnt(0)\nbuffer_wbl2 sc1")
    stamp(b, 'end')
    stamp_dump(b)
    b.e("s_endpgm")
```

```python
import sys, os
from asmlib import B, hazard_pass, align_pass, Gaps
KN = "sequential_preLN__ssm_conv_s4__glu_gated_reglu__prompt_kernel"
OPT = dict(stamps=False, stop=None, spin=1000000)

ST1, ST2 = 0, 16384
EPOCH = 32768
FLP2, FLP, FLH, FLE, FLL, FLM = 0x1520000, 0x1524000, 0x1528000, 0x1530000, 0x1538000, 0x1540000
CSP = 0x1500000
STAMP = 0xC000
XT, HT, W1P, W2P, HP = 0x10000, 0x300000, 0x600000, 0xB00000, 0xE00000
WS_STAMP = 0x1600000
WS_SIZE = 0x1700000
JSTR = 286720
P_X, P_ARE, P_AIM, P_BRE, P_BIM, P_CRE, P_CIM, P_LDT, P_DSK, P_BX, P_WG, P_WU, P_WD, P_OUT, P_DBG, P_WS = [16 + 2 * k for k in range(16)]
sW, sXCD, sI, sJ, sRHO, sC = 48, 49, 51, 52, 53, 54
sSI = 77
SRC = "s[4:7]"; WS = "s[8:11]"; OUT = "s[12:15]"
def sp(r): return f"s[{r}:{r+1}]"
def vr(r, n): return f"v[{r}:{r+n-1}]" if n > 1 else f"v{r}"
def ar(r, n): return f"a[{r}:{r+n-1}]" if n > 1 else f"a{r}"
RSTR = 33856
_lab = [0]
def lab(p):
    _lab[0] += 1; return f"L_{p}{_lab[0]}"

def stamp(b, name):
    st = OPT['stamps']
    if not st or name not in st: return
    r = 78 + 2 * st.index(name)
    b.sm(f"{'s_memtime' if OPT.get('cyc') else 's_memrealtime'} s[{r}:{r+1}]")
def stamp_init(b):
    if OPT['stamps']:
        for r in range(78, 102, 2): b.e(f"s_mov_b64 s[{r}:{r+1}], 0")
def stamp_dump(b):
    if not OPT['stamps']: return
    if OPT.get('amplify'):
        sk = lab("am"); lo = lab("al")
        b.e(f"""s_waitcnt lgkmcnt(0)
            s_cmp_lg_u32 s2, 100
            s_cbranch_scc1 {sk}
            s_sub_u32 s56, s80, s78
            s_mul_i32 s56, s56, 10
            s_min_u32 s56, s56, 100000
            s_memrealtime s[58:59]
            s_waitcnt lgkmcnt(0)
            {lo}:
            s_memrealtime s[60:61]
            s_waitcnt lgkmcnt(0)
            s_sub_u32 s57, s60, s58
            s_cmp_lt_u32 s57, s56
            s_cbranch_scc1 {lo}
            {sk}:""")
        return
    if OPT.get('dbgdump'):
        sk = lab("dd")
        b.e(f"s_waitcnt lgkmcnt(0)\ns_cmp_lg_u32 s{sW}, 0\ns_cbranch_scc1 {sk}\ns_mov_b64 exec, 1\nv_mov_b32 v30, 0\ns_not_b32 s78, s78")
        for k in range(12):
            b.e(f"v_mov_b32 v31, s{78 + 2 * k}\nglobal_atomic_umax v30, v31, {sp(P_DBG)} offset:{4 * k + 4} sc1")
        b.e(f"{sk}:")
        return
    b.e(f"s_waitcnt lgkmcnt(0)\ns_lshl_b32 s3, s2, 2\ns_add_u32 s3, s3, s{sW}\ns_lshl_b32 s3, s3, 7\ns_add_u32 s3, s3, {WS_STAMP}\nv_mov_b32 v30, 0")
    for k in range(12):
        b.e(f"v_mov_b32 v31, s{78 + 2 * k}\nbuffer_store_dword v31, v30, {WS}, s3 offen offset:{4 * k}")

def poll(b, load, cond, tok=None, sleep=0):
    if tok is None: tok = load(b)
    b.wait(vm=tok)
    lo, ok = lab("poll"), lab("ok")
    b.e(cond)
    b.e(f"s_cbranch_vccz {ok}\ns_mov_b32 s3, 0\n{lo}:")
    if sleep or OPT.get('backoff', 0): b.e(f"s_sleep {sleep or OPT['backoff']}")
    f = b.fork(); load(f); f.wait_all(lg=False)
    b.e(cond)
    b.e(f"s_add_u32 s3, s3, 1\ns_cmp_gt_u32 s3, {OPT['spin']}\ns_cbranch_scc1 {ok}\ns_cbranch_vccnz {lo}\n{ok}:")

def ld_ready(b, every=False):
    b.e("v_mov_b32 v26, 0" if every else f"s_lshl_b32 s55, s{sW}, 8\nv_mov_b32 v26, s55")
    return b.vm(f"buffer_load_dwordx4 v[28:31], v26, {OUT}, 0 offen sc1")
COND_READY = "v_xor_b32 v26, v28, v30\nv_xor_b32 v27, v29, v31\nv_and_b32 v26, v26, v27\nv_cmp_ne_u32 vcc, -1, v26"

def code_prefetch(b, stage):
    if stage == 1:
        b.e(f"""s_getpc_b64 s[76:77]
            L_pc:
            s_sub_u32 s76, s76, L_pc-{KN}
            s_subb_u32 s77, s77, 0
            s_lshr_b32 s55, s2, 3
            s_lshl_b32 s55, s55, 2
            s_add_u32 s55, s55, s{sW}
            s_and_b32 s55, s55, 31""")
    lo, hi = (KN, "L_stage2") if stage == 1 else ("L_stage2", "L_code_end")
    if OPT.get('cpf1', 1):
        if stage == 2: return
        hi = "L_code_end"
    nl = f"((({hi}-{lo})+4095)/4096)"
    b.e(f"""s_mul_i32 s3, s55, {nl}*128
        s_add_u32 s3, s3, {lo}-{KN}
        v_min_u32 v26, {nl}-1, v1
        v_lshl_add_u32 v26, v26, 7, s3
        s_mov_b32 s3, L_code_end-{KN}-4
        v_min_u32 v26, s3, v26""")
    b.vm(f"global_load_dword a{253 + stage}, v26, s[76:77]")

def mk_srd(b, r, ptr, size):
    b.e(f"s_mov_b32 s{r}, s{ptr}\ns_mov_b32 s{r+1}, s{ptr+1}\ns_mov_b32 s{r+2}, {size}\ns_mov_b32 s{r+3}, 0x20000")

LNB = 143104
LNS = LNB - 128
OOB = 0x40000000
def x_dma(c, late=False):
    so = "s59" if late else "s57"
    if late: c.e(f"v_lshl_add_u32 v26, v1, 4, s60\ns_mul_i32 s59, s50, 20480\ns_mul_i32 s3, s{sW}, 5120\ns_add_u32 s59, s59, s3")
    for p in range(2):
        if p: c.e(f"s_add_u32 m0, s58, 2592\ns_addk_i32 {so}, 2560")
        for k in range(3):
            if k == 2: c.e("s_mov_b32 exec_hi, 0")
            t = c.vm(f"buffer_load_dwordx4 {'v26' if late else 'v2'}, {SRC}, {so} offen offset:{k * 1024} nt lds")
        c.e("s_mov_b32 exec_hi, -1")
    return t
def entry(b):
    stamp_init(b)
    stamp(b, 'top')
    b.e(f"s_load_dwordx16 s[16:31], s[0:1], 0\ns_load_dwordx16 s[32:47], s[0:1], 64")
    b.e("s_cmp_ge_u32 s2, 256\ns_cbranch_scc1 L_exit")
    b.e(f"""v_lshrrev_b32 v2, 6, v0
        v_and_b32 v1, 63, v0
        v_readfirstlane_b32 s{sW}, v2
        s_and_b32 s{sXCD}, s2, 7""")
    code_prefetch(b, 1)
    b.e(f"""s_mov_b32 s50, s2
        s_cmp_lt_u32 s50, 128
        s_cselect_b32 s60, 0, {OOB}
        v_lshl_add_u32 v2, v1, 4, s60
        s_mul_i32 s57, s50, 20480
        s_mul_i32 s58, s{sW}, 5120
        s_add_u32 s57, s57, s58
        s_mul_i32 s58, s{sW}, 5184
        s_add_u32 s58, s58, {LNB}
        s_mov_b32 m0, s58
        s_mov_b32 s6, 2621440
        s_mov_b32 s7, 0x20000
        s_mov_b32 s10, {WS_SIZE}
        s_mov_b32 s11, 0x20000
        s_mov_b32 s14, 128
        s_mov_b32 s15, 0x20000
        s_lshl_b32 s59, s50, 3
        s_lshl_b32 s61, s50, 10
        s_lshl_b32 s56, s{sW}, 8
        s_add_u32 s61, s61, s56
        v_lshl_add_u32 v3, v1, 2, s61
        s_cmp_ge_u32 s2, 160
        s_waitcnt lgkmcnt(0)
        s_cbranch_scc1 L_help""")
    srd = f"""s_mov_b32 s4, s{P_X}
        s_mov_b32 s5, s{P_X + 1}
        s_add_u32 s8, s{P_WS}, {OPT.get('wsoff', 0)}
        s_addc_u32 s9, s{P_WS + 1}, 0
        s_mov_b32 s12, s{P_DBG}
        s_mov_b32 s13, s{P_DBG + 1}"""
    c = b.fork()
    pt = []
    def par():
        for k, p in enumerate((P_ARE, P_AIM, P_BRE, P_BIM, P_CRE, P_CIM)):
            pt.append(c.vm(f"global_load_dword v{4 + k}, v3, {sp(p)} nt"))
    par()
    c.e(srd)
    t = x_dma(c) if OPT.get('xat', 0) == 0 else None
    stamp(c, 'start')
    c.sm(f"s_load_dwordx2 s[62:63], {sp(P_LDT)}, s59\ns_load_dwordx2 s[64:65], {sp(P_DSK)}, s59")
    c.e("s_branch L_conv")
    b.e(f"""L_help:
        {srd}
        s_sub_u32 s2, s2, 160
        s_cmp_lg_u32 s2, 0
        s_cbranch_scc1 L_noinit
        s_cmp_lg_u32 s{sW}, 3
        s_cbranch_scc1 L_noinit
        v_mov_b32 v4, 0
        s_mov_b32 s56, {EPOCH}
        buffer_load_dwordx2 v[8:9], v4, {WS}, s56 offen sc1
        v_lshlrev_b32 v10, 4, v1
        s_waitcnt vmcnt(0)
        v_add_co_u32 v12, vcc, 1, v8
        v_addc_co_u32 v13, vcc, 0, v9, vcc
        v_not_b32 v14, v12
        v_not_b32 v15, v13
        buffer_store_dwordx4 v[12:15], v10, {OUT}, 0 offen sc1
        s_mov_b64 exec, 1
        buffer_store_dwordx2 v[12:13], v4, {WS}, s56 offen sc1
        s_mov_b64 exec, -1
        L_noinit:""")
    return t, c, pt

def ln1_addr(b):
    b.e(f"""v_and_b32 v2, 7, v1
        v_lshrrev_b32 v3, 3, v1
        v_mul_u32_u24 v240, 2592, v2
        v_lshl_add_u32 v240, v3, 3, v240
        s_lshl_b32 s3, s{sW}, 6
        s_add_u32 s3, s3, {LNB}
        v_add_u32 v240, s3, v240
        v_lshlrev_b32 v241, 8, v3
        v_lshl_add_u32 v241, v2, 4, v241
        s_lshl_b32 s3, s{sW}, 11
        s_add_u32 s3, s3, s60
        v_add_u32 v241, s3, v241
        v_lshrrev_b32 v2, 5, v1
        v_bfe_u32 v3, v1, 4, 1
        v_mul_u32_u24 v242, 2592, v2
        v_mul_u32_u24 v3, 1280, v3
        v_and_b32 v2, 15, v1
        v_lshl_add_u32 v242, v2, 4, v242
        v_add3_u32 v242, v242, v3, s58
        s_lshl_b32 s3, s{sW}, 4
        s_add_u32 s3, s3, {LNS}
        v_lshrrev_b32 v2, 4, v1
        v_lshl_add_u32 v243, v2, 2, s3
        s_lshr_b32 s57, s50, 1
        s_mul_i32 s57, s57, 40960
        s_and_b32 s3, s50, 1
        s_lshl_b32 s3, s3, 7
        s_add_u32 s57, s57, s3
        s_add_u32 s57, s57, {XT}""")

def ln1_a(b, xtok, R, out):
    A0 = R + 40
    tk = []; st = []; C = []
    def c0():
        b.e("s_mov_b32 s56, 0x3f803f80")
        b.wait(vm=xtok)
        b.e("s_barrier")
        stamp(b, 'ln_x')
        for k in range(5):
            b.lg(f"ds_read_b64 {vr(R + 4 * k, 2)}, v240 offset:{256 * k}")
            tk.append(b.lg(f"ds_read_b64 {vr(R + 4 * k + 2, 2)}, v240 offset:{256 * k + 1280}"))
    C.append(c0)
    def stores(ks):
        def f():
            for k in ks:
                b.wait(lg=tk[k])
                out['last'] = b.vm(f"buffer_store_dwordx4 {vr(R + 4 * k, 4)}, v241, {WS}, s57 offen sc1")
                b.e("s_addk_i32 s57, 8192")
                st.append(b.lg(f"ds_read_b128 {vr(R + 20 + 4 * k, 4)}, v242 offset:{256 * k}"))
            if 4 in ks: ld_ready(b)
        return f
    C += [stores([0, 1]), stores([2, 3]), stores([4])]
    def dots(g):
        def f():
            b.wait(lg=st[g])
            for k in range(4 * g, 4 * g + 4):
                r = R + 20 + k
                b.e(f"v_dot2_f32_bf16 v{A0 + (k & 1)}, v{r}, s56, {'0' if k < 2 else f'v{A0 + (k & 1)}'}")
                b.e(f"v_dot2_f32_bf16 v{A0 + 2 + (k & 1)}, v{r}, v{r}, {'0' if k < 2 else f'v{A0 + 2 + (k & 1)}'}")
        return f
    C += [dots(g) for g in range(5)]
    C.append(lambda: b.e(f"v_add_f32 v{A0}, v{A0}, v{A0 + 1}\nv_add_f32 v{A0 + 2}, v{A0 + 2}, v{A0 + 3}"))
    for m in ("quad_perm:[1,0,3,2]", "quad_perm:[2,3,0,1]", "row_half_mirror", "row_mirror"):
        C.append(lambda m=m: b.e(f"v_add_f32_dpp v{A0}, v{A0}, v{A0} {m} row_mask:0xf bank_mask:0xf\nv_add_f32_dpp v{A0 + 2}, v{A0 + 2}, v{A0 + 2} {m} row_mask:0xf bank_mask:0xf"))
    def fin():
        stats_finish(b, A0, A0 + 2, A0 + 1)
        b.e("s_mov_b32 exec_lo, 0x10001\ns_mov_b32 exec_hi, 0x10001")
        b.lg(f"ds_write_b32 v243, v{A0 + 1}")
        b.e("s_mov_b64 exec, -1")
        stamp(b, 'ln_a')
    C.append(fin)
    return C

def ln1_b(b, last):
    last = last + 1
    sk0 = lab("l0")
    b.wait(vm=last, lg=b.li - 1)
    stamp(b, 'ln_drain')
    b.e(f"s_cmp_lg_u32 s{sW}, 0\ns_cbranch_scc1 {sk0}")
    f = b.fork()
    poll(f, ld_ready, COND_READY, last)
    f.e(f"v_mov_b32 v2, {LNS + 64}\nds_write_b64 v2, v[28:29]\ns_waitcnt lgkmcnt(0)")
    b.e(f"{sk0}:\ns_barrier")
    b.e(f"""v_mov_b32 v2, {LNS + 64}
        v_and_b32 v26, 7, v1
        v_lshlrev_b32 v26, 3, v26
        v_add_u32 v26, {LNS}, v26""")
    b.lg("ds_read_b64 v[28:29], v2")
    t = b.lg("ds_read_b64 v[2:3], v26")
    b.e(f"""s_lshl_b32 s3, s{sW}, 30
        s_or_b32 s3, s3, s60
        v_lshl_add_u32 v27, v1, 4, s3
        s_lshl_b32 s56, s50, 7""")
    b.wait(lg=t)
    b.e(f"""v_readfirstlane_b32 s0, v28
        v_readfirstlane_b32 s1, v29
        v_mov_b32 v31, v29
        v_mov_b32 v29, v28
        v_mov_b32 v28, v2
        v_mov_b32 v30, v3
        s_mov_b64 exec, 0xff""")
    b.vm(f"buffer_store_dwordx4 v[28:31], v27, {WS}, s56 offen sc1")
    b.e("s_mov_b64 exec, -1")
    stamp(b, 'ln_done')

def w_prefetch(b):
    b.e(f"""s_lshr_b32 s3, s50, 3
        s_lshl_b32 s3, s3, 2
        s_add_u32 s3, s3, s{sW}
        s_min_u32 s3, s3, 71
        s_lshl_b32 s3, s3, 6
        v_add_u32 v16, s3, v1
        v_mul_u32_u24 v17, 683, v16
        v_lshrrev_b32 v17, 16, v17
        v_mul_u32_u24 v18, 96, v17
        v_sub_u32 v16, v16, v18
        v_lshrrev_b32 v18, 2, v17
        v_and_b32 v17, 3, v17
        v_lshl_add_u32 v17, v18, 5, v17
        s_lshl_b32 s3, s{sXCD}, 2
        v_add_u32 v17, s3, v17
        v_min_u32 v17, 377, v17
        v_mul_u32_u24 v18, 9363, v17
        v_lshrrev_b32 v18, 16, v18
        v_mul_u32_u24 v19, 7, v18
        v_sub_u32 v17, v17, v19
        v_mad_u32_u24 v16, v17, 48, v16
        v_mad_u32_u24 v16, v17, 48, v16
        v_min_u32 v16, 639, v16
        v_mul_u32_u24 v16, 3456, v16
        v_lshrrev_b32 v19, 1, v18
        v_lshl_add_u32 v16, v19, 7, v16
        v_and_b32 v18, 1, v18
        v_cmp_eq_u32 vcc, 0, v18
        v_mov_b32 v18, s{P_WU}
        v_mov_b32 v19, s{P_WG}
        v_cndmask_b32 v18, v18, v19, vcc
        v_mov_b32 v17, s{P_WU + 1}
        v_mov_b32 v19, s{P_WG + 1}
        v_cndmask_b32 v19, v17, v19, vcc
        v_add_co_u32 v18, vcc, v18, v16
        v_addc_co_u32 v19, vcc, 0, v19, vcc""")
    b.vm("global_load_dword a251, v[18:19], off nt")

def stats_finish(b, vs, vq, vo):
    b.e(f"""s_mov_b32 s3, 0x3acccccd
        v_mul_f32 v{vs}, s3, v{vs}
        v_mul_f32 v{vq}, s3, v{vq}
        v_fma_f32 v{vq}, -v{vs}, v{vs}, v{vq}
        v_max_f32 v{vq}, 0, v{vq}
        v_cvt_pk_bf16_f32 v{vq}, v{vq}, v{vq}
        v_lshlrev_b32 v{vq}, 16, v{vq}
        v_add_f32 v{vq}, 0x3727c5ac, v{vq}
        v_cvt_pk_bf16_f32 v{vq}, v{vq}, v{vq}
        v_lshlrev_b32 v{vq}, 16, v{vq}
        v_sqrt_f32 v{vq}, v{vq}
        v_cvt_pk_bf16_f32 v{vo}, v{vs}, v{vq}""")

def pack(b):
    mk_srd(b, 4, P_WD, 2211840)
    b.e(f"""s_mul_i32 s50, s{sW}, 20480
        s_mul_i32 s56, s2, 3
        s_add_u32 s56, s56, s{sW}
        s_cmp_lt_u32 s{sW}, 3
        s_cselect_b32 s56, s56, 999
        s_cmp_lt_u32 s56, 270
        s_cselect_b32 s76, 0, {OOB}
        s_cmp_lt_u32 s56, 280
        s_cselect_b32 s66, 0, {OOB}
        s_cselect_b32 s56, s56, 0
        s_mul_i32 s60, s56, 13108
        s_lshr_b32 s60, s60, 16
        s_mul_i32 s59, s60, 5
        s_sub_u32 s59, s56, s59
        s_cmp_ge_u32 s60, 31
        s_cbranch_scc1 L_w2late
        s_lshr_b32 s61, s60, 1
        s_mul_i32 s61, s61, 112
        s_and_b32 s62, s60, 1
        s_lshl_b32 s62, s62, 5
        s_add_u32 s61, s61, s62
        s_add_u32 s62, s61, 16
        s_and_b32 s63, s60, 3
        s_lshr_b32 s64, s60, 2
        s_branch L_w2go
        L_w2late:
        s_sub_u32 s60, s60, 31
        s_mul_i32 s61, s60, 112
        s_add_u32 s61, s61, 64
        s_add_u32 s62, s61, 16
        s_sub_u32 s70, s60, 15
        s_mul_i32 s64, s70, 224
        s_add_u32 s64, s64, 96
        s_add_u32 s65, s64, 112
        s_min_u32 s65, s65, 1712
        s_bitcmp1_b32 s70, 0
        s_cselect_b32 s71, s65, s64
        s_cselect_b32 s65, s64, s65
        s_add_u32 s70, s70, 16
        s_cmp_lt_u32 s60, 15
        s_cselect_b32 s61, s61, s71
        s_cselect_b32 s62, s62, s65
        s_cselect_b32 s70, s60, s70
        s_and_b32 s63, s70, 3
        s_lshr_b32 s64, s70, 2
        s_add_u32 s64, s64, 8
        s_cmp_eq_u32 s60, 23
        s_cselect_b32 s63, 3, s63
        s_cselect_b32 s64, 11, s64
        s_cmp_eq_u32 s60, 24
        s_cselect_b32 s63, 3, s63
        s_cselect_b32 s64, 7, s64
        L_w2go:
        v_lshrrev_b32 v4, 4, v1
        v_and_b32 v5, 15, v1
        v_lshlrev_b32 v6, 1, v4
        v_xor_b32 v6, v6, v5
        v_mul_u32_u24 v7, 1280, v4
        v_lshl_add_u32 v24, v6, 4, v7
        v_add_u32 v24, s76, v24
        v_xor_b32 v25, 0x80, v24
        s_lshl_b32 s65, s59, 8
        s_mul_i32 s61, s61, 1280
        s_mul_i32 s62, s62, 1280
        s_add_u32 s61, s61, s65
        s_add_u32 s62, s62, s65""")
    def a_dma():
        for m in range(8):
            b.e(f"s_add_u32 m0, s50, {m * 1024}" + (f"\ns_addk_i32 s{61 + (m >> 2)}, 5120" if m & 3 else ""))
            ta = b.vm(f"buffer_load_dwordx4 v{24 + (m & 1)}, {SRC}, s{61 + (m >> 2)} offen nt lds")
        return ta
    if not OPT.get('alate'): ta = a_dma()
    else: b.e('s_mov_b32 s54, s61\ns_mov_b32 s53, s62\ns_mov_b32 s52, s4\ns_mov_b32 s51, s5')
    b.e(f"""s_lshl_b32 s56, s2, 2
        s_add_u32 s56, s56, s{sW}
        s_cmp_lt_u32 s56, 378
        s_cselect_b32 s67, 0, {OOB}
        s_cselect_b32 s56, s56, 0
        s_mul_i32 s60, s56, 9363
        s_lshr_b32 s60, s60, 16
        s_mul_i32 s68, s60, 7
        s_sub_u32 s68, s56, s68
        s_and_b32 s69, s60, 1
        s_lshr_b32 s60, s60, 1
        s_cmp_eq_u32 s69, 0
        s_cselect_b32 s4, s{P_WG}, s{P_WU}
        s_cselect_b32 s5, s{P_WG+1}, s{P_WU+1}
        v_lshrrev_b32 v6, 3, v1
        v_and_b32 v7, 7, v1
        v_bfe_u32 v8, v1, 4, 1
        v_lshlrev_b32 v8, 1, v8
        v_xor_b32 v7, v7, v8
        v_mul_u32_u24 v6, 3456, v6
        v_lshl_add_u32 v12, v7, 4, v6
        v_add_u32 v12, s67, v12
        v_xor_b32 v13, 0x40, v12
        s_cmp_eq_u32 s68, 6
        s_cselect_b32 s56, {OOB}, 0
        v_or_b32 v14, s56, v12
        v_or_b32 v15, s56, v13
        s_mul_i32 s61, s68, {96 * 3456}
        s_lshl_b32 s62, s60, 7
        s_add_u32 s61, s61, s62""")
    tb = []
    def bdma(m):
        b.e(f"s_add_u32 m0, s50, {8192 + m * 1024}" + ("\ns_addk_i32 s61, 27648" if m else "\ns_nop 0"))
        tb.append(b.vm(f"buffer_load_dwordx4 v{(14 if m >= 8 else 12) + (m & 1)}, {SRC}, s61 offen nt lds"))
    NB1 = OPT.get('nb1', 0)
    for m in range(NB1): bdma(m)
    b.e("""s_mul_i32 s63, s63, 14
        s_lshl_b32 s56, s59, 3
        s_mul_i32 s57, s56, 205
        s_lshr_b32 s57, s57, 10
        s_mul_i32 s62, s57, 5
        s_sub_u32 s56, s56, s62
        s_cmp_lt_u32 s64, 12
        s_cselect_b32 s77, 3, 1
        s_cmp_lt_u32 s64, 8
        s_cselect_b32 s77, 7, s77""")
    for i3 in range(3):
        b.e(f"""s_mul_i32 s62, s57, {OPT.get('hrot', 1)}
            s_sub_u32 s70, s64, s62
            s_and_b32 s70, s70, s77
            s_andn2_b32 s71, s64, s77
            s_or_b32 s70, s70, s71
            s_mul_i32 s71, s57, 56
            s_add_u32 s71, s71, s63
            s_add_u32 s71, s71, s70
            s_mul_i32 s71, s71, 5
            s_add_u32 s71, s71, s56
            s_lshl_b32 s71, s71, 10
            s_add_u32 s{73 + i3}, s71, {W2P - 5 * i3 * 1024}
            s_add_u32 s57, s57, 1""")
    for t in range(8):
        b.e(f"""s_cmp_ge_u32 s56, {max(5 - t, 0)}
            s_cselect_b32 s71, s74, s73
            s_cmp_ge_u32 s56, {10 - t}
            s_cselect_b32 s71, s75, s71
            s_add_u32 s{16 + t}, s71, {t * 1024}""")
    b.e(f"""v_bfe_u32 v6, v1, 2, 2
        v_and_b32 v11, 1, v4
        v_lshl_add_u32 v11, v11, 2, v6
        v_lshlrev_b32 v11, 5, v11
        v_lshl_add_u32 v11, v6, 8, v11
        v_lshl_add_u32 v11, v4, 10, v11
        v_and_b32 v6, 3, v1
        v_lshl_add_u32 v11, v6, 3, v11
        v_add_u32 v11, s50, v11
        v_lshlrev_b32 v9, 4, v1
        v_add_u32 v10, s66, v9
        """)
    if OPT.get('alate'):
        b.e('s_mov_b32 s70, s61\ns_mov_b32 s71, s4\ns_mov_b32 s72, s5\ns_mov_b32 s61, s54\ns_mov_b32 s62, s53\ns_mov_b32 s4, s52\ns_mov_b32 s5, s51')
        ta = a_dma()
        b.e('s_mov_b32 s61, s70\ns_mov_b32 s4, s71\ns_mov_b32 s5, s72')
    b.wait(vm=ta)
    stamp(b, 'pkA_loaded')
    tk = []
    for t in range(8):
        b.e(f"v_xor_b32 v{98 + t}, {t << 5}, v11")
        b.lg(f"ds_read_b64_tr_b16 {vr(64 + 4 * t, 2)}, v{98 + t}")
        tk.append(b.lg(f"ds_read_b64_tr_b16 {vr(66 + 4 * t, 2)}, v{98 + t} offset:4096"))
    for t in range(8):
        b.wait(lg=tk[t])
        sa = b.vm(f"buffer_store_dwordx4 {vr(64 + 4 * t, 4)}, v10, {WS}, s{16 + t} offen sc1")
    rt = ld_ready(b, True)
    NB2 = OPT.get('nb2', 6)
    for m in range(NB1, NB2): bdma(m)
    for t in range(4):
        T, J, TA, BS, STR = 62, 63, 64, 24 + 2 * t, 25 + 2 * t
        b.e(f"""s_lshl_b32 s{T}, s60, 2
            s_add_u32 s{T}, s{T}, {t}
            s_mul_i32 s{J}, s{T}, 9363
            s_lshr_b32 s{J}, s{J}, 16
            s_mul_i32 s{TA}, s{J}, 7
            s_sub_u32 s{TA}, s{T}, s{TA}
            s_cmp_eq_u32 s{J}, 15
            s_cselect_b32 s65, 2, 4
            s_cselect_b32 s56, 2, 6
            s_mul_i32 s57, s65, 40
            s_mul_i32 s3, s56, 40
            s_cmp_eq_u32 s{TA}, s56
            s_cselect_b32 s{STR}, 1, 2
            s_cselect_b32 s57, s3, s57
            s_cselect_b32 s56, s56, s65
            s_cmp_lt_u32 s{TA}, s65
            s_cselect_b32 s{STR}, s65, s{STR}
            s_cselect_b32 s57, 0, s57
            s_cselect_b32 s56, 0, s56
            s_sub_u32 s{TA}, s{TA}, s56
            s_lshl_b32 s{TA}, s{TA}, 1
            s_add_u32 s{TA}, s{TA}, s69
            s_add_u32 s{TA}, s{TA}, s57
            s_lshl_b32 s{STR}, s{STR}, 11
            s_lshl_b32 s{TA}, s{TA}, 10
            s_and_b32 s56, s{J}, 3
            s_mul_i32 s56, s56, {5 if OPT.get('krot', 0) else 0}
            s_and_b32 s56, s56, -2
            s_mul_i32 s57, s68, 3
            s_add_u32 s57, s57, 20
            s_sub_u32 s{70 + t}, s57, s56
            s_mul_i32 s{J}, s{J}, {JSTR}
            s_add_u32 s{BS}, s{J}, s{TA}
            s_add_u32 s{BS}, s{BS}, {W1P}""")
    b.e(f"""v_bfe_u32 v6, v1, 2, 2
        v_bfe_u32 v7, v1, 3, 1
        v_and_b32 v8, 1, v4
        v_lshl_add_u32 v7, v8, 1, v7
        v_lshlrev_b32 v7, 5, v7
        v_lshl_add_u32 v7, v6, 7, v7
        v_lshl_add_u32 v7, v4, 10, v7
        v_and_b32 v6, 3, v1
        v_lshl_add_u32 v7, v6, 3, v7
        s_add_u32 s56, s50, 8192
        v_add_u32 v56, s56, v7
        v_xor_b32 v57, 32, v56
        v_xor_b32 v58, 64, v56
        v_xor_b32 v59, 0x60, v56
        v_add_u32 v96, s67, v9
        s_cmp_eq_u32 s68, 6
        s_cselect_b32 s56, {OOB}, s67
        v_add_u32 v97, s56, v9
        s_mov_b32 s3, 0x3f803f80
        v_mov_b32 v60, s3
        v_mov_b32 v61, s3
        v_mov_b32 v62, s3
        v_mov_b32 v63, s3""")
    poll(b, lambda bb: ld_ready(bb, True), COND_READY, rt)
    b.e("v_readfirstlane_b32 s0, v28\nv_readfirstlane_b32 s1, v29")
    b.e("s_barrier")
    arrive(b, FLP2, "s2")
    stamp(b, 'pkA_done')
    for m in range(NB2, 12): bdma(m)
    for k in range(3):
        b.wait(vm=tb[4 * k + 3])
        if k == 2: stamp(b, 'pk_loaded')
        tk = []
        for t in range(4):
            r = 128 + (k * 4 + t) * 4
            b.lg(f"ds_read_b64_tr_b16 {vr(r, 2)}, v{56 + t} offset:{k * 4096}")
            tk.append(b.lg(f"ds_read_b64_tr_b16 {vr(r + 2, 2)}, v{56 + t} offset:{k * 4096 + 512}"))
        for t in range(4):
            r = 128 + (k * 4 + t) * 4
            b.e(f"""s_add_u32 s56, s{70 + t}, {k}
                s_sub_u32 s57, s56, 20
                s_cmp_ge_u32 s56, 20
                s_cselect_b32 s56, s57, s56
                s_sub_u32 s57, s56, 20
                s_cmp_ge_u32 s56, 20
                s_cselect_b32 s56, s57, s56
                s_mul_i32 s56, s56, s{25 + 2 * t}
                s_add_u32 s57, s56, s{24 + 2 * t}""")
            b.wait(lg=tk[t])
            b.vm(f"buffer_store_dwordx4 {vr(r, 4)}, v{97 if k == 2 else 96}, {WS}, s57 offen sc1")
            b.e(f"v_mfma_f32_16x16x32_bf16 {vr(112 + 4 * t, 4)}, {vr(r, 4)}, v[60:63], {'0' if k == 0 else vr(112 + 4 * t, 4)}")
    b.e(f"""v_and_b32 v3, 3, v1
        v_cmp_eq_u32 s[62:63], 1, v3
        v_cmp_eq_u32 s[64:65], 2, v3
        v_cmp_eq_u32 vcc, 3, v3
        v_lshlrev_b32 v2, 4, v4
        v_lshl_add_u32 v2, v3, 6, v2
        v_add_u32 v2, s67, v2
        s_lshl_b32 s56, s68, 1
        s_add_u32 s56, s56, s69
        s_mul_i32 s56, s56, 7168
        s_lshl_b32 s57, s60, 8
        s_add_u32 s56, s56, s57
        s_add_u32 s56, s56, {CSP}""")
    for q in range(4):
        b.e(f"v_cndmask_b32 v{112 + q}, v{112 + q}, v{116 + q}, s[62:63]\nv_cndmask_b32 v{112 + q}, v{112 + q}, v{120 + q}, s[64:65]\nv_cndmask_b32 v{112 + q}, v{112 + q}, v{124 + q}, vcc")
    b.e("s_mov_b32 exec_lo, 0xf000f\ns_mov_b32 exec_hi, 0xf000f")
    b.vm(f"buffer_store_dwordx4 v[112:115], v2, {WS}, s56 offen sc1")
    b.e("s_mov_b64 exec, -1")
    stamp(b, 'pk_stored')
    b.wait_all()
    b.e("s_barrier")
    arrive(b, FLP, "s2")
    stamp(b, 'pack_done')

def arrive(b, base, idx, T='s3'):
    b.e(f"""s_lshl_b32 {T}, {idx}, 7
        s_add_u32 {T}, {T}, {base}
        s_lshl_b32 s55, s{sW}, 30
        v_lshl_add_u32 v26, v1, 3, s55
        v_mov_b32 v28, s0
        v_mov_b32 v29, s1
        s_mov_b64 exec, 0xffff""")
    t = b.vm(f"buffer_store_dwordx2 v[28:29], v26, {WS}, {T} offen sc1")
    b.e("s_mov_b64 exec, -1")
    return t

def ld_lines(base, n, R=28):
    def f(b):
        b.e(f"s_mov_b32 s55, {base}" if isinstance(base, int) else base)
        for k in range((n + 63) // 64):
            lim = n - 1 - 64 * k
            b.e((f"v_min_u32 v26, {lim}, v1\nv_lshlrev_b32 v26, 7, v26" if lim < 63 else "v_lshlrev_b32 v26, 7, v1") + (f"\nv_add_u32 v26, {8192 * k}, v26" if k else ""))
            t = b.vm(f"buffer_load_dwordx2 {vr(R + 2 * k, 2)}, v26, {WS}, s55 offen sc1")
        return t
    return f
def ld_quarter(base):
    return ld_lines(f"s_mul_i32 s55, s{sW}, {24 * 128}\ns_add_u32 s55, s55, {base}", 24)
def cond_lines(n, R=28):
    t = []
    for k in range((n + 63) // 64):
        t.append(f"v_xor_b32 v{R + 2 * k}, s0, v{R + 2 * k}\nv_xor_b32 v{R + 1 + 2 * k}, s1, v{R + 1 + 2 * k}")
        t.append(f"v_or3_b32 v26, v26, v{R + 2 * k}, v{R + 1 + 2 * k}" if k else f"v_or_b32 v26, v{R}, v{R + 1}")
    return "\n".join(t) + "\nv_cmp_ne_u32 vcc, 0, v26"

L2E, L2E_LO, LN2 = 0x3FB8AA3B, 0x32A57060, 0x3F317218
def cmul(b, o, x, w, t):
    b.e(f"v_pk_mul_f32 {vr(t,2)}, {vr(x,2)}, {vr(w,2)} op_sel_hi:[1,0]")
    b.e(f"v_pk_fma_f32 {vr(o,2)}, {vr(x,2)}, {vr(w,2)}, {vr(t,2)} op_sel:[1,1,0] op_sel_hi:[0,1,1] neg_lo:[0,1,0]")

CSTR, SPB, UB = 2368, 9472, 11008
def conv(b, xtok, pt):
    b.e("L_conv:")
    VX, VS, VU, SG, XR, RR, BND = 192, 193, 194, 196, 212, 228, 244
    RB = "s76"
    if OPT.get('wpf', 0) == 1: w_prefetch(b)
    ln1_addr(b)
    if OPT.get('xat', 0) == 1: xtok = x_dma(b, True)
    b.e(f"""s_mul_i32 {RB}, s{sW}, {RSTR}
        v_lshl_add_u32 v10, v1, 3, {RB}
        v_and_b32 v2, 31, v1
        v_lshrrev_b32 v3, 5, v1
        v_lshl_add_u32 v3, v3, 4, {RB}
        v_lshrrev_b32 v11, 3, v2
        v_lshlrev_b32 v11, 2, v11
        v_and_b32 v12, 3, v2
        v_add_u32 v11, v11, v12
        v_bfe_u32 v12, v2, 2, 1
        s_mov_b32 s72, 0x86444200
        s_mov_b32 s73, 0xfedcba88
        v_lshlrev_b32 v16, 2, v11
        v_lshrrev_b64 v[16:17], v16, s[72:73]
        v_and_b32 v16, 15, v16
        v_add_u32 v16, 16, v16
        v_cmp_eq_u32 vcc, 1, v12
        v_cndmask_b32 v11, v11, v16, vcc
        v_add_u32 v13, 32, v2
        s_movk_i32 s3, 528
        v_mad_u32_u24 v11, v11, s3, v3
        v_mad_u32_u24 v13, v13, s3, v3
        v_sub_u32 v2, 63, v1
        v_lshl_add_u32 v12, v2, 4, {RB}
        v_lshl_add_u32 v253, v1, 4, {RB}
        v_and_b32 v2, 15, v1
        v_lshrrev_b32 v3, 4, v1
        v_sub_u32 v16, 2, v2
        v_and_b32 v16, 3, v16
        v_add_u32 v17, v2, v16
        v_sub_u32 v17, 18, v17
        v_lshlrev_b32 v17, 1, v17
        v_mul_u32_u24 v16, {CSTR}, v16
        v_add3_u32 v17, v17, v16, {RB}
        v_lshl_add_u32 v236, v3, 4, v17
        v_lshlrev_b32 v17, 5, v2
        v_lshl_add_u32 v17, v3, 4, v17
        s_add_u32 s3, {RB}, {UB}
        v_add_u32 v237, s3, v17
        v_lshlrev_b32 v17, 4, v2
        v_lshl_add_u32 v17, v3, 2, v17
        v_add_u32 v238, {RB}, v17
        v_lshrrev_b32 v17, 2, v2
        v_mul_u32_u24 v17, {RSTR}, v17
        v_lshl_add_u32 v17, v3, 5, v17
        v_and_b32 v16, 3, v2
        v_lshl_add_u32 v17, v16, 3, v17
        s_lshl_b32 s3, s{sW}, 7
        v_add_u32 v239, s3, v17
        v_sub_u32 v16, 3, v2
        v_and_b32 v16, 3, v16
        v_add_u32 v17, v2, v16
        v_sub_u32 v17, 15, v17
        v_lshl_add_u32 v17, v3, 2, v17
        v_lshlrev_b32 v17, 1, v17
        v_mul_u32_u24 v16, 192, v16
        s_add_u32 s3, {RB}, {SPB}
        v_add3_u32 v235, v17, v16, s3
        v_subrev_u32 v16, 1, v1
        v_lshrrev_b32 v16, 1, v16
        v_lshlrev_b32 v16, 1, v16
        v_and_b32 v17, 1, v1
        v_mul_u32_u24 v17, 768, v17
        v_sub_u32 v17, v17, v16
        s_add_u32 s3, s3, 126
        v_add_u32 v254, s3, v17
        v_subrev_u32 v255, 64, v254
        v_cmp_eq_u32 s[70:71], 0, v1
        s_sub_u32 s3, s3, 126
        v_mov_b32 v16, s3
        s_add_u32 s3, s3, 64
        v_mov_b32 v17, s3
        v_cndmask_b32 v254, v254, v16, s[70:71]
        v_cndmask_b32 v255, v255, v17, s[70:71]
        s_mov_b32 s72, 0x01028403
        s_mov_b32 s73, 0x8500
        v_lshlrev_b32 v16, 3, v1
        v_lshrrev_b64 v[16:17], v16, s[72:73]
        v_and_b32 v16, 0xff, v16
        v_lshl_add_u32 v252, v16, 4, {RB}
        v_lshlrev_b32 v16, 3, v3
        v_sub_u32 v16, v2, v16
        v_add_u32 v18, 36, v16
        s_mov_b32 s72, 0x1ff
        s_mov_b32 s73, 0
        v_lshlrev_b64 v[20:21], v18, s[72:73]
        v_add_u32 v18, 37, v16
        s_mov_b32 s72, 0x7f
        v_lshlrev_b64 v[22:23], v18, s[72:73]
        s_movk_i32 s3, 0x3f80""")
    if OPT.get('xat', 0) == 2: xtok = x_dma(b, True); b.e("s_movk_i32 s3, 0x3f80")
    for cl in range(2):
        for k in range(4):
            d = BND + 4 * cl + k
            b.e(f"v_bfe_u32 v{d}, v{21 + 2 * cl}, {2 * k}, 2\nv_lshl_or_b32 v{d}, v{d}, 15, v{d}\nv_and_b32 v{d}, 0x10001, v{d}\nv_mul_u32_u24 v{d}, s3, v{d}")
    b.e(f"""v_lshrrev_b32 v2, 4, v0
        v_mul_u32_u24 v2, 40960, v2
        v_and_b32 v3, 15, v0
        v_lshl_add_u32 v{VX}, v3, 4, v2
        v_lshlrev_b32 v{VS}, 4, v0
        s_movk_i32 s72, 4096
        s_movk_i32 s73, 8192
        v_lshlrev_b32 v{VU}, 2, v0
        v_add_u32 v{VU}, {UB + 512}, v{VU}
        v_add_u32 v{VU + 1}, {2 * RSTR}, v{VU}
        s_lshl_b32 s74, s50, 8
        s_add_u32 s75, s74, {XT}
        s_add_u32 s74, s74, {HT}""")
    if OPT.get('xat', 0) == 3: xtok = x_dma(b, True)
    b.wait_all(vm=False)
    b.e(f"""s_lshr_b32 s3, s{sW}, 1
        s_cmp_eq_u32 s3, 0
        s_cselect_b32 s62, s62, s63
        s_and_b32 s3, s{sW}, 1
        s_lshl_b32 s3, s3, 4
        s_lshr_b32 s62, s62, s3
        s_lshl_b32 s62, s62, 16
        s_mov_b32 s65, s65
        v_mov_b32 v14, s62
        s_lshl_b32 s66, s64, 16
        s_and_b32 s67, s64, 0xffff0000
        s_lshl_b32 s68, s65, 16
        s_and_b32 s69, s65, 0xffff0000
        s_mov_b32 s64, 0x{L2E:x}
        v_mul_f32 v15, s64, v14
        v_fma_f32 v16, v14, s64, -v15
        v_fmac_f32 v16, 0x{L2E_LO:x}, v14
        v_exp_f32 v15, v15
        v_mul_f32 v16, 0x{LN2:x}, v16
        v_fmac_f32 v15, v15, v16
        v_cvt_pk_bf16_f32 v15, v15, v15
        v_lshlrev_b32 v14, 16, v15""".replace("        s_mov_b32 s65, s65\n", ""))
    b.e(ffn_map(False).replace("v_lshlrev_b32 v4, 4, v1", "s_nop 0"))
    if OPT.get('wpf', 0) == 2: w_prefetch(b)
    AL, BE, CC, Z1, Z8, Z256, T, DB, X, X2, X4, X6, X8, X10, Y = range(0, 30, 2)
    R = lambda n, k: 32 + n * 32 + k
    b.wait(vm=pt[5])
    stamp(b, 'kg_par')
    for n in range(2):
        un = (lambda d, s: f"v_lshlrev_b32 v{d}, 16, v{s}") if n == 0 else (lambda d, s: f"v_and_b32 v{d}, 0xffff0000, v{s}")
        b.e("\n".join([un(R(n, AL), 4), un(R(n, BE), 5), un(R(n, DB), 6), un(R(n, DB) + 1, 7), un(R(n, CC), 8), un(R(n, CC) + 1, 9)]))
    for n in range(2):
        b.e(f"""v_mul_f32 v{R(n,AL)}, v14, v{R(n,AL)}
            v_mul_f32 v{R(n,BE)}, v14, v{R(n,BE)}
            v_pk_mul_f32 {vr(R(n,DB),2)}, {vr(R(n,DB),2)}, v[14:15] op_sel_hi:[1,0]
            v_mul_f32 v{R(n,AL)}, s64, v{R(n,AL)}
            v_mul_f32 v{R(n,BE)}, 0.15915494, v{R(n,BE)}""")
    b.e("v_lshlrev_b32 v4, 4, v1\nv_mov_b32 v5, v235\nv_mov_b32 v6, v236\nv_mov_b32 v7, v237\nv_mov_b32 v8, v238\nv_mov_b32 v9, v239")
    for n in range(2): cmul(b, R(n, X), R(n, CC), R(n, DB), R(n, T))
    for (z, p) in ((Z8, 0x41000000), (Z1, None), (Z256, 0x43800000)):
        for n in range(2):
            e, ph = R(n, T), R(n, T) + 1
            if p is None: b.e(f"v_exp_f32 v{e}, v{R(n,AL)}\nv_fract_f32 v{ph}, v{R(n,BE)}")
            else: b.e(f"v_mul_f32 v{e}, 0x{p:x}, v{R(n,AL)}\nv_mul_f32 v{ph}, 0x{p:x}, v{R(n,BE)}\nv_exp_f32 v{e}, v{e}\nv_fract_f32 v{ph}, v{ph}")
        for n in range(2):
            b.e(f"v_cos_f32 v{R(n,z)}, v{R(n,T)+1}\nv_sin_f32 v{R(n,z)+1}, v{R(n,T)+1}")
        for n in range(2):
            b.e(f"v_pk_mul_f32 {vr(R(n,z),2)}, {vr(R(n,z),2)}, {vr(R(n,T),2)} op_sel_hi:[1,0]")
    pk = [0]
    def put(src, rows, neg=False):
        d = 16 + 2 * (pk[0] & 3); pk[0] += 1
        for n in range(2):
            b.e(f"v_cvt_pk_bf16_f32 v{d + n}, v{R(n,src)}, {'-' if neg else ''}v{R(n,src)+1}")
        for r in rows: b.lg(f"ds_write_b64 v10, {vr(d,2)} offset:{r * 528}")
    def mul(o, x, w):
        for n in range(2): b.e(f"v_pk_mul_f32 {vr(R(n,T),2)}, {vr(R(n,x),2)}, {vr(R(n,w),2)} op_sel_hi:[1,0]")
        for n in range(2): b.e(f"v_pk_fma_f32 {vr(R(n,o),2)}, {vr(R(n,x),2)}, {vr(R(n,w),2)}, {vr(R(n,T),2)} op_sel:[1,1,0] op_sel_hi:[0,1,1] neg_lo:[0,1,0]")
    stamp(b, 'kg_base')
    b.e("v_mov_b32 v24, 0x3f80\nv_mov_b32 v25, 0x3f80")
    b.lg(f"ds_write_b64 v10, v[24:25] offset:{32 * 528}")
    put(Z8, [33], True)
    lo = {}; chunks = ln1_a(b, xtok, 96, lo); step = [0]
    LNA, LNB_ = OPT.get('lna_at', 4), OPT.get('lnb_at', 18)
    def ld_st(bb):
        for q in range(4):
            t = bb.vm(f"buffer_load_dwordx4 {vr(SG + 4 * q, 4)}, v{VS}, {WS}, {('0', 's72', 's73', 's14')[q]} offen sc1")
        return t
    def nxt(o, x, w, rows, neg=False):
        mul(o, x, w); put(o, rows, neg); step[0] += 1
        for _ in range(OPT.get('lnr', 2)):
            if step[0] >= LNA and chunks: chunks.pop(0)()
        if step[0] == LNB_:
            assert not chunks
            ln1_b(b, lo['last']); b.e("s_movk_i32 s14, 12288")
        if step[0] == OPT.get('st_at', 56): lo['st'] = ld_st(b)
    cur = Z8
    for j in range(2, 32):
        nxt(Y, cur, Z8, [32 + j], True); cur = Y
    put(X, [0])
    keep = {2: X2, 4: X4, 6: X6, 8: X8, 10: X10}
    cur = X
    for o in range(1, 11):
        d = keep.get(o, Y)
        nxt(d, cur, Z1, [o]); cur = d
    for src, row in ((X, 16), (X2, 18), (X4, 20), (X6, 22), (X8, 24), (X10, 26)):
        nxt(src, src, Z256, [row])
    for r0 in (11, 27):
        for k, src in enumerate((X, X4, X8)):
            nxt(src, src, Z256, [r0 + k])
    for r0 in (14, 30, 15, 31):
        nxt(X, X, Z256, [r0])
    stok = lo['st']
    mul(X, X, Z256)
    b.wait_all(vm=False)
    stamp(b, 'kg_pow')
    tk = {}
    def rd(ks):
        r = 112 + (ks % 4) * 8
        b.lg(f"ds_read_b128 {vr(r,4)}, v11 offset:{32 * ks}")
        tk[ks] = b.lg(f"ds_read_b128 {vr(r+4,4)}, v13 offset:{32 * ks}")
    fill = [f"v_add_f32 v14, v{R(0,X)}, v{R(1,X)}"]
    for m in ("quad_perm:[1,0,3,2] row_mask:0xf", "quad_perm:[2,3,0,1] row_mask:0xf", "row_half_mirror row_mask:0xf", "row_mirror row_mask:0xf", "row_bcast:15 row_mask:0xa", "row_bcast:31 row_mask:0xc"):
        fill.append(f"v_add_f32_dpp v14, v14, v14 {m} bank_mask:0xf")
    fill += ["v_readlane_b32 s56, v14, 63", "v_mov_b32 v20, 0\nv_mov_b32 v21, 0", "v_mov_b32 v22, 0\nv_mov_b32 v23, 0"]
    for ks in range(3): rd(ks)
    cond = "\n".join(f"v_xor_b32 v2, s0, v{SG + 1 + 4 * q}\nv_xor_b32 v3, s1, v{SG + 3 + 4 * q}\n" + (f"v_or3_b32 v15, v2, v3, v15" if q else "v_or_b32 v15, v2, v3") for q in range(4))
    xt = []
    KC = OPT.get('kc', 11)
    for ks in range(16):
        r = 112 + (ks % 4) * 8
        b.wait(lg=tk[ks])
        b.e(f"v_mfma_f32_32x32x16_bf16 v[96:111], {vr(r,4)}, {vr(r+4,4)}, {'0' if ks == 0 else 'v[96:111]'}")
        if ks + 3 < 16: rd(ks + 3)
        if ks == KC:
            stamp(b, 'st_chk')
            poll(b, ld_st, cond + "\nv_cmp_ne_u32 vcc, 0, v15", stok)
            stamp(b, 'st_ok')
            for k in range(8):
                fill.append(f"v_and_b32 v{RR + 2 * k}, 0xffff0000, v{SG + 2 * k}\nv_lshlrev_b32 v{RR + 1 + 2 * k}, 16, v{SG + 2 * k}\nv_rcp_f32 v{RR + 2 * k}, v{RR + 2 * k}" + (f"\nv_mul_f32 v{RR - 1 + 2 * k}, -v{RR - 1 + 2 * k}, v{RR - 2 + 2 * k}" if k else ""))
            fill.append(f"v_mul_f32 v{RR + 15}, -v{RR + 15}, v{RR + 14}")
        if KC < ks <= KC + 4:
            q = ks - KC - 1
            xt.append(b.vm(f"buffer_load_dwordx4 {vr(XR + 4 * q, 4)}, v{VX}, {WS}, s75 offen sc1"))
            b.e("s_add_u32 s75, s75, 655360")
        if fill: b.e(fill.pop(0))
        if fill and ks > KC + 4: b.e(fill.pop(0))
    for x in fill: b.e(x)
    stamp(b, 'kg_mfma')
    p2tok = ld_quarter(FLP2)(b)
    b.lg(f"ds_write_b128 v253, v[20:23] offset:{SPB}")
    b.lg(f"ds_write_b128 v253, v[20:23] offset:{SPB + 1024}")
    b.e("s_barrier")
    stamp(b, 'st1_seen')
    b.e("""v_cmp_eq_u32 vcc, 31, v1
        v_cndmask_b32 v24, 0, v96, s[70:71]
        v_cndmask_b32 v25, 0, v97, s[70:71]
        v_cndmask_b32 v18, 0, v98, s[70:71]
        v_cndmask_b32 v105, v105, v104, vcc
        v_cmp_eq_u32 vcc, 63, v1
        v_cndmask_b32 v19, 0, v110, s[70:71]
        v_writelane_b32 v110, s56, 0
        v_cndmask_b32 v106, v106, v104, vcc
        v_mov_b32_dpp v24, v24 row_shr:1 row_mask:0xf bank_mask:0xf bound_ctrl:1
        v_mov_b32_dpp v25, v25 row_shr:1 row_mask:0xf bank_mask:0xf bound_ctrl:1
        v_mov_b32_dpp v18, v18 row_shr:1 row_mask:0xf bank_mask:0xf bound_ctrl:1
        v_cvt_pk_bf16_f32 v14, v110, v111""")
    pats = [list(range(96, 107)), [107] * 3 + [108] * 3 + [109] * 5, [19] * 5 + [20] * 3 + [24, 25, 18]]
    for rnd, w in enumerate(pats):
        for c in range(4):
            d = 32 + ((rnd * 4 + c) % 8) * 4
            for k in range(4):
                b.e(f"v_cvt_pk_bf16_f32 v{d + k}, v{w[10 - c - 2 * k]}, v{w[9 - c - 2 * k]}")
            if rnd < 2: b.lg(f"ds_write_b128 v12, {vr(d,4)} offset:{c * CSTR + 64 + (1 - rnd) * 1024}")
        if rnd == 0:
            for c in range(4): b.lg(f"ds_write_b16 v254, v14 offset:{c * 190}")
        if rnd == 1:
            for c in range(4): b.lg(f"ds_write_b16_d16_hi v255, v14 offset:{c * 190}")
    b.e("s_mov_b64 exec, 63")
    for c in range(4): b.lg(f"ds_write_b128 v252, {vr(32 + c * 4, 4)} offset:{c * CSTR}")
    b.e("s_mov_b64 exec, -1")
    stamp(b, 'kgen_done')
    b.e("L_stage2:")
    XF, UF = 128, 160
    for q in range(4):
        b.wait(vm=xt[q])
        for k in range(4):
            b.e(f"v_lshlrev_b32 v{XF + 8 * q + 2 * k}, 16, v{XR + 4 * q + k}\nv_and_b32 v{XF + 8 * q + 2 * k + 1}, 0xffff0000, v{XR + 4 * q + k}")
        for k in range(4):
            rr = RR + 2 * (2 * q + (k >> 1))
            b.e(f"v_pk_fma_f32 {vr(UF + 8 * q + 2 * k, 2)}, {vr(XF + 8 * q + 2 * k, 2)}, {vr(rr, 2)}, {vr(rr, 2)} op_sel:[0,0,1] op_sel_hi:[1,0,1]")
        for c in range(4):
            b.e(f"v_cvt_pk_bf16_f32 v{SG + 4 * q + c}, v{UF + 8 * q + c}, v{UF + 8 * q + 4 + c}")
        for c in range(4):
            b.lg(f"ds_write_b32 v{VU + (c >> 1)}, v{SG + 4 * q + c} offset:{(c & 1) * RSTR + q * 1024}")
    rtok = {}
    ACC, VB, UA, DW, WF = 32, 64, 36, 196, 228
    def f_rd(it, k, r=None):
        d = 2 * it + 1 + 16 * k; r = (it & 1) * 16 + 4 * k if r is None else r
        b.lg(f"ds_read_b64 {ar(r, 2)}, v6 offset:{2080 - 32 * d}")
        rtok[(it, 'f', k)] = b.lg(f"ds_read_b64 {ar(r + 2, 2)}, v6 offset:{2080 - 32 * d + 8}")
    def v_rd(it, k):
        rtok[(it, 'v', k)] = b.lg(f"ds_read_b128 {vr(VB + (it & 1) * 32 + 4 * k, 4)}, v7 offset:{512 + 512 * k - 32 * (2 * it + 1)}")
    ulast = b.li - 1
    for k in range(4): f_rd(0, k)
    f_rd(0, 4, 32)
    if OPT.get('w2t', 0): w2_touch(b, False)
    poll(b, ld_quarter(FLP2), cond_lines(24), p2tok)
    b.wait(lg=ulast)
    b.e("s_barrier")
    stamp(b, 'conv_start')
    for k in range(8): v_rd(0, k)
    G = Gaps(b, spread=OPT.get('spread', 1))
    w2n = 0; W1AT = OPT.get('w1at', 99); W2AT = OPT.get('w2at', 0)
    tok = {}
    def y_out(ct, G_=None):
        G.add(f"v_cvt_pk_bf16_f32 v{64 + 2 * ct}, v{ACC + 4 * ct}, v{ACC + 4 * ct + 2}\nv_cvt_pk_bf16_f32 v{65 + 2 * ct}, v{ACC + 4 * ct + 1}, v{ACC + 4 * ct + 3}")
        G.add(lambda: b.lg(f"ds_write2st64_b32 v8, v{64 + 2 * ct}, v{65 + 2 * ct} offset0:{ct} offset1:{ct + 8}"), 2)
    for it in range(8):
        par = it & 1
        stamp(b, f'cv_{it}')
        if it < 7:
            for k in range(8):
                if k < 4: G.add(lambda k=k, it=it: f_rd(it + 1, k), 2)
                G.add(lambda k=k, it=it: v_rd(it + 1, k), 1)
        ex = []
        if it == 0:
            for cl in range(2):
                for t in range(4):
                    G.add(lambda cl=cl, t=t: tok.__setitem__('u', b.lg(f"ds_read_b128 {ar(UA + 16 * cl + 4 * t, 4)}, v7 offset:{512 + 512 * t - (48 if cl == 0 else 32)}")), 1)
            ex = [(vr(ACC + 4 * ct, 4), ar(32, 4), vr(VB + 4 * (ct - 4), 4), vr(ACC + 4 * ct, 4)) for ct in range(4, 8)]
        if it == 1:
            ex = [(vr(DW + 16 * cl + 4 * t, 4), ar(UA + 16 * cl + 4 * t, 4), vr(BND + 4 * cl, 4), '0') for cl in range(2) for t in range(4)]
        if it == 2:
            for cl in range(2):
                for d in range(3, -1, -1):
                    G.add(lambda cl=cl, d=d: tok.__setitem__('t', b.lg(f"ds_read_b64 {ar(UA + 10 * cl + 2 * (3 - d), 2)}, v5 offset:{768 * cl + 96 - 32 * d}")), 1)
                G.add(f"v_accvgpr_write_b32 a{UA + 10 * cl + 8}, 0\nv_accvgpr_write_b32 a{UA + 10 * cl + 9}, 0")
            for cl in range(2):
                for t in range(4):
                    G.add(f"v_cvt_pk_bf16_f32 v{WF + 8 * cl + 2 * t}, v{DW + 16 * cl + 4 * t}, v{DW + 16 * cl + 4 * t + 1}\nv_cvt_pk_bf16_f32 v{WF + 8 * cl + 2 * t + 1}, v{DW + 16 * cl + 4 * t + 2}, v{DW + 16 * cl + 4 * t + 3}")
        if it in (3, 4):
            cl = it - 3
            ex = [(vr(ACC + 4 * ct, 4), vr(WF + 8 * cl + 4 * kk, 4), ar(UA + 10 * cl + 2 * (3 - (ct - 4 - 2 * kk)), 4), vr(ACC + 4 * ct, 4)) for kk in range(2) for ct in range(4 + 2 * kk, 8)]
        if it >= 4:
            q = it - 4
            for k in range(8): G.add(f"v_fma_f32 v{XF + 8 * q + k}, v{UF + 8 * q + k}, s{66 + (k & 3)}, v{XF + 8 * q + k}")
        if it == W1AT:
            G.add(f"v_lshlrev_b32 v2, 7, v0\nv_min_u32 v2, {230 * 128}, v2"); G.add(f"s_mul_i32 s3, s{sSI}, {231 * 128}\ns_add_u32 s3, s3, s{sDMA}")
            G.add(lambda: (b.e(f"s_sub_u32 s3, s3, s{sM0}"), b.vm(f"buffer_load_dword a252, v2, {WS}, s3 offen sc1")), 2)
        if it >= W2AT:
            for _ in range(-(-(OPT.get('w2n', 40) - w2n) // (8 - it))):
                G.addv(lambda m=w2n: w2_load(b, m)); w2n += 1
        if it == 6: G.add(lambda: tok.__setitem__('p1', ld_quarter(FLP)(b)), 2)
        G.begin(26 + len(ex))
        order = [(i, ct) for i in range(4) for ct in range(i, 8)]
        if it == 7: order = [(i, ct) for ct in range(8) for i in range(min(ct, 3) + 1)]
        pend = []
        for cnt, (i, ct) in enumerate(order):
            c = '0' if (it == 0 and i == 0) else vr(ACC + 4 * ct, 4)
            G.now(lambda: b.wait(lg=max(rtok[(it, 'f', i)], rtok[(it, 'v', ct - i)])), 1)
            G.mfma(f"v_mfma_f32_16x16x32_bf16 {vr(ACC + 4 * ct, 4)}, {ar(par * 16 + 4 * i, 4)}, {vr(VB + par * 32 + 4 * (ct - i), 4)}, {c}")
            if pend and cnt >= pend[0][0]:
                y_out(pend.pop(0)[1])
            G.fill()
            if it == 7 and i == min(ct, 3): pend.append((cnt + 4, ct))
        for x in ex:
            G.mfma("v_mfma_f32_16x16x32_bf16 %s, %s, %s, %s" % x)
            G.fill()
        if it == 7:
            poll(b, ld_quarter(FLP), cond_lines(24), tok['p1'])
            for _, ct in pend: y_out(ct)
        G.flush()
        if it < 7: b.wait(lg=b.li - 1)
    stamp(b, 'conv_end')
    b.e("s_mov_b32 s56, 0x3f80\ns_mov_b32 s57, 0x3f800000")
    b.wait_all(vm=False)
    stamp(b, 'y_written')
    b.e("s_barrier")
    stamp(b, 'y_bar')
    yt = []
    for q in range(4):
        b.lg(f"ds_read_b64_tr_b16 {vr(80 + 4 * q, 2)}, v9 offset:{512 * q}")
        yt.append(b.lg(f"ds_read_b64_tr_b16 {vr(82 + 4 * q, 2)}, v9 offset:{512 * q + 2048}"))
    def h_pack(q):
        for k in range(4):
            b.e(f"v_cvt_pk_bf16_f32 v{96 + 4 * q + k}, v{XF + 8 * q + 2 * k}, v{XF + 8 * q + 2 * k + 1}")
        t = b.vm(f"buffer_store_dwordx4 {vr(96 + 4 * q, 4)}, v{VX}, {WS}, s74 offen sc1")
        b.e("s_add_u32 s74, s74, 655360")
        return t
    for q in range(4):
        b.wait(lg=yt[q])
        for k in range(8):
            b.e(f"v_dot2_f32_bf16 v{XF + 8 * q + k}, v{80 + 4 * q + (k >> 1)}, s{56 + (k & 1)}, v{XF + 8 * q + k}")
        if q: h_pack(q - 1)
    hs = h_pack(3)
    stamp(b, 'h_stored')
    return None, hs

from ffn import ffn_map, preload, ffn

def build():
    _lab[0] = 0
    b = B()
    xtok, b3, pt = entry(b)
    b2 = b.fork()
    pack(b2)
    if OPT['stop'] in ('pack', 'conv'): (b2.e("s_add_u32 s2, s2, 160"), stamp_dump(b2), b2.e("s_endpgm"))
    b2.e(ffn_map(True))
    poll(b2, ld_quarter(FLP2), cond_lines(24))
    b2.e("s_barrier")
    if OPT.get('hw2t', 0):
        w2_touch(b2, False)
        b2.wait_all(lg=False)
    HW = OPT.get('hw2', 28)
    for m in range(HW): w2_load(b2, m)
    stamp(b2, 'w2_issued')
    poll(b2, ld_quarter(FLP), cond_lines(24), sleep=OPT.get('psl', 4))
    b2.e("s_barrier")
    stamp(b2, 'p1_seen')
    preload(b2, 0, 36)
    for m in range(HW, 40): w2_load(b2, m)
    if OPT.get('buddy', 1):
        sk = lab("bd")
        b2.e(f"s_cmp_lg_u32 s{sW}, 0\ns_cbranch_scc1 {sk}")
        poll(b2.fork(), ld_lines(f"s_lshl_b32 s55, s2, 7\ns_add_u32 s55, s55, {FLH}", 1), cond_lines(1), sleep=2)
        b2.e(f"{sk}:")
    b2.e("s_add_u32 s2, s2, 160\ns_branch L_g1")
    packtok, hs = conv(b3, xtok, pt)
    if OPT['stop'] in ('pack', 'conv'): (stamp_dump(b3), b3.e("s_endpgm"))
    b3.e("s_barrier")
    preload(b3, 0, OPT.get('pre1', 12))
    b3.wait(vm=hs)
    b3.e("s_barrier")
    arrive(b3, FLH, "s50")
    stamp(b3, 'h_arrive')
    preload(b3, OPT.get('pre1', 12), 36)
    for m in range(OPT.get('w2n', 40), 40): w2_load(b3, m)
    b3.e(f"s_add_u32 s{sSI}, s{sSI}, 3\nL_g1:")
    b4 = B(); b4.L = b.L; b4.vi = 100
    ffn(b4)
    b.e("L_exit:\ns_endpgm\nL_code_end:")
    lines, nn = hazard_pass(b.L, verbose=OPT.get('verbose', False))
    if OPT.get('align', 1):
        lines = align_pass([KN + ':'] + lines, nop_cost=OPT.get('nopc', 4.0))[0][1:]
    hdr = open(os.path.join(os.path.dirname(os.path.abspath(__file__)), "header.txt")).read()
    out = hdr + (f"; stamps: {','.join(OPT['stamps'])}\n" if OPT['stamps'] else "") + "; @launch grid=(256,1,1) block=(256,1,1) lds=163840\n"
    out += f'.amdgcn_target "amdgcn-amd-amdhsa--gfx950"\n.text\n.globl {KN}\n.p2align 8\n.type {KN},@function\n{KN}:\n'
    out += "\n".join(("" if l.endswith(":") else "    ") + l for l in lines)
    out += f"""
.section .rodata,"a"
.p2align 6
.amdhsa_kernel {KN}
  .amdhsa_next_free_vgpr 512
  .amdhsa_next_free_sgpr 102
  .amdhsa_accum_offset 256
  .amdhsa_group_segment_fixed_size 0
  .amdhsa_kernarg_size 128
  .amdhsa_user_sgpr_count 2
  .amdhsa_user_sgpr_kernarg_segment_ptr 1
  .amdhsa_system_sgpr_workgroup_id_x 1
.end_amdhsa_kernel
"""
    return out, nn, len(lines)

if __name__ == "__main__":
    import ffn as _f
    for a in sys.argv[2:]:
        k, v = a.split("=")
        OPT[k] = eval(v)
    out, nn, nl = build()
    open(sys.argv[1], "w").write(out)
    print(f"wrote {sys.argv[1]}: {nl} lines, {nn} hazard nops")
```

```python
import sys, os
from asmlib import B, hazard_pass, align_pass, Gaps
KN = "sequential_preLN__ssm_conv_s4__glu_gated_reglu__prompt_kernel"
OPT = dict(stamps=False, stop=None, spin=1000000)

ST1, ST2 = 0, 16384
EPOCH = 32768
FLP2, FLP, FLH, FLE, FLL, FLM = 0x1520000, 0x1524000, 0x1528000, 0x1530000, 0x1538000, 0x1540000
CSP = 0x1500000
STAMP = 0xC000
XT, HT, W1P, W2P, HP = 0x10000, 0x300000, 0x600000, 0xB00000, 0xE00000
WS_STAMP = 0x1600000
WS_SIZE = 0x1700000
JSTR = 286720
P_X, P_ARE, P_AIM, P_BRE, P_BIM, P_CRE, P_CIM, P_LDT, P_DSK, P_BX, P_WG, P_WU, P_WD, P_OUT, P_DBG, P_WS = [16 + 2 * k for k in range(16)]
sW, sXCD, sI, sJ, sRHO, sC = 48, 49, 51, 52, 53, 54
sSI = 77
SRC = "s[4:7]"; WS = "s[8:11]"; OUT = "s[12:15]"
def sp(r): return f"s[{r}:{r+1}]"
def vr(r, n): return f"v[{r}:{r+n-1}]" if n > 1 else f"v{r}"
def ar(r, n): return f"a[{r}:{r+n-1}]" if n > 1 else f"a{r}"
RSTR = 33856
_lab = [0]
def lab(p):
    _lab[0] += 1; return f"L_{p}{_lab[0]}"

def stamp(b, name):
    if OPT.get('jitter') and name != 'top':
        l = lab("jt"); _lab[0] += 1
        b.e(f"""s_memtime s[98:99]
            s_waitcnt lgkmcnt(0)
            s_lshr_b32 s98, s98, 2
            s_mul_i32 s98, s98, 0x9e3779b1
            s_lshr_b32 s99, s98, 28
            s_bfe_u32 s98, s98, 0x30010
            s_cmp_eq_u32 s98, 0
            s_cselect_b32 s99, s99, 0
            s_mul_i32 s99, s99, {OPT['jitter']}
            {l}:
            s_cmp_eq_u32 s99, 0
            s_cbranch_scc1 {l}_e
            s_sleep 1
            s_sub_u32 s99, s99, 1
            s_branch {l}
            {l}_e:""")
        b.ld = b.li
    st = OPT['stamps']
    if not st or name not in st: return
    r = 78 + 2 * st.index(name)
    b.sm(f"{'s_memtime' if OPT.get('cyc') else 's_memrealtime'} s[{r}:{r+1}]")
def stamp_init(b):
    if OPT['stamps']:
        for r in range(78, 102, 2): b.e(f"s_mov_b64 s[{r}:{r+1}], 0")
def stamp_dump(b):
    if not OPT['stamps']: return
    if OPT.get('amplify'):
        sk = lab("am"); lo = lab("al")
        b.e(f"""s_waitcnt lgkmcnt(0)
            s_cmp_lg_u32 s2, 100
            s_cbranch_scc1 {sk}
            s_sub_u32 s56, s80, s78
            s_mul_i32 s56, s56, 10
            s_min_u32 s56, s56, 100000
            s_memrealtime s[58:59]
            s_waitcnt lgkmcnt(0)
            {lo}:
            s_memrealtime s[60:61]
            s_waitcnt lgkmcnt(0)
            s_sub_u32 s57, s60, s58
            s_cmp_lt_u32 s57, s56
            s_cbranch_scc1 {lo}
            {sk}:""")
        return
    if OPT.get('dbgdump'):
        sk = lab("dd")
        b.e(f"s_waitcnt lgkmcnt(0)\ns_cmp_lg_u32 s{sW}, 0\ns_cbranch_scc1 {sk}\ns_mov_b64 exec, 1\nv_mov_b32 v30, 0\ns_not_b32 s78, s78")
        for k in range(12):
            b.e(f"v_mov_b32 v31, s{78 + 2 * k}\nglobal_atomic_umax v30, v31, {sp(P_DBG)} offset:{4 * k + 4} sc1")
        b.e(f"{sk}:")
        return
    b.e(f"s_waitcnt lgkmcnt(0)\ns_lshl_b32 s3, s2, 2\ns_add_u32 s3, s3, s{sW}\ns_lshl_b32 s3, s3, 7\ns_add_u32 s3, s3, {WS_STAMP}\nv_mov_b32 v30, 0")
    for k in range(12):
        b.e(f"v_mov_b32 v31, s{78 + 2 * k}\nbuffer_store_dword v31, v30, {WS}, s3 offen offset:{4 * k}")

def poll(b, load, cond, tok=None, sleep=0):
    if tok is None: tok = load(b)
    b.wait(vm=tok)
    lo, ok = lab("poll"), lab("ok")
    b.e(cond)
    b.e(f"s_cbranch_vccz {ok}\ns_mov_b32 s3, 0\n{lo}:")
    if sleep or OPT.get('backoff', 0): b.e(f"s_sleep {sleep or OPT['backoff']}")
    f = b.fork(); load(f); f.wait_all(lg=False)
    b.e(cond)
    b.e(f"s_add_u32 s3, s3, 1\ns_cmp_gt_u32 s3, {OPT['spin']}\ns_cbranch_scc1 {ok}\ns_cbranch_vccnz {lo}\n{ok}:")

def ld_ready(b, every=False):
    b.e("v_mov_b32 v26, 0" if every else f"s_lshl_b32 s55, s{sW}, 8\nv_mov_b32 v26, s55")
    return b.vm(f"buffer_load_dwordx4 v[28:31], v26, {OUT}, 0 offen sc1")
COND_READY = "v_xor_b32 v26, v28, v30\nv_xor_b32 v27, v29, v31\nv_and_b32 v26, v26, v27\nv_cmp_ne_u32 vcc, -1, v26"

def code_prefetch(b, stage):
    if stage == 1:
        _lab[0] += 1
        b.e(f"""s_getpc_b64 s[76:77]
            L_pc{_lab[0]}:
            s_sub_u32 s76, s76, L_pc{_lab[0]}-{KN}
            s_subb_u32 s77, s77, 0
            s_lshr_b32 s55, s2, 3
            s_lshl_b32 s55, s55, 2
            s_add_u32 s55, s55, s{sW}
            s_and_b32 s55, s55, 31""")
    lo, hi = (KN, "L_stage2") if stage == 1 else ("L_stage2", "L_code_end")
    if OPT.get('cpf1', 1):
        if stage == 2: return
        hi = "L_code_end"
    nl = f"((({hi}-{lo})+4095)/4096)"
    b.e(f"""s_mul_i32 s3, s55, {nl}*128
        s_add_u32 s3, s3, {lo}-{KN}
        v_min_u32 v26, {nl}-1, v1
        v_lshl_add_u32 v26, v26, 7, s3
        s_mov_b32 s3, L_code_end-{KN}-4
        v_min_u32 v26, s3, v26""")
    b.vm(f"global_load_dword a{253 + stage}, v26, s[76:77]")

def mk_srd(b, r, ptr, size):
    b.e(f"s_mov_b32 s{r}, s{ptr}\ns_mov_b32 s{r+1}, s{ptr+1}\ns_mov_b32 s{r+2}, {size}\ns_mov_b32 s{r+3}, 0x20000")

LNB = 143104
LNS = LNB - 128
OOB = 0x40000000
def x_dma(c, late=False):
    so = "s59" if late else "s57"
    if late: c.e(f"v_lshl_add_u32 v26, v1, 4, s60\ns_mul_i32 s59, s50, 20480\ns_mul_i32 s3, s{sW}, 5120\ns_add_u32 s59, s59, s3")
    for p in range(2):
        if p: c.e(f"s_add_u32 m0, s58, 2592\ns_addk_i32 {so}, 2560")
        for k in range(3):
            if k == 2: c.e("s_mov_b32 exec_hi, 0")
            t = c.vm(f"buffer_load_dwordx4 {'v26' if late else 'v2'}, {SRC}, {so} offen offset:{k * 1024} nt lds")
        c.e("s_mov_b32 exec_hi, -1")
    return t
def entry(b):
    stamp_init(b)
    stamp(b, 'top')
    EV = OPT.get('ev', 0)
    ids = f"""v_lshrrev_b32 v2, 6, v0
        v_and_b32 v1, 63, v0
        v_readfirstlane_b32 s{sW}, v2
        s_and_b32 s{sXCD}, s2, 7"""
    consts = f"""s_mov_b32 s7, 0x20000
        s_mov_b32 s10, {WS_SIZE}
        s_mov_b32 s11, 0x20000
        s_movk_i32 s14, 128
        s_mov_b32 s15, 0x20000"""
    srd = f"""s_mov_b32 s4, s{P_X}
        s_mov_b32 s5, s{P_X + 1}
        s_mov_b32 s8, s{P_WS}
        s_mov_b32 s9, s{P_WS + 1}
        s_mov_b32 s12, s{P_DBG}
        s_mov_b32 s13, s{P_DBG + 1}"""
    xprep = f"""s_mov_b32 s50, s2
        s_cmp_lt_u32 s50, 128
        s_cselect_b32 s60, 0, {OOB}
        v_lshl_add_u32 v2, v1, 4, s60
        s_mul_i32 s57, s50, 20480
        s_mul_i32 s58, s{sW}, 5120
        s_add_u32 s57, s57, s58
        s_mul_i32 s58, s{sW}, 5184
        s_add_u32 s58, s58, {LNB}
        s_mov_b32 m0, s58
        s_mov_b32 s6, 2621440
        s_lshl_b32 s59, s50, 3"""
    b.e(f"""s_load_dwordx16 s[16:31], s[0:1], 0
        s_load_dwordx16 s[32:47], s[0:1], 64
        s_lshl_b32 s61, s2, 10
        v_lshl_add_u32 v3, v0, 2, s61
        s_cmp_ge_u32 s2, 160
        s_cbranch_scc1 L_help""")
    c = b.fork()
    if EV == 0: c.e(ids); code_prefetch(c, 1); c.e(xprep + "\n" + consts)
    if EV == 2: c.e(ids + "\n" + xprep + "\n" + consts)
    c.e("s_waitcnt lgkmcnt(0)")
    pt = []
    for k, p in enumerate((P_ARE, P_AIM, P_BRE, P_BIM, P_CRE, P_CIM)):
        pt.append(c.vm(f"global_load_dword v{4 + k}, v3, {sp(p)} nt"))
    if EV == 1: c.e(ids + "\n" + xprep + "\n" + consts)
    c.e(srd)
    t = x_dma(c)
    stamp(c, 'start')
    c.sm(f"s_load_dwordx2 s[62:63], {sp(P_LDT)}, s59\ns_load_dwordx2 s[64:65], {sp(P_DSK)}, s59")
    c.e("s_branch L_conv")
    b.e(f"L_help:\ns_cmp_ge_u32 s2, 256\ns_cbranch_scc1 L_exit\n{ids}")
    code_prefetch(b, 1)
    b.e(consts + "\ns_waitcnt lgkmcnt(0)")
    b.e(f"""{srd}
        s_sub_u32 s2, s2, 160
        s_cmp_lg_u32 s2, 0
        s_cbranch_scc1 L_noinit
        s_cmp_lg_u32 s{sW}, 3
        s_cbranch_scc1 L_noinit
        v_mov_b32 v4, 0
        s_mov_b32 s56, {EPOCH}
        buffer_load_dwordx2 v[8:9], v4, {WS}, s56 offen sc1
        v_lshlrev_b32 v10, 4, v1
        s_waitcnt vmcnt(0)
        v_add_co_u32 v12, vcc, 1, v8
        v_addc_co_u32 v13, vcc, 0, v9, vcc
        v_not_b32 v14, v12
        v_not_b32 v15, v13
        buffer_store_dwordx4 v[12:15], v10, {OUT}, 0 offen sc1
        s_mov_b64 exec, 1
        buffer_store_dwordx2 v[12:13], v4, {WS}, s56 offen sc1
        s_mov_b64 exec, -1
        L_noinit:""")
    return t, c, pt

def ln1_addr(b):
    b.e(f"""v_and_b32 v2, 7, v1
        v_lshrrev_b32 v3, 3, v1
        v_mul_u32_u24 v240, 2592, v2
        v_lshl_add_u32 v240, v3, 3, v240
        s_lshl_b32 s3, s{sW}, 6
        s_add_u32 s3, s3, {LNB}
        v_add_u32 v240, s3, v240
        v_lshlrev_b32 v241, 8, v3
        v_lshl_add_u32 v241, v2, 4, v241
        s_lshl_b32 s3, s{sW}, 11
        s_add_u32 s3, s3, s60
        v_add_u32 v241, s3, v241
        v_lshrrev_b32 v2, 5, v1
        v_bfe_u32 v3, v1, 4, 1
        v_mul_u32_u24 v242, 2592, v2
        v_mul_u32_u24 v3, 1280, v3
        v_and_b32 v2, 15, v1
        v_lshl_add_u32 v242, v2, 4, v242
        v_add3_u32 v242, v242, v3, s58
        s_lshl_b32 s3, s{sW}, 4
        s_add_u32 s3, s3, {LNS}
        v_lshrrev_b32 v2, 4, v1
        v_lshl_add_u32 v243, v2, 2, s3
        s_lshr_b32 s57, s50, 1
        s_mul_i32 s57, s57, 40960
        s_and_b32 s3, s50, 1
        s_lshl_b32 s3, s3, 7
        s_add_u32 s57, s57, s3
        s_add_u32 s57, s57, {XT}""")

def ln1_a(b, xtok, R, out):
    A0 = R + 40
    tk = []; st = []; C = []
    def c0():
        b.e("s_mov_b32 s56, 0x3f803f80")
        b.wait(vm=xtok)
        b.e("s_barrier")
        stamp(b, 'ln_x')
        for k in range(5):
            b.lg(f"ds_read_b64 {vr(R + 4 * k, 2)}, v240 offset:{256 * k}")
            tk.append(b.lg(f"ds_read_b64 {vr(R + 4 * k + 2, 2)}, v240 offset:{256 * k + 1280}"))
    C.append(c0)
    def stores(ks):
        def f():
            for k in ks:
                b.wait(lg=tk[k])
                out['last'] = b.vm(f"buffer_store_dwordx4 {vr(R + 4 * k, 4)}, v241, {WS}, s57 offen sc1")
                b.e("s_addk_i32 s57, 8192")
                st.append(b.lg(f"ds_read_b128 {vr(R + 20 + 4 * k, 4)}, v242 offset:{256 * k}"))
            if 4 in ks: ld_ready(b)
        return f
    C += [stores([0, 1]), stores([2, 3]), stores([4])]
    def dots(g):
        def f():
            b.wait(lg=st[g])
            for k in range(4 * g, 4 * g + 4):
                r = R + 20 + k
                b.e(f"v_dot2_f32_bf16 v{A0 + (k & 1)}, v{r}, s56, {'0' if k < 2 else f'v{A0 + (k & 1)}'}")
                b.e(f"v_dot2_f32_bf16 v{A0 + 2 + (k & 1)}, v{r}, v{r}, {'0' if k < 2 else f'v{A0 + 2 + (k & 1)}'}")
        return f
    C += [dots(g) for g in range(5)]
    C.append(lambda: b.e(f"v_add_f32 v{A0}, v{A0}, v{A0 + 1}\nv_add_f32 v{A0 + 2}, v{A0 + 2}, v{A0 + 3}"))
    for m in ("quad_perm:[1,0,3,2]", "quad_perm:[2,3,0,1]", "row_half_mirror", "row_mirror"):
        C.append(lambda m=m: b.e(f"v_add_f32_dpp v{A0}, v{A0}, v{A0} {m} row_mask:0xf bank_mask:0xf\nv_add_f32_dpp v{A0 + 2}, v{A0 + 2}, v{A0 + 2} {m} row_mask:0xf bank_mask:0xf"))
    def fin():
        stats_finish(b, A0, A0 + 2, A0 + 1)
        b.e("s_mov_b32 exec_lo, 0x10001\ns_mov_b32 exec_hi, 0x10001")
        b.lg(f"ds_write_b32 v243, v{A0 + 1}")
        b.e("s_mov_b64 exec, -1")
        stamp(b, 'ln_a')
    C.append(fin)
    return C

def ln1_b(b, last):
    last = last + 1
    sk0 = lab("l0")
    b.wait(vm=last, lg=b.li - 1)
    stamp(b, 'ln_drain')
    b.e(f"s_cmp_lg_u32 s{sW}, 0\ns_cbranch_scc1 {sk0}")
    f = b.fork()
    poll(f, ld_ready, COND_READY, last)
    f.e(f"v_mov_b32 v2, {LNS + 64}\nds_write_b64 v2, v[28:29]\ns_waitcnt lgkmcnt(0)")
    b.e(f"{sk0}:\ns_barrier")
    b.e(f"""v_mov_b32 v2, {LNS + 64}
        v_and_b32 v26, 7, v1
        v_lshlrev_b32 v26, 3, v26
        v_add_u32 v26, {LNS}, v26""")
    b.lg("ds_read_b64 v[28:29], v2")
    t = b.lg("ds_read_b64 v[2:3], v26")
    b.e(f"""s_lshl_b32 s3, s{sW}, 30
        s_or_b32 s3, s3, s60
        v_lshl_add_u32 v27, v1, 4, s3
        s_lshl_b32 s56, s50, 7""")
    b.wait(lg=t)
    b.e(f"""v_readfirstlane_b32 s0, v28
        v_readfirstlane_b32 s1, v29
        v_mov_b32 v31, v29
        v_mov_b32 v29, v28
        v_mov_b32 v28, v2
        v_mov_b32 v30, v3
        s_mov_b64 exec, 0xff""")
    b.vm(f"buffer_store_dwordx4 v[28:31], v27, {WS}, s56 offen sc1")
    b.e("s_mov_b64 exec, -1")
    stamp(b, 'ln_done')

def w_prefetch(b):
    b.e(f"""s_lshr_b32 s3, s50, 3
        s_lshl_b32 s3, s3, 2
        s_add_u32 s3, s3, s{sW}
        s_min_u32 s3, s3, 71
        s_lshl_b32 s3, s3, 6
        v_add_u32 v16, s3, v1
        v_mul_u32_u24 v17, 683, v16
        v_lshrrev_b32 v17, 16, v17
        v_mul_u32_u24 v18, 96, v17
        v_sub_u32 v16, v16, v18
        v_lshrrev_b32 v18, 2, v17
        v_and_b32 v17, 3, v17
        v_lshl_add_u32 v17, v18, 5, v17
        s_lshl_b32 s3, s{sXCD}, 2
        v_add_u32 v17, s3, v17
        v_min_u32 v17, 377, v17
        v_mul_u32_u24 v18, 9363, v17
        v_lshrrev_b32 v18, 16, v18
        v_mul_u32_u24 v19, 7, v18
        v_sub_u32 v17, v17, v19
        v_mad_u32_u24 v16, v17, 48, v16
        v_mad_u32_u24 v16, v17, 48, v16
        v_min_u32 v16, 639, v16
        v_mul_u32_u24 v16, 3456, v16
        v_lshrrev_b32 v19, 1, v18
        v_lshl_add_u32 v16, v19, 7, v16
        v_and_b32 v18, 1, v18
        v_cmp_eq_u32 vcc, 0, v18
        v_mov_b32 v18, s{P_WU}
        v_mov_b32 v19, s{P_WG}
        v_cndmask_b32 v18, v18, v19, vcc
        v_mov_b32 v17, s{P_WU + 1}
        v_mov_b32 v19, s{P_WG + 1}
        v_cndmask_b32 v19, v17, v19, vcc
        v_add_co_u32 v18, vcc, v18, v16
        v_addc_co_u32 v19, vcc, 0, v19, vcc""")
    b.vm("global_load_dword a251, v[18:19], off nt")

def stats_finish(b, vs, vq, vo):
    b.e(f"""s_mov_b32 s3, 0x3acccccd
        v_mul_f32 v{vs}, s3, v{vs}
        v_mul_f32 v{vq}, s3, v{vq}
        v_fma_f32 v{vq}, -v{vs}, v{vs}, v{vq}
        v_max_f32 v{vq}, 0, v{vq}
        v_cvt_pk_bf16_f32 v{vq}, v{vq}, v{vq}
        v_lshlrev_b32 v{vq}, 16, v{vq}
        v_add_f32 v{vq}, 0x3727c5ac, v{vq}
        v_cvt_pk_bf16_f32 v{vq}, v{vq}, v{vq}
        v_lshlrev_b32 v{vq}, 16, v{vq}
        v_sqrt_f32 v{vq}, v{vq}
        v_cvt_pk_bf16_f32 v{vo}, v{vs}, v{vq}""")

def pack(b):
    mk_srd(b, 4, P_WD, 2211840)
    b.e(f"""s_mul_i32 s50, s{sW}, 20480
        s_mul_i32 s56, s2, 3
        s_add_u32 s56, s56, s{sW}
        s_cmp_lt_u32 s{sW}, 3
        s_cselect_b32 s56, s56, 999
        s_cmp_lt_u32 s56, 270
        s_cselect_b32 s76, 0, {OOB}
        s_cmp_lt_u32 s56, 280
        s_cselect_b32 s66, 0, {OOB}
        s_cselect_b32 s56, s56, 0
        s_mul_i32 s60, s56, 13108
        s_lshr_b32 s60, s60, 16
        s_mul_i32 s59, s60, 5
        s_sub_u32 s59, s56, s59
        s_cmp_ge_u32 s60, 31
        s_cbranch_scc1 L_w2late
        s_lshr_b32 s61, s60, 1
        s_mul_i32 s61, s61, 112
        s_and_b32 s62, s60, 1
        s_lshl_b32 s62, s62, 5
        s_add_u32 s61, s61, s62
        s_add_u32 s62, s61, 16
        s_and_b32 s63, s60, 3
        s_lshr_b32 s64, s60, 2
        s_branch L_w2go
        L_w2late:
        s_sub_u32 s60, s60, 31
        s_mul_i32 s61, s60, 112
        s_add_u32 s61, s61, 64
        s_add_u32 s62, s61, 16
        s_sub_u32 s70, s60, 15
        s_mul_i32 s64, s70, 224
        s_add_u32 s64, s64, 96
        s_add_u32 s65, s64, 112
        s_min_u32 s65, s65, 1712
        s_bitcmp1_b32 s70, 0
        s_cselect_b32 s71, s65, s64
        s_cselect_b32 s65, s64, s65
        s_add_u32 s70, s70, 16
        s_cmp_lt_u32 s60, 15
        s_cselect_b32 s61, s61, s71
        s_cselect_b32 s62, s62, s65
        s_cselect_b32 s70, s60, s70
        s_and_b32 s63, s70, 3
        s_lshr_b32 s64, s70, 2
        s_add_u32 s64, s64, 8
        s_cmp_eq_u32 s60, 23
        s_cselect_b32 s63, 3, s63
        s_cselect_b32 s64, 11, s64
        s_cmp_eq_u32 s60, 24
        s_cselect_b32 s63, 3, s63
        s_cselect_b32 s64, 7, s64
        L_w2go:
        v_lshrrev_b32 v4, 4, v1
        v_and_b32 v5, 15, v1
        v_lshlrev_b32 v6, 1, v4
        v_xor_b32 v6, v6, v5
        v_mul_u32_u24 v7, 1280, v4
        v_lshl_add_u32 v24, v6, 4, v7
        v_add_u32 v24, s76, v24
        v_xor_b32 v25, 0x80, v24
        s_lshl_b32 s65, s59, 8
        s_mul_i32 s61, s61, 1280
        s_mul_i32 s62, s62, 1280
        s_add_u32 s61, s61, s65
        s_add_u32 s62, s62, s65""")
    def a_dma():
        for m in range(8):
            b.e(f"s_add_u32 m0, s50, {m * 1024}" + (f"\ns_addk_i32 s{61 + (m >> 2)}, 5120" if m & 3 else ""))
            ta = b.vm(f"buffer_load_dwordx4 v{24 + (m & 1)}, {SRC}, s{61 + (m >> 2)} offen nt lds")
        return ta
    if not OPT.get('alate'): ta = a_dma()
    else: b.e('s_mov_b32 s54, s61\ns_mov_b32 s53, s62\ns_mov_b32 s52, s4\ns_mov_b32 s51, s5')
    b.e(f"""s_lshl_b32 s56, s2, 2
        s_add_u32 s56, s56, s{sW}
        s_cmp_lt_u32 s56, 378
        s_cselect_b32 s67, 0, {OOB}
        s_cselect_b32 s56, s56, 0
        s_mul_i32 s60, s56, 9363
        s_lshr_b32 s60, s60, 16
        s_mul_i32 s68, s60, 7
        s_sub_u32 s68, s56, s68
        s_and_b32 s69, s60, 1
        s_lshr_b32 s60, s60, 1
        s_cmp_eq_u32 s69, 0
        s_cselect_b32 s4, s{P_WG}, s{P_WU}
        s_cselect_b32 s5, s{P_WG+1}, s{P_WU+1}
        v_lshrrev_b32 v6, 3, v1
        v_and_b32 v7, 7, v1
        v_bfe_u32 v8, v1, 4, 1
        v_lshlrev_b32 v8, 1, v8
        v_xor_b32 v7, v7, v8
        v_mul_u32_u24 v6, 3456, v6
        v_lshl_add_u32 v12, v7, 4, v6
        v_add_u32 v12, s67, v12
        v_xor_b32 v13, 0x40, v12
        s_cmp_eq_u32 s68, 6
        s_cselect_b32 s56, {OOB}, 0
        v_or_b32 v14, s56, v12
        v_or_b32 v15, s56, v13
        s_mul_i32 s61, s68, {96 * 3456}
        s_lshl_b32 s62, s60, 7
        s_add_u32 s61, s61, s62""")
    tb = []
    def bdma(m):
        b.e(f"s_add_u32 m0, s50, {8192 + m * 1024}" + ("\ns_addk_i32 s61, 27648" if m else "\ns_nop 0"))
        tb.append(b.vm(f"buffer_load_dwordx4 v{(14 if m >= 8 else 12) + (m & 1)}, {SRC}, s61 offen nt lds"))
    NB1 = OPT.get('nb1', 0)
    for m in range(NB1): bdma(m)
    b.e("""s_mul_i32 s63, s63, 14
        s_lshl_b32 s56, s59, 3
        s_mul_i32 s57, s56, 205
        s_lshr_b32 s57, s57, 10
        s_mul_i32 s62, s57, 5
        s_sub_u32 s56, s56, s62
        s_cmp_lt_u32 s64, 12
        s_cselect_b32 s77, 3, 1
        s_cmp_lt_u32 s64, 8
        s_cselect_b32 s77, 7, s77""")
    for i3 in range(3):
        b.e(f"""s_mul_i32 s62, s57, {OPT.get('hrot', 1)}
            s_sub_u32 s70, s64, s62
            s_and_b32 s70, s70, s77
            s_andn2_b32 s71, s64, s77
            s_or_b32 s70, s70, s71
            s_mul_i32 s71, s57, 56
            s_add_u32 s71, s71, s63
            s_add_u32 s71, s71, s70
            s_mul_i32 s71, s71, 5
            s_add_u32 s71, s71, s56
            s_lshl_b32 s71, s71, 10
            s_add_u32 s{73 + i3}, s71, {W2P - 5 * i3 * 1024}
            s_add_u32 s57, s57, 1""")
    for t in range(8):
        b.e(f"""s_cmp_ge_u32 s56, {max(5 - t, 0)}
            s_cselect_b32 s71, s74, s73
            s_cmp_ge_u32 s56, {10 - t}
            s_cselect_b32 s71, s75, s71
            s_add_u32 s{16 + t}, s71, {t * 1024}""")
    b.e(f"""v_bfe_u32 v6, v1, 2, 2
        v_and_b32 v11, 1, v4
        v_lshl_add_u32 v11, v11, 2, v6
        v_lshlrev_b32 v11, 5, v11
        v_lshl_add_u32 v11, v6, 8, v11
        v_lshl_add_u32 v11, v4, 10, v11
        v_and_b32 v6, 3, v1
        v_lshl_add_u32 v11, v6, 3, v11
        v_add_u32 v11, s50, v11
        v_lshlrev_b32 v9, 4, v1
        v_add_u32 v10, s66, v9
        """)
    if OPT.get('alate'):
        b.e('s_mov_b32 s70, s61\ns_mov_b32 s71, s4\ns_mov_b32 s72, s5\ns_mov_b32 s61, s54\ns_mov_b32 s62, s53\ns_mov_b32 s4, s52\ns_mov_b32 s5, s51')
        ta = a_dma()
        b.e('s_mov_b32 s61, s70\ns_mov_b32 s4, s71\ns_mov_b32 s5, s72')
    b.wait(vm=ta)
    stamp(b, 'pkA_loaded')
    tk = []
    for t in range(8):
        b.e(f"v_xor_b32 v{98 + t}, {t << 5}, v11")
        b.lg(f"ds_read_b64_tr_b16 {vr(64 + 4 * t, 2)}, v{98 + t}")
        tk.append(b.lg(f"ds_read_b64_tr_b16 {vr(66 + 4 * t, 2)}, v{98 + t} offset:4096"))
    for t in range(8):
        b.wait(lg=tk[t])
        sa = b.vm(f"buffer_store_dwordx4 {vr(64 + 4 * t, 4)}, v10, {WS}, s{16 + t} offen sc1")
    rt = ld_ready(b, True)
    NB2 = OPT.get('nb2', 6)
    for m in range(NB1, NB2): bdma(m)
    for t in range(4):
        T, J, TA, BS, STR = 62, 63, 64, 24 + 2 * t, 25 + 2 * t
        b.e(f"""s_lshl_b32 s{T}, s60, 2
            s_add_u32 s{T}, s{T}, {t}
            s_mul_i32 s{J}, s{T}, 9363
            s_lshr_b32 s{J}, s{J}, 16
            s_mul_i32 s{TA}, s{J}, 7
            s_sub_u32 s{TA}, s{T}, s{TA}
            s_cmp_eq_u32 s{J}, 15
            s_cselect_b32 s65, 2, 4
            s_cselect_b32 s56, 2, 6
            s_mul_i32 s57, s65, 40
            s_mul_i32 s3, s56, 40
            s_cmp_eq_u32 s{TA}, s56
            s_cselect_b32 s{STR}, 1, 2
            s_cselect_b32 s57, s3, s57
            s_cselect_b32 s56, s56, s65
            s_cmp_lt_u32 s{TA}, s65
            s_cselect_b32 s{STR}, s65, s{STR}
            s_cselect_b32 s57, 0, s57
            s_cselect_b32 s56, 0, s56
            s_sub_u32 s{TA}, s{TA}, s56
            s_lshl_b32 s{TA}, s{TA}, 1
            s_add_u32 s{TA}, s{TA}, s69
            s_add_u32 s{TA}, s{TA}, s57
            s_lshl_b32 s{STR}, s{STR}, 11
            s_lshl_b32 s{TA}, s{TA}, 10
            s_and_b32 s56, s{J}, 3
            s_mul_i32 s56, s56, {5 if OPT.get('krot', 0) else 0}
            s_and_b32 s56, s56, -2
            s_mul_i32 s57, s68, 3
            s_add_u32 s57, s57, 20
            s_sub_u32 s{70 + t}, s57, s56
            s_mul_i32 s{J}, s{J}, {JSTR}
            s_add_u32 s{BS}, s{J}, s{TA}
            s_add_u32 s{BS}, s{BS}, {W1P}""")
    b.e(f"""v_bfe_u32 v6, v1, 2, 2
        v_bfe_u32 v7, v1, 3, 1
        v_and_b32 v8, 1, v4
        v_lshl_add_u32 v7, v8, 1, v7
        v_lshlrev_b32 v7, 5, v7
        v_lshl_add_u32 v7, v6, 7, v7
        v_lshl_add_u32 v7, v4, 10, v7
        v_and_b32 v6, 3, v1
        v_lshl_add_u32 v7, v6, 3, v7
        s_add_u32 s56, s50, 8192
        v_add_u32 v56, s56, v7
        v_xor_b32 v57, 32, v56
        v_xor_b32 v58, 64, v56
        v_xor_b32 v59, 0x60, v56
        v_add_u32 v96, s67, v9
        s_cmp_eq_u32 s68, 6
        s_cselect_b32 s56, {OOB}, s67
        v_add_u32 v97, s56, v9
        s_mov_b32 s3, 0x3f803f80
        v_mov_b32 v60, s3
        v_mov_b32 v61, s3
        v_mov_b32 v62, s3
        v_mov_b32 v63, s3""")
    poll(b, lambda bb: ld_ready(bb, True), COND_READY, rt)
    b.e("v_readfirstlane_b32 s0, v28\nv_readfirstlane_b32 s1, v29")
    b.e("s_barrier")
    arrive(b, FLP2, "s2")
    stamp(b, 'pkA_done')
    for m in range(NB2, 12): bdma(m)
    for k in range(3):
        b.wait(vm=tb[4 * k + 3])
        if k == 2: stamp(b, 'pk_loaded')
        tk = []
        for t in range(4):
            r = 128 + (k * 4 + t) * 4
            b.lg(f"ds_read_b64_tr_b16 {vr(r, 2)}, v{56 + t} offset:{k * 4096}")
            tk.append(b.lg(f"ds_read_b64_tr_b16 {vr(r + 2, 2)}, v{56 + t} offset:{k * 4096 + 512}"))
        for t in range(4):
            r = 128 + (k * 4 + t) * 4
            b.e(f"""s_add_u32 s56, s{70 + t}, {k}
                s_sub_u32 s57, s56, 20
                s_cmp_ge_u32 s56, 20
                s_cselect_b32 s56, s57, s56
                s_sub_u32 s57, s56, 20
                s_cmp_ge_u32 s56, 20
                s_cselect_b32 s56, s57, s56
                s_mul_i32 s56, s56, s{25 + 2 * t}
                s_add_u32 s57, s56, s{24 + 2 * t}""")
            b.wait(lg=tk[t])
            b.vm(f"buffer_store_dwordx4 {vr(r, 4)}, v{97 if k == 2 else 96}, {WS}, s57 offen sc1")
            b.e(f"v_mfma_f32_16x16x32_bf16 {vr(112 + 4 * t, 4)}, {vr(r, 4)}, v[60:63], {'0' if k == 0 else vr(112 + 4 * t, 4)}")
    b.e(f"""v_and_b32 v3, 3, v1
        v_cmp_eq_u32 s[62:63], 1, v3
        v_cmp_eq_u32 s[64:65], 2, v3
        v_cmp_eq_u32 vcc, 3, v3
        v_lshlrev_b32 v2, 4, v4
        v_lshl_add_u32 v2, v3, 6, v2
        v_add_u32 v2, s67, v2
        s_lshl_b32 s56, s68, 1
        s_add_u32 s56, s56, s69
        s_mul_i32 s56, s56, 7168
        s_lshl_b32 s57, s60, 8
        s_add_u32 s56, s56, s57
        s_add_u32 s56, s56, {CSP}""")
    for q in range(4):
        b.e(f"v_cndmask_b32 v{112 + q}, v{112 + q}, v{116 + q}, s[62:63]\nv_cndmask_b32 v{112 + q}, v{112 + q}, v{120 + q}, s[64:65]\nv_cndmask_b32 v{112 + q}, v{112 + q}, v{124 + q}, vcc")
    b.e("s_mov_b32 exec_lo, 0xf000f\ns_mov_b32 exec_hi, 0xf000f")
    b.vm(f"buffer_store_dwordx4 v[112:115], v2, {WS}, s56 offen sc1")
    b.e("s_mov_b64 exec, -1")
    stamp(b, 'pk_stored')
    b.wait_all()
    b.e("s_barrier")
    arrive(b, FLP, "s2")
    stamp(b, 'pack_done')

def arrive(b, base, idx, T='s3'):
    b.e(f"""s_lshl_b32 {T}, {idx}, 7
        s_add_u32 {T}, {T}, {base}
        s_lshl_b32 s55, s{sW}, 30
        v_lshl_add_u32 v26, v1, 3, s55
        v_mov_b32 v28, s0
        v_mov_b32 v29, s1
        s_mov_b64 exec, 0xffff""")
    t = b.vm(f"buffer_store_dwordx2 v[28:29], v26, {WS}, {T} offen sc1")
    b.e("s_mov_b64 exec, -1")
    return t

def ld_lines(base, n, R=28):
    def f(b):
        b.e(f"s_mov_b32 s55, {base}" if isinstance(base, int) else base)
        for k in range((n + 63) // 64):
            lim = n - 1 - 64 * k
            b.e((f"v_min_u32 v26, {lim}, v1\nv_lshlrev_b32 v26, 7, v26" if lim < 63 else "v_lshlrev_b32 v26, 7, v1") + (f"\nv_add_u32 v26, {8192 * k}, v26" if k else ""))
            t = b.vm(f"buffer_load_dwordx2 {vr(R + 2 * k, 2)}, v26, {WS}, s55 offen sc1")
        return t
    return f
def ld_quarter(base):
    return ld_lines(f"s_mul_i32 s55, s{sW}, {24 * 128}\ns_add_u32 s55, s55, {base}", 24)
def cond_lines(n, R=28):
    t = []
    for k in range((n + 63) // 64):
        t.append(f"v_xor_b32 v{R + 2 * k}, s0, v{R + 2 * k}\nv_xor_b32 v{R + 1 + 2 * k}, s1, v{R + 1 + 2 * k}")
        t.append(f"v_or3_b32 v26, v26, v{R + 2 * k}, v{R + 1 + 2 * k}" if k else f"v_or_b32 v26, v{R}, v{R + 1}")
    return "\n".join(t) + "\nv_cmp_ne_u32 vcc, 0, v26"

L2E, L2E_LO, LN2 = 0x3FB8AA3B, 0x32A57060, 0x3F317218
def cmul(b, o, x, w, t):
    b.e(f"v_pk_mul_f32 {vr(t,2)}, {vr(x,2)}, {vr(w,2)} op_sel_hi:[1,0]")
    b.e(f"v_pk_fma_f32 {vr(o,2)}, {vr(x,2)}, {vr(w,2)}, {vr(t,2)} op_sel:[1,1,0] op_sel_hi:[0,1,1] neg_lo:[0,1,0]")

CSTR, SPB, UB = 2368, 9472, 11008
def conv(b, xtok, pt):
    b.e("L_conv:")
    stamp(b, 'c_in')
    VX, VS, VU, SG, XR, RR, BND = 192, 193, 194, 196, 212, 228, 244
    RB = "s76"
    if OPT.get('wpf', 0) == 1: w_prefetch(b)
    ln1_addr(b)
    if OPT.get('xat', 0) == 1: xtok = x_dma(b, True)
    b.e(f"""s_mul_i32 {RB}, s{sW}, {RSTR}
        v_lshl_add_u32 v10, v1, 3, {RB}
        v_and_b32 v2, 31, v1
        v_lshrrev_b32 v3, 5, v1
        v_lshl_add_u32 v3, v3, 4, {RB}
        v_lshrrev_b32 v11, 3, v2
        v_lshlrev_b32 v11, 2, v11
        v_and_b32 v12, 3, v2
        v_add_u32 v11, v11, v12
        v_bfe_u32 v12, v2, 2, 1
        s_mov_b32 s72, 0x86444200
        s_mov_b32 s73, 0xfedcba88
        v_lshlrev_b32 v16, 2, v11
        v_lshrrev_b64 v[16:17], v16, s[72:73]
        v_and_b32 v16, 15, v16
        v_add_u32 v16, 16, v16
        v_cmp_eq_u32 vcc, 1, v12
        v_cndmask_b32 v11, v11, v16, vcc
        v_add_u32 v13, 32, v2
        s_movk_i32 s3, 528
        v_mad_u32_u24 v11, v11, s3, v3
        v_mad_u32_u24 v13, v13, s3, v3
        v_sub_u32 v2, 63, v1
        v_lshl_add_u32 v12, v2, 4, {RB}
        v_lshl_add_u32 v253, v1, 4, {RB}
        v_and_b32 v250, 15, v1
        v_lshrrev_b32 v251, 4, v1
        v_sub_u32 v16, 2, v250
        v_and_b32 v16, 3, v16
        v_add_u32 v17, v250, v16
        v_sub_u32 v17, 18, v17
        v_lshlrev_b32 v17, 1, v17
        v_mul_u32_u24 v16, {CSTR}, v16
        v_add3_u32 v17, v17, v16, {RB}
        v_lshl_add_u32 v236, v251, 4, v17
        v_lshlrev_b32 v17, 5, v250
        v_lshl_add_u32 v17, v251, 4, v17
        s_add_u32 s3, {RB}, {UB}
        v_add_u32 v237, s3, v17
        s_add_u32 s3, {RB}, {SPB + 126}
        v_subrev_u32 v16, 1, v1
        v_and_b32 v16, -2, v16
        v_and_b32 v17, 1, v1
        v_mul_u32_u24 v17, 768, v17
        v_sub_u32 v17, v17, v16
        v_add_u32 v254, s3, v17
        v_subrev_u32 v255, 64, v254
        v_cmp_eq_u32 s[70:71], 0, v1
        s_sub_u32 s3, s3, 126
        v_writelane_b32 v254, s3, 0
        s_add_u32 s3, s3, 64
        v_writelane_b32 v255, s3, 0
        s_mov_b32 s72, 0x01028403
        s_mov_b32 s73, 0x8500
        v_lshlrev_b32 v16, 3, v1
        v_lshrrev_b64 v[16:17], v16, s[72:73]
        v_and_b32 v16, 0xff, v16
        v_lshl_add_u32 v252, v16, 4, {RB}
        v_lshrrev_b32 v2, 4, v0
        v_mul_u32_u24 v2, 40960, v2
        v_lshl_add_u32 v{VX}, v250, 4, v2
        v_lshlrev_b32 v{VS}, 4, v0
        s_movk_i32 s72, 4096
        s_movk_i32 s73, 8192
        v_lshlrev_b32 v{VU}, 2, v0
        v_add_u32 v{VU}, {UB + 512}, v{VU}
        v_add_u32 v{VU + 1}, {2 * RSTR}, v{VU}
        s_lshl_b32 s74, s50, 8
        s_add_u32 s75, s74, {XT}
        s_add_u32 s74, s74, {HT}
        s_lshr_b32 s{sC}, s50, 5
        s_add_u32 s{sC}, s{sC}, 3
        s_mul_i32 s3, s{sC}, 56
        s_mul_i32 s61, s{sW}, 14
        s_add_u32 s3, s3, s61
        s_mul_i32 s3, s3, 5120
        s_add_u32 s61, s3, {W2P}""")
    band = [f"v_lshlrev_b32 v16, 3, v251\nv_sub_u32 v16, v250, v16", "v_add_u32 v18, 36, v16\ns_mov_b32 s72, 0x1ff", "s_mov_b32 s73, 0\nv_add_u32 v19, 37, v16",
            "v_lshlrev_b64 v[20:21], v18, s[72:73]", "s_mov_b32 s72, 0x7f", "v_lshlrev_b64 v[22:23], v19, s[72:73]\ns_movk_i32 s73, 0x3f80",
            "v_mov_b32 v14, v250\nv_mov_b32 v15, v251"]
    for cl in range(2):
        for k in range(4):
            d = BND + 4 * cl + k
            band += [f"v_bfe_u32 v{d}, v{21 + 2 * cl}, {2 * k}, 2\nv_lshl_or_b32 v{d}, v{d}, 15, v{d}", f"v_and_b32 v{d}, 0x10001, v{d}\nv_mul_u32_u24 v{d}, s73, v{d}"]
    late = [l.strip() for l in f"""v_sub_u32 v16, 3, v14
        v_and_b32 v16, 3, v16
        v_add_u32 v17, v14, v16
        v_sub_u32 v17, 15, v17
        v_lshl_add_u32 v17, v15, 2, v17
        v_lshlrev_b32 v17, 1, v17
        v_mul_u32_u24 v16, 192, v16
        s_add_u32 s72, {RB}, {SPB}
        v_add3_u32 v5, v17, v16, s72
        v_lshlrev_b32 v17, 4, v14
        v_lshl_add_u32 v17, v15, 2, v17
        v_add_u32 v8, {RB}, v17
        v_lshrrev_b32 v17, 2, v14
        v_mul_u32_u24 v17, {RSTR}, v17
        v_lshl_add_u32 v17, v15, 5, v17
        v_and_b32 v16, 3, v14
        v_lshl_add_u32 v17, v16, 3, v17
        s_lshl_b32 s72, s{sW}, 7
        v_add_u32 v9, s72, v17""".split("\n")]
    fmap = [l.strip() for l in ffn_map(False).split("\n")]
    fmap = [l for l in fmap[:fmap.index(f"s_mul_i32 s58, s{sC}, 56")] if l and not l.startswith("v_lshlrev_b32 v4")]
    stamp(b, 'c_sm')
    b.wait_all(vm=False)
    b.e(f"""s_lshr_b32 s3, s{sW}, 1
        s_cmp_eq_u32 s3, 0
        s_cselect_b32 s62, s62, s63
        s_and_b32 s3, s{sW}, 1
        s_lshl_b32 s3, s3, 4
        s_lshr_b32 s62, s62, s3
        s_lshl_b32 s62, s62, 16
        s_mov_b32 s65, s65
        v_mov_b32 v14, s62
        s_lshl_b32 s66, s64, 16
        s_and_b32 s67, s64, 0xffff0000
        s_lshl_b32 s68, s65, 16
        s_and_b32 s69, s65, 0xffff0000
        s_mov_b32 s64, 0x{L2E:x}
        v_mul_f32 v15, s64, v14
        v_fma_f32 v16, v14, s64, -v15
        v_fmac_f32 v16, 0x{L2E_LO:x}, v14
        v_exp_f32 v15, v15
        v_mul_f32 v16, 0x{LN2:x}, v16
        v_fmac_f32 v15, v15, v16
        v_cvt_pk_bf16_f32 v15, v15, v15
        v_lshlrev_b32 v14, 16, v15""".replace("        s_mov_b32 s65, s65\n", ""))
    b.e(f"s_mov_b32 s{sW2}, s61")
    if OPT.get('wpf', 0) == 2: w_prefetch(b)
    AL, BE, CC, Z1, Z8, Z256, T, DB, X, X2, X4, X6, X8, X10, Y = range(0, 30, 2)
    R = lambda n, k: 32 + n * 32 + k
    stamp(b, 'kg_pre')
    b.wait(vm=pt[5])
    stamp(b, 'kg_par')
    for n in range(2):
        un = (lambda d, s: f"v_lshlrev_b32 v{d}, 16, v{s}") if n == 0 else (lambda d, s: f"v_and_b32 v{d}, 0xffff0000, v{s}")
        b.e("\n".join([un(R(n, AL), 4), un(R(n, BE), 5), un(R(n, DB), 6), un(R(n, DB) + 1, 7), un(R(n, CC), 8), un(R(n, CC) + 1, 9)]))
    for n in range(2):
        b.e(f"""v_mul_f32 v{R(n,AL)}, v14, v{R(n,AL)}
            v_mul_f32 v{R(n,BE)}, v14, v{R(n,BE)}
            v_pk_mul_f32 {vr(R(n,DB),2)}, {vr(R(n,DB),2)}, v[14:15] op_sel_hi:[1,0]
            v_mul_f32 v{R(n,AL)}, s64, v{R(n,AL)}
            v_mul_f32 v{R(n,BE)}, 0.15915494, v{R(n,BE)}""")
    b.e("v_lshlrev_b32 v4, 4, v1\nv_mov_b32 v6, v236\nv_mov_b32 v7, v237")
    for n in range(2): cmul(b, R(n, X), R(n, CC), R(n, DB), R(n, T))
    for (z, p) in ((Z8, 0x41000000), (Z1, None), (Z256, 0x43800000)):
        for n in range(2):
            e, ph = R(n, T), R(n, T) + 1
            if p is None: b.e(f"v_exp_f32 v{e}, v{R(n,AL)}\nv_fract_f32 v{ph}, v{R(n,BE)}")
            else: b.e(f"v_mul_f32 v{e}, 0x{p:x}, v{R(n,AL)}\nv_mul_f32 v{ph}, 0x{p:x}, v{R(n,BE)}\nv_exp_f32 v{e}, v{e}\nv_fract_f32 v{ph}, v{ph}")
        for n in range(2):
            b.e(f"v_cos_f32 v{R(n,z)}, v{R(n,T)+1}\nv_sin_f32 v{R(n,z)+1}, v{R(n,T)+1}")
        for n in range(2):
            b.e(f"v_pk_mul_f32 {vr(R(n,z),2)}, {vr(R(n,z),2)}, {vr(R(n,T),2)} op_sel_hi:[1,0]")
    pk = [0]
    def put(src, rows, neg=False):
        d = 16 + 2 * (pk[0] & 3); pk[0] += 1
        for n in range(2):
            b.e(f"v_cvt_pk_bf16_f32 v{d + n}, v{R(n,src)}, {'-' if neg else ''}v{R(n,src)+1}")
        for r in rows: b.lg(f"ds_write_b64 v10, {vr(d,2)} offset:{r * 528}")
    def mul(o, x, w):
        for n in range(2): b.e(f"v_pk_mul_f32 {vr(R(n,T),2)}, {vr(R(n,x),2)}, {vr(R(n,w),2)} op_sel_hi:[1,0]")
        for n in range(2): b.e(f"v_pk_fma_f32 {vr(R(n,o),2)}, {vr(R(n,x),2)}, {vr(R(n,w),2)}, {vr(R(n,T),2)} op_sel:[1,1,0] op_sel_hi:[0,1,1] neg_lo:[0,1,0]")
    stamp(b, 'kg_base')
    b.e("v_mov_b32 v24, 0x3f80\nv_mov_b32 v25, 0x3f80")
    b.lg(f"ds_write_b64 v10, v[24:25] offset:{32 * 528}")
    put(Z8, [33], True)
    lo = {}; chunks = ln1_a(b, xtok, 96, lo); step = [0]
    LNA, LNB_ = OPT.get('lna_at', 4), OPT.get('lnb_at', 18)
    def ld_st(bb):
        for q in range(4):
            t = bb.vm(f"buffer_load_dwordx4 {vr(SG + 4 * q, 4)}, v{VS}, {WS}, {('0', 's72', 's73', 's14')[q]} offen sc1")
        return t
    def nxt(o, x, w, rows, neg=False):
        mul(o, x, w); put(o, rows, neg); step[0] += 1
        for _ in range(OPT.get('lnr', 2)):
            if step[0] >= LNA and chunks: chunks.pop(0)()
        if step[0] == LNB_:
            assert not chunks
            ln1_b(b, lo['last']); b.e("s_movk_i32 s14, 12288")
        if step[0] == OPT.get('st_at', 56): lo['st'] = ld_st(b)
    cur = Z8
    for j in range(2, 32):
        nxt(Y, cur, Z8, [32 + j], True); cur = Y
    put(X, [0])
    keep = {2: X2, 4: X4, 6: X6, 8: X8, 10: X10}
    cur = X
    for o in range(1, 11):
        d = keep.get(o, Y)
        nxt(d, cur, Z1, [o]); cur = d
    for src, row in ((X, 16), (X2, 18), (X4, 20), (X6, 22), (X8, 24), (X10, 26)):
        nxt(src, src, Z256, [row])
    for r0 in (11, 27):
        for k, src in enumerate((X, X4, X8)):
            nxt(src, src, Z256, [r0 + k])
    for r0 in (14, 30, 15, 31):
        nxt(X, X, Z256, [r0])
    stok = lo['st']
    mul(X, X, Z256)
    b.wait_all(vm=False)
    stamp(b, 'kg_pow')
    tk = {}
    def rd(ks):
        r = 112 + (ks % 4) * 8
        b.lg(f"ds_read_b128 {vr(r,4)}, v11 offset:{32 * ks}")
        tk[ks] = b.lg(f"ds_read_b128 {vr(r+4,4)}, v13 offset:{32 * ks}")
    fill = [f"v_add_f32 v14, v{R(0,X)}, v{R(1,X)}"]
    for m in ("quad_perm:[1,0,3,2] row_mask:0xf", "quad_perm:[2,3,0,1] row_mask:0xf", "row_half_mirror row_mask:0xf", "row_mirror row_mask:0xf", "row_bcast:15 row_mask:0xa", "row_bcast:31 row_mask:0xc"):
        fill.append(f"v_add_f32_dpp v14, v14, v14 {m} bank_mask:0xf")
    fill += ["v_readlane_b32 s56, v14, 63", "v_mov_b32 v20, 0\nv_mov_b32 v21, 0", "v_mov_b32 v22, 0\nv_mov_b32 v23, 0"]
    for ks in range(3): rd(ks)
    cond = "\n".join(f"v_xor_b32 v2, s0, v{SG + 1 + 4 * q}\nv_xor_b32 v3, s1, v{SG + 3 + 4 * q}\n" + (f"v_or3_b32 v15, v2, v3, v15" if q else "v_or_b32 v15, v2, v3") for q in range(4))
    xt = []
    KC = OPT.get('kc', 11)
    for ks in range(16):
        r = 112 + (ks % 4) * 8
        b.wait(lg=tk[ks])
        b.e(f"v_mfma_f32_32x32x16_bf16 v[96:111], {vr(r,4)}, {vr(r+4,4)}, {'0' if ks == 0 else 'v[96:111]'}")
        if ks + 3 < 16: rd(ks + 3)
        if ks == KC:
            stamp(b, 'st_chk')
            poll(b, ld_st, cond + "\nv_cmp_ne_u32 vcc, 0, v15", stok)
            stamp(b, 'st_ok')
            for k in range(8):
                fill.append(f"v_and_b32 v{RR + 2 * k}, 0xffff0000, v{SG + 2 * k}\nv_lshlrev_b32 v{RR + 1 + 2 * k}, 16, v{SG + 2 * k}\nv_rcp_f32 v{RR + 2 * k}, v{RR + 2 * k}" + (f"\nv_mul_f32 v{RR - 1 + 2 * k}, -v{RR - 1 + 2 * k}, v{RR - 2 + 2 * k}" if k else ""))
            fill.append(f"v_mul_f32 v{RR + 15}, -v{RR + 15}, v{RR + 14}")
        if KC < ks <= KC + 4:
            q = ks - KC - 1
            xt.append(b.vm(f"buffer_load_dwordx4 {vr(XR + 4 * q, 4)}, v{VX}, {WS}, s75 offen sc1"))
            b.e("s_add_u32 s75, s75, 655360")
        if fill: b.e(fill.pop(0))
        if fill and ks > KC + 4: b.e(fill.pop(0))
    for x in fill: b.e(x)
    stamp(b, 'kg_mfma')
    p2tok = ld_quarter(FLP2)(b)
    b.lg(f"ds_write_b128 v253, v[20:23] offset:{SPB}")
    b.lg(f"ds_write_b128 v253, v[20:23] offset:{SPB + 1024}")
    b.e("s_barrier")
    stamp(b, 'st1_seen')
    b.e("""v_cmp_eq_u32 vcc, 31, v1
        v_cndmask_b32 v24, 0, v96, s[70:71]
        v_cndmask_b32 v25, 0, v97, s[70:71]
        v_cndmask_b32 v18, 0, v98, s[70:71]
        v_cndmask_b32 v105, v105, v104, vcc
        v_cmp_eq_u32 vcc, 63, v1
        v_cndmask_b32 v19, 0, v110, s[70:71]
        v_writelane_b32 v110, s56, 0
        v_cndmask_b32 v106, v106, v104, vcc
        v_mov_b32_dpp v24, v24 row_shr:1 row_mask:0xf bank_mask:0xf bound_ctrl:1
        v_mov_b32_dpp v25, v25 row_shr:1 row_mask:0xf bank_mask:0xf bound_ctrl:1
        v_mov_b32_dpp v18, v18 row_shr:1 row_mask:0xf bank_mask:0xf bound_ctrl:1
        v_cvt_pk_bf16_f32 v14, v110, v111""")
    pats = [list(range(96, 107)), [107] * 3 + [108] * 3 + [109] * 5, [19] * 5 + [20] * 3 + [24, 25, 18]]
    for rnd, w in enumerate(pats):
        for c in range(4):
            d = 32 + ((rnd * 4 + c) % 8) * 4
            for k in range(4):
                b.e(f"v_cvt_pk_bf16_f32 v{d + k}, v{w[10 - c - 2 * k]}, v{w[9 - c - 2 * k]}")
            if rnd < 2: b.lg(f"ds_write_b128 v12, {vr(d,4)} offset:{c * CSTR + 64 + (1 - rnd) * 1024}")
        if rnd == 0:
            for c in range(4): b.lg(f"ds_write_b16 v254, v14 offset:{c * 190}")
        if rnd == 1:
            for c in range(4): b.lg(f"ds_write_b16_d16_hi v255, v14 offset:{c * 190}")
    b.e("s_mov_b64 exec, 63")
    for c in range(4): b.lg(f"ds_write_b128 v252, {vr(32 + c * 4, 4)} offset:{c * CSTR}")
    b.e("s_mov_b64 exec, -1")
    stamp(b, 'kgen_done')
    b.e("L_stage2:")
    XF, UF = 128, 160
    for q in range(4):
        b.wait(vm=xt[q])
        for k in range(4):
            b.e(f"v_lshlrev_b32 v{XF + 8 * q + 2 * k}, 16, v{XR + 4 * q + k}\nv_and_b32 v{XF + 8 * q + 2 * k + 1}, 0xffff0000, v{XR + 4 * q + k}")
        for k in range(4):
            rr = RR + 2 * (2 * q + (k >> 1))
            b.e(f"v_pk_fma_f32 {vr(UF + 8 * q + 2 * k, 2)}, {vr(XF + 8 * q + 2 * k, 2)}, {vr(rr, 2)}, {vr(rr, 2)} op_sel:[0,0,1] op_sel_hi:[1,0,1]")
        for c in range(4):
            b.e(f"v_cvt_pk_bf16_f32 v{SG + 4 * q + c}, v{UF + 8 * q + c}, v{UF + 8 * q + 4 + c}")
        for c in range(4):
            b.lg(f"ds_write_b32 v{VU + (c >> 1)}, v{SG + 4 * q + c} offset:{(c & 1) * RSTR + q * 1024}")
    rtok = {}
    ACC, VB, UA, DW, WF = 32, 64, 36, 196, 228
    def f_rd(it, k, r=None):
        d = 2 * it + 1 + 16 * k; r = (it & 1) * 16 + 4 * k if r is None else r
        b.lg(f"ds_read_b64 {ar(r, 2)}, v6 offset:{2080 - 32 * d}")
        rtok[(it, 'f', k)] = b.lg(f"ds_read_b64 {ar(r + 2, 2)}, v6 offset:{2080 - 32 * d + 8}")
    def v_rd(it, k):
        rtok[(it, 'v', k)] = b.lg(f"ds_read_b128 {vr(VB + (it & 1) * 32 + 4 * k, 4)}, v7 offset:{512 + 512 * k - 32 * (2 * it + 1)}")
    ulast = b.li - 1
    for k in range(4): f_rd(0, k)
    f_rd(0, 4, 32)
    if OPT.get('w2t', 0): w2_touch(b, False)
    poll(b, ld_quarter(FLP2), cond_lines(24), p2tok)
    b.wait(lg=ulast)
    b.e("s_barrier")
    stamp(b, 'conv_start')
    for k in range(8): v_rd(0, k)
    G = Gaps(b, spread=OPT.get('spread', 1))
    w2n = 0; W1AT = OPT.get('w1at', 99); W2AT = OPT.get('w2at', 0)
    tok = {}
    def y_out(ct, G_=None):
        G.add(f"v_cvt_pk_bf16_f32 v{64 + 2 * ct}, v{ACC + 4 * ct}, v{ACC + 4 * ct + 2}\nv_cvt_pk_bf16_f32 v{65 + 2 * ct}, v{ACC + 4 * ct + 1}, v{ACC + 4 * ct + 3}")
        G.add(lambda: b.lg(f"ds_write2st64_b32 v8, v{64 + 2 * ct}, v{65 + 2 * ct} offset0:{ct} offset1:{ct + 8}"), 2)
    for it in range(8):
        par = it & 1
        stamp(b, f'cv_{it}')
        if it < 7:
            for k in range(8):
                if k < 4: G.add(lambda k=k, it=it: f_rd(it + 1, k), 2)
                G.add(lambda k=k, it=it: v_rd(it + 1, k), 1)
        ex = []
        if it == 0:
            for x in band[:12]: G.add(x)
        if it == 1:
            for x in reversed(band[12:]): G.add(x, front=True)
            for x in late[:9]: G.add(x)
        if it == 3:
            for x in late[9:]: G.add(x)
        if it in (5, 6):
            for x in fmap[(it - 5) * 12:(it - 4) * 12 if it == 5 else None]: G.add(x)
        if it == 0:
            for cl in range(2):
                for t in range(4):
                    G.add(lambda cl=cl, t=t: tok.__setitem__('u', b.lg(f"ds_read_b128 {ar(UA + 16 * cl + 4 * t, 4)}, v7 offset:{512 + 512 * t - (48 if cl == 0 else 32)}")), 1)
            ex = [(vr(ACC + 4 * ct, 4), ar(32, 4), vr(VB + 4 * (ct - 4), 4), vr(ACC + 4 * ct, 4)) for ct in range(4, 8)]
        if it == 1:
            ex = [(vr(DW + 16 * cl + 4 * t, 4), ar(UA + 16 * cl + 4 * t, 4), vr(BND + 4 * cl, 4), '0') for cl in range(2) for t in range(4)]
        if it == 2:
            for cl in range(2):
                for d in range(3, -1, -1):
                    G.add(lambda cl=cl, d=d: tok.__setitem__('t', b.lg(f"ds_read_b64 {ar(UA + 10 * cl + 2 * (3 - d), 2)}, v5 offset:{768 * cl + 96 - 32 * d}")), 1)
                G.add(f"v_accvgpr_write_b32 a{UA + 10 * cl + 8}, 0\nv_accvgpr_write_b32 a{UA + 10 * cl + 9}, 0")
            for cl in range(2):
                for t in range(4):
                    G.add(f"v_cvt_pk_bf16_f32 v{WF + 8 * cl + 2 * t}, v{DW + 16 * cl + 4 * t}, v{DW + 16 * cl + 4 * t + 1}\nv_cvt_pk_bf16_f32 v{WF + 8 * cl + 2 * t + 1}, v{DW + 16 * cl + 4 * t + 2}, v{DW + 16 * cl + 4 * t + 3}")
        if it in (3, 4):
            cl = it - 3
            ex = [(vr(ACC + 4 * ct, 4), vr(WF + 8 * cl + 4 * kk, 4), ar(UA + 10 * cl + 2 * (3 - (ct - 4 - 2 * kk)), 4), vr(ACC + 4 * ct, 4)) for kk in range(2) for ct in range(4 + 2 * kk, 8)]
        if it >= 4:
            q = it - 4
            for k in range(8): G.add(f"v_fma_f32 v{XF + 8 * q + k}, v{UF + 8 * q + k}, s{66 + (k & 3)}, v{XF + 8 * q + k}")
        if it == W1AT:
            G.add(f"v_lshlrev_b32 v2, 7, v0\nv_min_u32 v2, {230 * 128}, v2"); G.add(f"s_mul_i32 s3, s{sSI}, {231 * 128}\ns_add_u32 s3, s3, s{sDMA}")
            G.add(lambda: (b.e(f"s_sub_u32 s3, s3, s{sM0}"), b.vm(f"buffer_load_dword a252, v2, {WS}, s3 offen sc1")), 2)
        if it >= W2AT:
            for _ in range(-(-(OPT.get('w2n', 40) - w2n) // (8 - it))):
                G.addv(lambda m=w2n: w2_load(b, m)); w2n += 1
        if it == 6: G.add(lambda: tok.__setitem__('p1', ld_quarter(FLP)(b)), 2)
        G.begin(26 + len(ex))
        order = [(i, ct) for i in range(4) for ct in range(i, 8)]
        if it == 7: order = [(i, ct) for ct in range(8) for i in range(min(ct, 3) + 1)]
        pend = []
        for cnt, (i, ct) in enumerate(order):
            c = '0' if (it == 0 and i == 0) else vr(ACC + 4 * ct, 4)
            G.now(lambda: b.wait(lg=max(rtok[(it, 'f', i)], rtok[(it, 'v', ct - i)])), 1)
            G.mfma(f"v_mfma_f32_16x16x32_bf16 {vr(ACC + 4 * ct, 4)}, {ar(par * 16 + 4 * i, 4)}, {vr(VB + par * 32 + 4 * (ct - i), 4)}, {c}")
            if pend and cnt >= pend[0][0]:
                y_out(pend.pop(0)[1])
            G.fill()
            if it == 7 and i == min(ct, 3): pend.append((cnt + 4, ct))
        for x in ex:
            G.mfma("v_mfma_f32_16x16x32_bf16 %s, %s, %s, %s" % x)
            G.fill()
        if it == 7:
            poll(b, ld_quarter(FLP), cond_lines(24), tok['p1'])
            for _, ct in pend: y_out(ct)
        G.flush()
        if it < 7: b.wait(lg=b.li - 1)
    stamp(b, 'conv_end')
    b.e("s_mov_b32 s56, 0x3f80\ns_mov_b32 s57, 0x3f800000")
    b.wait_all(vm=False)
    stamp(b, 'y_written')
    b.e("s_barrier")
    stamp(b, 'y_bar')
    yt = []
    for q in range(4):
        b.lg(f"ds_read_b64_tr_b16 {vr(80 + 4 * q, 2)}, v9 offset:{512 * q}")
        yt.append(b.lg(f"ds_read_b64_tr_b16 {vr(82 + 4 * q, 2)}, v9 offset:{512 * q + 2048}"))
    def h_pack(q):
        for k in range(4):
            b.e(f"v_cvt_pk_bf16_f32 v{96 + 4 * q + k}, v{XF + 8 * q + 2 * k}, v{XF + 8 * q + 2 * k + 1}")
        t = b.vm(f"buffer_store_dwordx4 {vr(96 + 4 * q, 4)}, v{VX}, {WS}, s74 offen sc1")
        b.e("s_add_u32 s74, s74, 655360")
        return t
    for q in range(4):
        b.wait(lg=yt[q])
        for k in range(8):
            b.e(f"v_dot2_f32_bf16 v{XF + 8 * q + k}, v{80 + 4 * q + (k >> 1)}, s{56 + (k & 1)}, v{XF + 8 * q + k}")
        if q: h_pack(q - 1)
    hs = h_pack(3)
    stamp(b, 'h_stored')
    return None, hs

from ffn import ffn_map, preload, ffn

def build():
    _lab[0] = 0
    b = B()
    xtok, b3, pt = entry(b)
    b2 = b.fork()
    pack(b2)
    if OPT['stop'] in ('pack', 'conv'): (b2.e("s_add_u32 s2, s2, 160"), stamp_dump(b2), b2.e("s_endpgm"))
    b2.e(ffn_map(True))
    poll(b2, ld_quarter(FLP2), cond_lines(24))
    b2.e("s_barrier")
    if OPT.get('hw2t', 0):
        w2_touch(b2, False)
        b2.wait_all(lg=False)
    HW = OPT.get('hw2', 28)
    for m in range(HW): w2_load(b2, m)
    stamp(b2, 'w2_issued')
    poll(b2, ld_quarter(FLP), cond_lines(24), sleep=OPT.get('psl', 4))
    b2.e("s_barrier")
    stamp(b2, 'p1_seen')
    preload(b2, 0, 36)
    for m in range(HW, 40): w2_load(b2, m)
    if OPT.get('buddy', 1):
        sk = lab("bd")
        b2.e(f"s_cmp_lg_u32 s{sW}, 0\ns_cbranch_scc1 {sk}")
        poll(b2.fork(), ld_lines(f"s_lshl_b32 s55, s2, 7\ns_add_u32 s55, s55, {FLH}", 1), cond_lines(1), sleep=2)
        b2.e(f"{sk}:")
    b2.e("s_add_u32 s2, s2, 160\ns_branch L_g1")
    packtok, hs = conv(b3, xtok, pt)
    if OPT['stop'] in ('pack', 'conv'): (stamp_dump(b3), b3.e("s_endpgm"))
    b3.e("s_barrier")
    preload(b3, 0, OPT.get('pre1', 12))
    b3.wait(vm=hs)
    b3.e("s_barrier")
    arrive(b3, FLH, "s50")
    stamp(b3, 'h_arrive')
    preload(b3, OPT.get('pre1', 12), 36)
    for m in range(OPT.get('w2n', 40), 40): w2_load(b3, m)
    b3.e(f"s_add_u32 s{sSI}, s{sSI}, 3\nL_g1:")
    b4 = B(); b4.L = b.L; b4.vi = 100
    ffn(b4)
    b.e("L_exit:\ns_endpgm\nL_code_end:")
    lines, nn = hazard_pass(b.L, verbose=OPT.get('verbose', False))
    if OPT.get('align', 1):
        lines = align_pass([KN + ':'] + lines, nop_cost=OPT.get('nopc', 4.0))[0][1:]
    hdr = open(os.path.join(os.path.dirname(os.path.abspath(__file__)), "header.txt")).read()
    out = hdr + (f"; stamps: {','.join(OPT['stamps'])}\n" if OPT['stamps'] else "") + "; @launch grid=(256,1,1) block=(256,1,1) lds=163840\n"
    out += f'.amdgcn_target "amdgcn-amd-amdhsa--gfx950"\n.text\n.globl {KN}\n.p2align 8\n.type {KN},@function\n{KN}:\n'
    out += "\n".join(("" if l.endswith(":") else "    ") + l for l in lines)
    out += f"""
.section .rodata,"a"
.p2align 6
.amdhsa_kernel {KN}
  .amdhsa_next_free_vgpr 512
  .amdhsa_next_free_sgpr 102
  .amdhsa_accum_offset 256
  .amdhsa_group_segment_fixed_size 0
  .amdhsa_kernarg_size 128
  .amdhsa_user_sgpr_count 2
  .amdhsa_user_sgpr_kernarg_segment_ptr 1
  .amdhsa_system_sgpr_workgroup_id_x 1
.end_amdhsa_kernel
"""
    return out, nn, len(lines)

if __name__ == "__main__":
    import ffn as _f
    for a in sys.argv[2:]:
        k, v = a.split("=")
        OPT[k] = eval(v)
    out, nn, nl = build()
    open(sys.argv[1], "w").write(out)
    print(f"wrote {sys.argv[1]}: {nl} lines, {nn} hazard nops")
```

```python
import sys, os
from asmlib import B, hazard_pass, align_pass, Gaps
KN = "sequential_preLN__ssm_conv_s4__glu_gated_reglu__prompt_kernel"
OPT = dict(stamps=False, stop=None, spin=1000000)

ST1, ST2 = 0, 16384
EPOCH = 32768
FLP2, FLP, FLH, FLE, FLL, FLM = 0x1520000, 0x1524000, 0x1528000, 0x1530000, 0x1538000, 0x1540000
CSP = 0x1500000
STAMP = 0xC000
XT, HT, W1P, W2P, HP = 0x10000, 0x300000, 0x600000, 0xB00000, 0xE00000
WS_STAMP = 0x1600000
WS_SIZE = 0x1700000
JSTR = 286720
P_X, P_ARE, P_AIM, P_BRE, P_BIM, P_CRE, P_CIM, P_LDT, P_DSK, P_BX, P_WG, P_WU, P_WD, P_OUT, P_DBG, P_WS = [16 + 2 * k for k in range(16)]
sW, sXCD, sI, sJ, sRHO, sC = 48, 49, 51, 52, 53, 54
sSI = 77
SRC = "s[4:7]"; WS = "s[8:11]"; OUT = "s[12:15]"
def sp(r): return f"s[{r}:{r+1}]"
def vr(r, n): return f"v[{r}:{r+n-1}]" if n > 1 else f"v{r}"
def ar(r, n): return f"a[{r}:{r+n-1}]" if n > 1 else f"a{r}"
RSTR = 33856
_lab = [0]
def lab(p):
    _lab[0] += 1; return f"L_{p}{_lab[0]}"

def stamp(b, name):
    if OPT.get('jitter') and name != 'top':
        l = lab("jt"); _lab[0] += 1
        b.e(f"""s_memtime s[98:99]
            s_waitcnt lgkmcnt(0)
            s_lshr_b32 s98, s98, 2
            s_mul_i32 s98, s98, 0x9e3779b1
            s_lshr_b32 s99, s98, 28
            s_bfe_u32 s98, s98, 0x30010
            s_cmp_eq_u32 s98, 0
            s_cselect_b32 s99, s99, 0
            s_mul_i32 s99, s99, {OPT['jitter']}
            {l}:
            s_cmp_eq_u32 s99, 0
            s_cbranch_scc1 {l}_e
            s_sleep 1
            s_sub_u32 s99, s99, 1
            s_branch {l}
            {l}_e:""")
        b.ld = b.li
    st = OPT['stamps']
    if not st or name not in st: return
    r = 78 + 2 * st.index(name)
    b.sm(f"{'s_memtime' if OPT.get('cyc') else 's_memrealtime'} s[{r}:{r+1}]")
def stamp_init(b):
    if OPT['stamps']:
        for r in range(78, 102, 2): b.e(f"s_mov_b64 s[{r}:{r+1}], 0")
def stamp_dump(b):
    if not OPT['stamps']: return
    if OPT.get('amplify'):
        sk = lab("am"); lo = lab("al")
        b.e(f"""s_waitcnt lgkmcnt(0)
            s_cmp_lg_u32 s2, 100
            s_cbranch_scc1 {sk}
            s_sub_u32 s56, s80, s78
            s_mul_i32 s56, s56, 10
            s_min_u32 s56, s56, 100000
            s_memrealtime s[58:59]
            s_waitcnt lgkmcnt(0)
            {lo}:
            s_memrealtime s[60:61]
            s_waitcnt lgkmcnt(0)
            s_sub_u32 s57, s60, s58
            s_cmp_lt_u32 s57, s56
            s_cbranch_scc1 {lo}
            {sk}:""")
        return
    if OPT.get('dbgdump'):
        sk = lab("dd")
        b.e(f"s_waitcnt lgkmcnt(0)\ns_cmp_lg_u32 s{sW}, 0\ns_cbranch_scc1 {sk}\ns_mov_b64 exec, 1\nv_mov_b32 v30, 0\ns_not_b32 s78, s78")
        for k in range(12):
            b.e(f"v_mov_b32 v31, s{78 + 2 * k}\nglobal_atomic_umax v30, v31, {sp(P_DBG)} offset:{4 * k + 4} sc1")
        b.e(f"{sk}:")
        return
    b.e(f"s_waitcnt lgkmcnt(0)\ns_lshl_b32 s3, s2, 2\ns_add_u32 s3, s3, s{sW}\ns_lshl_b32 s3, s3, 7\ns_add_u32 s3, s3, {WS_STAMP}\nv_mov_b32 v30, 0")
    for k in range(12):
        b.e(f"v_mov_b32 v31, s{78 + 2 * k}\nbuffer_store_dword v31, v30, {WS}, s3 offen offset:{4 * k}")

def poll(b, load, cond, tok=None, sleep=0):
    if tok is None: tok = load(b)
    b.wait(vm=tok)
    lo, ok = lab("poll"), lab("ok")
    b.e(cond)
    b.e(f"s_cbranch_vccz {ok}\ns_mov_b32 s3, 0\n{lo}:")
    if sleep or OPT.get('backoff', 0): b.e(f"s_sleep {sleep or OPT['backoff']}")
    f = b.fork(); load(f); f.wait_all(lg=False)
    b.e(cond)
    b.e(f"s_add_u32 s3, s3, 1\ns_cmp_gt_u32 s3, {OPT['spin']}\ns_cbranch_scc1 {ok}\ns_cbranch_vccnz {lo}\n{ok}:")

def ld_ready(b, every=False):
    b.e("v_mov_b32 v26, 0" if every else f"s_lshl_b32 s55, s{sW}, 8\nv_mov_b32 v26, s55")
    return b.vm(f"buffer_load_dwordx4 v[28:31], v26, {OUT}, 0 offen sc1")
COND_READY = "v_xor_b32 v26, v28, v30\nv_xor_b32 v27, v29, v31\nv_and_b32 v26, v26, v27\nv_cmp_ne_u32 vcc, -1, v26"

def code_prefetch(b, stage):
    if stage == 1:
        _lab[0] += 1
        b.e(f"""s_getpc_b64 s[76:77]
            L_pc{_lab[0]}:
            s_sub_u32 s76, s76, L_pc{_lab[0]}-{KN}
            s_subb_u32 s77, s77, 0
            s_lshr_b32 s55, s2, 3
            s_lshl_b32 s55, s55, 2
            s_add_u32 s55, s55, s{sW}
            s_and_b32 s55, s55, 31""")
    lo, hi = (KN, "L_stage2") if stage == 1 else ("L_stage2", "L_code_end")
    if OPT.get('cpf1', 1):
        if stage == 2: return
        hi = "L_code_end"
    nl = f"((({hi}-{lo})+4095)/4096)"
    b.e(f"""s_mul_i32 s3, s55, {nl}*128
        s_add_u32 s3, s3, {lo}-{KN}
        v_min_u32 v26, {nl}-1, v1
        v_lshl_add_u32 v26, v26, 7, s3
        s_mov_b32 s3, L_code_end-{KN}-4
        v_min_u32 v26, s3, v26""")
    b.vm(f"global_load_dword a{253 + stage}, v26, s[76:77]")

def mk_srd(b, r, ptr, size):
    b.e(f"s_mov_b32 s{r}, s{ptr}\ns_mov_b32 s{r+1}, s{ptr+1}\ns_mov_b32 s{r+2}, {size}\ns_mov_b32 s{r+3}, 0x20000")

LNB = 143104
LNS = LNB - 128
OOB = 0x40000000
def x_dma(c, late=False):
    so = "s59" if late else "s57"
    if late: c.e(f"v_lshl_add_u32 v26, v1, 4, s60\ns_mul_i32 s59, s50, 20480\ns_mul_i32 s3, s{sW}, 5120\ns_add_u32 s59, s59, s3")
    for p in range(2):
        if p: c.e(f"s_add_u32 m0, s58, 2592\ns_addk_i32 {so}, 2560")
        for k in range(3):
            if k == 2: c.e("s_mov_b32 exec_hi, 0")
            t = c.vm(f"buffer_load_dwordx4 {'v26' if late else 'v2'}, {SRC}, {so} offen offset:{k * 1024} nt lds")
        c.e("s_mov_b32 exec_hi, -1")
    return t
def entry(b):
    stamp_init(b)
    stamp(b, 'top')
    EV = OPT.get('ev', 0)
    ids = f"""v_lshrrev_b32 v2, 6, v0
        v_and_b32 v1, 63, v0
        v_readfirstlane_b32 s{sW}, v2
        s_and_b32 s{sXCD}, s2, 7"""
    consts = f"""s_mov_b32 s7, 0x20000
        s_mov_b32 s10, {WS_SIZE}
        s_mov_b32 s11, 0x20000
        s_movk_i32 s14, 128
        s_mov_b32 s15, 0x20000"""
    srd = f"""s_mov_b32 s4, s{P_X}
        s_mov_b32 s5, s{P_X + 1}
        s_mov_b32 s8, s{P_WS}
        s_mov_b32 s9, s{P_WS + 1}
        s_mov_b32 s12, s{P_DBG}
        s_mov_b32 s13, s{P_DBG + 1}"""
    xprep = f"""s_mov_b32 s50, s2
        s_cmp_lt_u32 s50, 128
        s_cselect_b32 s60, 0, {OOB}
        v_lshl_add_u32 v2, v1, 4, s60
        s_mul_i32 s57, s50, 20480
        s_mul_i32 s58, s{sW}, 5120
        s_add_u32 s57, s57, s58
        s_mul_i32 s58, s{sW}, 5184
        s_add_u32 s58, s58, {LNB}
        s_mov_b32 m0, s58
        s_mov_b32 s6, 2621440
        s_lshl_b32 s59, s50, 3"""
    b.e(f"""s_load_dwordx16 s[16:31], s[0:1], 0
        s_load_dwordx16 s[32:47], s[0:1], 64
        s_lshl_b32 s61, s2, 10
        v_lshl_add_u32 v3, v0, 2, s61
        s_cmp_ge_u32 s2, 160
        s_cbranch_scc1 L_help""")
    c = b.fork()
    if EV == 0: c.e(ids); code_prefetch(c, 1); c.e(xprep + "\n" + consts)
    if EV == 2: c.e(ids + "\n" + xprep + "\n" + consts)
    c.e("s_waitcnt lgkmcnt(0)")
    c.sm(f"s_load_dwordx2 s[62:63], {sp(P_LDT)}, s59\ns_load_dwordx2 s[64:65], {sp(P_DSK)}, s59")
    pt = []
    def par():
        for k, p in enumerate((P_ARE, P_AIM, P_BRE, P_BIM, P_CRE, P_CIM)):
            pt.append(c.vm(f"global_load_dword v{4 + k}, v3, {sp(p)} nt"))
    if not OPT.get('xfirst', 0): par()
    c.e(srd)
    t = x_dma(c)
    if OPT.get('xfirst', 0): par()
    stamp(c, 'start')
    c.e("s_branch L_conv")
    b.e(f"L_help:\ns_cmp_ge_u32 s2, 256\ns_cbranch_scc1 L_exit\n{ids}")
    code_prefetch(b, 1)
    b.e(consts + "\ns_waitcnt lgkmcnt(0)")
    b.e(f"""{srd}
        s_sub_u32 s2, s2, 160
        s_cmp_lg_u32 s2, 0
        s_cbranch_scc1 L_noinit
        s_cmp_lg_u32 s{sW}, 3
        s_cbranch_scc1 L_noinit
        v_mov_b32 v4, 0
        s_mov_b32 s56, {EPOCH}
        buffer_load_dwordx2 v[8:9], v4, {WS}, s56 offen sc1
        v_lshlrev_b32 v10, 4, v1
        s_waitcnt vmcnt(0)
        v_add_co_u32 v12, vcc, 1, v8
        v_addc_co_u32 v13, vcc, 0, v9, vcc
        v_not_b32 v14, v12
        v_not_b32 v15, v13
        buffer_store_dwordx4 v[12:15], v10, {OUT}, 0 offen sc1
        s_mov_b64 exec, 1
        buffer_store_dwordx2 v[12:13], v4, {WS}, s56 offen sc1
        s_mov_b64 exec, -1
        L_noinit:""")
    return t, c, pt

def ln1_addr(b):
    b.e(f"""v_and_b32 v2, 7, v1
        v_lshrrev_b32 v3, 3, v1
        v_mul_u32_u24 v240, 2592, v2
        v_lshl_add_u32 v240, v3, 3, v240
        s_lshl_b32 s3, s{sW}, 6
        s_add_u32 s3, s3, {LNB}
        v_add_u32 v240, s3, v240
        v_lshlrev_b32 v241, 8, v3
        v_lshl_add_u32 v241, v2, 4, v241
        s_lshl_b32 s3, s{sW}, 11
        s_add_u32 s3, s3, s60
        v_add_u32 v241, s3, v241
        v_lshrrev_b32 v2, 5, v1
        v_bfe_u32 v3, v1, 4, 1
        v_mul_u32_u24 v242, 2592, v2
        v_mul_u32_u24 v3, 1280, v3
        v_and_b32 v2, 15, v1
        v_lshl_add_u32 v242, v2, 4, v242
        v_add3_u32 v242, v242, v3, s58
        s_lshl_b32 s3, s{sW}, 4
        s_add_u32 s3, s3, {LNS}
        v_lshrrev_b32 v2, 4, v1
        v_lshl_add_u32 v243, v2, 2, s3
        s_lshr_b32 s57, s50, 1
        s_mul_i32 s57, s57, 40960
        s_and_b32 s3, s50, 1
        s_lshl_b32 s3, s3, 7
        s_add_u32 s57, s57, s3
        s_add_u32 s57, s57, {XT}""")

def ln1_a(b, xtok, R, out):
    A0 = R + 40
    tk = []; st = []; C = []
    def c0():
        b.e("s_mov_b32 s56, 0x3f803f80")
        b.wait(vm=xtok)
        b.e("s_barrier")
        stamp(b, 'ln_x')
        for k in range(5):
            b.lg(f"ds_read_b64 {vr(R + 4 * k, 2)}, v240 offset:{256 * k}")
            tk.append(b.lg(f"ds_read_b64 {vr(R + 4 * k + 2, 2)}, v240 offset:{256 * k + 1280}"))
    C.append(c0)
    def stores(ks):
        def f():
            for k in ks:
                b.wait(lg=tk[k])
                out['last'] = b.vm(f"buffer_store_dwordx4 {vr(R + 4 * k, 4)}, v241, {WS}, s57 offen sc1")
                b.e("s_addk_i32 s57, 8192")
                st.append(b.lg(f"ds_read_b128 {vr(R + 20 + 4 * k, 4)}, v242 offset:{256 * k}"))
            if 4 in ks: ld_ready(b)
        return f
    C += [stores([0, 1]), stores([2, 3]), stores([4])]
    def dots(g):
        def f():
            b.wait(lg=st[g])
            for k in range(4 * g, 4 * g + 4):
                r = R + 20 + k
                b.e(f"v_dot2_f32_bf16 v{A0 + (k & 1)}, v{r}, s56, {'0' if k < 2 else f'v{A0 + (k & 1)}'}")
                b.e(f"v_dot2_f32_bf16 v{A0 + 2 + (k & 1)}, v{r}, v{r}, {'0' if k < 2 else f'v{A0 + 2 + (k & 1)}'}")
        return f
    C += [dots(g) for g in range(5)]
    C.append(lambda: b.e(f"v_add_f32 v{A0}, v{A0}, v{A0 + 1}\nv_add_f32 v{A0 + 2}, v{A0 + 2}, v{A0 + 3}"))
    for m in ("quad_perm:[1,0,3,2]", "quad_perm:[2,3,0,1]", "row_half_mirror", "row_mirror"):
        C.append(lambda m=m: b.e(f"v_add_f32_dpp v{A0}, v{A0}, v{A0} {m} row_mask:0xf bank_mask:0xf\nv_add_f32_dpp v{A0 + 2}, v{A0 + 2}, v{A0 + 2} {m} row_mask:0xf bank_mask:0xf"))
    def fin():
        stats_finish(b, A0, A0 + 2, A0 + 1)
        b.e("s_mov_b32 exec_lo, 0x10001\ns_mov_b32 exec_hi, 0x10001")
        b.lg(f"ds_write_b32 v243, v{A0 + 1}")
        b.e("s_mov_b64 exec, -1")
        stamp(b, 'ln_a')
    C.append(fin)
    return C

def ln1_b(b, last):
    last = last + 1
    sk0 = lab("l0")
    b.wait(vm=last, lg=b.li - 1)
    stamp(b, 'ln_drain')
    b.e(f"s_cmp_lg_u32 s{sW}, 0\ns_cbranch_scc1 {sk0}")
    f = b.fork()
    poll(f, ld_ready, COND_READY, last)
    f.e(f"v_mov_b32 v2, {LNS + 64}\nds_write_b64 v2, v[28:29]\ns_waitcnt lgkmcnt(0)")
    b.e(f"{sk0}:\ns_barrier")
    b.e(f"""v_mov_b32 v2, {LNS + 64}
        v_and_b32 v26, 7, v1
        v_lshlrev_b32 v26, 3, v26
        v_add_u32 v26, {LNS}, v26""")
    b.lg("ds_read_b64 v[28:29], v2")
    t = b.lg("ds_read_b64 v[2:3], v26")
    b.e(f"""s_lshl_b32 s3, s{sW}, 30
        s_or_b32 s3, s3, s60
        v_lshl_add_u32 v27, v1, 4, s3
        s_lshl_b32 s56, s50, 7""")
    b.wait(lg=t)
    b.e(f"""v_readfirstlane_b32 s0, v28
        v_readfirstlane_b32 s1, v29
        v_mov_b32 v31, v29
        v_mov_b32 v29, v28
        v_mov_b32 v28, v2
        v_mov_b32 v30, v3
        s_mov_b64 exec, 0xff""")
    b.vm(f"buffer_store_dwordx4 v[28:31], v27, {WS}, s56 offen sc1")
    b.e("s_mov_b64 exec, -1")
    stamp(b, 'ln_done')

def w_prefetch(b):
    b.e(f"""s_lshr_b32 s3, s50, 3
        s_lshl_b32 s3, s3, 2
        s_add_u32 s3, s3, s{sW}
        s_min_u32 s3, s3, 71
        s_lshl_b32 s3, s3, 6
        v_add_u32 v16, s3, v1
        v_mul_u32_u24 v17, 683, v16
        v_lshrrev_b32 v17, 16, v17
        v_mul_u32_u24 v18, 96, v17
        v_sub_u32 v16, v16, v18
        v_lshrrev_b32 v18, 2, v17
        v_and_b32 v17, 3, v17
        v_lshl_add_u32 v17, v18, 5, v17
        s_lshl_b32 s3, s{sXCD}, 2
        v_add_u32 v17, s3, v17
        v_min_u32 v17, 377, v17
        v_mul_u32_u24 v18, 9363, v17
        v_lshrrev_b32 v18, 16, v18
        v_mul_u32_u24 v19, 7, v18
        v_sub_u32 v17, v17, v19
        v_mad_u32_u24 v16, v17, 48, v16
        v_mad_u32_u24 v16, v17, 48, v16
        v_min_u32 v16, 639, v16
        v_mul_u32_u24 v16, 3456, v16
        v_lshrrev_b32 v19, 1, v18
        v_lshl_add_u32 v16, v19, 7, v16
        v_and_b32 v18, 1, v18
        v_cmp_eq_u32 vcc, 0, v18
        v_mov_b32 v18, s{P_WU}
        v_mov_b32 v19, s{P_WG}
        v_cndmask_b32 v18, v18, v19, vcc
        v_mov_b32 v17, s{P_WU + 1}
        v_mov_b32 v19, s{P_WG + 1}
        v_cndmask_b32 v19, v17, v19, vcc
        v_add_co_u32 v18, vcc, v18, v16
        v_addc_co_u32 v19, vcc, 0, v19, vcc""")
    b.vm("global_load_dword a251, v[18:19], off nt")

def stats_finish(b, vs, vq, vo):
    b.e(f"""s_mov_b32 s3, 0x3acccccd
        v_mul_f32 v{vs}, s3, v{vs}
        v_mul_f32 v{vq}, s3, v{vq}
        v_fma_f32 v{vq}, -v{vs}, v{vs}, v{vq}
        v_max_f32 v{vq}, 0, v{vq}
        v_cvt_pk_bf16_f32 v{vq}, v{vq}, v{vq}
        v_lshlrev_b32 v{vq}, 16, v{vq}
        v_add_f32 v{vq}, 0x3727c5ac, v{vq}
        v_cvt_pk_bf16_f32 v{vq}, v{vq}, v{vq}
        v_lshlrev_b32 v{vq}, 16, v{vq}
        v_sqrt_f32 v{vq}, v{vq}
        v_cvt_pk_bf16_f32 v{vo}, v{vs}, v{vq}""")

def pack(b):
    mk_srd(b, 4, P_WD, 2211840)
    b.e(f"""s_mul_i32 s50, s{sW}, 20480
        s_mul_i32 s56, s2, 3
        s_add_u32 s56, s56, s{sW}
        s_cmp_lt_u32 s{sW}, 3
        s_cselect_b32 s56, s56, 999
        s_cmp_lt_u32 s56, 270
        s_cselect_b32 s76, 0, {OOB}
        s_cmp_lt_u32 s56, 280
        s_cselect_b32 s66, 0, {OOB}
        s_cselect_b32 s56, s56, 0
        s_mul_i32 s60, s56, 13108
        s_lshr_b32 s60, s60, 16
        s_mul_i32 s59, s60, 5
        s_sub_u32 s59, s56, s59
        s_cmp_ge_u32 s60, 31
        s_cbranch_scc1 L_w2late
        s_lshr_b32 s61, s60, 1
        s_mul_i32 s61, s61, 112
        s_and_b32 s62, s60, 1
        s_lshl_b32 s62, s62, 5
        s_add_u32 s61, s61, s62
        s_add_u32 s62, s61, 16
        s_and_b32 s63, s60, 3
        s_lshr_b32 s64, s60, 2
        s_branch L_w2go
        L_w2late:
        s_sub_u32 s60, s60, 31
        s_mul_i32 s61, s60, 112
        s_add_u32 s61, s61, 64
        s_add_u32 s62, s61, 16
        s_sub_u32 s70, s60, 15
        s_mul_i32 s64, s70, 224
        s_add_u32 s64, s64, 96
        s_add_u32 s65, s64, 112
        s_min_u32 s65, s65, 1712
        s_bitcmp1_b32 s70, 0
        s_cselect_b32 s71, s65, s64
        s_cselect_b32 s65, s64, s65
        s_add_u32 s70, s70, 16
        s_cmp_lt_u32 s60, 15
        s_cselect_b32 s61, s61, s71
        s_cselect_b32 s62, s62, s65
        s_cselect_b32 s70, s60, s70
        s_and_b32 s63, s70, 3
        s_lshr_b32 s64, s70, 2
        s_add_u32 s64, s64, 8
        s_cmp_eq_u32 s60, 23
        s_cselect_b32 s63, 3, s63
        s_cselect_b32 s64, 11, s64
        s_cmp_eq_u32 s60, 24
        s_cselect_b32 s63, 3, s63
        s_cselect_b32 s64, 7, s64
        L_w2go:
        v_lshrrev_b32 v4, 4, v1
        v_and_b32 v5, 15, v1
        v_lshlrev_b32 v6, 1, v4
        v_xor_b32 v6, v6, v5
        v_mul_u32_u24 v7, 1280, v4
        v_lshl_add_u32 v24, v6, 4, v7
        v_add_u32 v24, s76, v24
        v_xor_b32 v25, 0x80, v24
        s_lshl_b32 s65, s59, 8
        s_mul_i32 s61, s61, 1280
        s_mul_i32 s62, s62, 1280
        s_add_u32 s61, s61, s65
        s_add_u32 s62, s62, s65""")
    def a_dma():
        for m in range(8):
            b.e(f"s_add_u32 m0, s50, {m * 1024}" + (f"\ns_addk_i32 s{61 + (m >> 2)}, 5120" if m & 3 else ""))
            ta = b.vm(f"buffer_load_dwordx4 v{24 + (m & 1)}, {SRC}, s{61 + (m >> 2)} offen nt lds")
        return ta
    if not OPT.get('alate', 1): ta = a_dma()
    else: b.e('s_mov_b32 s54, s61\ns_mov_b32 s53, s62\ns_mov_b32 s52, s4\ns_mov_b32 s51, s5')
    b.e(f"""s_lshl_b32 s56, s2, 2
        s_add_u32 s56, s56, s{sW}
        s_cmp_lt_u32 s56, 378
        s_cselect_b32 s67, 0, {OOB}
        s_cselect_b32 s56, s56, 0
        s_mul_i32 s60, s56, 9363
        s_lshr_b32 s60, s60, 16
        s_mul_i32 s68, s60, 7
        s_sub_u32 s68, s56, s68
        s_and_b32 s69, s60, 1
        s_lshr_b32 s60, s60, 1
        s_cmp_eq_u32 s69, 0
        s_cselect_b32 s4, s{P_WG}, s{P_WU}
        s_cselect_b32 s5, s{P_WG+1}, s{P_WU+1}
        v_lshrrev_b32 v6, 3, v1
        v_and_b32 v7, 7, v1
        v_bfe_u32 v8, v1, 4, 1
        v_lshlrev_b32 v8, 1, v8
        v_xor_b32 v7, v7, v8
        v_mul_u32_u24 v6, 3456, v6
        v_lshl_add_u32 v12, v7, 4, v6
        v_add_u32 v12, s67, v12
        v_xor_b32 v13, 0x40, v12
        s_cmp_eq_u32 s68, 6
        s_cselect_b32 s56, {OOB}, 0
        v_or_b32 v14, s56, v12
        v_or_b32 v15, s56, v13
        s_mul_i32 s61, s68, {96 * 3456}
        s_lshl_b32 s62, s60, 7
        s_add_u32 s61, s61, s62""")
    tb = []
    def bdma(m):
        b.e(f"s_add_u32 m0, s50, {8192 + m * 1024}" + ("\ns_addk_i32 s61, 27648" if m else "\ns_nop 0"))
        tb.append(b.vm(f"buffer_load_dwordx4 v{(14 if m >= 8 else 12) + (m & 1)}, {SRC}, s61 offen nt lds"))
    NB1 = OPT.get('nb1', 0)
    for m in range(NB1): bdma(m)
    b.e("""s_mul_i32 s63, s63, 14
        s_lshl_b32 s56, s59, 3
        s_mul_i32 s57, s56, 205
        s_lshr_b32 s57, s57, 10
        s_mul_i32 s62, s57, 5
        s_sub_u32 s56, s56, s62
        s_cmp_lt_u32 s64, 12
        s_cselect_b32 s77, 3, 1
        s_cmp_lt_u32 s64, 8
        s_cselect_b32 s77, 7, s77""")
    for i3 in range(3):
        b.e(f"""s_mul_i32 s62, s57, {OPT.get('hrot', 1)}
            s_sub_u32 s70, s64, s62
            s_and_b32 s70, s70, s77
            s_andn2_b32 s71, s64, s77
            s_or_b32 s70, s70, s71
            s_mul_i32 s71, s57, 56
            s_add_u32 s71, s71, s63
            s_add_u32 s71, s71, s70
            s_mul_i32 s71, s71, 5
            s_add_u32 s71, s71, s56
            s_lshl_b32 s71, s71, 10
            s_add_u32 s{73 + i3}, s71, {W2P - 5 * i3 * 1024}
            s_add_u32 s57, s57, 1""")
    for t in range(8):
        b.e(f"""s_cmp_ge_u32 s56, {max(5 - t, 0)}
            s_cselect_b32 s71, s74, s73
            s_cmp_ge_u32 s56, {10 - t}
            s_cselect_b32 s71, s75, s71
            s_add_u32 s{16 + t}, s71, {t * 1024}""")
    b.e(f"""v_bfe_u32 v6, v1, 2, 2
        v_and_b32 v11, 1, v4
        v_lshl_add_u32 v11, v11, 2, v6
        v_lshlrev_b32 v11, 5, v11
        v_lshl_add_u32 v11, v6, 8, v11
        v_lshl_add_u32 v11, v4, 10, v11
        v_and_b32 v6, 3, v1
        v_lshl_add_u32 v11, v6, 3, v11
        v_add_u32 v11, s50, v11
        v_lshlrev_b32 v9, 4, v1
        v_add_u32 v10, s66, v9
        """)
    if OPT.get('alate', 1):
        b.e('s_mov_b32 s70, s61\ns_mov_b32 s71, s4\ns_mov_b32 s72, s5\ns_mov_b32 s61, s54\ns_mov_b32 s62, s53\ns_mov_b32 s4, s52\ns_mov_b32 s5, s51')
        ta = a_dma()
        b.e('s_mov_b32 s61, s70\ns_mov_b32 s4, s71\ns_mov_b32 s5, s72')
    b.wait(vm=ta)
    stamp(b, 'pkA_loaded')
    tk = []
    for t in range(8):
        b.e(f"v_xor_b32 v{98 + t}, {t << 5}, v11")
        b.lg(f"ds_read_b64_tr_b16 {vr(64 + 4 * t, 2)}, v{98 + t}")
        tk.append(b.lg(f"ds_read_b64_tr_b16 {vr(66 + 4 * t, 2)}, v{98 + t} offset:4096"))
    for t in range(8):
        b.wait(lg=tk[t])
        sa = b.vm(f"buffer_store_dwordx4 {vr(64 + 4 * t, 4)}, v10, {WS}, s{16 + t} offen sc1")
    rt = ld_ready(b, True)
    NB2 = OPT.get('nb2', 6)
    for m in range(NB1, NB2): bdma(m)
    for t in range(4):
        T, J, TA, BS, STR = 62, 63, 64, 24 + 2 * t, 25 + 2 * t
        b.e(f"""s_lshl_b32 s{T}, s60, 2
            s_add_u32 s{T}, s{T}, {t}
            s_mul_i32 s{J}, s{T}, 9363
            s_lshr_b32 s{J}, s{J}, 16
            s_mul_i32 s{TA}, s{J}, 7
            s_sub_u32 s{TA}, s{T}, s{TA}
            s_cmp_eq_u32 s{J}, 15
            s_cselect_b32 s65, 2, 4
            s_cselect_b32 s56, 2, 6
            s_mul_i32 s57, s65, 40
            s_mul_i32 s3, s56, 40
            s_cmp_eq_u32 s{TA}, s56
            s_cselect_b32 s{STR}, 1, 2
            s_cselect_b32 s57, s3, s57
            s_cselect_b32 s56, s56, s65
            s_cmp_lt_u32 s{TA}, s65
            s_cselect_b32 s{STR}, s65, s{STR}
            s_cselect_b32 s57, 0, s57
            s_cselect_b32 s56, 0, s56
            s_sub_u32 s{TA}, s{TA}, s56
            s_lshl_b32 s{TA}, s{TA}, 1
            s_add_u32 s{TA}, s{TA}, s69
            s_add_u32 s{TA}, s{TA}, s57
            s_lshl_b32 s{STR}, s{STR}, 11
            s_lshl_b32 s{TA}, s{TA}, 10
            s_and_b32 s56, s{J}, {1 if OPT.get('krot', 0) >= 2 else 3}
            s_mul_i32 s56, s56, {(0, 5, 10, 4, 2)[OPT.get('krot', 0)]}
            s_and_b32 s56, s56, -2
            s_mul_i32 s57, s68, 3
            s_add_u32 s57, s57, 20
            s_sub_u32 s{70 + t}, s57, s56
            s_mul_i32 s{J}, s{J}, {JSTR}
            s_add_u32 s{BS}, s{J}, s{TA}
            s_add_u32 s{BS}, s{BS}, {W1P}""")
    b.e(f"""v_bfe_u32 v6, v1, 2, 2
        v_bfe_u32 v7, v1, 3, 1
        v_and_b32 v8, 1, v4
        v_lshl_add_u32 v7, v8, 1, v7
        v_lshlrev_b32 v7, 5, v7
        v_lshl_add_u32 v7, v6, 7, v7
        v_lshl_add_u32 v7, v4, 10, v7
        v_and_b32 v6, 3, v1
        v_lshl_add_u32 v7, v6, 3, v7
        s_add_u32 s56, s50, 8192
        v_add_u32 v56, s56, v7
        v_xor_b32 v57, 32, v56
        v_xor_b32 v58, 64, v56
        v_xor_b32 v59, 0x60, v56
        v_add_u32 v96, s67, v9
        s_cmp_eq_u32 s68, 6
        s_cselect_b32 s56, {OOB}, s67
        v_add_u32 v97, s56, v9
        s_mov_b32 s3, 0x3f803f80
        v_mov_b32 v60, s3
        v_mov_b32 v61, s3
        v_mov_b32 v62, s3
        v_mov_b32 v63, s3""")
    poll(b, lambda bb: ld_ready(bb, True), COND_READY, rt)
    b.e("v_readfirstlane_b32 s0, v28\nv_readfirstlane_b32 s1, v29")
    b.e("s_barrier")
    arrive(b, FLP2, "s2")
    stamp(b, 'pkA_done')
    for m in range(NB2, 12): bdma(m)
    for k in range(3):
        b.wait(vm=tb[4 * k + 3])
        if k == 2: stamp(b, 'pk_loaded')
        tk = []
        for t in range(4):
            r = 128 + (k * 4 + t) * 4
            b.lg(f"ds_read_b64_tr_b16 {vr(r, 2)}, v{56 + t} offset:{k * 4096}")
            tk.append(b.lg(f"ds_read_b64_tr_b16 {vr(r + 2, 2)}, v{56 + t} offset:{k * 4096 + 512}"))
        for t in range(4):
            r = 128 + (k * 4 + t) * 4
            b.e(f"""s_add_u32 s56, s{70 + t}, {k}
                s_sub_u32 s57, s56, 20
                s_cmp_ge_u32 s56, 20
                s_cselect_b32 s56, s57, s56
                s_sub_u32 s57, s56, 20
                s_cmp_ge_u32 s56, 20
                s_cselect_b32 s56, s57, s56
                s_mul_i32 s56, s56, s{25 + 2 * t}
                s_add_u32 s57, s56, s{24 + 2 * t}""")
            b.wait(lg=tk[t])
            b.vm(f"buffer_store_dwordx4 {vr(r, 4)}, v{97 if k == 2 else 96}, {WS}, s57 offen sc1")
            b.e(f"v_mfma_f32_16x16x32_bf16 {vr(112 + 4 * t, 4)}, {vr(r, 4)}, v[60:63], {'0' if k == 0 else vr(112 + 4 * t, 4)}")
    b.e(f"""v_and_b32 v3, 3, v1
        v_cmp_eq_u32 s[62:63], 1, v3
        v_cmp_eq_u32 s[64:65], 2, v3
        v_cmp_eq_u32 vcc, 3, v3
        v_lshlrev_b32 v2, 4, v4
        v_lshl_add_u32 v2, v3, 6, v2
        v_add_u32 v2, s67, v2
        s_lshl_b32 s56, s68, 1
        s_add_u32 s56, s56, s69
        s_mul_i32 s56, s56, 7168
        s_lshl_b32 s57, s60, 8
        s_add_u32 s56, s56, s57
        s_add_u32 s56, s56, {CSP}""")
    for q in range(4):
        b.e(f"v_cndmask_b32 v{112 + q}, v{112 + q}, v{116 + q}, s[62:63]\nv_cndmask_b32 v{112 + q}, v{112 + q}, v{120 + q}, s[64:65]\nv_cndmask_b32 v{112 + q}, v{112 + q}, v{124 + q}, vcc")
    b.e("s_mov_b32 exec_lo, 0xf000f\ns_mov_b32 exec_hi, 0xf000f")
    b.vm(f"buffer_store_dwordx4 v[112:115], v2, {WS}, s56 offen sc1")
    b.e("s_mov_b64 exec, -1")
    stamp(b, 'pk_stored')
    b.wait_all()
    b.e("s_barrier")
    arrive(b, FLP, "s2")
    stamp(b, 'pack_done')

def arrive(b, base, idx, T='s3'):
    b.e(f"""s_lshl_b32 {T}, {idx}, 7
        s_add_u32 {T}, {T}, {base}
        s_lshl_b32 s55, s{sW}, 30
        v_lshl_add_u32 v26, v1, 3, s55
        v_mov_b32 v28, s0
        v_mov_b32 v29, s1
        s_mov_b64 exec, 0xffff""")
    t = b.vm(f"buffer_store_dwordx2 v[28:29], v26, {WS}, {T} offen sc1")
    b.e("s_mov_b64 exec, -1")
    return t

def ld_lines(base, n, R=28):
    def f(b):
        b.e(f"s_mov_b32 s55, {base}" if isinstance(base, int) else base)
        for k in range((n + 63) // 64):
            lim = n - 1 - 64 * k
            b.e((f"v_min_u32 v26, {lim}, v1\nv_lshlrev_b32 v26, 7, v26" if lim < 63 else "v_lshlrev_b32 v26, 7, v1") + (f"\nv_add_u32 v26, {8192 * k}, v26" if k else ""))
            t = b.vm(f"buffer_load_dwordx2 {vr(R + 2 * k, 2)}, v26, {WS}, s55 offen sc1")
        return t
    return f
def ld_quarter(base):
    return ld_lines(f"s_mul_i32 s55, s{sW}, {24 * 128}\ns_add_u32 s55, s55, {base}", 24)
def cond_lines(n, R=28):
    t = []
    for k in range((n + 63) // 64):
        t.append(f"v_xor_b32 v{R + 2 * k}, s0, v{R + 2 * k}\nv_xor_b32 v{R + 1 + 2 * k}, s1, v{R + 1 + 2 * k}")
        t.append(f"v_or3_b32 v26, v26, v{R + 2 * k}, v{R + 1 + 2 * k}" if k else f"v_or_b32 v26, v{R}, v{R + 1}")
    return "\n".join(t) + "\nv_cmp_ne_u32 vcc, 0, v26"

L2E, L2E_LO, LN2 = 0x3FB8AA3B, 0x32A57060, 0x3F317218
def cmul(b, o, x, w, t):
    b.e(f"v_pk_mul_f32 {vr(t,2)}, {vr(x,2)}, {vr(w,2)} op_sel_hi:[1,0]")
    b.e(f"v_pk_fma_f32 {vr(o,2)}, {vr(x,2)}, {vr(w,2)}, {vr(t,2)} op_sel:[1,1,0] op_sel_hi:[0,1,1] neg_lo:[0,1,0]")

CSTR, SPB, UB = 2368, 9472, 11008
def conv(b, xtok, pt):
    b.e("L_conv:")
    stamp(b, 'c_in')
    VX, VS, VU, SG, XR, RR, BND = 192, 193, 194, 196, 212, 228, 244
    RB = "s76"
    if OPT.get('wpf', 0) == 1: w_prefetch(b)
    ln1_addr(b)
    if OPT.get('xat', 0) == 1: xtok = x_dma(b, True)
    b.e(f"""s_mul_i32 {RB}, s{sW}, {RSTR}
        v_lshl_add_u32 v10, v1, 3, {RB}
        v_and_b32 v2, 31, v1
        v_lshrrev_b32 v3, 5, v1
        v_lshl_add_u32 v3, v3, 4, {RB}
        v_lshrrev_b32 v11, 3, v2
        v_lshlrev_b32 v11, 2, v11
        v_and_b32 v12, 3, v2
        v_add_u32 v11, v11, v12
        v_bfe_u32 v12, v2, 2, 1
        s_mov_b32 s72, 0x86444200
        s_mov_b32 s73, 0xfedcba88
        v_lshlrev_b32 v16, 2, v11
        v_lshrrev_b64 v[16:17], v16, s[72:73]
        v_and_b32 v16, 15, v16
        v_add_u32 v16, 16, v16
        v_cmp_eq_u32 vcc, 1, v12
        v_cndmask_b32 v11, v11, v16, vcc
        v_add_u32 v13, 32, v2
        s_movk_i32 s3, 528
        v_mad_u32_u24 v11, v11, s3, v3
        v_mad_u32_u24 v13, v13, s3, v3
        v_sub_u32 v2, 63, v1
        v_lshl_add_u32 v12, v2, 4, {RB}
        v_lshl_add_u32 v253, v1, 4, {RB}
        v_and_b32 v250, 15, v1
        v_lshrrev_b32 v251, 4, v1
        v_sub_u32 v16, 2, v250
        v_and_b32 v16, 3, v16
        v_add_u32 v17, v250, v16
        v_sub_u32 v17, 18, v17
        v_lshlrev_b32 v17, 1, v17
        v_mul_u32_u24 v16, {CSTR}, v16
        v_add3_u32 v17, v17, v16, {RB}
        v_lshl_add_u32 v236, v251, 4, v17
        v_lshlrev_b32 v17, 5, v250
        v_lshl_add_u32 v17, v251, 4, v17
        s_add_u32 s3, {RB}, {UB}
        v_add_u32 v237, s3, v17
        s_add_u32 s3, {RB}, {SPB + 126}
        v_subrev_u32 v16, 1, v1
        v_and_b32 v16, -2, v16
        v_and_b32 v17, 1, v1
        v_mul_u32_u24 v17, 768, v17
        v_sub_u32 v17, v17, v16
        v_add_u32 v254, s3, v17
        v_subrev_u32 v255, 64, v254
        v_cmp_eq_u32 s[70:71], 0, v1
        s_sub_u32 s3, s3, 126
        v_writelane_b32 v254, s3, 0
        s_add_u32 s3, s3, 64
        v_writelane_b32 v255, s3, 0
        s_mov_b32 s72, 0x01028403
        s_mov_b32 s73, 0x8500
        v_lshlrev_b32 v16, 3, v1
        v_lshrrev_b64 v[16:17], v16, s[72:73]
        v_and_b32 v16, 0xff, v16
        v_lshl_add_u32 v252, v16, 4, {RB}
        v_lshrrev_b32 v2, 4, v0
        v_mul_u32_u24 v2, 40960, v2
        v_lshl_add_u32 v{VX}, v250, 4, v2
        v_lshlrev_b32 v{VS}, 4, v0
        s_movk_i32 s72, 4096
        s_movk_i32 s73, 8192
        v_lshlrev_b32 v{VU}, 2, v0
        v_add_u32 v{VU}, {UB + 512}, v{VU}
        v_add_u32 v{VU + 1}, {2 * RSTR}, v{VU}
        s_lshl_b32 s74, s50, 8
        s_add_u32 s75, s74, {XT}
        s_add_u32 s74, s74, {HT}
        s_lshr_b32 s{sC}, s50, 5
        s_add_u32 s{sC}, s{sC}, 3
        s_mul_i32 s3, s{sC}, 56
        s_mul_i32 s61, s{sW}, 14
        s_add_u32 s3, s3, s61
        s_mul_i32 s3, s3, 5120
        s_add_u32 s61, s3, {W2P}""")
    band = [f"v_lshlrev_b32 v16, 3, v251\nv_sub_u32 v16, v250, v16", "v_add_u32 v18, 36, v16\ns_mov_b32 s72, 0x1ff", "s_mov_b32 s73, 0\nv_add_u32 v19, 37, v16",
            "v_lshlrev_b64 v[20:21], v18, s[72:73]", "s_mov_b32 s72, 0x7f", "v_lshlrev_b64 v[22:23], v19, s[72:73]\ns_movk_i32 s73, 0x3f80",
            "v_mov_b32 v14, v250\nv_mov_b32 v15, v251"]
    for cl in range(2):
        for k in range(4):
            d = BND + 4 * cl + k
            band += [f"v_bfe_u32 v{d}, v{21 + 2 * cl}, {2 * k}, 2\nv_lshl_or_b32 v{d}, v{d}, 15, v{d}", f"v_and_b32 v{d}, 0x10001, v{d}\nv_mul_u32_u24 v{d}, s73, v{d}"]
    late = [l.strip() for l in f"""v_sub_u32 v16, 3, v14
        v_and_b32 v16, 3, v16
        v_add_u32 v17, v14, v16
        v_sub_u32 v17, 15, v17
        v_lshl_add_u32 v17, v15, 2, v17
        v_lshlrev_b32 v17, 1, v17
        v_mul_u32_u24 v16, 192, v16
        s_add_u32 s72, {RB}, {SPB}
        v_add3_u32 v5, v17, v16, s72
        v_lshlrev_b32 v17, 4, v14
        v_lshl_add_u32 v17, v15, 2, v17
        v_add_u32 v8, {RB}, v17
        v_lshrrev_b32 v17, 2, v14
        v_mul_u32_u24 v17, {RSTR}, v17
        v_lshl_add_u32 v17, v15, 5, v17
        v_and_b32 v16, 3, v14
        v_lshl_add_u32 v17, v16, 3, v17
        s_lshl_b32 s72, s{sW}, 7
        v_add_u32 v9, s72, v17""".split("\n")]
    fmap = [l.strip() for l in ffn_map(False).split("\n")]
    fmap = [l for l in fmap[:fmap.index(f"s_mul_i32 s58, s{sC}, 56")] if l and not l.startswith("v_lshlrev_b32 v4")]
    stamp(b, 'c_sm')
    b.wait_all(vm=False)
    b.e(f"""s_lshr_b32 s3, s{sW}, 1
        s_cmp_eq_u32 s3, 0
        s_cselect_b32 s62, s62, s63
        s_and_b32 s3, s{sW}, 1
        s_lshl_b32 s3, s3, 4
        s_lshr_b32 s62, s62, s3
        s_lshl_b32 s62, s62, 16
        s_mov_b32 s65, s65
        v_mov_b32 v14, s62
        s_lshl_b32 s66, s64, 16
        s_and_b32 s67, s64, 0xffff0000
        s_lshl_b32 s68, s65, 16
        s_and_b32 s69, s65, 0xffff0000
        s_mov_b32 s64, 0x{L2E:x}
        v_mul_f32 v15, s64, v14
        v_fma_f32 v16, v14, s64, -v15
        v_fmac_f32 v16, 0x{L2E_LO:x}, v14
        v_exp_f32 v15, v15
        v_mul_f32 v16, 0x{LN2:x}, v16
        v_fmac_f32 v15, v15, v16
        v_cvt_pk_bf16_f32 v15, v15, v15
        v_lshlrev_b32 v14, 16, v15""".replace("        s_mov_b32 s65, s65\n", ""))
    b.e(f"s_mov_b32 s{sW2}, s61")
    if OPT.get('wpf', 0) == 2: w_prefetch(b)
    AL, BE, CC, Z1, Z8, Z256, T, DB, X, X2, X4, X6, X8, X10, Y = range(0, 30, 2)
    R = lambda n, k: 32 + n * 32 + k
    stamp(b, 'kg_pre')
    b.wait(vm=pt[5])
    stamp(b, 'kg_par')
    for n in range(2):
        un = (lambda d, s: f"v_lshlrev_b32 v{d}, 16, v{s}") if n == 0 else (lambda d, s: f"v_and_b32 v{d}, 0xffff0000, v{s}")
        b.e("\n".join([un(R(n, AL), 4), un(R(n, BE), 5), un(R(n, DB), 6), un(R(n, DB) + 1, 7), un(R(n, CC), 8), un(R(n, CC) + 1, 9)]))
    for n in range(2):
        b.e(f"""v_mul_f32 v{R(n,AL)}, v14, v{R(n,AL)}
            v_mul_f32 v{R(n,BE)}, v14, v{R(n,BE)}
            v_pk_mul_f32 {vr(R(n,DB),2)}, {vr(R(n,DB),2)}, v[14:15] op_sel_hi:[1,0]
            v_mul_f32 v{R(n,AL)}, s64, v{R(n,AL)}
            v_mul_f32 v{R(n,BE)}, 0.15915494, v{R(n,BE)}""")
    b.e("v_lshlrev_b32 v4, 4, v1\nv_mov_b32 v6, v236\nv_mov_b32 v7, v237")
    for n in range(2): cmul(b, R(n, X), R(n, CC), R(n, DB), R(n, T))
    for (z, p) in ((Z8, 0x41000000), (Z1, None), (Z256, 0x43800000)):
        for n in range(2):
            e, ph = R(n, T), R(n, T) + 1
            if p is None: b.e(f"v_exp_f32 v{e}, v{R(n,AL)}\nv_fract_f32 v{ph}, v{R(n,BE)}")
            else: b.e(f"v_mul_f32 v{e}, 0x{p:x}, v{R(n,AL)}\nv_mul_f32 v{ph}, 0x{p:x}, v{R(n,BE)}\nv_exp_f32 v{e}, v{e}\nv_fract_f32 v{ph}, v{ph}")
        for n in range(2):
            b.e(f"v_cos_f32 v{R(n,z)}, v{R(n,T)+1}\nv_sin_f32 v{R(n,z)+1}, v{R(n,T)+1}")
        for n in range(2):
            b.e(f"v_pk_mul_f32 {vr(R(n,z),2)}, {vr(R(n,z),2)}, {vr(R(n,T),2)} op_sel_hi:[1,0]")
    pk = [0]
    def put(src, rows, neg=False):
        d = 16 + 2 * (pk[0] & 3); pk[0] += 1
        for n in range(2):
            b.e(f"v_cvt_pk_bf16_f32 v{d + n}, v{R(n,src)}, {'-' if neg else ''}v{R(n,src)+1}")
        for r in rows: b.lg(f"ds_write_b64 v10, {vr(d,2)} offset:{r * 528}")
    def mul(o, x, w):
        for n in range(2): b.e(f"v_pk_mul_f32 {vr(R(n,T),2)}, {vr(R(n,x),2)}, {vr(R(n,w),2)} op_sel_hi:[1,0]")
        for n in range(2): b.e(f"v_pk_fma_f32 {vr(R(n,o),2)}, {vr(R(n,x),2)}, {vr(R(n,w),2)}, {vr(R(n,T),2)} op_sel:[1,1,0] op_sel_hi:[0,1,1] neg_lo:[0,1,0]")
    stamp(b, 'kg_base')
    b.e("v_mov_b32 v24, 0x3f80\nv_mov_b32 v25, 0x3f80")
    b.lg(f"ds_write_b64 v10, v[24:25] offset:{32 * 528}")
    put(Z8, [33], True)
    lo = {}; chunks = ln1_a(b, xtok, 96, lo); step = [0]
    LNA, LNB_ = OPT.get('lna_at', 4), OPT.get('lnb_at', 14)
    def ld_st(bb):
        for q in range(4):
            t = bb.vm(f"buffer_load_dwordx4 {vr(SG + 4 * q, 4)}, v{VS}, {WS}, {('0', 's72', 's73', 's14')[q]} offen sc1")
        return t
    def nxt(o, x, w, rows, neg=False):
        mul(o, x, w); put(o, rows, neg); step[0] += 1
        for _ in range(OPT.get('lnr', 5)):
            if step[0] >= LNA and chunks: chunks.pop(0)()
        if step[0] == LNB_:
            assert not chunks
            ln1_b(b, lo['last']); b.e("s_movk_i32 s14, 12288")
        if step[0] == OPT.get('st_at', 56): lo['st'] = ld_st(b)
    cur = Z8
    for j in range(2, 32):
        nxt(Y, cur, Z8, [32 + j], True); cur = Y
    put(X, [0])
    keep = {2: X2, 4: X4, 6: X6, 8: X8, 10: X10}
    cur = X
    for o in range(1, 11):
        d = keep.get(o, Y)
        nxt(d, cur, Z1, [o]); cur = d
    for src, row in ((X, 16), (X2, 18), (X4, 20), (X6, 22), (X8, 24), (X10, 26)):
        nxt(src, src, Z256, [row])
    for r0 in (11, 27):
        for k, src in enumerate((X, X4, X8)):
            nxt(src, src, Z256, [r0 + k])
    for r0 in (14, 30, 15, 31):
        nxt(X, X, Z256, [r0])
    stok = lo.get('st')
    mul(X, X, Z256)
    b.wait_all(vm=False)
    stamp(b, 'kg_pow')
    tk = {}
    def rd(ks):
        r = 112 + (ks % 4) * 8
        b.lg(f"ds_read_b128 {vr(r,4)}, v11 offset:{32 * ks}")
        tk[ks] = b.lg(f"ds_read_b128 {vr(r+4,4)}, v13 offset:{32 * ks}")
    fill = [f"v_add_f32 v14, v{R(0,X)}, v{R(1,X)}"]
    for m in ("quad_perm:[1,0,3,2] row_mask:0xf", "quad_perm:[2,3,0,1] row_mask:0xf", "row_half_mirror row_mask:0xf", "row_mirror row_mask:0xf", "row_bcast:15 row_mask:0xa", "row_bcast:31 row_mask:0xc"):
        fill.append(f"v_add_f32_dpp v14, v14, v14 {m} bank_mask:0xf")
    fill += ["v_readlane_b32 s56, v14, 63", "v_mov_b32 v20, 0\nv_mov_b32 v21, 0", "v_mov_b32 v22, 0\nv_mov_b32 v23, 0"]
    for ks in range(3): rd(ks)
    cond = "\n".join(f"v_xor_b32 v2, s0, v{SG + 1 + 4 * q}\nv_xor_b32 v3, s1, v{SG + 3 + 4 * q}\n" + (f"v_or3_b32 v15, v2, v3, v15" if q else "v_or_b32 v15, v2, v3") for q in range(4))
    xt = []
    KC = OPT.get('kc', 11)
    for ks in range(16):
        r = 112 + (ks % 4) * 8
        b.wait(lg=tk[ks])
        b.e(f"v_mfma_f32_32x32x16_bf16 v[96:111], {vr(r,4)}, {vr(r+4,4)}, {'0' if ks == 0 else 'v[96:111]'}")
        if ks + 3 < 16: rd(ks + 3)
        if ks == OPT.get('st_ks', -1): stok = ld_st(b)
        if ks == KC:
            stamp(b, 'st_chk')
            poll(b, ld_st, cond + "\nv_cmp_ne_u32 vcc, 0, v15", stok)
            stamp(b, 'st_ok')
            for k in range(8):
                fill.append(f"v_and_b32 v{RR + 2 * k}, 0xffff0000, v{SG + 2 * k}\nv_lshlrev_b32 v{RR + 1 + 2 * k}, 16, v{SG + 2 * k}\nv_rcp_f32 v{RR + 2 * k}, v{RR + 2 * k}" + (f"\nv_mul_f32 v{RR - 1 + 2 * k}, -v{RR - 1 + 2 * k}, v{RR - 2 + 2 * k}" if k else ""))
            fill.append(f"v_mul_f32 v{RR + 15}, -v{RR + 15}, v{RR + 14}")
        if KC < ks <= KC + 4:
            q = ks - KC - 1
            xt.append(b.vm(f"buffer_load_dwordx4 {vr(XR + 4 * q, 4)}, v{VX}, {WS}, s75 offen sc1"))
            b.e("s_add_u32 s75, s75, 655360")
        if fill: b.e(fill.pop(0))
        if fill and ks > KC + 4: b.e(fill.pop(0))
    while len(xt) < 4:
        xt.append(b.vm(f"buffer_load_dwordx4 {vr(XR + 4 * len(xt), 4)}, v{VX}, {WS}, s75 offen sc1"))
        b.e("s_add_u32 s75, s75, 655360")
    for x in fill: b.e(x)
    stamp(b, 'kg_mfma')
    p2tok = ld_quarter(FLP2)(b)
    b.lg(f"ds_write_b128 v253, v[20:23] offset:{SPB}")
    b.lg(f"ds_write_b128 v253, v[20:23] offset:{SPB + 1024}")
    b.e("s_barrier")
    stamp(b, 'st1_seen')
    b.e("""v_cmp_eq_u32 vcc, 31, v1
        v_cndmask_b32 v24, 0, v96, s[70:71]
        v_cndmask_b32 v25, 0, v97, s[70:71]
        v_cndmask_b32 v18, 0, v98, s[70:71]
        v_cndmask_b32 v105, v105, v104, vcc
        v_cmp_eq_u32 vcc, 63, v1
        v_cndmask_b32 v19, 0, v110, s[70:71]
        v_writelane_b32 v110, s56, 0
        v_cndmask_b32 v106, v106, v104, vcc
        v_mov_b32_dpp v24, v24 row_shr:1 row_mask:0xf bank_mask:0xf bound_ctrl:1
        v_mov_b32_dpp v25, v25 row_shr:1 row_mask:0xf bank_mask:0xf bound_ctrl:1
        v_mov_b32_dpp v18, v18 row_shr:1 row_mask:0xf bank_mask:0xf bound_ctrl:1
        v_cvt_pk_bf16_f32 v14, v110, v111""")
    pats = [list(range(96, 107)), [107] * 3 + [108] * 3 + [109] * 5, [19] * 5 + [20] * 3 + [24, 25, 18]]
    for rnd, w in enumerate(pats):
        for c in range(4):
            d = 32 + ((rnd * 4 + c) % 8) * 4
            for k in range(4):
                b.e(f"v_cvt_pk_bf16_f32 v{d + k}, v{w[10 - c - 2 * k]}, v{w[9 - c - 2 * k]}")
            if rnd < 2: b.lg(f"ds_write_b128 v12, {vr(d,4)} offset:{c * CSTR + 64 + (1 - rnd) * 1024}")
        if rnd == 0:
            for c in range(4): b.lg(f"ds_write_b16 v254, v14 offset:{c * 190}")
        if rnd == 1:
            for c in range(4): b.lg(f"ds_write_b16_d16_hi v255, v14 offset:{c * 190}")
    b.e("s_mov_b64 exec, 63")
    for c in range(4): b.lg(f"ds_write_b128 v252, {vr(32 + c * 4, 4)} offset:{c * CSTR}")
    b.e("s_mov_b64 exec, -1")
    stamp(b, 'kgen_done')
    b.e("L_stage2:")
    XF, UF = 128, 160
    for q in range(4):
        b.wait(vm=xt[q])
        for k in range(4):
            b.e(f"v_lshlrev_b32 v{XF + 8 * q + 2 * k}, 16, v{XR + 4 * q + k}\nv_and_b32 v{XF + 8 * q + 2 * k + 1}, 0xffff0000, v{XR + 4 * q + k}")
        for k in range(4):
            rr = RR + 2 * (2 * q + (k >> 1))
            b.e(f"v_pk_fma_f32 {vr(UF + 8 * q + 2 * k, 2)}, {vr(XF + 8 * q + 2 * k, 2)}, {vr(rr, 2)}, {vr(rr, 2)} op_sel:[0,0,1] op_sel_hi:[1,0,1]")
        for c in range(4):
            b.e(f"v_cvt_pk_bf16_f32 v{SG + 4 * q + c}, v{UF + 8 * q + c}, v{UF + 8 * q + 4 + c}")
        for c in range(4):
            b.lg(f"ds_write_b32 v{VU + (c >> 1)}, v{SG + 4 * q + c} offset:{(c & 1) * RSTR + q * 1024}")
    rtok = {}
    ACC, VB, UA, DW, WF = 32, 64, 36, 196, 228
    def f_rd(it, k, r=None):
        d = 2 * it + 1 + 16 * k; r = (it & 1) * 16 + 4 * k if r is None else r
        b.lg(f"ds_read_b64 {ar(r, 2)}, v6 offset:{2080 - 32 * d}")
        rtok[(it, 'f', k)] = b.lg(f"ds_read_b64 {ar(r + 2, 2)}, v6 offset:{2080 - 32 * d + 8}")
    def v_rd(it, k):
        rtok[(it, 'v', k)] = b.lg(f"ds_read_b128 {vr(VB + (it & 1) * 32 + 4 * k, 4)}, v7 offset:{512 + 512 * k - 32 * (2 * it + 1)}")
    ulast = b.li - 1
    for k in range(4): f_rd(0, k)
    f_rd(0, 4, 32)
    if OPT.get('w2t', 0): w2_touch(b, False)
    poll(b, ld_quarter(FLP2), cond_lines(24), p2tok)
    b.wait(lg=ulast)
    b.e("s_barrier")
    stamp(b, 'conv_start')
    for k in range(8): v_rd(0, k)
    G = Gaps(b, spread=OPT.get('spread', 1))
    w2n = 0; W1AT = OPT.get('w1at', 99); W2AT = OPT.get('w2at', 0)
    tok = {}
    def y_out(ct, G_=None):
        G.add(f"v_cvt_pk_bf16_f32 v{64 + 2 * ct}, v{ACC + 4 * ct}, v{ACC + 4 * ct + 2}\nv_cvt_pk_bf16_f32 v{65 + 2 * ct}, v{ACC + 4 * ct + 1}, v{ACC + 4 * ct + 3}")
        G.add(lambda: b.lg(f"ds_write2st64_b32 v8, v{64 + 2 * ct}, v{65 + 2 * ct} offset0:{ct} offset1:{ct + 8}"), 2)
    for it in range(8):
        par = it & 1
        stamp(b, f'cv_{it}')
        if it < 7:
            for k in range(8):
                if k < 4: G.add(lambda k=k, it=it: f_rd(it + 1, k), 2)
                G.add(lambda k=k, it=it: v_rd(it + 1, k), 1)
        ex = []
        if it == 0:
            for x in band[:12]: G.add(x)
        if it == 1:
            for x in reversed(band[12:]): G.add(x, front=True)
            for x in late[:9]: G.add(x)
        if it == 3:
            for x in late[9:]: G.add(x)
        if it in (5, 6):
            for x in fmap[(it - 5) * 12:(it - 4) * 12 if it == 5 else None]: G.add(x)
        if it == 0:
            for cl in range(2):
                for t in range(4):
                    G.add(lambda cl=cl, t=t: tok.__setitem__('u', b.lg(f"ds_read_b128 {ar(UA + 16 * cl + 4 * t, 4)}, v7 offset:{512 + 512 * t - (48 if cl == 0 else 32)}")), 1)
            ex = [(vr(ACC + 4 * ct, 4), ar(32, 4), vr(VB + 4 * (ct - 4), 4), vr(ACC + 4 * ct, 4)) for ct in range(4, 8)]
        if it == 1:
            ex = [(vr(DW + 16 * cl + 4 * t, 4), ar(UA + 16 * cl + 4 * t, 4), vr(BND + 4 * cl, 4), '0') for cl in range(2) for t in range(4)]
        if it == 2:
            for cl in range(2):
                for d in range(3, -1, -1):
                    G.add(lambda cl=cl, d=d: tok.__setitem__('t', b.lg(f"ds_read_b64 {ar(UA + 10 * cl + 2 * (3 - d), 2)}, v5 offset:{768 * cl + 96 - 32 * d}")), 1)
                G.add(f"v_accvgpr_write_b32 a{UA + 10 * cl + 8}, 0\nv_accvgpr_write_b32 a{UA + 10 * cl + 9}, 0")
            for cl in range(2):
                for t in range(4):
                    G.add(f"v_cvt_pk_bf16_f32 v{WF + 8 * cl + 2 * t}, v{DW + 16 * cl + 4 * t}, v{DW + 16 * cl + 4 * t + 1}\nv_cvt_pk_bf16_f32 v{WF + 8 * cl + 2 * t + 1}, v{DW + 16 * cl + 4 * t + 2}, v{DW + 16 * cl + 4 * t + 3}")
        if it in (3, 4):
            cl = it - 3
            ex = [(vr(ACC + 4 * ct, 4), vr(WF + 8 * cl + 4 * kk, 4), ar(UA + 10 * cl + 2 * (3 - (ct - 4 - 2 * kk)), 4), vr(ACC + 4 * ct, 4)) for kk in range(2) for ct in range(4 + 2 * kk, 8)]
        if it >= 4:
            q = it - 4
            for k in range(8): G.add(f"v_fma_f32 v{XF + 8 * q + k}, v{UF + 8 * q + k}, s{66 + (k & 3)}, v{XF + 8 * q + k}")
        if it == W1AT:
            G.add(f"v_lshlrev_b32 v2, 7, v0\nv_min_u32 v2, {230 * 128}, v2"); G.add(f"s_mul_i32 s3, s{sSI}, {231 * 128}\ns_add_u32 s3, s3, s{sDMA}")
            G.add(lambda: (b.e(f"s_sub_u32 s3, s3, s{sM0}"), b.vm(f"buffer_load_dword a252, v2, {WS}, s3 offen sc1")), 2)
        if it >= W2AT:
            for _ in range(-(-(OPT.get('w2n', 40) - w2n) // (8 - it))):
                G.addv(lambda m=w2n: w2_load(b, m)); w2n += 1
        if it == 6: G.add(lambda: tok.__setitem__('p1', ld_quarter(FLP)(b)), 2)
        G.begin(26 + len(ex))
        order = [(i, ct) for i in range(4) for ct in range(i, 8)]
        if it == 7: order = [(i, ct) for ct in range(8) for i in range(min(ct, 3) + 1)]
        pend = []
        for cnt, (i, ct) in enumerate(order):
            c = '0' if (it == 0 and i == 0) else vr(ACC + 4 * ct, 4)
            G.now(lambda: b.wait(lg=max(rtok[(it, 'f', i)], rtok[(it, 'v', ct - i)])), 1)
            G.mfma(f"v_mfma_f32_16x16x32_bf16 {vr(ACC + 4 * ct, 4)}, {ar(par * 16 + 4 * i, 4)}, {vr(VB + par * 32 + 4 * (ct - i), 4)}, {c}")
            if pend and cnt >= pend[0][0]:
                y_out(pend.pop(0)[1])
            G.fill()
            if it == 7 and i == min(ct, 3): pend.append((cnt + 4, ct))
        for x in ex:
            G.mfma("v_mfma_f32_16x16x32_bf16 %s, %s, %s, %s" % x)
            G.fill()
        if it == 7:
            poll(b, ld_quarter(FLP), cond_lines(24), tok['p1'])
            for _, ct in pend: y_out(ct)
        G.flush()
        if it < 7: b.wait(lg=b.li - 1)
    stamp(b, 'conv_end')
    b.e("s_mov_b32 s56, 0x3f80\ns_mov_b32 s57, 0x3f800000")
    b.wait_all(vm=False)
    stamp(b, 'y_written')
    b.e("s_barrier")
    stamp(b, 'y_bar')
    yt = []
    for q in range(4):
        b.lg(f"ds_read_b64_tr_b16 {vr(80 + 4 * q, 2)}, v9 offset:{512 * q}")
        yt.append(b.lg(f"ds_read_b64_tr_b16 {vr(82 + 4 * q, 2)}, v9 offset:{512 * q + 2048}"))
    def h_pack(q):
        for k in range(4):
            b.e(f"v_cvt_pk_bf16_f32 v{96 + 4 * q + k}, v{XF + 8 * q + 2 * k}, v{XF + 8 * q + 2 * k + 1}")
        t = b.vm(f"buffer_store_dwordx4 {vr(96 + 4 * q, 4)}, v{VX}, {WS}, s74 offen sc1")
        b.e("s_add_u32 s74, s74, 655360")
        return t
    for q in range(4):
        b.wait(lg=yt[q])
        for k in range(8):
            b.e(f"v_dot2_f32_bf16 v{XF + 8 * q + k}, v{80 + 4 * q + (k >> 1)}, s{56 + (k & 1)}, v{XF + 8 * q + k}")
        if q: h_pack(q - 1)
    hs = h_pack(3)
    stamp(b, 'h_stored')
    return None, hs

from ffn import ffn_map, preload, ffn

def build():
    _lab[0] = 0
    b = B()
    xtok, b3, pt = entry(b)
    b2 = b.fork()
    pack(b2)
    if OPT['stop'] in ('pack', 'conv'): (b2.e("s_add_u32 s2, s2, 160"), stamp_dump(b2), b2.e("s_endpgm"))
    b2.e(ffn_map(True))
    poll(b2, ld_quarter(FLP2), cond_lines(24))
    b2.e("s_barrier")
    if OPT.get('hw2t', 0):
        w2_touch(b2, False)
        b2.wait_all(lg=False)
    HW = OPT.get('hw2', 28)
    for m in range(HW): w2_load(b2, m)
    stamp(b2, 'w2_issued')
    poll(b2, ld_quarter(FLP), cond_lines(24), sleep=OPT.get('psl', 4))
    b2.e("s_barrier")
    stamp(b2, 'p1_seen')
    preload(b2, 0, 36)
    for m in range(HW, 40): w2_load(b2, m)
    if OPT.get('buddy', 1):
        sk = lab("bd")
        b2.e(f"s_cmp_lg_u32 s{sW}, 0\ns_cbranch_scc1 {sk}")
        poll(b2.fork(), ld_lines(f"s_lshl_b32 s55, s2, 7\ns_add_u32 s55, s55, {FLH}", 1), cond_lines(1), sleep=OPT.get('bsl', 2))
        b2.e(f"{sk}:")
    b2.e("s_add_u32 s2, s2, 160\ns_branch L_g1")
    packtok, hs = conv(b3, xtok, pt)
    if OPT['stop'] in ('pack', 'conv'): (stamp_dump(b3), b3.e("s_endpgm"))
    b3.e("s_barrier")
    preload(b3, 0, OPT.get('pre1', 12))
    b3.wait(vm=hs)
    b3.e("s_barrier")
    arrive(b3, FLH, "s50")
    stamp(b3, 'h_arrive')
    preload(b3, OPT.get('pre1', 12), 36)
    for m in range(OPT.get('w2n', 40), 40): w2_load(b3, m)
    b3.e(f"s_add_u32 s{sSI}, s{sSI}, 3\nL_g1:")
    b4 = B(); b4.L = b.L; b4.vi = 100
    ffn(b4)
    b.e("L_exit:\ns_endpgm\nL_code_end:")
    lines, nn = hazard_pass(b.L, verbose=OPT.get('verbose', False))
    if OPT.get('align', 1):
        lines = align_pass([KN + ':'] + lines, nop_cost=OPT.get('nopc', 4.0))[0][1:]
    hdr = open(os.path.join(os.path.dirname(os.path.abspath(__file__)), "header.txt")).read()
    out = hdr + (f"; stamps: {','.join(OPT['stamps'])}\n" if OPT['stamps'] else "") + "; @launch grid=(256,1,1) block=(256,1,1) lds=163840\n"
    out += f'.amdgcn_target "amdgcn-amd-amdhsa--gfx950"\n.text\n.globl {KN}\n.p2align 8\n.type {KN},@function\n{KN}:\n'
    out += "\n".join(("" if l.endswith(":") else "    ") + l for l in lines)
    out += f"""
.section .rodata,"a"
.p2align 6
.amdhsa_kernel {KN}
  .amdhsa_next_free_vgpr 512
  .amdhsa_next_free_sgpr 102
  .amdhsa_accum_offset 256
  .amdhsa_group_segment_fixed_size 0
  .amdhsa_kernarg_size 128
  .amdhsa_user_sgpr_count 2
  .amdhsa_user_sgpr_kernarg_segment_ptr 1
  .amdhsa_system_sgpr_workgroup_id_x 1
.end_amdhsa_kernel
"""
    return out, nn, len(lines)

if __name__ == "__main__":
    import ffn as _f
    for a in sys.argv[2:]:
        k, v = a.split("=")
        OPT[k] = eval(v)
    out, nn, nl = build()
    open(sys.argv[1], "w").write(out)
    print(f"wrote {sys.argv[1]}: {nl} lines, {nn} hazard nops")
```

```python
sPAN, sDMA, sM0, sW2, sH0 = 60, 61, 62, 63, 64
sROT = 59
sHP, sSTK = 68, 72
CSB = 162816
A_PAN, A_RING, A_W2 = 0, 48, 80
V_ACC1, V_ACC2, V_ACC3, V_PAN = 32, 96, 128, 144
V_G2, V_HR = 144, 32

def ffn_map(helper):
    if helper:
        t = f"""s_lshr_b32 s76, s2, 3
            s_mul_i32 s{sJ}, s76, 43
            s_lshr_b32 s{sJ}, s{sJ}, 7
            s_mul_i32 s58, s{sJ}, 3
            s_sub_u32 s{sSI}, s76, s58
            s_and_b32 s58, s{sXCD}, 1
            s_mul_i32 s58, s58, 3
            s_add_u32 s{sI}, s{sSI}, s58
            s_mul_i32 s{sROT}, s{sSI}, 3
            s_lshr_b32 s{sC}, s76, 2
            """
    else:
        t = f"""s_lshr_b32 s76, s50, 3
            s_mul_i32 s{sJ}, s76, 52
            s_lshr_b32 s{sJ}, s{sJ}, 8
            s_mul_i32 s58, s{sJ}, 5
            s_sub_u32 s{sSI}, s76, s58
            s_and_b32 s58, s{sXCD}, 1
            s_mul_i32 s58, s58, 5
            s_add_u32 s58, s58, s{sSI}
            s_add_u32 s{sI}, s58, 6
            s_mov_b32 s{sROT}, 0
            s_lshr_b32 s{sC}, s76, 2
            s_add_u32 s{sC}, s{sC}, 3
            """
    return t + f"""s_lshr_b32 s58, s{sXCD}, 1
        s_lshl_b32 s58, s58, 2
        s_add_u32 s{sJ}, s{sJ}, s58
        s_and_b32 s76, s76, 3
        s_lshl_b32 s{sRHO}, s{sXCD}, 2
        s_add_u32 s{sRHO}, s{sRHO}, s76
        v_lshlrev_b32 v4, 4, v1
        s_lshl_b32 s{sM0}, s{sW}, 12
        s_mul_i32 s{sDMA}, s{sJ}, {JSTR}
        s_add_u32 s{sDMA}, s{sDMA}, s{sM0}
        s_add_u32 s{sDMA}, s{sDMA}, {W1P}
        s_mul_i32 s58, s{sC}, 56
        s_mul_i32 s{sW2}, s{sW}, 14
        s_add_u32 s58, s58, s{sW2}
        s_mul_i32 s{sW2}, s58, 5120
        s_add_u32 s{sW2}, s{sW2}, {W2P}"""

def w2_touch(b, late):
    nl = 60 if late else 80
    b.e(f"""s_and_b32 s3, s{sRHO}, 3
        s_mul_i32 s3, s3, {nl * 128}
        s_add_u32 s3, s3, s{sW2}
        v_lshlrev_b32 v2, 7, v1""")
    if late:
        b.e(f"s_add_u32 s3, s3, 4096\nv_min_u32 v2, {59 * 128}, v2")
        b.vm(f"buffer_load_dword a253, v2, {WS}, s3 offen sc1")
    else:
        b.e(f"v_add_u32 v3, 0x2000, v2\nv_min_u32 v3, {79 * 128}, v3")
        b.vm(f"buffer_load_dword a253, v2, {WS}, s3 offen sc1")
        b.vm(f"buffer_load_dword a254, v3, {WS}, s3 offen sc1")

def dma_w1(b, n):
    blk, k = n >> 2, n & 3
    if k == 0:
        b.e(f"s_add_u32 m0, s{sM0}, {(blk % 9) * 16384}\ns_addk_i32 s{sDMA}, 16384")
    return b.vm(f"buffer_load_dwordx4 v4, {WS}, s{sDMA} offen offset:{k * 1024} sc1 lds")

def w2_load(b, m):
    n, dt = divmod(m, 5)
    if m and m % 4 == 0: b.e(f"s_addk_i32 s{sW2}, 4096")
    return b.vm(f"buffer_load_dwordx4 {ar(A_W2 + (n % 8) * 20 + dt * 4, 4)}, v4, {WS}, s{sW2} offen offset:{(m % 4) * 1024} sc1")

def preload(b, lo, hi, order=None):
    for n in range(lo, hi):
        if order is not None:
            if n % 4 == 0 or n == lo: b.e(f"s_add_u32 m0, s{sM0}, {order[n // 4] * 16384}\ns_add_u32 s58, s{sDMA}, {order[n // 4] * 16384}")
            b.vm(f"buffer_load_dwordx4 v4, {WS}, s58 offen offset:{(n & 3) * 1024} sc1 lds")
            continue
        if n % 4 == 0:
            b.e(f"""s_lshl_b32 s56, s{sROT}, 14
                s_add_u32 m0, s{sM0}, s56
                s_add_u32 s57, s{sDMA}, s56
                s_add_u32 s{sROT}, s{sROT}, 1
                s_cmp_eq_u32 s{sROT}, 9
                s_cselect_b32 s{sROT}, 0, s{sROT}""")
        b.vm(f"buffer_load_dwordx4 v4, {WS}, s57 offen offset:{(n & 3) * 1024} sc1 lds")
    if hi == 36:
        b.e(f"""s_add_u32 s{sDMA}, s{sDMA}, {8 * 16384}
            v_cmp_lt_u32 vcc, 111, v0
            v_mov_b32 v2, 0
            v_mov_b32 v3, {7168 - 448}
            v_cndmask_b32 v2, v2, v3, vcc
            v_lshl_add_u32 v2, v0, 2, v2
            s_mul_i32 s56, s{sJ}, 448
            s_add_u32 s56, s56, {CSP}""")
        for k in range(7):
            b.vm(f"buffer_load_dword v{16 + k}, v2, {WS}, s56 offen sc1")
            b.e("s_addk_i32 s56, 14336")

def ffn(b):
    b.e(f"""v_add_u32 v5, 0x10000, v4
        v_add_u32 v6, 0x20000, v4
        v_and_b32 v2, 15, v1
        v_lshrrev_b32 v3, 4, v1
        v_lshlrev_b32 v7, 4, v2
        v_lshl_add_u32 v7, v3, 9, v7
        v_lshlrev_b32 v8, 4, v3
        v_add_u32 v8, {CSB}, v8
        v_lshlrev_b32 v9, 4, v2
        s_lshl_b32 s56, s{sI}, 2
        s_add_u32 s56, s56, s{sW}
        s_mul_i32 s{sPAN}, s56, 40960
        s_add_u32 s74, s{sPAN}, {HT}
        s_add_u32 s75, s74, 40960
        s_and_b32 s57, s{sJ}, {1 if OPT.get('krot', 0) >= 2 else 3}
        s_mul_i32 s57, s57, {(0, 5, 10, 4, 2)[OPT.get('krot', 0)]}
        s_lshr_b32 s57, s57, 1
        s_lshl_b32 s57, s57, 12
        s_add_u32 s{sPAN}, s74, s57
        s_lshl_b32 s{sSTK}, s56, 8
        s_add_u32 s{sSTK}, s{sSTK}, {ST2}
        s_mul_i32 s56, s56, {2 * 56 * 1024}
        s_add_u32 s56, s56, {HP}""")
    for k in range(2):
        b.e(f"""s_lshl_b32 s57, s{sJ}, 1
            s_add_u32 s57, s57, {k}
            s_and_b32 s58, s57, 3
            s_mul_i32 s58, s58, 14
            s_lshr_b32 s57, s57, 2
            s_add_u32 s57, s57, s58
            s_lshl_b32 s57, s57, 10
            s_add_u32 s{sHP + k}, s56, s57""")
    for k in range(2):
        b.e(f"s_mov_b32 s57, s{sJ}" if k == 0 else f"s_lshr_b32 s57, s{sJ}, 1")
        b.e(f"""s_and_b32 s58, s57, 3
            s_mul_i32 s58, s58, 14
            s_lshr_b32 s57, s57, 2
            s_add_u32 s57, s57, s58
            s_add_u32 s57, s57, {8 + 4 * k}
            s_lshl_b32 s57, s57, 10
            s_add_u32 s{sHP + 2 + k}, s56, s57""")
    b.e(f"""s_and_b32 s57, s{sJ}, 1
        s_mul_i32 s57, s57, {56 * 1024}
        s_add_u32 s{sHP + 3}, s{sHP + 3}, s57""")
    for k in range(4):
        b.e(f"""s_xor_b32 s57, s{sW}, {k}
            s_lshl_b32 s58, s{sRHO}, 2
            s_add_u32 s57, s57, s58
            s_mul_i32 s57, s57, 56
            s_mul_i32 s58, s{sW}, 14
            s_add_u32 s57, s57, s58
            s_lshl_b32 s57, s57, 10
            s_add_u32 s{sH0 + k}, s57, {HP}""")
    stamp(b, 'pre_issued')
    sk = lab("np")
    b.e(f"s_cmp_lg_u32 s{sW}, 0\ns_cbranch_scc1 {sk}")
    poll(b.fork(), ld_lines(FLH, 160, 10), cond_lines(160, 10))
    b.e(f"{sk}:")
    b.wait_all()
    b.e(f"""v_add_f32 v16, v16, v17
        v_add_f32 v18, v18, v19
        v_add_f32 v20, v20, v21
        v_add_f32 v16, v16, v22
        v_add_f32 v18, v18, v20
        v_lshlrev_b32 v2, 2, v0
        v_add_u32 v2, {CSB}, v2
        v_add_f32 v16, v16, v18
        ds_write_b32 v2, v16
        s_waitcnt lgkmcnt(0)""")
    b.e("s_barrier")
    stamp(b, 'g1_start')
    sk = lab("dz")
    b.e(f"""s_cmp_lg_u32 s2, 255
        s_cbranch_scc1 {sk}
        s_mov_b32 s14, 128
        v_mov_b32 v16, 0
        v_lshlrev_b32 v17, 2, v0
        buffer_store_dword v16, v17, {OUT}, 0 offen sc1
        {sk}:""")
    mk_srd(b, 12, P_OUT, 2621440)
    if OPT['stop'] == 'pre': stamp_dump(b); b.e("s_endpgm")
    b.e(f"s_cmp_eq_u32 s{sJ}, 15\ns_cbranch_scc1 L_j15")
    g12(b.fork(), 4, 2, False)
    b.e("L_j15:")
    g12(b.fork(), 2, 0, True)

def flag_store(b, base):
    b.e(f"s_lshl_b32 s16, s{sI}, 4\ns_add_u32 s16, s16, s{sJ}")
    arrive(b, base, "s16", "s16")
def ld_flags(base):
    return ld_lines(f"s_lshr_b32 s55, s{sRHO}, 1\ns_lshl_b32 s55, s55, 11\ns_add_u32 s55, s55, {base}", 16)
COND_FLAG = cond_lines(16)
def ld_st2(b):
    return b.vm(f"buffer_load_dwordx4 v[28:31], v9, {WS}, s{sSTK} offen sc1")
COND_ST2 = "v_xor_b32 v26, s0, v29\nv_xor_b32 v27, s1, v31\nv_or_b32 v26, v26, v27\nv_cmp_ne_u32 vcc, 0, v26"

def M(fn):
    fn.mem = True; return fn

def g12(b, np1, np2, stats):
    NK = 20
    ptok = {}
    VT = V_ACC1 if stats else V_ACC2
    VS_ = 96
    def preg(k): return V_PAN + 8 * k if k < 14 else VT + 8 * (k - 14)
    def pan(k, s, first):
        return vr(preg(k) + 4 * s, 4) if (k < 14 or first) else ar(A_PAN + 8 * (k - 14) + 4 * s, 4)
    def pan_load(k):
        if k and k % 2 == 0:
            b.e(f"s_addk_i32 s{sPAN}, 4096")
            if OPT.get('krot', 0): b.e(f"s_cmp_eq_u32 s{sPAN}, s75\ns_cselect_b32 s{sPAN}, s74, s{sPAN}")
        for p in range(2):
            ptok[k] = b.vm(f"buffer_load_dwordx4 {vr(preg(k) + 4 * p, 4)}, v7, {WS}, s{sPAN} offen offset:{(k & 1) * 2048 + p * 256} sc1")
    def pan_fix(k):
        b.wait(vm=ptok[k])
        r = preg(k)
        b.e(f"v_swap_b32 v{r + 2}, v{r + 4}\nv_swap_b32 v{r + 3}, v{r + 5}")
        return [f"v_accvgpr_write_b32 a{A_PAN + 8 * (k - 14) + q}, v{r + q}" for q in range(8)] if k >= 14 else []
    def pan_load_ops(k):
        L = []
        if k and k % 2 == 0:
            L.append((f"s_addk_i32 s{sPAN}, 4096" + (f"\ns_cmp_eq_u32 s{sPAN}, s75\ns_cselect_b32 s{sPAN}, s74, s{sPAN}" if OPT.get('krot', 0) else ""), 1))
        for p in range(2):
            if OPT.get('nopan'): ptok[k] = 0; continue
            L.append((M(lambda p=p: ptok.__setitem__(k, b.vm(f"buffer_load_dwordx4 {vr(preg(k) + 4 * p, 4)}, v7, {WS}, s{sPAN} offen offset:{(k & 1) * 2048 + p * 256} sc1"))), 2))
        return L
    def pan_fix_ops(k):
        r = preg(k)
        L = [(lambda: b.wait(vm=ptok[k]), 1), (f"v_swap_b32 v{r + 2}, v{r + 4}", 2), (f"v_swap_b32 v{r + 3}, v{r + 5}", 2)]
        if OPT.get('emu32'): L = [L[0]] + [(f"v_permlane16_swap_b32 v{r + q}, v{r + q + 2}", 2) for q in (0, 1, 4, 5)]
        return L
    def pan_copy_ops(k):
        return [(f"v_accvgpr_write_b32 a{A_PAN + 8 * (k - 14) + q}, v{preg(k) + q}", 1) for q in range(8)] if k >= 14 else []
    LA = OPT.get('la', 5)
    for k in range(LA): pan_load(k)
    if OPT.get('ptouch'):
        P0 = OPT['ptouch']
        b.e(f"v_min_u32 v2, {(20 - P0) * 4 - 1}, v1\nv_lshlrev_b32 v2, 9, v2\ns_and_b32 s3, s{sJ}, 3\ns_lshl_b32 s3, s3, 7\ns_add_u32 s3, s3, s74\ns_add_u32 s3, s3, {P0 * 2048}")
        b.vm(f"buffer_load_dword a253, v2, {WS}, s3 offen sc1")
    nslot1, nslot2 = 2 * np1 * NK, 2 * (np2 + 1) * NK
    ftok = {}
    ring = dict(vis=9, free=0, rd=-1, used=-1)
    def frag_read(n):
        if n >= nslot1 + nslot2: return
        assert n // 16 < ring['vis'], ("ring RAW", n)
        pos = (n % 144) * 1024
        ftok[n] = b.lg(f"ds_read_b128 {ar(A_RING + (n % 8) * 4, 4)}, v{4 + (pos >> 16)} offset:{pos & 0xffff}")
    FA = OPT.get('fa', 7); WG_ = OPT.get('wg', 4)
    b.e(f"v_add_u32 v24, {56 * 1024}, v4")
    if stats:
        b.e("s_mov_b32 s3, 0x3f803f80\nv_mov_b32 v12, s3\nv_mov_b32 v13, s3\nv_mov_b32 v14, s3\nv_mov_b32 v15, s3")
        pan_fix(0)
        for k in range(NK):
            if k + LA < NK: pan_load(k + LA)
            cp = pan_fix(k + 1) if k + 1 < NK else []
            for s in range(2):
                b.e(f"v_mfma_f32_16x16x32_bf16 {vr(VS_ + 4 * s, 4)}, v[12:15], {pan(k, s, True)}, {'0' if k == 0 else vr(VS_ + 4 * s, 4)}")
                b.e(f"v_mfma_f32_16x16x32_bf16 {vr(VS_ + 8 + 4 * s, 4)}, {pan(k, s, True)}, {pan(k, s, True)}, {'0' if k == 0 else vr(VS_ + 8 + 4 * s, 4)}")
            for c in cp: b.e(c)
        b.e("""v_and_b32 v2, 3, v1
            v_cmp_eq_u32 s[56:57], 1, v2
            v_cmp_eq_u32 s[58:59], 2, v2
            v_cmp_eq_u32 s[74:75], 3, v2
            v_bfe_u32 v2, v1, 2, 2
            v_lshrrev_b32 v3, 4, v1
            v_cmp_eq_u32 s[76:77], v2, v3""")
        for s in range(2):
            g = VS_ + 8 + 4 * s
            b.e(f"v_cndmask_b32 v{g}, v{g}, v{g+1}, s[56:57]\nv_cndmask_b32 v{g}, v{g}, v{g+2}, s[58:59]\nv_cndmask_b32 v{g}, v{g}, v{g+3}, s[74:75]")
            stats_finish(b, VS_ + 4 * s, g, 16 + 2 * s)
        b.e("v_mov_b32 v17, s0\nv_mov_b32 v19, s1\ns_mov_b64 exec, s[76:77]")
        b.vm(f"buffer_store_dwordx4 v[16:19], v9, {WS}, s{sSTK} offen sc1")
        b.e("s_mov_b64 exec, -1")
    for n in range(FA): frag_read(n)
    if not stats: pan_fix(0)
    dman = [36]
    dtok = {}
    def dma_next():
        if dman[0] < 72 and not stats:
            assert (dman[0] // 4 - 9 + 1) * 16 <= ring['free'], ("ring WAR", dman[0])
            dtok[dman[0]] = dma_w1(b, dman[0]); dman[0] += 1
    dq = [36]; m0cur = [None]
    def set_m0(want):
        if m0cur[0] != want: b.e(f"s_add_u32 m0, s{sM0}, {want & 0xffffffff}"); m0cur[0] = want
    def dma_ops():
        m = dq[0]
        if m >= 72 or stats: return []
        dq[0] += 1
        L = []
        want = ((m >> 2) % 9) * 16384
        if m % 4 == 0: L.append((lambda: (set_m0(want), b.e(f"s_addk_i32 s{sDMA}, 16384")), 2))
        def go():
            assert (m // 4 - 9 + 1) * 16 <= ring['free'], ("ring WAR", m)
            set_m0(want)
            dtok[m] = b.vm(f"buffer_load_dwordx4 v4, {WS}, s{sDMA} offen offset:{(m & 3) * 1024} sc1 lds") if not OPT.get('nodma') else b.vi - 1; dman[0] = m + 1
        L.append((M(go), 2))
        return L
    def ring_barrier(upto):
        if upto - 1 in dtok: b.wait(vm=dtok[upto - 1])
        else: assert upto == 36 or stats
        if not OPT.get('nobar'): b.e("s_barrier")
        ring['vis'] = max(ring['vis'], upto // 4); ring['free'] = ring['used'] + 1
    def epi_ops(acc, tau0, taus, dsts, pk, CA, CB):
        ops = []; st = {}
        def rd(ti):
            if ti >= len(taus): return
            c = (CA, CB)[ti & 1]
            b.lg(f"ds_read_b128 {vr(c, 4)}, v8 offset:{(tau0 + taus[ti]) * 64}")
            st[ti] = b.lg(f"ds_read_b128 {vr(c + 4, 4)}, v8 offset:{448 + (tau0 + taus[ti]) * 64}")
        st['rd'] = rd
        for ti, t in enumerate(taus):
            c0 = (CA, CB)[ti & 1]
            ops.append(lambda ti=ti: (b.wait(lg=st[ti]), rd(ti + 1) if CA != CB else None))
            for s in range(2):
                g = acc + ((t * 2 + 0) * 2 + s) * 4; u = acc + ((t * 2 + 1) * 2 + s) * 4
                if pk:
                    for (r, c) in ((g, c0), (g + 2, c0 + 2), (u, c0 + 4), (u + 2, c0 + 6)):
                        ops.append(lambda r=r, c=c, s=s: b.e(f"v_pk_fma_f32 {vr(r,2)}, {vr(c,2)}, v[12:13], {vr(r,2)} op_sel:[0,{s},0] op_sel_hi:[1,{s},1]"))
                else:
                    for q in range(4):
                        ops.append(lambda r=g + q, c=c0 + q, s=s: b.e(f"v_fmac_f32 v{r}, v{c}, v{12 + s}"))
                    for q in range(4):
                        ops.append(lambda r=u + q, c=c0 + 4 + q, s=s: b.e(f"v_fmac_f32 v{r}, v{c}, v{12 + s}"))
                if s == 1 and CA == CB: ops.append(lambda ti=ti: rd(ti + 1))
                for q in range(4):
                    ops.append(lambda r=g + q: b.e(f"v_max_f32 v{r}, 0, v{r}"))
                if pk:
                    for q in (0, 2):
                        ops.append(lambda r=g + q, u=u + q: b.e(f"v_pk_mul_f32 {vr(r,2)}, {vr(r,2)}, {vr(u,2)}"))
                else:
                    for q in range(4):
                        ops.append(lambda r=g + q, u=u + q: b.e(f"v_mul_f32 v{r}, v{r}, v{u}"))
                d, half, sreg, last = dsts[ti](s)
                for q in range(2):
                    ops.append(lambda d=d + q, r=g + 2 * q: b.e(f"v_cvt_pk_bf16_f32 v{d}, v{r}, v{r + 1}"))
                if last == 4:
                    ops.append(lambda d=d - 2, s=s, sreg=sreg: st.__setitem__('last', b.vm(f"buffer_store_dwordx4 {vr(d,4)}, v{4 if s == 0 else 24}, {WS}, s{sreg} offen sc1")))
                elif last == 2:
                    def hst(d=d - 2, sreg=sreg):
                        l = lab("hs")
                        b.e(f"s_bitcmp0_b32 s{sJ}, 1\ns_cbranch_scc1 {l}\nv_swap_b32 v{d}, v{d + 2}\nv_swap_b32 v{d + 1}, v{d + 3}\n{l}:")
                        st['last'] = b.vm(f"buffer_store_dwordx4 {vr(d,4)}, v4, {WS}, s{sreg} offen sc1")
                    ops.append(hst)
                if last: ops[-1].vm = True
        return [(o, 2 if getattr(o, 'vm', False) else 1) for o in ops], st
    def dst_pair(acc, ta, second, sreg):
        def f(s):
            base = acc + ((ta * 2 + 1) * 2 + s) * 4
            return (base + (2 if second else 0), second, sreg, 4 if second else 0)
        return f
    def dst_half(acc, t, sreg):
        def f(s): return (acc + (t * 2 + 1) * 8 + 2 * s, 0, sreg, 2 * s)
        return f
    d1 = [dst_pair(V_ACC1, 0, False, sHP), dst_pair(V_ACC1, 0, True, sHP), dst_pair(V_ACC1, 2, False, sHP + 1), dst_pair(V_ACC1, 2, True, sHP + 1)]
    ops, est = epi_ops(V_ACC1, 0, list(range(np1)), d1, OPT.get('pk1', 0), 16, 16)
    G = Gaps(b, spread=OPT.get('spread', 1))
    def addv(L, front=False):
        for it, c in (reversed(L) if front else L): G.addv(it, c, getattr(it, 'mem', False), front)
    n = 0
    tok = {}
    DS = OPT.get('ds', [0, 0, 0, 0, 1, 2, 1, 2, 1, 2, 1, 2, 1, 1, 1, 2, 2, 2, 2, 2])
    NT = nslot1 + nslot2
    pn = [LA]
    def slot(n, k, accb, t, mat, cap=None, first=False):
        if n % WG_ == 0: G.now(lambda: b.wait(lg=ftok[min(n + WG_ - 1, NT - 1)]), 1)
        if OPT.get('emu32'):
            a = accb + t * 16
            G.mfma(f"v_mfma_f32_32x32x16_bf16 {vr(a,16)}, {ar(A_RING + (n % 8) * 4, 4)}, {pan(k, mat, first)}, {'0' if (k == 0 and mat == 0) else vr(a,16)}")
            G.now(lambda: frag_read(n + FA), 1)
            c6 = OPT['emu32'] + (2 * (cap - 2) if cap else 0)
            G.fill(reserve=1 if (n + 1) % WG_ == 0 else 0, cap=c6); G.pos += 1
            ring['used'] = n
            return
        for s in range(2):
            a = accb + ((t * 2 + mat) * 2 + s) * 4
            G.mfma(f"v_mfma_f32_16x16x32_bf16 {vr(a,4)}, {ar(A_RING + (n % 8) * 4, 4)}, {pan(k, s, first)}, {'0' if k == 0 else vr(a,4)}")
            if s == 0: G.now(lambda: frag_read(n + FA), 1)
            G.fill(reserve=1 if (s == 1 and (n + 1) % WG_ == 0) else 0, cap=cap)
        ring['used'] = n
    for k in range(NK):
        if not stats:
            for _ in range(OPT.get('pr', [1] * 20)[k]):
                if pn[0] < NK:
                    addv(pan_load_ops(pn[0]))
                    pn[0] += 1
            if k + 1 < NK:
                fx = pan_fix_ops(k + 1)
                pos = min(len(G.q), 3)
                G.q[pos:pos] = [(c, it) for it, c in fx]
            for _ in range(DS[k]):
                addv(dma_ops())
            for it in pan_copy_ops(k): G.add(*it)
        T0 = OPT.get('t2at', 99)
        if k == T0 - 1:
            G.add(f"s_and_b32 s73, s{sRHO}, 3\ns_mul_i32 s73, s73, {60 * 128}"); G.add(f"s_add_u32 s73, s73, s{sW2}\nv_min_u32 v11, 5, v1")
            G.add(f"s_add_u32 s73, s73, {4096 - 768}\nv_lshlrev_b32 v11, 7, v11")
        if T0 <= k < T0 + 10:
            G.add("s_addk_i32 s73, 768"); G.add(lambda: b.vm(f"buffer_load_dword a253, v11, {WS}, s73 offen sc1"), 2)
        if k == OPT.get('t1at', 99) and not stats:
            G.add(f"s_mul_i32 s3, s{sSI}, {136 * 128}\ns_add_u32 s3, s3, s{sDMA}")
            G.add(f"s_sub_u32 s3, s3, s{sM0}\nv_lshlrev_b32 v2, 7, v0"); G.add(f"s_add_u32 s3, s3, 16384\nv_min_u32 v2, {135 * 128}, v2")
            G.add(lambda: b.vm(f"buffer_load_dword a252, v2, {WS}, s3 offen sc1"), 2)
        if k == NK - 2: G.add(lambda: tok.__setitem__('st2', ld_st2(b)), 2)
        if k == NK - 1: G.add(lambda: est['rd'](0), 2)
        G.begin(4 * np1)
        for t in range(np1):
            for mat in range(2):
                slot(n, k, V_ACC1, t, mat, first=not stats); n += 1
        G.flush()
        stamp(b, f'p1_{k}')
        if not stats and k in (3, 7, 11, 15, 19):
            ring_barrier(max(36, (dman[0] - 3) // 4 * 4))
    st2tok = tok['st2']
    stamp(b, 'p1_end')
    poll(b, ld_st2, COND_ST2, st2tok)
    b.e("v_lshlrev_b32 v12, 16, v28\nv_lshlrev_b32 v13, 16, v30\nv_xor_b32 v12, 0x80000000, v12\nv_xor_b32 v13, 0x80000000, v13")
    htok = {}; wtok = {}
    def g2_setup():
        return [l.strip().replace('|', '\n') for l in f"""s_mul_i32 s50, s{sC}, {1024 * OPT.get('hrot', 1)}
        s_cmp_eq_u32 s{sW}, 3|s_cselect_b32 s59, {7 * 1024}, -1|s_cselect_b32 s73, {3 * 1024}, -1
        v_and_b32 v2, 15, v1
        v_lshrrev_b32 v3, 4, v1
        v_lshlrev_b32 v14, 4, v2
        v_lshl_add_u32 v14, v3, 8, v14
        s_lshr_b32 s56, s{sW}, 1
        s_lshl_b32 s57, s{sRHO}, 1
        s_add_u32 s56, s56, s57
        s_and_b32 s57, s{sW}, 1
        s_mul_i32 s58, s56, 40960
        s_mul_i32 s3, s{sC}, 5120
        s_add_u32 s58, s58, s3
        s_lshl_b32 s3, s57, 3
        s_add_u32 s58, s58, s3
        s_add_u32 s74, s58, {HT}
        s_add_u32 s75, s74, 4096
        s_lshl_b32 s56, s56, 5
        s_add_u32 s56, s56, s57
        s_lshl_b32 s76, s56, 3
        s_add_u32 s76, s76, {ST2}
        s_mul_i32 s77, s56, 1280
        s_mul_i32 s3, s{sC}, 160
        s_add_u32 s77, s77, s3
        v_mul_u32_u24 v15, 2560, v2
        v_lshl_add_u32 v15, v3, 3, v15""".split("\n")]
    HD = OPT.get('hd', 4)
    def hreg(nn): return (32, 48, 64, 80, 224, 240)[nn % HD]
    def h_ops(nn):
        if nn >= 14: return []
        def addr():
            msk, base, dm = (7168, 0, 59) if nn < 8 else (3072, 8192, 73) if nn < 12 else (1024, 12288, None)
            b.e(f"s_add_u32 s56, s50, {nn * 1024}\ns_and_b32 s56, s56, {msk}")
            if dm: b.e(f"s_cmp_eq_u32 s56, s{dm}\ns_cselect_b32 s56, {OOB}, s56")
            if base: b.e(f"s_add_u32 s56, s56, {base}")
            b.e(f"v_add_u32 v{25 + (nn & 1) * 2}, s56, v4")
        L = [(addr, 2)]
        for tt in range(4):
            if OPT.get('noh'): htok[nn] = 0; continue
            L.append((M(lambda tt=tt: htok.__setitem__(nn, b.vm(f"buffer_load_dwordx4 {vr(hreg(nn) + tt * 4, 4)}, v{25 + (nn & 1) * 2}, {WS}, s{sH0 + tt} offen sc1"))), 2))
        return L
    stg = [40]; stok = {}; spos = {}; avail = []; freed = set(); NS = OPT.get('ns', 19)
    def release():
        for blk in range(0 if stats else 9, 14 if not stats else 5):
            if blk not in freed and 16 * (blk + 1) <= ring['free']:
                freed.add(blk); avail.extend((blk % 9) * 16384 + 1024 * q for q in range(4))
                if len(freed) == 1: avail.extend(147456 + 1024 * q for q in range(3))
    def stage_ops():
        m = stg[0]
        if m >= 40 + NS or not avail: return []
        stg[0] += 1
        a = avail.pop(0); spos[m] = a
        want = a - (m % 4) * 1024
        L = [(lambda: (set_m0(want), b.e(f"s_addk_i32 s{sW2}, 4096") if m % 4 == 0 else None), 1)]
        def go():
            set_m0(want)
            stok[m] = b.vm(f"buffer_load_dwordx4 v4, {WS}, s{sW2} offen offset:{(m % 4) * 1024} sc1 lds") if not OPT.get('nostage') else 0
        L.append((M(go), 2))
        return L
    P = dict(e1=36, xf=56, send=100, e2=102, xe=92, xr=84) if not stats else dict(e1=16, xf=26, send=38, e2=0, xe=38, xr=30)
    if not stats: P.update({k_: OPT[k_] for k_ in P if k_ in OPT})
    d2 = [dst_pair(V_ACC2, 0, False, sHP + 2), dst_pair(V_ACC2, 0, True, sHP + 2)]
    ops2, est2 = epi_ops(V_ACC2, np1, list(range(np2)), d2, False, 16, 16)
    ops3, est3 = epi_ops(V_ACC3, np1 + np2, [0], [dst_half(V_ACC3, 0, sHP + 3)], True, 16, 16)
    steps = [(2, k, np2, V_ACC2) for k in range(NK if np2 else 0)] + [(3, k, 1, V_ACC3) for k in range(NK)]
    XT_ = nslot2; X3 = XT_ - 2 * NK
    oi = o2 = 0; setup = g2_setup(); x = 0; hq = []; done = set()
    if stats: ring_barrier(36)
    release()
    def once(name, cond):
        if cond and name not in done: done.add(name); return True
        return False
    for (ps, k, npp, accb) in steps:
        x1 = x + 2 * npp
        if k % OPT.get('rk', 1) == 0 or ps == 3: addv(dma_ops())
        if k < 8: addv(dma_ops())
        hi = min(len(ops), -(-len(ops) * x1 // P['e1']))
        for it in ops[oi:hi]: G.add(*it)
        oi = hi
        setup_done = not setup
        if x >= P['e1']:
            for _ in range(6 if stats else 3 * npp):
                if setup: G.add(setup.pop(0))
        if np2 and once('rd2', x1 >= X3): G.add(lambda: est2['rd'](0), 2)
        if np2 and x >= X3:
            hi = min(len(ops2), -(-len(ops2) * (x1 - X3) // (P['e2'] - X3)))
            for it in ops2[o2:hi]: G.add(*it)
            o2 = hi
        if dq[0] >= 72 or stats:
            togo = min(40 + NS - stg[0], len(avail))
            for _ in range(-(-togo * 2 * npp // max(2 * npp, P['send'] - x))): addv(stage_ops())
        if once('res', x >= P['xr'] and setup_done):
            for dt in range(5):
                G.addv(lambda dt=dt: b.vm(f"buffer_load_dwordx2 {ar(240 + 2 * dt, 2)}, v14, {WS}, s{74 if dt < 4 else 75} offen offset:{(dt % 4) * 1024} sc1"))
        if once('eld', x1 >= P['xe'] - OPT.get('xel', 6)): G.add(lambda: tok.__setitem__('e', ld_flags(FLE)(b)), 4, front=True)
        if hq:
            for _ in range(-(-len(hq) * 2 * npp // (XT_ - x))):
                it = hq.pop(0); addv([it])
                if not getattr(it[0], 'mem', False) and hq: addv([hq.pop(0)])
                if not hq: break
        if x1 == XT_: G.add(lambda: est3['rd'](0), 2)
        ng = 4 * npp
        G.begin(ng)
        free2 = 2 * ng - 2 * npp - 2 * npp / WG_
        for t in range(npp):
            for mat in range(2):
                left = ng - 2 * (t * 2 + mat)
                need = G.need()
                cap = 2 if need <= free2 * left / ng else (3 if need <= (free2 + ng) * left / ng + 1 else 4 + need // left)
                slot(n, k, accb, t, mat, cap); n += 1
        G.flush()
        x = x1
        stamp(b, f'p{ps}_{k}')
        if once('fle', x >= P['xf']):
            b.wait(vm=est['last'])
            ring_barrier(72)
            flag_store(b, FLE); release()
            if stats: flag_store(b, FLM)
        if once('echk', x >= P['xe']):
            assert not setup
            poll(b, ld_flags(FLE), COND_FLAG, tok['e'])
            stamp(b, 'early_seen')
            hq = h_ops(0) + h_ops(1) + h_ops(2)
    assert 'res' in done and stg[0] == 40 + NS and oi == len(ops) and o2 == len(ops2), stg
    for it, _ in hq: it()
    stamp(b, 'p2_end')
    b.e(f"v_add_u32 v10, s{sM0}, v4\nv_add_u32 v5, s{sM0}, v5\nv_add_u32 v6, s{sM0}, v6")
    for o, _ in ops3: o()
    stamp(b, 'epi2_end')
    hmax = 7; hnext = 3
    NMF, NM, NF, NL = OPT.get('nmf', 0), OPT.get('nm', 5), OPT.get('nf', 2), OPT.get('nl', 8)
    wl = {}; direct = []; PL = OPT.get('pl', 2)
    def mid_flag():
        if not stats:
            b.wait(vm=est2['last'])
            b.e("s_barrier")
            flag_store(b, FLM)
    if NMF < 0: mid_flag()
    for nn in range(14):
        lim = min(nn + HD - 1, hmax, hnext + OPT.get('hb', 2) - 1)
        while hnext <= lim:
            addv(h_ops(hnext))
            hnext += 1
        if nn == max(NM - PL + 1, NF + 1): G.add(lambda: wtok.__setitem__('mid', ld_flags(FLM)(b)), 4, front=True)
        if 1 <= nn <= 6:
            for dt in range(5):
                m = (nn + 7) * 5 + dt
                if m in spos:
                    G.add(lambda m=m, nn=nn, dt=dt: (b.wait(vm=stok[39 + NS]), wl.__setitem__(nn + 7, b.lg(f"ds_read_b128 {ar(A_W2 + (nn - 1) * 20 + dt * 4, 4)}, v{(10, 5, 6)[spos[m] >> 16]} offset:{spos[m] & 0xffff}"))), 1)
                else: direct.append(m)
        D0 = OPT.get('d0', 7)
        if nn >= D0 and direct:
            for _ in range(-(-len(direct) // (11 - nn))):
                m = direct.pop(0); G.addv(lambda m=m: wtok.__setitem__(m // 5, w2_load(b, m)))
        if nn == 3: G.add(lambda: wtok.__setitem__('res', b.vm(f"buffer_load_dword v106, v9, {WS}, s76 offen sc1")), 2)
        if nn == max(NL - PL + 1, NM + 1): G.add(lambda: wtok.__setitem__('late', ld_flags(FLL)(b)), 4, front=True)
        if nn == 10:
            G.add(lambda: (b.wait(vm=wtok['res']), b.e("v_and_b32 v106, 0xffff0000, v106")), 2)
            G.add("v_rcp_f32 v106, v106")
            for dt in range(5):
                for k in range(2):
                    G.add(f"v_accvgpr_read_b32 v{96 + 2 * dt + k}, a{240 + 2 * dt + k}")
                    G.add(f"v_lshlrev_b32 v{108 + 4 * dt + 2 * k}, 16, v{96 + 2 * dt + k}\nv_and_b32 v{109 + 4 * dt + 2 * k}, 0xffff0000, v{96 + 2 * dt + k}")
            G.add("v_mul_f32 v106, v106, v106")
        if nn == 11:
            for q in (12, 13):
                G.add(lambda q=q: b.wait(vm=htok[q]), 1)
                for r in (hreg(q), hreg(q) + 8): G.add(f"v_swap_b32 v{r + 2}, v{r + 4}"); G.add(f"v_swap_b32 v{r + 3}, v{r + 5}")
        if nn == 9:
            for k in range(3): G.add(f"s_xor_b32 s56, s{sW}, {k + 1}\ns_mul_i32 s56, s56, 15360"); G.add(f"s_add_u32 s56, s56, 81920\nv_add_u32 v{16 + k}, s56, v4")
            G.add(f"s_mul_i32 s56, s{sW}, 15360\ns_add_u32 s56, s56, 81920"); G.add("v_add_u32 v19, s56, v4")
        def g2m(nn, tt, dt):
            a = V_G2 + (tt * 5 + dt) * 4
            G.mfma(f"v_mfma_f32_16x16x32_bf16 {vr(a,4)}, {ar(A_W2 + (nn % 8) * 20 + dt * 4, 4)}, {vr(hreg(nn) + tt * 4, 4)}, {'0' if nn == 0 else vr(a,4)}")
        if nn == 12 and OPT.get('ttail', 1):
            b.wait(vm=max(htok[13], wtok.get(13, -1)), lg=max(wl.values()))
            cnt = 0; pend = []
            for tt in (1, 2, 3, 0):
                for q in (12, 13):
                    for dt in range(5):
                        g2m(q, tt, dt); cnt += 1
                        if pend and cnt >= pend[0][0] and cnt % 2 == 0:
                            _, t2, d2_ = pend.pop(0)
                            b.lg(f"ds_write_b128 v{15 + t2}, {vr(V_G2 + (t2 * 5 + d2_) * 4, 4)} offset:{(t2 - 1) * 5120 + d2_ * 1024}")
                        if q == 13 and tt: pend.append((cnt + 5, tt, dt))
            for _, t2, d2_ in pend: b.lg(f"ds_write_b128 v{15 + t2}, {vr(V_G2 + (t2 * 5 + d2_) * 4, 4)} offset:{(t2 - 1) * 5120 + d2_ * 1024}")
            break
        b.wait(vm=max(htok[nn], wtok.get(nn, -1)), lg=wl.get(nn))
        G.begin(20)
        for dt in range(5):
            for tt in range(4):
                g2m(nn, tt, dt)
                G.fill()
        G.flush()
        stamp(b, f'g2_{nn}')
        if nn == NMF: mid_flag()
        if nn == NF:
            b.wait(vm=est3['last'])
            b.e("s_barrier")
            flag_store(b, FLL)
        if nn == NM:
            poll(b, ld_flags(FLM), COND_FLAG, wtok['mid']); hmax = 11
            stamp(b, 'mid_seen')
        if nn == NL:
            poll(b, ld_flags(FLL), COND_FLAG, wtok['late']); hmax = 13
            stamp(b, 'late_seen')
    stamp(b, 'g2_end')
    if not OPT.get('ttail', 1):
        for tt in range(1, 4):
            for dt in range(5):
                b.lg(f"ds_write_b128 v{15 + tt}, {vr(V_G2 + (tt * 5 + dt) * 4, 4)} offset:{(tt - 1) * 5120 + dt * 1024}")
    b.wait_all(vm=False)
    b.e("s_barrier")
    rk = {}
    for dt in range(5):
        for k in range(3):
            rk[dt] = b.lg(f"ds_read_b128 {vr(32 + (dt * 3 + k) * 4, 4)}, v19 offset:{k * 5120 + dt * 1024}")
    for dt in range(5):
        b.wait(lg=rk[dt])
        a = V_G2 + dt * 4; r = 32 + dt * 12
        for h in (0, 2):
            b.e(f"v_pk_add_f32 {vr(a + h, 2)}, {vr(a + h, 2)}, {vr(r + h, 2)}")
            b.e(f"v_pk_add_f32 {vr(r + 4 + h, 2)}, {vr(r + 4 + h, 2)}, {vr(r + 8 + h, 2)}")
        for h in (0, 2):
            b.e(f"v_pk_add_f32 {vr(a + h, 2)}, {vr(a + h, 2)}, {vr(r + 4 + h, 2)}")
        for h in (0, 2):
            b.e(f"v_pk_fma_f32 {vr(a + h, 2)}, {vr(a + h, 2)}, v[106:107], {vr(108 + 4 * dt + h, 2)} op_sel_hi:[1,0,1]")
        b.e(f"v_cvt_pk_bf16_f32 v{a}, v{a}, v{a + 1}\nv_cvt_pk_bf16_f32 v{a + 1}, v{a + 2}, v{a + 3}")
        b.vm(f"buffer_store_dwordx2 {vr(a, 2)}, v15, {OUT}, s77 offen offset:{dt * 32} {OPT.get('outaux', '')}")
    if OPT.get('endwb'): b.e("s_waitcnt vmcnt(0)\nbuffer_wbl2 sc1")
    stamp(b, 'end')
    stamp_dump(b)
    b.e("s_endpgm")
```

```python
import sys, os
from asmlib import B, hazard_pass, align_pass, Gaps
KN = "sequential_preLN__ssm_conv_s4__glu_gated_reglu__prompt_kernel"
OPT = dict(stamps=False, stop=None, spin=1000000)

ST1, ST2 = 0, 16384
EPOCH = 32768
FLP2, FLP, FLH, FLE, FLL, FLM = 0x1520000, 0x1524000, 0x1528000, 0x1530000, 0x1538000, 0x1540000
CSP = 0x1500000
STAMP = 0xC000
XT, W1P, W2P, HP = 0x10000, 0x600000, 0xB00000, 0xE00000
HT = 0x300000
WS_STAMP = 0x1600000
WS_SIZE = 0x1700000
JSTR = 286720
P_X, P_ARE, P_AIM, P_BRE, P_BIM, P_CRE, P_CIM, P_LDT, P_DSK, P_BX, P_WG, P_WU, P_WD, P_OUT, P_DBG, P_WS = [16 + 2 * k for k in range(16)]
sW, sXCD, sI, sJ, sRHO, sC = 48, 49, 51, 52, 53, 54
sSI = 77
SRC = "s[4:7]"; WS = "s[8:11]"; OUT = "s[12:15]"
def sp(r): return f"s[{r}:{r+1}]"
def vr(r, n): return f"v[{r}:{r+n-1}]" if n > 1 else f"v{r}"
def ar(r, n): return f"a[{r}:{r+n-1}]" if n > 1 else f"a{r}"
RSTR = 33856
_lab = [0]
def lab(p):
    _lab[0] += 1; return f"L_{p}{_lab[0]}"

def stamp(b, name):
    if OPT.get('jitter') and name != 'top':
        l = lab("jt"); _lab[0] += 1
        b.e(f"""s_memtime s[98:99]
            s_waitcnt lgkmcnt(0)
            s_lshr_b32 s98, s98, 2
            s_mul_i32 s98, s98, 0x9e3779b1
            s_lshr_b32 s99, s98, 28
            s_bfe_u32 s98, s98, 0x30010
            s_cmp_eq_u32 s98, 0
            s_cselect_b32 s99, s99, 0
            s_mul_i32 s99, s99, {OPT['jitter']}
            {l}:
            s_cmp_eq_u32 s99, 0
            s_cbranch_scc1 {l}_e
            s_sleep 1
            s_sub_u32 s99, s99, 1
            s_branch {l}
            {l}_e:""")
        b.ld = b.li
    st = OPT['stamps']
    if not st or name not in st: return
    r = 78 + 2 * st.index(name)
    b.sm(f"{'s_memtime' if OPT.get('cyc') else 's_memrealtime'} s[{r}:{r+1}]")
def stamp_init(b):
    if OPT['stamps']:
        for r in range(78, 102, 2): b.e(f"s_mov_b64 s[{r}:{r+1}], 0")
def stamp_dump(b):
    if not OPT['stamps']: return
    if OPT.get('amplify'):
        sk = lab("am"); lo = lab("al")
        b.e(f"""s_waitcnt lgkmcnt(0)
            s_cmp_lg_u32 s2, 100
            s_cbranch_scc1 {sk}
            s_sub_u32 s56, s80, s78
            s_mul_i32 s56, s56, 10
            s_min_u32 s56, s56, 100000
            s_memrealtime s[58:59]
            s_waitcnt lgkmcnt(0)
            {lo}:
            s_memrealtime s[60:61]
            s_waitcnt lgkmcnt(0)
            s_sub_u32 s57, s60, s58
            s_cmp_lt_u32 s57, s56
            s_cbranch_scc1 {lo}
            {sk}:""")
        return
    if OPT.get('dbgdump'):
        sk = lab("dd")
        b.e(f"s_waitcnt lgkmcnt(0)\ns_cmp_lg_u32 s{sW}, 0\ns_cbranch_scc1 {sk}\ns_mov_b64 exec, 1\nv_mov_b32 v30, 0\ns_not_b32 s78, s78")
        for k in range(12):
            b.e(f"v_mov_b32 v31, s{78 + 2 * k}\nglobal_atomic_umax v30, v31, {sp(P_DBG)} offset:{4 * k + 4} sc1")
        b.e(f"{sk}:")
        return
    b.e(f"s_waitcnt lgkmcnt(0)\ns_lshl_b32 s3, s2, 2\ns_add_u32 s3, s3, s{sW}\ns_lshl_b32 s3, s3, 7\ns_add_u32 s3, s3, {WS_STAMP}\nv_mov_b32 v30, 0")
    for k in range(12):
        b.e(f"v_mov_b32 v31, s{78 + 2 * k}\nbuffer_store_dword v31, v30, {WS}, s3 offen offset:{4 * k}")

def poll(b, load, cond, tok=None, sleep=0):
    if tok is None: tok = load(b)
    b.wait(vm=tok)
    lo, ok = lab("poll"), lab("ok")
    b.e(cond)
    b.e(f"s_cbranch_vccz {ok}\ns_mov_b32 s3, 0\n{lo}:")
    if sleep or OPT.get('backoff', 0): b.e(f"s_sleep {sleep or OPT['backoff']}")
    f = b.fork(); load(f); f.wait_all(lg=False)
    b.e(cond)
    b.e(f"s_add_u32 s3, s3, 1\ns_cmp_gt_u32 s3, {OPT['spin']}\ns_cbranch_scc1 {ok}\ns_cbranch_vccnz {lo}\n{ok}:")

def ld_ready(b, every=False):
    b.e("v_mov_b32 v26, 0" if every else f"s_lshl_b32 s55, s{sW}, 8\nv_mov_b32 v26, s55")
    return b.vm(f"buffer_load_dwordx4 v[28:31], v26, {OUT}, 0 offen sc1")
COND_READY = "v_xor_b32 v26, v28, v30\nv_xor_b32 v27, v29, v31\nv_and_b32 v26, v26, v27\nv_cmp_ne_u32 vcc, -1, v26"

def code_prefetch(b, stage):
    if stage == 1:
        _lab[0] += 1
        b.e(f"""s_getpc_b64 s[76:77]
            L_pc{_lab[0]}:
            s_sub_u32 s76, s76, L_pc{_lab[0]}-{KN}
            s_subb_u32 s77, s77, 0
            s_lshr_b32 s55, s2, 3
            s_lshl_b32 s55, s55, 2
            s_add_u32 s55, s55, s{sW}
            s_and_b32 s55, s55, 31""")
    lo, hi = (KN, "L_stage2") if stage == 1 else ("L_stage2", "L_code_end")
    if OPT.get('cpf1', 1):
        if stage == 2: return
        hi = "L_code_end"
    nl = f"((({hi}-{lo})+4095)/4096)"
    b.e(f"""s_mul_i32 s3, s55, {nl}*128
        s_add_u32 s3, s3, {lo}-{KN}
        v_min_u32 v26, {nl}-1, v1
        v_lshl_add_u32 v26, v26, 7, s3
        s_mov_b32 s3, L_code_end-{KN}-4
        v_min_u32 v26, s3, v26""")
    b.vm(f"global_load_dword a{253 + stage}, v26, s[76:77]")

def mk_srd(b, r, ptr, size):
    b.e(f"s_mov_b32 s{r}, s{ptr}\ns_mov_b32 s{r+1}, s{ptr+1}\ns_mov_b32 s{r+2}, {size}\ns_mov_b32 s{r+3}, 0x20000")

LNB = 143104
LNS = LNB - 128
OOB = 0x40000000
def x_dma(c, late=False):
    so = "s59" if late else "s57"
    if late: c.e(f"v_lshl_add_u32 v26, v1, 4, s60\ns_mul_i32 s59, s50, 20480\ns_mul_i32 s3, s{sW}, 5120\ns_add_u32 s59, s59, s3")
    for p in range(2):
        if p: c.e(f"s_add_u32 m0, s58, 2592\ns_addk_i32 {so}, 2560")
        for k in range(3):
            if k == 2: c.e("s_mov_b32 exec_hi, 0")
            t = c.vm(f"buffer_load_dwordx4 {'v26' if late else 'v2'}, {SRC}, {so} offen offset:{k * 1024} nt lds")
        c.e("s_mov_b32 exec_hi, -1")
    return t
def entry(b):
    stamp_init(b)
    stamp(b, 'top')
    EV = OPT.get('ev', 0)
    ids = f"""v_lshrrev_b32 v2, 6, v0
        v_and_b32 v1, 63, v0
        v_readfirstlane_b32 s{sW}, v2
        s_and_b32 s{sXCD}, s2, 7"""
    consts = f"""s_mov_b32 s7, 0x20000
        s_mov_b32 s10, {WS_SIZE}
        s_mov_b32 s11, 0x20000
        s_movk_i32 s14, 128
        s_mov_b32 s15, 0x20000"""
    srd = f"""s_mov_b32 s4, s{P_X}
        s_mov_b32 s5, s{P_X + 1}
        s_mov_b32 s8, s{P_WS}
        s_mov_b32 s9, s{P_WS + 1}
        s_mov_b32 s12, s{P_DBG}
        s_mov_b32 s13, s{P_DBG + 1}"""
    xprep = f"""s_mov_b32 s50, s2
        s_cmp_lt_u32 s50, 128
        s_cselect_b32 s60, 0, {OOB}
        v_lshl_add_u32 v2, v1, 4, s60
        s_mul_i32 s57, s50, 20480
        s_mul_i32 s58, s{sW}, 5120
        s_add_u32 s57, s57, s58
        s_mul_i32 s58, s{sW}, 5184
        s_add_u32 s58, s58, {LNB}
        s_mov_b32 m0, s58
        s_mov_b32 s6, 2621440
        s_lshl_b32 s59, s50, 3"""
    b.e(f"""s_load_dwordx16 s[16:31], s[0:1], 0
        s_load_dwordx16 s[32:47], s[0:1], 64
        s_lshl_b32 s61, s2, 10
        v_lshl_add_u32 v3, v0, 2, s61
        s_cmp_ge_u32 s2, 160
        s_cbranch_scc1 L_help""")
    c = b.fork()
    if EV == 0: c.e(ids); code_prefetch(c, 1); c.e(xprep + "\n" + consts)
    if EV == 2: c.e(ids + "\n" + xprep + "\n" + consts)
    c.e("s_waitcnt lgkmcnt(0)")
    c.sm(f"s_load_dwordx2 s[62:63], {sp(P_LDT)}, s59\ns_load_dwordx2 s[64:65], {sp(P_DSK)}, s59")
    pt = []
    def par():
        for k, p in enumerate((P_ARE, P_AIM, P_BRE, P_BIM, P_CRE, P_CIM)):
            pt.append(c.vm(f"global_load_dword v{4 + k}, v3, {sp(p)} nt"))
    if not OPT.get('xfirst', 0): par()
    c.e(srd)
    t = x_dma(c)
    if OPT.get('xfirst', 0): par()
    stamp(c, 'start')
    c.e("s_branch L_conv")
    b.e(f"L_help:\ns_cmp_ge_u32 s2, 256\ns_cbranch_scc1 L_exit\n{ids}")
    code_prefetch(b, 1)
    b.e(consts + "\ns_waitcnt lgkmcnt(0)")
    b.e(f"""{srd}
        s_sub_u32 s2, s2, 160
        s_cmp_lg_u32 s2, 0
        s_cbranch_scc1 L_noinit
        s_cmp_lg_u32 s{sW}, 3
        s_cbranch_scc1 L_noinit
        v_mov_b32 v4, 0
        s_mov_b32 s56, {EPOCH}
        buffer_load_dwordx2 v[8:9], v4, {WS}, s56 offen sc1
        v_lshlrev_b32 v10, 4, v1
        s_waitcnt vmcnt(0)
        v_add_co_u32 v12, vcc, 1, v8
        v_addc_co_u32 v13, vcc, 0, v9, vcc
        v_not_b32 v14, v12
        v_not_b32 v15, v13
        buffer_store_dwordx4 v[12:15], v10, {OUT}, 0 offen sc1
        s_mov_b64 exec, 1
        buffer_store_dwordx2 v[12:13], v4, {WS}, s56 offen sc1
        s_mov_b64 exec, -1
        L_noinit:""")
    return t, c, pt

def ln1_addr(b):
    b.e(f"""v_and_b32 v2, 7, v1
        v_lshrrev_b32 v3, 3, v1
        v_mul_u32_u24 v240, 2592, v2
        v_lshl_add_u32 v240, v3, 3, v240
        s_lshl_b32 s3, s{sW}, 6
        s_add_u32 s3, s3, {LNB}
        v_add_u32 v240, s3, v240
        v_lshlrev_b32 v241, 8, v3
        v_lshl_add_u32 v241, v2, 4, v241
        s_lshl_b32 s3, s{sW}, 11
        s_add_u32 s3, s3, s60
        v_add_u32 v241, s3, v241
        v_lshrrev_b32 v2, 5, v1
        v_bfe_u32 v3, v1, 4, 1
        v_mul_u32_u24 v242, 2592, v2
        v_mul_u32_u24 v3, 1280, v3
        v_and_b32 v2, 15, v1
        v_lshl_add_u32 v242, v2, 4, v242
        v_add3_u32 v242, v242, v3, s58
        s_lshl_b32 s3, s{sW}, 4
        s_add_u32 s3, s3, {LNS}
        v_lshrrev_b32 v2, 4, v1
        v_lshl_add_u32 v243, v2, 2, s3
        s_lshr_b32 s57, s50, 1
        s_mul_i32 s57, s57, 40960
        s_and_b32 s3, s50, 1
        s_lshl_b32 s3, s3, 7
        s_add_u32 s57, s57, s3
        s_add_u32 s57, s57, {XT}""")

def ln1_a(b, xtok, R, out):
    A0 = R + 40
    tk = []; st = []; C = []
    def c0():
        b.e("s_mov_b32 s56, 0x3f803f80")
        b.wait(vm=xtok)
        b.e("s_barrier")
        stamp(b, 'ln_x')
        for k in range(5):
            b.lg(f"ds_read_b64 {vr(R + 4 * k, 2)}, v240 offset:{256 * k}")
            tk.append(b.lg(f"ds_read_b64 {vr(R + 4 * k + 2, 2)}, v240 offset:{256 * k + 1280}"))
    C.append(c0)
    def stores(ks):
        def f():
            for k in ks:
                b.wait(lg=tk[k])
                out['last'] = b.vm(f"buffer_store_dwordx4 {vr(R + 4 * k, 4)}, v241, {WS}, s57 offen sc1")
                b.e("s_addk_i32 s57, 8192")
                st.append(b.lg(f"ds_read_b128 {vr(R + 20 + 4 * k, 4)}, v242 offset:{256 * k}"))
            if 4 in ks: ld_ready(b)
        return f
    C += [stores([0, 1]), stores([2, 3]), stores([4])]
    def dots(g):
        def f():
            b.wait(lg=st[g])
            for k in range(4 * g, 4 * g + 4):
                r = R + 20 + k
                b.e(f"v_dot2_f32_bf16 v{A0 + (k & 1)}, v{r}, s56, {'0' if k < 2 else f'v{A0 + (k & 1)}'}")
                b.e(f"v_dot2_f32_bf16 v{A0 + 2 + (k & 1)}, v{r}, v{r}, {'0' if k < 2 else f'v{A0 + 2 + (k & 1)}'}")
        return f
    C += [dots(g) for g in range(5)]
    C.append(lambda: b.e(f"v_add_f32 v{A0}, v{A0}, v{A0 + 1}\nv_add_f32 v{A0 + 2}, v{A0 + 2}, v{A0 + 3}"))
    for m in ("quad_perm:[1,0,3,2]", "quad_perm:[2,3,0,1]", "row_half_mirror", "row_mirror"):
        C.append(lambda m=m: b.e(f"v_add_f32_dpp v{A0}, v{A0}, v{A0} {m} row_mask:0xf bank_mask:0xf\nv_add_f32_dpp v{A0 + 2}, v{A0 + 2}, v{A0 + 2} {m} row_mask:0xf bank_mask:0xf"))
    def fin():
        stats_finish(b, A0, A0 + 2, A0 + 1)
        b.e("s_mov_b32 exec_lo, 0x10001\ns_mov_b32 exec_hi, 0x10001")
        b.lg(f"ds_write_b32 v243, v{A0 + 1}")
        b.e("s_mov_b64 exec, -1")
        stamp(b, 'ln_a')
    C.append(fin)
    return C

def ln1_b(b, last):
    last = last + 1
    sk0 = lab("l0")
    b.wait(vm=last, lg=b.li - 1)
    stamp(b, 'ln_drain')
    b.e(f"s_cmp_lg_u32 s{sW}, 0\ns_cbranch_scc1 {sk0}")
    f = b.fork()
    poll(f, ld_ready, COND_READY, last)
    f.e(f"v_mov_b32 v2, {LNS + 64}\nds_write_b64 v2, v[28:29]\ns_waitcnt lgkmcnt(0)")
    b.e(f"{sk0}:\ns_barrier")
    b.e(f"""v_mov_b32 v2, {LNS + 64}
        v_and_b32 v26, 7, v1
        v_lshlrev_b32 v26, 3, v26
        v_add_u32 v26, {LNS}, v26""")
    b.lg("ds_read_b64 v[28:29], v2")
    t = b.lg("ds_read_b64 v[2:3], v26")
    b.e(f"""s_lshl_b32 s3, s{sW}, 30
        s_or_b32 s3, s3, s60
        v_lshl_add_u32 v27, v1, 4, s3
        s_lshl_b32 s56, s50, 7""")
    b.wait(lg=t)
    b.e(f"""v_readfirstlane_b32 s0, v28
        v_readfirstlane_b32 s1, v29
        v_mov_b32 v31, v29
        v_mov_b32 v29, v28
        v_mov_b32 v28, v2
        v_mov_b32 v30, v3
        s_mov_b64 exec, 0xff""")
    b.vm(f"buffer_store_dwordx4 v[28:31], v27, {WS}, s56 offen sc1")
    b.e("s_mov_b64 exec, -1")
    stamp(b, 'ln_done')

def w_prefetch(b):
    b.e(f"""s_lshr_b32 s3, s50, 3
        s_lshl_b32 s3, s3, 2
        s_add_u32 s3, s3, s{sW}
        s_min_u32 s3, s3, 71
        s_lshl_b32 s3, s3, 6
        v_add_u32 v140, s3, v1
        v_mul_u32_u24 v141, 43691, v140
        v_lshrrev_b32 v141, 22, v141
        v_mul_u32_u24 v142, 96, v141
        v_sub_u32 v140, v140, v142
        v_lshrrev_b32 v142, 2, v141
        v_and_b32 v141, 3, v141
        v_lshl_add_u32 v141, v142, 5, v141
        s_lshl_b32 s3, s{sXCD}, 2
        v_add_u32 v141, s3, v141
        v_min_u32 v141, 377, v141
        v_mul_u32_u24 v142, 9363, v141
        v_lshrrev_b32 v142, 16, v142
        v_mul_u32_u24 v143, 7, v142
        v_sub_u32 v141, v141, v143
        v_mad_u32_u24 v140, v141, 48, v140
        v_mad_u32_u24 v140, v141, 48, v140
        v_min_u32 v140, 639, v140
        v_mul_u32_u24 v140, 3456, v140
        v_lshrrev_b32 v143, 1, v142
        v_lshl_add_u32 v140, v143, 7, v140
        v_and_b32 v142, 1, v142
        v_cmp_eq_u32 vcc, 0, v142
        v_mov_b32 v142, s{P_WU}
        v_mov_b32 v143, s{P_WG}
        v_cndmask_b32 v142, v142, v143, vcc
        v_mov_b32 v141, s{P_WU + 1}
        v_mov_b32 v143, s{P_WG + 1}
        v_cndmask_b32 v143, v141, v143, vcc
        v_add_co_u32 v142, vcc, v142, v140
        v_addc_co_u32 v143, vcc, 0, v143, vcc""")
    b.vm("global_load_dword a251, v[142:143], off nt")

def stats_finish(b, vs, vq, vo):
    b.e(f"""s_mov_b32 s3, 0x3acccccd
        v_mul_f32 v{vs}, s3, v{vs}
        v_mul_f32 v{vq}, s3, v{vq}
        v_fma_f32 v{vq}, -v{vs}, v{vs}, v{vq}
        v_max_f32 v{vq}, 0, v{vq}
        v_cvt_pk_bf16_f32 v{vq}, v{vq}, v{vq}
        v_lshlrev_b32 v{vq}, 16, v{vq}
        v_add_f32 v{vq}, 0x3727c5ac, v{vq}
        v_cvt_pk_bf16_f32 v{vq}, v{vq}, v{vq}
        v_lshlrev_b32 v{vq}, 16, v{vq}
        v_sqrt_f32 v{vq}, v{vq}
        v_cvt_pk_bf16_f32 v{vo}, v{vs}, v{vq}""")

def pack(b):
    mk_srd(b, 4, P_WD, 2211840)
    b.e(f"""s_mul_i32 s50, s{sW}, 20480
        s_mul_i32 s56, s2, 3
        s_add_u32 s56, s56, s{sW}
        s_cmp_lt_u32 s{sW}, 3
        s_cselect_b32 s56, s56, 999
        s_cmp_lt_u32 s56, 270
        s_cselect_b32 s76, 0, {OOB}
        s_cmp_lt_u32 s56, 280
        s_cselect_b32 s66, 0, {OOB}
        s_cselect_b32 s56, s56, 0
        s_mul_i32 s60, s56, 13108
        s_lshr_b32 s60, s60, 16
        s_mul_i32 s59, s60, 5
        s_sub_u32 s59, s56, s59
        s_cmp_ge_u32 s60, 31
        s_cbranch_scc1 L_w2late
        s_lshr_b32 s61, s60, 1
        s_mul_i32 s61, s61, 112
        s_and_b32 s62, s60, 1
        s_lshl_b32 s62, s62, 5
        s_add_u32 s61, s61, s62
        s_add_u32 s62, s61, 16
        s_and_b32 s63, s60, 3
        s_lshr_b32 s64, s60, 2
        s_branch L_w2go
        L_w2late:
        s_sub_u32 s60, s60, 31
        s_mul_i32 s61, s60, 112
        s_add_u32 s61, s61, 64
        s_add_u32 s62, s61, 16
        s_sub_u32 s70, s60, 15
        s_mul_i32 s64, s70, 224
        s_add_u32 s64, s64, 96
        s_add_u32 s65, s64, 112
        s_min_u32 s65, s65, 1712
        s_bitcmp1_b32 s70, 0
        s_cselect_b32 s71, s65, s64
        s_cselect_b32 s65, s64, s65
        s_add_u32 s70, s70, 16
        s_cmp_lt_u32 s60, 15
        s_cselect_b32 s61, s61, s71
        s_cselect_b32 s62, s62, s65
        s_cselect_b32 s70, s60, s70
        s_and_b32 s63, s70, 3
        s_lshr_b32 s64, s70, 2
        s_add_u32 s64, s64, 8
        s_cmp_eq_u32 s60, 23
        s_cselect_b32 s63, 3, s63
        s_cselect_b32 s64, 11, s64
        s_cmp_eq_u32 s60, 24
        s_cselect_b32 s63, 3, s63
        s_cselect_b32 s64, 7, s64
        L_w2go:
        v_lshrrev_b32 v4, 4, v1
        v_and_b32 v5, 15, v1
        v_lshlrev_b32 v6, 1, v4
        v_xor_b32 v6, v6, v5
        v_mul_u32_u24 v7, 1280, v4
        v_lshl_add_u32 v24, v6, 4, v7
        v_add_u32 v24, s76, v24
        v_xor_b32 v25, 0x80, v24
        s_lshl_b32 s65, s59, 8
        s_mul_i32 s61, s61, 1280
        s_mul_i32 s62, s62, 1280
        s_add_u32 s61, s61, s65
        s_add_u32 s62, s62, s65""")
    def a_dma():
        for m in range(8):
            b.e(f"s_add_u32 m0, s50, {m * 1024}" + (f"\ns_addk_i32 s{61 + (m >> 2)}, 5120" if m & 3 else ""))
            ta = b.vm(f"buffer_load_dwordx4 v{24 + (m & 1)}, {SRC}, s{61 + (m >> 2)} offen nt lds")
        return ta
    if not OPT.get('alate', 1): ta = a_dma()
    else: b.e('s_mov_b32 s54, s61\ns_mov_b32 s53, s62\ns_mov_b32 s52, s4\ns_mov_b32 s51, s5')
    b.e(f"""s_lshl_b32 s56, s2, 2
        s_add_u32 s56, s56, s{sW}
        s_cmp_lt_u32 s56, 378
        s_cselect_b32 s67, 0, {OOB}
        s_cselect_b32 s56, s56, 0
        s_mul_i32 s60, s56, 9363
        s_lshr_b32 s60, s60, 16
        s_mul_i32 s68, s60, 7
        s_sub_u32 s68, s56, s68
        s_and_b32 s69, s60, 1
        s_lshr_b32 s60, s60, 1
        s_cmp_eq_u32 s69, 0
        s_cselect_b32 s4, s{P_WG}, s{P_WU}
        s_cselect_b32 s5, s{P_WG+1}, s{P_WU+1}
        v_lshrrev_b32 v6, 3, v1
        v_and_b32 v7, 7, v1
        v_bfe_u32 v8, v1, 4, 1
        v_lshlrev_b32 v8, 1, v8
        v_xor_b32 v7, v7, v8
        v_mul_u32_u24 v6, 3456, v6
        v_lshl_add_u32 v12, v7, 4, v6
        v_add_u32 v12, s67, v12
        v_xor_b32 v13, 0x40, v12
        s_cmp_eq_u32 s68, 6
        s_cselect_b32 s56, {OOB}, 0
        v_or_b32 v14, s56, v12
        v_or_b32 v15, s56, v13
        s_mul_i32 s61, s68, {96 * 3456}
        s_lshl_b32 s62, s60, 7
        s_add_u32 s61, s61, s62""")
    tb = []
    def bdma(m):
        b.e(f"s_add_u32 m0, s50, {8192 + m * 1024}" + ("\ns_addk_i32 s61, 27648" if m else "\ns_nop 0"))
        tb.append(b.vm(f"buffer_load_dwordx4 v{(14 if m >= 8 else 12) + (m & 1)}, {SRC}, s61 offen nt lds"))
    NB1 = OPT.get('nb1', 0)
    for m in range(NB1): bdma(m)
    b.e("""s_mul_i32 s63, s63, 14
        s_lshl_b32 s56, s59, 3
        s_mul_i32 s57, s56, 205
        s_lshr_b32 s57, s57, 10
        s_mul_i32 s62, s57, 5
        s_sub_u32 s56, s56, s62
        s_cmp_lt_u32 s64, 12
        s_cselect_b32 s77, 3, 1
        s_cmp_lt_u32 s64, 8
        s_cselect_b32 s77, 7, s77""")
    for i3 in range(3):
        b.e(f"""s_mul_i32 s62, s57, {OPT.get('hrot', 1)}
            s_sub_u32 s70, s64, s62
            s_and_b32 s70, s70, s77
            s_andn2_b32 s71, s64, s77
            s_or_b32 s70, s70, s71
            s_mul_i32 s71, s57, 56
            s_add_u32 s71, s71, s63
            s_add_u32 s71, s71, s70
            s_mul_i32 s71, s71, 5
            s_add_u32 s71, s71, s56
            s_lshl_b32 s71, s71, 10
            s_add_u32 s{73 + i3}, s71, {W2P - 5 * i3 * 1024}
            s_add_u32 s57, s57, 1""")
    for t in range(8):
        b.e(f"""s_cmp_ge_u32 s56, {max(5 - t, 0)}
            s_cselect_b32 s71, s74, s73
            s_cmp_ge_u32 s56, {10 - t}
            s_cselect_b32 s71, s75, s71
            s_add_u32 s{16 + t}, s71, {t * 1024}""")
    b.e(f"""v_bfe_u32 v6, v1, 2, 2
        v_and_b32 v11, 1, v4
        v_lshl_add_u32 v11, v11, 2, v6
        v_lshlrev_b32 v11, 5, v11
        v_lshl_add_u32 v11, v6, 8, v11
        v_lshl_add_u32 v11, v4, 10, v11
        v_and_b32 v6, 3, v1
        v_lshl_add_u32 v11, v6, 3, v11
        v_add_u32 v11, s50, v11
        v_lshlrev_b32 v9, 4, v1
        v_add_u32 v10, s66, v9
        """)
    if OPT.get('alate', 1):
        b.e('s_mov_b32 s70, s61\ns_mov_b32 s71, s4\ns_mov_b32 s72, s5\ns_mov_b32 s61, s54\ns_mov_b32 s62, s53\ns_mov_b32 s4, s52\ns_mov_b32 s5, s51')
        ta = a_dma()
        b.e('s_mov_b32 s61, s70\ns_mov_b32 s4, s71\ns_mov_b32 s5, s72')
    b.wait(vm=ta)
    stamp(b, 'pkA_loaded')
    tk = []
    for t in range(8):
        b.e(f"v_xor_b32 v{98 + t}, {t << 5}, v11")
        b.lg(f"ds_read_b64_tr_b16 {vr(64 + 4 * t, 2)}, v{98 + t}")
        tk.append(b.lg(f"ds_read_b64_tr_b16 {vr(66 + 4 * t, 2)}, v{98 + t} offset:4096"))
    for t in range(8):
        b.wait(lg=tk[t])
        sa = b.vm(f"buffer_store_dwordx4 {vr(64 + 4 * t, 4)}, v10, {WS}, s{16 + t} offen sc1")
    rt = ld_ready(b, True)
    NB2 = OPT.get('nb2', 6)
    for m in range(NB1, NB2): bdma(m)
    for t in range(4):
        T, J, TA, BS, STR = 62, 63, 64, 24 + 2 * t, 25 + 2 * t
        b.e(f"""s_lshl_b32 s{T}, s60, 2
            s_add_u32 s{T}, s{T}, {t}
            s_mul_i32 s{J}, s{T}, 9363
            s_lshr_b32 s{J}, s{J}, 16
            s_mul_i32 s{TA}, s{J}, 7
            s_sub_u32 s{TA}, s{T}, s{TA}
            s_cmp_eq_u32 s{J}, 15
            s_cselect_b32 s65, 2, 4
            s_cselect_b32 s56, 2, 6
            s_mul_i32 s57, s65, 40
            s_mul_i32 s3, s56, 40
            s_cmp_eq_u32 s{TA}, s56
            s_cselect_b32 s{STR}, 1, 2
            s_cselect_b32 s57, s3, s57
            s_cselect_b32 s56, s56, s65
            s_cmp_lt_u32 s{TA}, s65
            s_cselect_b32 s{STR}, s65, s{STR}
            s_cselect_b32 s57, 0, s57
            s_cselect_b32 s56, 0, s56
            s_sub_u32 s{TA}, s{TA}, s56
            s_lshl_b32 s{TA}, s{TA}, 1
            s_add_u32 s{TA}, s{TA}, s69
            s_add_u32 s{TA}, s{TA}, s57
            s_lshl_b32 s{STR}, s{STR}, 11
            s_lshl_b32 s{TA}, s{TA}, 10
            s_and_b32 s56, s{J}, {1 if OPT.get('krot', 0) >= 2 else 3}
            s_mul_i32 s56, s56, {(0, 5, 10, 4, 2)[OPT.get('krot', 0)]}
            s_and_b32 s56, s56, -2
            s_mul_i32 s57, s68, 3
            s_add_u32 s57, s57, 20
            s_sub_u32 s{70 + t}, s57, s56
            s_mul_i32 s{J}, s{J}, {JSTR}
            s_add_u32 s{BS}, s{J}, s{TA}
            s_add_u32 s{BS}, s{BS}, {W1P}""")
    b.e(f"""v_bfe_u32 v6, v1, 2, 2
        v_bfe_u32 v7, v1, 3, 1
        v_and_b32 v8, 1, v4
        v_lshl_add_u32 v7, v8, 1, v7
        v_lshlrev_b32 v7, 5, v7
        v_lshl_add_u32 v7, v6, 7, v7
        v_lshl_add_u32 v7, v4, 10, v7
        v_and_b32 v6, 3, v1
        v_lshl_add_u32 v7, v6, 3, v7
        s_add_u32 s56, s50, 8192
        v_add_u32 v56, s56, v7
        v_xor_b32 v57, 32, v56
        v_xor_b32 v58, 64, v56
        v_xor_b32 v59, 0x60, v56
        v_add_u32 v96, s67, v9
        s_cmp_eq_u32 s68, 6
        s_cselect_b32 s56, {OOB}, s67
        v_add_u32 v97, s56, v9
        s_mov_b32 s3, 0x3f803f80
        v_mov_b32 v60, s3
        v_mov_b32 v61, s3
        v_mov_b32 v62, s3
        v_mov_b32 v63, s3""")
    poll(b, lambda bb: ld_ready(bb, True), COND_READY, rt)
    b.e("v_readfirstlane_b32 s0, v28\nv_readfirstlane_b32 s1, v29")
    b.e("s_barrier")
    arrive(b, FLP2, "s2")
    stamp(b, 'pkA_done')
    for m in range(NB2, 12): bdma(m)
    for k in range(3):
        b.wait(vm=tb[4 * k + 3])
        if k == 2: stamp(b, 'pk_loaded')
        tk = []
        for t in range(4):
            r = 128 + (k * 4 + t) * 4
            b.lg(f"ds_read_b64_tr_b16 {vr(r, 2)}, v{56 + t} offset:{k * 4096}")
            tk.append(b.lg(f"ds_read_b64_tr_b16 {vr(r + 2, 2)}, v{56 + t} offset:{k * 4096 + 512}"))
        for t in range(4):
            r = 128 + (k * 4 + t) * 4
            b.e(f"""s_add_u32 s56, s{70 + t}, {k}
                s_sub_u32 s57, s56, 20
                s_cmp_ge_u32 s56, 20
                s_cselect_b32 s56, s57, s56
                s_sub_u32 s57, s56, 20
                s_cmp_ge_u32 s56, 20
                s_cselect_b32 s56, s57, s56
                s_mul_i32 s56, s56, s{25 + 2 * t}
                s_add_u32 s57, s56, s{24 + 2 * t}""")
            b.wait(lg=tk[t])
            b.vm(f"buffer_store_dwordx4 {vr(r, 4)}, v{97 if k == 2 else 96}, {WS}, s57 offen sc1")
            b.e(f"v_mfma_f32_16x16x32_bf16 {vr(112 + 4 * t, 4)}, {vr(r, 4)}, v[60:63], {'0' if k == 0 else vr(112 + 4 * t, 4)}")
    b.e(f"""v_and_b32 v3, 3, v1
        v_cmp_eq_u32 s[62:63], 1, v3
        v_cmp_eq_u32 s[64:65], 2, v3
        v_cmp_eq_u32 vcc, 3, v3
        v_lshlrev_b32 v2, 4, v4
        v_lshl_add_u32 v2, v3, 6, v2
        v_add_u32 v2, s67, v2
        s_lshl_b32 s56, s68, 1
        s_add_u32 s56, s56, s69
        s_mul_i32 s56, s56, 7168
        s_lshl_b32 s57, s60, 8
        s_add_u32 s56, s56, s57
        s_add_u32 s56, s56, {CSP}""")
    for q in range(4):
        b.e(f"v_cndmask_b32 v{112 + q}, v{112 + q}, v{116 + q}, s[62:63]\nv_cndmask_b32 v{112 + q}, v{112 + q}, v{120 + q}, s[64:65]\nv_cndmask_b32 v{112 + q}, v{112 + q}, v{124 + q}, vcc")
    b.e("s_mov_b32 exec_lo, 0xf000f\ns_mov_b32 exec_hi, 0xf000f")
    b.vm(f"buffer_store_dwordx4 v[112:115], v2, {WS}, s56 offen sc1")
    b.e("s_mov_b64 exec, -1")
    stamp(b, 'pk_stored')
    b.wait_all()
    b.e("s_barrier")
    arrive(b, FLP, "s2")
    stamp(b, 'pack_done')

def arrive(b, base, idx, T='s3'):
    b.e(f"""s_lshl_b32 {T}, {idx}, 7
        s_add_u32 {T}, {T}, {base}
        s_lshl_b32 s55, s{sW}, 30
        v_lshl_add_u32 v26, v1, 3, s55
        v_mov_b32 v28, s0
        v_mov_b32 v29, s1
        s_mov_b64 exec, 0xffff""")
    t = b.vm(f"buffer_store_dwordx2 v[28:29], v26, {WS}, {T} offen sc1")
    b.e("s_mov_b64 exec, -1")
    return t

def ld_lines(base, n, R=28):
    def f(b):
        b.e(f"s_mov_b32 s55, {base}" if isinstance(base, int) else base)
        for k in range((n + 63) // 64):
            lim = n - 1 - 64 * k
            b.e((f"v_min_u32 v26, {lim}, v1\nv_lshlrev_b32 v26, 7, v26" if lim < 63 else "v_lshlrev_b32 v26, 7, v1") + (f"\nv_add_u32 v26, {8192 * k}, v26" if k else ""))
            t = b.vm(f"buffer_load_dwordx2 {vr(R + 2 * k, 2)}, v26, {WS}, s55 offen sc1")
        return t
    return f
def ld_quarter(base):
    return ld_lines(f"s_mul_i32 s55, s{sW}, {24 * 128}\ns_add_u32 s55, s55, {base}", 24)
def cond_lines(n, R=28):
    t = []
    for k in range((n + 63) // 64):
        t.append(f"v_xor_b32 v{R + 2 * k}, s0, v{R + 2 * k}\nv_xor_b32 v{R + 1 + 2 * k}, s1, v{R + 1 + 2 * k}")
        t.append(f"v_or3_b32 v26, v26, v{R + 2 * k}, v{R + 1 + 2 * k}" if k else f"v_or_b32 v26, v{R}, v{R + 1}")
    return "\n".join(t) + "\nv_cmp_ne_u32 vcc, 0, v26"

L2E, L2E_LO, LN2 = 0x3FB8AA3B, 0x32A57060, 0x3F317218
def cmul(b, o, x, w, t):
    b.e(f"v_pk_mul_f32 {vr(t,2)}, {vr(x,2)}, {vr(w,2)} op_sel_hi:[1,0]")
    b.e(f"v_pk_fma_f32 {vr(o,2)}, {vr(x,2)}, {vr(w,2)}, {vr(t,2)} op_sel:[1,1,0] op_sel_hi:[0,1,1] neg_lo:[0,1,0]")

PORD = [1, 3, 5, 7, 8, 0, 2, 4, 6]
CSTR, SPB, UB = 2368, 9472, 11008
def conv(b, xtok, pt):
    b.e("L_conv:")
    stamp(b, 'c_in')
    VX, VS, VU, SG, XR, RR, BND = 192, 193, 194, 196, 212, 228, 244
    RB = "s76"
    if OPT.get('wpf', 0) == 1: w_prefetch(b)
    ln1_addr(b)
    if OPT.get('xat', 0) == 1: xtok = x_dma(b, True)
    b.e(f"""s_mul_i32 {RB}, s{sW}, {RSTR}
        v_lshl_add_u32 v10, v1, 3, {RB}
        v_and_b32 v2, 31, v1
        v_lshrrev_b32 v3, 5, v1
        v_lshl_add_u32 v3, v3, 4, {RB}
        v_lshrrev_b32 v11, 3, v2
        v_lshlrev_b32 v11, 2, v11
        v_and_b32 v12, 3, v2
        v_add_u32 v11, v11, v12
        v_bfe_u32 v12, v2, 2, 1
        s_mov_b32 s72, 0x86444200
        s_mov_b32 s73, 0xfedcba88
        v_lshlrev_b32 v16, 2, v11
        v_lshrrev_b64 v[16:17], v16, s[72:73]
        v_and_b32 v16, 15, v16
        v_add_u32 v16, 16, v16
        v_cmp_eq_u32 vcc, 1, v12
        v_cndmask_b32 v11, v11, v16, vcc
        v_add_u32 v13, 32, v2
        s_movk_i32 s3, 528
        v_mad_u32_u24 v11, v11, s3, v3
        v_mad_u32_u24 v13, v13, s3, v3
        v_sub_u32 v2, 63, v1
        v_lshl_add_u32 v12, v2, 4, {RB}
        v_lshl_add_u32 v253, v1, 4, {RB}
        v_and_b32 v250, 15, v1
        v_lshrrev_b32 v251, 4, v1
        v_sub_u32 v16, 2, v250
        v_and_b32 v16, 3, v16
        v_add_u32 v17, v250, v16
        v_sub_u32 v17, 18, v17
        v_lshlrev_b32 v17, 1, v17
        v_mul_u32_u24 v16, {CSTR}, v16
        v_add3_u32 v17, v17, v16, {RB}
        v_lshl_add_u32 v236, v251, 4, v17
        v_lshlrev_b32 v17, 5, v250
        v_lshl_add_u32 v17, v251, 4, v17
        s_add_u32 s3, {RB}, {UB}
        v_add_u32 v237, s3, v17
        s_add_u32 s3, {RB}, {SPB + 126}
        v_subrev_u32 v16, 1, v1
        v_and_b32 v16, -2, v16
        v_and_b32 v17, 1, v1
        v_mul_u32_u24 v17, 768, v17
        v_sub_u32 v17, v17, v16
        v_add_u32 v254, s3, v17
        v_subrev_u32 v255, 64, v254
        v_cmp_eq_u32 s[70:71], 0, v1
        s_sub_u32 s3, s3, 126
        v_writelane_b32 v254, s3, 0
        s_add_u32 s3, s3, 64
        v_writelane_b32 v255, s3, 0
        s_mov_b32 s72, 0x01028403
        s_mov_b32 s73, 0x8500
        v_lshlrev_b32 v16, 3, v1
        v_lshrrev_b64 v[16:17], v16, s[72:73]
        v_and_b32 v16, 0xff, v16
        v_lshl_add_u32 v252, v16, 4, {RB}
        v_lshrrev_b32 v2, 4, v0
        v_mul_u32_u24 v2, 40960, v2
        v_lshl_add_u32 v{VX}, v250, 4, v2
        v_lshlrev_b32 v{VS}, 4, v0
        s_movk_i32 s72, 4096
        s_movk_i32 s73, 8192
        v_lshlrev_b32 v{VU}, 2, v0
        v_add_u32 v{VU}, {UB + 512}, v{VU}
        v_add_u32 v{VU + 1}, {2 * RSTR}, v{VU}
        s_lshl_b32 s74, s50, 8
        s_add_u32 s75, s74, {XT}
        s_add_u32 s74, s74, {HT}
        s_lshr_b32 s{sC}, s50, 5
        s_add_u32 s{sC}, s{sC}, 3
        s_mul_i32 s3, s{sC}, 56
        s_mul_i32 s61, s{sW}, 14
        s_add_u32 s3, s3, s61
        s_mul_i32 s3, s3, 5120
        s_add_u32 s61, s3, {W2P}""")
    band = [f"v_lshlrev_b32 v16, 3, v251\nv_sub_u32 v16, v250, v16", "v_add_u32 v18, 36, v16\ns_mov_b32 s72, 0x1ff", "s_mov_b32 s73, 0\nv_add_u32 v19, 37, v16",
            "v_lshlrev_b64 v[20:21], v18, s[72:73]", "s_mov_b32 s72, 0x7f", "v_lshlrev_b64 v[22:23], v19, s[72:73]\ns_movk_i32 s73, 0x3f80",
            "v_mov_b32 v14, v250\nv_mov_b32 v15, v251"]
    for cl in range(2):
        for k in range(4):
            d = BND + 4 * cl + k
            band += [f"v_bfe_u32 v{d}, v{21 + 2 * cl}, {2 * k}, 2\nv_lshl_or_b32 v{d}, v{d}, 15, v{d}", f"v_and_b32 v{d}, 0x10001, v{d}\nv_mul_u32_u24 v{d}, s73, v{d}"]
    late = [l.strip() for l in f"""v_sub_u32 v16, 3, v14
        v_and_b32 v16, 3, v16
        v_add_u32 v17, v14, v16
        v_sub_u32 v17, 15, v17
        v_lshl_add_u32 v17, v15, 2, v17
        v_lshlrev_b32 v17, 1, v17
        v_mul_u32_u24 v16, 192, v16
        s_add_u32 s72, {RB}, {SPB}
        v_add3_u32 v5, v17, v16, s72
        v_lshlrev_b32 v17, 4, v14
        v_lshl_add_u32 v17, v15, 2, v17
        v_add_u32 v8, {RB}, v17
        v_lshrrev_b32 v17, 2, v14
        v_mul_u32_u24 v17, {RSTR}, v17
        v_lshl_add_u32 v17, v15, 5, v17
        v_and_b32 v16, 3, v14
        v_lshl_add_u32 v17, v16, 3, v17
        s_lshl_b32 s72, s{sW}, 7
        v_add_u32 v9, s72, v17""".split("\n")]
    fmap = [l.strip() for l in ffn_map(False).split("\n")]
    fmap = [l for l in fmap[:fmap.index(f"s_mul_i32 s58, s{sC}, 56")] if l and not l.startswith("v_lshlrev_b32 v4")]
    stamp(b, 'c_sm')
    b.wait_all(vm=False)
    b.e(f"""s_lshr_b32 s3, s{sW}, 1
        s_cmp_eq_u32 s3, 0
        s_cselect_b32 s62, s62, s63
        s_and_b32 s3, s{sW}, 1
        s_lshl_b32 s3, s3, 4
        s_lshr_b32 s62, s62, s3
        s_lshl_b32 s62, s62, 16
        s_mov_b32 s65, s65
        v_mov_b32 v14, s62
        s_lshl_b32 s66, s64, 16
        s_and_b32 s67, s64, 0xffff0000
        s_lshl_b32 s68, s65, 16
        s_and_b32 s69, s65, 0xffff0000
        s_mov_b32 s64, 0x{L2E:x}
        v_mul_f32 v15, s64, v14
        v_fma_f32 v16, v14, s64, -v15
        v_fmac_f32 v16, 0x{L2E_LO:x}, v14
        v_exp_f32 v15, v15
        v_mul_f32 v16, 0x{LN2:x}, v16
        v_fmac_f32 v15, v15, v16
        v_cvt_pk_bf16_f32 v15, v15, v15
        v_lshlrev_b32 v14, 16, v15""".replace("        s_mov_b32 s65, s65\n", ""))
    b.e(f"s_mov_b32 s{sW2}, s61")
    if OPT.get('wpf', 0) == 2: w_prefetch(b)
    AL, BE, CC, Z1, Z8, Z256, T, DB, X, X2, X4, X6, X8, X10, Y = range(0, 30, 2)
    R = lambda n, k: 32 + n * 32 + k
    stamp(b, 'kg_pre')
    b.wait(vm=pt[5])
    stamp(b, 'kg_par')
    for n in range(2):
        un = (lambda d, s: f"v_lshlrev_b32 v{d}, 16, v{s}") if n == 0 else (lambda d, s: f"v_and_b32 v{d}, 0xffff0000, v{s}")
        b.e("\n".join([un(R(n, AL), 4), un(R(n, BE), 5), un(R(n, DB), 6), un(R(n, DB) + 1, 7), un(R(n, CC), 8), un(R(n, CC) + 1, 9)]))
    for n in range(2):
        b.e(f"""v_mul_f32 v{R(n,AL)}, v14, v{R(n,AL)}
            v_mul_f32 v{R(n,BE)}, v14, v{R(n,BE)}
            v_pk_mul_f32 {vr(R(n,DB),2)}, {vr(R(n,DB),2)}, v[14:15] op_sel_hi:[1,0]
            v_mul_f32 v{R(n,AL)}, s64, v{R(n,AL)}
            v_mul_f32 v{R(n,BE)}, 0.15915494, v{R(n,BE)}""")
    b.e("v_lshlrev_b32 v4, 4, v1\nv_mov_b32 v6, v236\nv_mov_b32 v7, v237")
    for n in range(2): cmul(b, R(n, X), R(n, CC), R(n, DB), R(n, T))
    for (z, p) in ((Z8, 0x41000000), (Z1, None), (Z256, 0x43800000)):
        for n in range(2):
            e, ph = R(n, T), R(n, T) + 1
            if p is None: b.e(f"v_exp_f32 v{e}, v{R(n,AL)}\nv_fract_f32 v{ph}, v{R(n,BE)}")
            else: b.e(f"v_mul_f32 v{e}, 0x{p:x}, v{R(n,AL)}\nv_mul_f32 v{ph}, 0x{p:x}, v{R(n,BE)}\nv_exp_f32 v{e}, v{e}\nv_fract_f32 v{ph}, v{ph}")
        for n in range(2):
            b.e(f"v_cos_f32 v{R(n,z)}, v{R(n,T)+1}\nv_sin_f32 v{R(n,z)+1}, v{R(n,T)+1}")
        for n in range(2):
            b.e(f"v_pk_mul_f32 {vr(R(n,z),2)}, {vr(R(n,z),2)}, {vr(R(n,T),2)} op_sel_hi:[1,0]")
    pk = [0]
    def put(src, rows, neg=False):
        d = 16 + 2 * (pk[0] & 3); pk[0] += 1
        for n in range(2):
            b.e(f"v_cvt_pk_bf16_f32 v{d + n}, v{R(n,src)}, {'-' if neg else ''}v{R(n,src)+1}")
        for r in rows: b.lg(f"ds_write_b64 v10, {vr(d,2)} offset:{r * 528}")
    def mul(o, x, w):
        for n in range(2): b.e(f"v_pk_mul_f32 {vr(R(n,T),2)}, {vr(R(n,x),2)}, {vr(R(n,w),2)} op_sel_hi:[1,0]")
        for n in range(2): b.e(f"v_pk_fma_f32 {vr(R(n,o),2)}, {vr(R(n,x),2)}, {vr(R(n,w),2)}, {vr(R(n,T),2)} op_sel:[1,1,0] op_sel_hi:[0,1,1] neg_lo:[0,1,0]")
    stamp(b, 'kg_base')
    b.e("v_mov_b32 v24, 0x3f80\nv_mov_b32 v25, 0x3f80")
    b.lg(f"ds_write_b64 v10, v[24:25] offset:{32 * 528}")
    put(Z8, [33], True)
    lo = {}; chunks = ln1_a(b, xtok, 96, lo); step = [0]
    LNA, LNB_ = OPT.get('lna_at', 4), OPT.get('lnb_at', 14)
    def ld_st(bb):
        for q in range(4):
            t = bb.vm(f"buffer_load_dwordx4 {vr(SG + 4 * q, 4)}, v{VS}, {WS}, {('0', 's72', 's73', 's14')[q]} offen sc1")
        return t
    def nxt(o, x, w, rows, neg=False):
        mul(o, x, w); put(o, rows, neg); step[0] += 1
        for _ in range(OPT.get('lnr', 5)):
            if step[0] >= LNA and chunks: chunks.pop(0)()
        if step[0] == LNB_:
            assert not chunks
            ln1_b(b, lo['last']); b.e("s_movk_i32 s14, 12288")
        if step[0] == OPT.get('wp_at', 99): w_prefetch(b)
        if step[0] == OPT.get('st_at', 56): lo['st'] = ld_st(b)
    cur = Z8
    for j in range(2, 32):
        nxt(Y, cur, Z8, [32 + j], True); cur = Y
    put(X, [0])
    keep = {2: X2, 4: X4, 6: X6, 8: X8, 10: X10}
    cur = X
    for o in range(1, 11):
        d = keep.get(o, Y)
        nxt(d, cur, Z1, [o]); cur = d
    for src, row in ((X, 16), (X2, 18), (X4, 20), (X6, 22), (X8, 24), (X10, 26)):
        nxt(src, src, Z256, [row])
    for r0 in (11, 27):
        for k, src in enumerate((X, X4, X8)):
            nxt(src, src, Z256, [r0 + k])
    for r0 in (14, 30, 15, 31):
        nxt(X, X, Z256, [r0])
    stok = lo.get('st')
    mul(X, X, Z256)
    b.wait_all(vm=False)
    stamp(b, 'kg_pow')
    tk = {}
    def rd(ks):
        r = 112 + (ks % 4) * 8
        b.lg(f"ds_read_b128 {vr(r,4)}, v11 offset:{32 * ks}")
        tk[ks] = b.lg(f"ds_read_b128 {vr(r+4,4)}, v13 offset:{32 * ks}")
    fill = [f"v_add_f32 v14, v{R(0,X)}, v{R(1,X)}"]
    for m in ("quad_perm:[1,0,3,2] row_mask:0xf", "quad_perm:[2,3,0,1] row_mask:0xf", "row_half_mirror row_mask:0xf", "row_mirror row_mask:0xf", "row_bcast:15 row_mask:0xa", "row_bcast:31 row_mask:0xc"):
        fill.append(f"v_add_f32_dpp v14, v14, v14 {m} bank_mask:0xf")
    fill += ["v_readlane_b32 s56, v14, 63", "v_mov_b32 v20, 0\nv_mov_b32 v21, 0", "v_mov_b32 v22, 0\nv_mov_b32 v23, 0"]
    for ks in range(3): rd(ks)
    cond = "\n".join(f"v_xor_b32 v2, s0, v{SG + 1 + 4 * q}\nv_xor_b32 v3, s1, v{SG + 3 + 4 * q}\n" + (f"v_or3_b32 v15, v2, v3, v15" if q else "v_or_b32 v15, v2, v3") for q in range(4))
    xt = []
    KC = OPT.get('kc', 11)
    for ks in range(16):
        r = 112 + (ks % 4) * 8
        b.wait(lg=tk[ks])
        b.e(f"v_mfma_f32_32x32x16_bf16 v[96:111], {vr(r,4)}, {vr(r+4,4)}, {'0' if ks == 0 else 'v[96:111]'}")
        if ks + 3 < 16: rd(ks + 3)
        if ks == OPT.get('st_ks', -1): stok = ld_st(b)
        if ks == KC:
            stamp(b, 'st_chk')
            poll(b, ld_st, cond + "\nv_cmp_ne_u32 vcc, 0, v15", stok)
            stamp(b, 'st_ok')
            for k in range(8):
                fill.append(f"v_and_b32 v{RR + 2 * k}, 0xffff0000, v{SG + 2 * k}\nv_lshlrev_b32 v{RR + 1 + 2 * k}, 16, v{SG + 2 * k}\nv_rcp_f32 v{RR + 2 * k}, v{RR + 2 * k}" + (f"\nv_mul_f32 v{RR - 1 + 2 * k}, -v{RR - 1 + 2 * k}, v{RR - 2 + 2 * k}" if k else ""))
            fill.append(f"v_mul_f32 v{RR + 15}, -v{RR + 15}, v{RR + 14}")
        if KC < ks <= KC + 4:
            q = ks - KC - 1
            xt.append(b.vm(f"buffer_load_dwordx4 {vr(XR + 4 * q, 4)}, v{VX}, {WS}, s75 offen sc1"))
            b.e("s_add_u32 s75, s75, 655360")
        if fill: b.e(fill.pop(0))
        if fill and ks > KC + 4: b.e(fill.pop(0))
    while len(xt) < 4:
        xt.append(b.vm(f"buffer_load_dwordx4 {vr(XR + 4 * len(xt), 4)}, v{VX}, {WS}, s75 offen sc1"))
        b.e("s_add_u32 s75, s75, 655360")
    for x in fill: b.e(x)
    stamp(b, 'kg_mfma')
    p2tok = ld_quarter(FLP2)(b)
    b.lg(f"ds_write_b128 v253, v[20:23] offset:{SPB}")
    b.lg(f"ds_write_b128 v253, v[20:23] offset:{SPB + 1024}")
    b.e("s_barrier")
    stamp(b, 'st1_seen')
    b.e("""v_cmp_eq_u32 vcc, 31, v1
        v_cndmask_b32 v24, 0, v96, s[70:71]
        v_cndmask_b32 v25, 0, v97, s[70:71]
        v_cndmask_b32 v18, 0, v98, s[70:71]
        v_cndmask_b32 v105, v105, v104, vcc
        v_cmp_eq_u32 vcc, 63, v1
        v_cndmask_b32 v19, 0, v110, s[70:71]
        v_writelane_b32 v110, s56, 0
        v_cndmask_b32 v106, v106, v104, vcc
        v_mov_b32_dpp v24, v24 row_shr:1 row_mask:0xf bank_mask:0xf bound_ctrl:1
        v_mov_b32_dpp v25, v25 row_shr:1 row_mask:0xf bank_mask:0xf bound_ctrl:1
        v_mov_b32_dpp v18, v18 row_shr:1 row_mask:0xf bank_mask:0xf bound_ctrl:1
        v_cvt_pk_bf16_f32 v14, v110, v111""")
    pats = [list(range(96, 107)), [107] * 3 + [108] * 3 + [109] * 5, [19] * 5 + [20] * 3 + [24, 25, 18]]
    for rnd, w in enumerate(pats):
        for c in range(4):
            d = 32 + ((rnd * 4 + c) % 8) * 4
            for k in range(4):
                b.e(f"v_cvt_pk_bf16_f32 v{d + k}, v{w[10 - c - 2 * k]}, v{w[9 - c - 2 * k]}")
            if rnd < 2: b.lg(f"ds_write_b128 v12, {vr(d,4)} offset:{c * CSTR + 64 + (1 - rnd) * 1024}")
        if rnd == 0:
            for c in range(4): b.lg(f"ds_write_b16 v254, v14 offset:{c * 190}")
        if rnd == 1:
            for c in range(4): b.lg(f"ds_write_b16_d16_hi v255, v14 offset:{c * 190}")
    b.e("s_mov_b64 exec, 63")
    for c in range(4): b.lg(f"ds_write_b128 v252, {vr(32 + c * 4, 4)} offset:{c * CSTR}")
    b.e("s_mov_b64 exec, -1")
    stamp(b, 'kgen_done')
    b.e("L_stage2:")
    XF, UF = 128, 160
    for q in range(4):
        b.wait(vm=xt[q])
        for k in range(4):
            b.e(f"v_lshlrev_b32 v{XF + 8 * q + 2 * k}, 16, v{XR + 4 * q + k}\nv_and_b32 v{XF + 8 * q + 2 * k + 1}, 0xffff0000, v{XR + 4 * q + k}")
        for k in range(4):
            rr = RR + 2 * (2 * q + (k >> 1))
            b.e(f"v_pk_fma_f32 {vr(UF + 8 * q + 2 * k, 2)}, {vr(XF + 8 * q + 2 * k, 2)}, {vr(rr, 2)}, {vr(rr, 2)} op_sel:[0,0,1] op_sel_hi:[1,0,1]")
        for c in range(4):
            b.e(f"v_cvt_pk_bf16_f32 v{SG + 4 * q + c}, v{UF + 8 * q + c}, v{UF + 8 * q + 4 + c}")
        for c in range(4):
            b.lg(f"ds_write_b32 v{VU + (c >> 1)}, v{SG + 4 * q + c} offset:{(c & 1) * RSTR + q * 1024}")
    rtok = {}
    ACC, VB, UA, DW, WF = 32, 64, 36, 196, 228
    def f_rd(it, k, r=None):
        d = 2 * it + 1 + 16 * k; r = (it & 1) * 16 + 4 * k if r is None else r
        b.lg(f"ds_read_b64 {ar(r, 2)}, v6 offset:{2080 - 32 * d}")
        rtok[(it, 'f', k)] = b.lg(f"ds_read_b64 {ar(r + 2, 2)}, v6 offset:{2080 - 32 * d + 8}")
    def v_rd(it, k):
        rtok[(it, 'v', k)] = b.lg(f"ds_read_b128 {vr(VB + (it & 1) * 32 + 4 * k, 4)}, v7 offset:{512 + 512 * k - 32 * (2 * it + 1)}")
    ulast = b.li - 1
    for k in range(4): f_rd(0, k)
    f_rd(0, 4, 32)
    if OPT.get('w2t', 0): w2_touch(b, False)
    poll(b, ld_quarter(FLP2), cond_lines(24), p2tok)
    b.wait(lg=ulast)
    b.e("s_barrier")
    stamp(b, 'conv_start')
    for k in range(8): v_rd(0, k)
    G = Gaps(b, spread=OPT.get('spread', 1))
    w2n = 0; W1AT = OPT.get('w1at', 99); W2AT = OPT.get('w2at', 0)
    tok = {}
    def y_out(ct, G_=None):
        G.add(f"v_cvt_pk_bf16_f32 v{64 + 2 * ct}, v{ACC + 4 * ct}, v{ACC + 4 * ct + 2}\nv_cvt_pk_bf16_f32 v{65 + 2 * ct}, v{ACC + 4 * ct + 1}, v{ACC + 4 * ct + 3}")
        G.add(lambda: b.lg(f"ds_write2st64_b32 v8, v{64 + 2 * ct}, v{65 + 2 * ct} offset0:{ct} offset1:{ct + 8}"), 2)
    for it in range(8):
        par = it & 1
        stamp(b, f'cv_{it}')
        if it < 7:
            for k in range(8):
                if k < 4: G.add(lambda k=k, it=it: f_rd(it + 1, k), 2)
                G.add(lambda k=k, it=it: v_rd(it + 1, k), 1)
        ex = []
        SH = OPT.get('sh', 1)
        nb = -(-len(band) // (2 + SH))
        for x in band[it * nb:(it + 1) * nb]: G.add(x, front=False)
        if it == 1 + SH:
            for x in late[:9]: G.add(x)
        if it == 5:
            for x in late[9:]: G.add(x)
        if it in (5, 6):
            for x in fmap[(it - 5) * 8:8 if it == 5 else None]: G.add(x)
        if it == 0:
            ex = [(vr(ACC + 4 * ct, 4), ar(32, 4), vr(VB + 4 * (ct - 4), 4), vr(ACC + 4 * ct, 4)) for ct in range(4, 8)]
        if it == SH:
            for cl in range(2):
                for t in range(4):
                    G.add(lambda cl=cl, t=t: tok.__setitem__('u', b.lg(f"ds_read_b128 {ar(UA + 16 * cl + 4 * t, 4)}, v7 offset:{512 + 512 * t - (48 if cl == 0 else 32)}")), 1)
        if it == 1 + SH:
            ex = [(vr(DW + 16 * cl + 4 * t, 4), ar(UA + 16 * cl + 4 * t, 4), vr(BND + 4 * cl, 4), '0') for cl in range(2) for t in range(4)]
        if it == 2 + SH:
            for cl in range(2):
                for d in range(3, -1, -1):
                    G.add(lambda cl=cl, d=d: tok.__setitem__('t', b.lg(f"ds_read_b64 {ar(UA + 10 * cl + 2 * (3 - d), 2)}, v5 offset:{768 * cl + 96 - 32 * d}")), 1)
                G.add(f"v_accvgpr_write_b32 a{UA + 10 * cl + 8}, 0\nv_accvgpr_write_b32 a{UA + 10 * cl + 9}, 0")
            for cl in range(2):
                for t in range(4):
                    G.add(f"v_cvt_pk_bf16_f32 v{WF + 8 * cl + 2 * t}, v{DW + 16 * cl + 4 * t}, v{DW + 16 * cl + 4 * t + 1}\nv_cvt_pk_bf16_f32 v{WF + 8 * cl + 2 * t + 1}, v{DW + 16 * cl + 4 * t + 2}, v{DW + 16 * cl + 4 * t + 3}")
        if it in (3 + SH, 4 + SH):
            cl = it - 3 - SH
            ex = [(vr(ACC + 4 * ct, 4), vr(WF + 8 * cl + 4 * kk, 4), ar(UA + 10 * cl + 2 * (3 - (ct - 4 - 2 * kk)), 4), vr(ACC + 4 * ct, 4)) for kk in range(2) for ct in range(4 + 2 * kk, 8)]
        if it >= 4:
            q = it - 4
            for k in range(8): G.add(f"v_fma_f32 v{XF + 8 * q + k}, v{UF + 8 * q + k}, s{66 + (k & 3)}, v{XF + 8 * q + k}")
        if it == W1AT:
            G.add(f"v_lshlrev_b32 v2, 7, v0\nv_min_u32 v2, {230 * 128}, v2"); G.add(f"s_mul_i32 s3, s{sSI}, {231 * 128}\ns_add_u32 s3, s3, s{sDMA}")
            G.add(lambda: (b.e(f"s_sub_u32 s3, s3, s{sM0}"), b.vm(f"buffer_load_dword a252, v2, {WS}, s3 offen sc1")), 2)
        if it >= W2AT:
            for _ in range(-(-(OPT.get('w2n', 40) - w2n) // (8 - it))):
                G.addv(lambda m=w2n: w2_load(b, m)); w2n += 1
        if it == OPT.get('p1at', 6): G.add(lambda: tok.__setitem__('p1', ld_quarter(FLP)(b)), 2, front=True)
        G.begin(26 + len(ex))
        order = [(i, ct) for i in range(4) for ct in range(i, 8)]
        if it == 7: order = [(i, ct) for ct in range(8) for i in range(min(ct, 3) + 1)]
        pend = []
        for cnt, (i, ct) in enumerate(order):
            c = '0' if (it == 0 and i == 0) else vr(ACC + 4 * ct, 4)
            G.now(lambda: b.wait(lg=max(rtok[(it, 'f', i)], rtok[(it, 'v', ct - i)])), 1)
            G.mfma(f"v_mfma_f32_16x16x32_bf16 {vr(ACC + 4 * ct, 4)}, {ar(par * 16 + 4 * i, 4)}, {vr(VB + par * 32 + 4 * (ct - i), 4)}, {c}")
            if pend and cnt >= pend[0][0]:
                y_out(pend.pop(0)[1])
            G.fill()
            if it == 7 and i == min(ct, 3): pend.append((cnt + 4, ct))
        if it == 1 + SH: assert not any(isinstance(x[1], str) and x[1] in band for x in G.q)
        for x in ex:
            G.mfma("v_mfma_f32_16x16x32_bf16 %s, %s, %s, %s" % x)
            G.fill()
        if it == 7:
            stamp(b, 'p1_chk')
            poll(b, ld_quarter(FLP), cond_lines(24), tok['p1'])
            stamp(b, 'p1_ok')
            for _, ct in pend: y_out(ct)
        G.flush()
        if it < 7: b.wait(lg=b.li - 1)
    stamp(b, 'conv_end')
    b.e("s_mov_b32 s56, 0x3f80\ns_mov_b32 s57, 0x3f800000")
    b.wait_all(vm=False)
    stamp(b, 'y_written')
    b.e("s_barrier")
    stamp(b, 'y_bar')
    yt = []
    for q in range(4):
        b.lg(f"ds_read_b64_tr_b16 {vr(80 + 4 * q, 2)}, v9 offset:{512 * q}")
        yt.append(b.lg(f"ds_read_b64_tr_b16 {vr(82 + 4 * q, 2)}, v9 offset:{512 * q + 2048}"))
    preload(b, 0, OPT.get('pre0', 0), PORD)
    def h_pack(q):
        for k in range(4):
            b.e(f"v_cvt_pk_bf16_f32 v{96 + 4 * q + k}, v{XF + 8 * q + 2 * k}, v{XF + 8 * q + 2 * k + 1}")
        t = b.vm(f"buffer_store_dwordx4 {vr(96 + 4 * q, 4)}, v{VX}, {WS}, s74 offen sc1")
        b.e("s_add_u32 s74, s74, 655360")
        return t
    for q in range(4):
        b.wait(lg=yt[q])
        for k in range(8):
            b.e(f"v_dot2_f32_bf16 v{XF + 8 * q + k}, v{80 + 4 * q + (k >> 1)}, s{56 + (k & 1)}, v{XF + 8 * q + k}")
        if q: h_pack(q - 1)
    hs = h_pack(3)
    stamp(b, 'h_stored')
    return None, hs

from ffn import ffn_map, preload, ffn

def build():
    _lab[0] = 0
    b = B()
    xtok, b3, pt = entry(b)
    b2 = b.fork()
    pack(b2)
    if OPT['stop'] in ('pack', 'conv'): (b2.e("s_add_u32 s2, s2, 160"), stamp_dump(b2), b2.e("s_endpgm"))
    b2.e(ffn_map(True))
    poll(b2, ld_quarter(FLP2), cond_lines(24))
    b2.e("s_barrier")
    if OPT.get('hw2t', 0):
        w2_touch(b2, False)
        b2.wait_all(lg=False)
    HW = OPT.get('hw2', 28)
    for m in range(HW): w2_load(b2, m)
    stamp(b2, 'w2_issued')
    poll(b2, ld_quarter(FLP), cond_lines(24), sleep=OPT.get('psl', 4))
    b2.e("s_barrier")
    stamp(b2, 'p1_seen')
    preload(b2, 0, 36)
    for m in range(HW, 40): w2_load(b2, m)
    if OPT.get('buddy', 1):
        sk = lab("bd")
        b2.e(f"s_cmp_lg_u32 s{sW}, 0\ns_cbranch_scc1 {sk}")
        poll(b2.fork(), ld_lines(f"s_lshl_b32 s55, s2, 7\ns_add_u32 s55, s55, {FLH}", 1), cond_lines(1), sleep=OPT.get('bsl', 2))
        b2.e(f"{sk}:")
    b2.e("s_add_u32 s2, s2, 160\ns_branch L_g1")
    packtok, hs = conv(b3, xtok, pt)
    if OPT['stop'] in ('pack', 'conv'): (stamp_dump(b3), b3.e("s_endpgm"))
    preload(b3, OPT.get('pre0', 0), OPT.get('pre1', 12), PORD)
    b3.wait(vm=hs)
    b3.e("s_barrier")
    arrive(b3, FLH, "s50")
    stamp(b3, 'h_arrive')
    preload(b3, OPT.get('pre1', 12), 36, PORD)
    for m in range(OPT.get('w2n', 40), 40): w2_load(b3, m)
    b3.e(f"s_add_u32 s{sSI}, s{sSI}, 3\nL_g1:")
    b4 = B(); b4.L = b.L; b4.vi = 100
    ffn(b4)
    b.e("L_exit:\ns_endpgm\nL_code_end:")
    lines, nn = hazard_pass(b.L, verbose=OPT.get('verbose', False))
    if OPT.get('align', 1):
        lines = align_pass([KN + ':'] + lines, nop_cost=OPT.get('nopc', 4.0))[0][1:]
    hdr = open(os.path.join(os.path.dirname(os.path.abspath(__file__)), "header.txt")).read()
    out = hdr + (f"; stamps: {','.join(OPT['stamps'])}\n" if OPT['stamps'] else "") + "; @launch grid=(256,1,1) block=(256,1,1) lds=163840\n"
    out += f'.amdgcn_target "amdgcn-amd-amdhsa--gfx950"\n.text\n.globl {KN}\n.p2align 8\n.type {KN},@function\n{KN}:\n'
    out += "\n".join(("" if l.endswith(":") else "    ") + l for l in lines)
    out += f"""
.section .rodata,"a"
.p2align 6
.amdhsa_kernel {KN}
  .amdhsa_next_free_vgpr 512
  .amdhsa_next_free_sgpr 102
  .amdhsa_accum_offset 256
  .amdhsa_group_segment_fixed_size 0
  .amdhsa_kernarg_size 128
  .amdhsa_user_sgpr_count 2
  .amdhsa_user_sgpr_kernarg_segment_ptr 1
  .amdhsa_system_sgpr_workgroup_id_x 1
.end_amdhsa_kernel
"""
    return out, nn, len(lines)

if __name__ == "__main__":
    import ffn as _f
    for a in sys.argv[2:]:
        k, v = a.split("=")
        OPT[k] = eval(v)
    out, nn, nl = build()
    open(sys.argv[1], "w").write(out)
    print(f"wrote {sys.argv[1]}: {nl} lines, {nn} hazard nops")
```

```python
sPAN, sDMA, sM0, sW2, sH0 = 60, 61, 62, 63, 64
sROT = 59
sHP, sSTK = 68, 72
CSB = 162816
A_PAN, A_RING, A_W2 = 0, 48, 80
V_ACC1, V_ACC2, V_ACC3, V_PAN = 32, 96, 128, 144
V_G2, V_HR = 144, 32

def ffn_map(helper):
    if helper:
        t = f"""s_lshr_b32 s76, s2, 3
            s_mul_i32 s{sJ}, s76, 43
            s_lshr_b32 s{sJ}, s{sJ}, 7
            s_mul_i32 s58, s{sJ}, 3
            s_sub_u32 s{sSI}, s76, s58
            s_and_b32 s58, s{sXCD}, 1
            s_mul_i32 s58, s58, 3
            s_add_u32 s{sI}, s{sSI}, s58
            s_mul_i32 s{sROT}, s{sSI}, 3
            s_lshr_b32 s{sC}, s76, 2
            """
    else:
        t = f"""s_lshr_b32 s76, s50, 3
            s_mul_i32 s{sJ}, s76, 52
            s_lshr_b32 s{sJ}, s{sJ}, 8
            s_mul_i32 s58, s{sJ}, 5
            s_sub_u32 s{sSI}, s76, s58
            s_and_b32 s58, s{sXCD}, 1
            s_mul_i32 s58, s58, 5
            s_add_u32 s58, s58, s{sSI}
            s_add_u32 s{sI}, s58, 6
            s_mov_b32 s{sROT}, 0
            s_lshr_b32 s{sC}, s76, 2
            s_add_u32 s{sC}, s{sC}, 3
            """
    return t + f"""s_lshr_b32 s58, s{sXCD}, 1
        s_lshl_b32 s58, s58, 2
        s_add_u32 s{sJ}, s{sJ}, s58
        s_and_b32 s76, s76, 3
        s_lshl_b32 s{sRHO}, s{sXCD}, 2
        s_add_u32 s{sRHO}, s{sRHO}, s76
        v_lshlrev_b32 v4, 4, v1
        s_lshl_b32 s{sM0}, s{sW}, 12
        s_mul_i32 s{sDMA}, s{sJ}, {JSTR}
        s_add_u32 s{sDMA}, s{sDMA}, s{sM0}
        s_add_u32 s{sDMA}, s{sDMA}, {W1P}
        s_mul_i32 s58, s{sC}, 56
        s_mul_i32 s{sW2}, s{sW}, 14
        s_add_u32 s58, s58, s{sW2}
        s_mul_i32 s{sW2}, s58, 5120
        s_add_u32 s{sW2}, s{sW2}, {W2P}"""

def w2_touch(b, late):
    nl = 60 if late else 80
    b.e(f"""s_and_b32 s3, s{sRHO}, 3
        s_mul_i32 s3, s3, {nl * 128}
        s_add_u32 s3, s3, s{sW2}
        v_lshlrev_b32 v2, 7, v1""")
    if late:
        b.e(f"s_add_u32 s3, s3, 4096\nv_min_u32 v2, {59 * 128}, v2")
        b.vm(f"buffer_load_dword a253, v2, {WS}, s3 offen sc1")
    else:
        b.e(f"v_add_u32 v3, 0x2000, v2\nv_min_u32 v3, {79 * 128}, v3")
        b.vm(f"buffer_load_dword a253, v2, {WS}, s3 offen sc1")
        b.vm(f"buffer_load_dword a254, v3, {WS}, s3 offen sc1")

def dma_w1(b, n):
    blk, k = n >> 2, n & 3
    if k == 0:
        b.e(f"s_add_u32 m0, s{sM0}, {(blk % 9) * 16384}\ns_addk_i32 s{sDMA}, 16384")
    return b.vm(f"buffer_load_dwordx4 v4, {WS}, s{sDMA} offen offset:{k * 1024} sc1 lds")

def w2_load(b, m):
    n, dt = divmod(m, 5)
    if m and m % 4 == 0: b.e(f"s_addk_i32 s{sW2}, 4096")
    return b.vm(f"buffer_load_dwordx4 {ar(A_W2 + (n % 8) * 20 + dt * 4, 4)}, v4, {WS}, s{sW2} offen offset:{(m % 4) * 1024} sc1")

def preload(b, lo, hi, order=None):
    for n in range(lo, hi):
        if order is not None:
            if n % 4 == 0 or n == lo: b.e(f"s_add_u32 m0, s{sM0}, {order[n // 4] * 16384}\ns_add_u32 s58, s{sDMA}, {order[n // 4] * 16384}")
            b.vm(f"buffer_load_dwordx4 v4, {WS}, s58 offen offset:{(n & 3) * 1024} sc1 lds")
            continue
        if n % 4 == 0:
            b.e(f"""s_lshl_b32 s56, s{sROT}, 14
                s_add_u32 m0, s{sM0}, s56
                s_add_u32 s57, s{sDMA}, s56
                s_add_u32 s{sROT}, s{sROT}, 1
                s_cmp_eq_u32 s{sROT}, 9
                s_cselect_b32 s{sROT}, 0, s{sROT}""")
        b.vm(f"buffer_load_dwordx4 v4, {WS}, s57 offen offset:{(n & 3) * 1024} sc1 lds")
    if hi == 36:
        b.e(f"""s_add_u32 s{sDMA}, s{sDMA}, {8 * 16384}
            v_cmp_lt_u32 vcc, 111, v0
            v_mov_b32 v2, 0
            v_mov_b32 v3, {7168 - 448}
            v_cndmask_b32 v2, v2, v3, vcc
            v_lshl_add_u32 v2, v0, 2, v2
            s_mul_i32 s56, s{sJ}, 448
            s_add_u32 s56, s56, {CSP}""")
        for k in range(7):
            b.vm(f"buffer_load_dword v{16 + k}, v2, {WS}, s56 offen sc1")
            b.e("s_addk_i32 s56, 14336")

def ffn(b):
    b.e(f"""v_add_u32 v5, 0x10000, v4
        v_add_u32 v6, 0x20000, v4
        v_and_b32 v2, 15, v1
        v_lshrrev_b32 v3, 4, v1
        v_lshlrev_b32 v7, 4, v2
        v_lshl_add_u32 v7, v3, 9, v7
        v_lshlrev_b32 v8, 4, v3
        v_add_u32 v8, {CSB}, v8
        v_lshlrev_b32 v9, 4, v2
        s_lshl_b32 s56, s{sI}, 2
        s_add_u32 s56, s56, s{sW}
        s_mul_i32 s{sPAN}, s56, 40960
        s_add_u32 s74, s{sPAN}, {HT}
        s_add_u32 s75, s74, 40960
        s_and_b32 s57, s{sJ}, {1 if OPT.get('krot', 0) >= 2 else 3}
        s_mul_i32 s57, s57, {(0, 5, 10, 4, 2)[OPT.get('krot', 0)]}
        s_lshr_b32 s57, s57, 1
        s_lshl_b32 s57, s57, 12
        s_add_u32 s{sPAN}, s74, s57
        s_lshl_b32 s{sSTK}, s56, 8
        s_add_u32 s{sSTK}, s{sSTK}, {ST2}
        s_mul_i32 s56, s56, {2 * 56 * 1024}
        s_add_u32 s56, s56, {HP}""")
    for k in range(2):
        b.e(f"""s_lshl_b32 s57, s{sJ}, 1
            s_add_u32 s57, s57, {k}
            s_and_b32 s58, s57, 3
            s_mul_i32 s58, s58, 14
            s_lshr_b32 s57, s57, 2
            s_add_u32 s57, s57, s58
            s_lshl_b32 s57, s57, 10
            s_add_u32 s{sHP + k}, s56, s57""")
    for k in range(2):
        b.e(f"s_mov_b32 s57, s{sJ}" if k == 0 else f"s_lshr_b32 s57, s{sJ}, 1")
        b.e(f"""s_and_b32 s58, s57, 3
            s_mul_i32 s58, s58, 14
            s_lshr_b32 s57, s57, 2
            s_add_u32 s57, s57, s58
            s_add_u32 s57, s57, {8 + 4 * k}
            s_lshl_b32 s57, s57, 10
            s_add_u32 s{sHP + 2 + k}, s56, s57""")
    b.e(f"""s_and_b32 s57, s{sJ}, 1
        s_mul_i32 s57, s57, {56 * 1024}
        s_add_u32 s{sHP + 3}, s{sHP + 3}, s57""")
    for k in range(4):
        b.e(f"""s_xor_b32 s57, s{sW}, {k}
            s_lshl_b32 s58, s{sRHO}, 2
            s_add_u32 s57, s57, s58
            s_mul_i32 s57, s57, 56
            s_mul_i32 s58, s{sW}, 14
            s_add_u32 s57, s57, s58
            s_lshl_b32 s57, s57, 10
            s_add_u32 s{sH0 + k}, s57, {HP}""")
    stamp(b, 'pre_issued')
    sk = lab("np")
    b.e(f"s_cmp_lg_u32 s{sW}, 0\ns_cbranch_scc1 {sk}")
    poll(b.fork(), ld_lines(FLH, 160, 10), cond_lines(160, 10))
    b.e(f"{sk}:")
    b.wait_all()
    b.e(f"s_cmp_eq_u32 s{sJ}, 15\ns_barrier\ns_cbranch_scc1 L_j15")
    stamp(b, 'g1_start')
    if OPT['stop'] == 'pre': stamp_dump(b); b.e("s_endpgm")
    g12(b.fork(), 4, 2, False)
    b.e("L_j15:")
    stamp(b, 'g1_start')
    g12(b.fork(), 2, 0, True)

def flag_store(b, base):
    b.e(f"s_lshl_b32 s16, s{sI}, 4\ns_add_u32 s16, s16, s{sJ}")
    arrive(b, base, "s16", "s16")
def ld_flags(base):
    return ld_lines(f"s_lshr_b32 s55, s{sRHO}, 1\ns_lshl_b32 s55, s55, 11\ns_add_u32 s55, s55, {base}", 16)
COND_FLAG = cond_lines(16)
def ld_st2(b):
    return b.vm(f"buffer_load_dwordx4 v[28:31], v9, {WS}, s{sSTK} offen sc1")
COND_ST2 = "v_xor_b32 v26, s0, v29\nv_xor_b32 v27, s1, v31\nv_or_b32 v26, v26, v27\nv_cmp_ne_u32 vcc, 0, v26"

CS_OPS = [f"v_add_f32 v16, v16, v17\nv_add_f32 v18, v18, v19", "v_add_f32 v20, v20, v21\nv_add_f32 v16, v16, v22",
          f"v_add_f32 v18, v18, v20\nv_lshlrev_b32 v2, 2, v0", f"v_add_u32 v2, {CSB}, v2\nv_add_f32 v16, v16, v18"]
def dbg_reset(b):
    sk = lab("dz")
    b.e(f"""s_cmp_lg_u32 s2, 255
        s_cbranch_scc1 {sk}
        s_mov_b32 s14, 128
        v_mov_b32 v23, 0
        v_lshlrev_b32 v3, 2, v0
        buffer_store_dword v23, v3, {OUT}, 0 offen sc1
        {sk}:""")
    mk_srd(b, 12, P_OUT, 2621440)
def M(fn):
    fn.mem = True; return fn

def g12(b, np1, np2, stats):
    NK = 20
    ptok = {}
    VT = V_ACC1 if stats else V_ACC2
    VS_ = 96
    def preg(k): return V_PAN + 8 * k if k < 14 else VT + 8 * (k - 14)
    def pan(k, s, first):
        return vr(preg(k) + 4 * s, 4) if (k < 14 or first) else ar(A_PAN + 8 * (k - 14) + 4 * s, 4)
    def pan_load(k):
        if k and k % 2 == 0:
            b.e(f"s_addk_i32 s{sPAN}, 4096")
            if OPT.get('krot', 0): b.e(f"s_cmp_eq_u32 s{sPAN}, s75\ns_cselect_b32 s{sPAN}, s74, s{sPAN}")
        for p in range(2):
            ptok[k] = b.vm(f"buffer_load_dwordx4 {vr(preg(k) + 4 * p, 4)}, v7, {WS}, s{sPAN} offen offset:{(k & 1) * 2048 + p * 256} sc1")
    def pan_fix(k):
        b.wait(vm=ptok[k])
        r = preg(k)
        b.e(f"v_swap_b32 v{r + 2}, v{r + 4}\nv_swap_b32 v{r + 3}, v{r + 5}")
        return [f"v_accvgpr_write_b32 a{A_PAN + 8 * (k - 14) + q}, v{r + q}" for q in range(8)] if k >= 14 else []
    def pan_load_ops(k):
        L = []
        if k and k % 2 == 0:
            L.append((f"s_addk_i32 s{sPAN}, 4096" + (f"\ns_cmp_eq_u32 s{sPAN}, s75\ns_cselect_b32 s{sPAN}, s74, s{sPAN}" if OPT.get('krot', 0) else ""), 1))
        for p in range(2):
            if OPT.get('nopan'): ptok[k] = 0; continue
            L.append((M(lambda p=p: ptok.__setitem__(k, b.vm(f"buffer_load_dwordx4 {vr(preg(k) + 4 * p, 4)}, v7, {WS}, s{sPAN} offen offset:{(k & 1) * 2048 + p * 256} sc1"))), 2))
        return L
    def pan_fix_ops(k):
        r = preg(k)
        L = [(lambda: b.wait(vm=ptok[k]), 1), (f"v_swap_b32 v{r + 2}, v{r + 4}", 2), (f"v_swap_b32 v{r + 3}, v{r + 5}", 2)]
        if OPT.get('emu32'): L = [L[0]] + [(f"v_permlane16_swap_b32 v{r + q}, v{r + q + 2}", 2) for q in (0, 1, 4, 5)]
        return L
    def pan_copy_ops(k):
        return [(f"v_accvgpr_write_b32 a{A_PAN + 8 * (k - 14) + q}, v{preg(k) + q}", 1) for q in range(8)] if k >= 14 else []
    LA = OPT.get('la', 5)
    for k in range(LA): pan_load(k)
    if OPT.get('ptouch'):
        P0 = OPT['ptouch']
        b.e(f"v_min_u32 v2, {(20 - P0) * 4 - 1}, v1\nv_lshlrev_b32 v2, 9, v2\ns_and_b32 s3, s{sJ}, 3\ns_lshl_b32 s3, s3, 7\ns_add_u32 s3, s3, s74\ns_add_u32 s3, s3, {P0 * 2048}")
        b.vm(f"buffer_load_dword a253, v2, {WS}, s3 offen sc1")
    nslot1, nslot2 = 2 * np1 * NK, 2 * (np2 + 1) * NK
    ftok = {}
    ring = dict(vis=9, free=0, rd=-1, used=-1)
    def frag_read(n):
        if n >= nslot1 + nslot2: return
        assert n // 16 < ring['vis'], ("ring RAW", n)
        pos = (n % 144) * 1024
        ftok[n] = b.lg(f"ds_read_b128 {ar(A_RING + (n % 8) * 4, 4)}, v{4 + (pos >> 16)} offset:{pos & 0xffff}")
    FA = OPT.get('fa', 7); WG_ = OPT.get('wg', 4)
    b.e(f"v_add_u32 v24, {56 * 1024}, v4")
    dbg_reset(b)
    if stats:
        for x in CS_OPS: b.e(x)
        b.wait(lg=b.lg("ds_write_b32 v2, v16")); b.e("s_barrier")
        b.e("s_mov_b32 s3, 0x3f803f80\nv_mov_b32 v12, s3\nv_mov_b32 v13, s3\nv_mov_b32 v14, s3\nv_mov_b32 v15, s3")
        pan_fix(0)
        for k in range(NK):
            if k + LA < NK: pan_load(k + LA)
            cp = pan_fix(k + 1) if k + 1 < NK else []
            for s in range(2):
                b.e(f"v_mfma_f32_16x16x32_bf16 {vr(VS_ + 4 * s, 4)}, v[12:15], {pan(k, s, True)}, {'0' if k == 0 else vr(VS_ + 4 * s, 4)}")
                b.e(f"v_mfma_f32_16x16x32_bf16 {vr(VS_ + 8 + 4 * s, 4)}, {pan(k, s, True)}, {pan(k, s, True)}, {'0' if k == 0 else vr(VS_ + 8 + 4 * s, 4)}")
            for c in cp: b.e(c)
        b.e("""v_and_b32 v2, 3, v1
            v_cmp_eq_u32 s[56:57], 1, v2
            v_cmp_eq_u32 s[58:59], 2, v2
            v_cmp_eq_u32 s[74:75], 3, v2
            v_bfe_u32 v2, v1, 2, 2
            v_lshrrev_b32 v3, 4, v1
            v_cmp_eq_u32 s[76:77], v2, v3""")
        for s in range(2):
            g = VS_ + 8 + 4 * s
            b.e(f"v_cndmask_b32 v{g}, v{g}, v{g+1}, s[56:57]\nv_cndmask_b32 v{g}, v{g}, v{g+2}, s[58:59]\nv_cndmask_b32 v{g}, v{g}, v{g+3}, s[74:75]")
            stats_finish(b, VS_ + 4 * s, g, 16 + 2 * s)
        b.e("v_mov_b32 v17, s0\nv_mov_b32 v19, s1\ns_mov_b64 exec, s[76:77]")
        b.vm(f"buffer_store_dwordx4 v[16:19], v9, {WS}, s{sSTK} offen sc1")
        b.e("s_mov_b64 exec, -1")
    for n in range(FA): frag_read(n)
    if not stats: pan_fix(0)
    dman = [36]
    dtok = {}
    def dma_next():
        if dman[0] < 72 and not stats:
            assert (dman[0] // 4 - 9 + 1) * 16 <= ring['free'], ("ring WAR", dman[0])
            dtok[dman[0]] = dma_w1(b, dman[0]); dman[0] += 1
    dq = [36]; m0cur = [None]
    def set_m0(want):
        if m0cur[0] != want: b.e(f"s_add_u32 m0, s{sM0}, {want & 0xffffffff}"); m0cur[0] = want
    def dma_ops():
        m = dq[0]
        if m >= 72 or stats: return []
        dq[0] += 1
        L = []
        want = ((m >> 2) % 9) * 16384
        if m % 4 == 0: L.append((lambda: (set_m0(want), b.e(f"s_addk_i32 s{sDMA}, 16384")), 2))
        def go():
            assert (m // 4 - 9 + 1) * 16 <= ring['free'], ("ring WAR", m)
            set_m0(want)
            dtok[m] = b.vm(f"buffer_load_dwordx4 v4, {WS}, s{sDMA} offen offset:{(m & 3) * 1024} sc1 lds") if not OPT.get('nodma') else b.vi - 1; dman[0] = m + 1
        L.append((M(go), 2))
        return L
    def ring_barrier(upto):
        if upto - 1 in dtok: b.wait(vm=dtok[upto - 1])
        else: assert upto == 36 or stats
        if not OPT.get('nobar'): b.e("s_barrier")
        ring['vis'] = max(ring['vis'], upto // 4); ring['free'] = ring['used'] + 1
    def epi_ops(acc, tau0, taus, dsts, pk, CA, CB):
        ops = []; st = {}
        def rd(ti):
            if ti >= len(taus): return
            c = (CA, CB)[ti & 1]
            b.lg(f"ds_read_b128 {vr(c, 4)}, v8 offset:{(tau0 + taus[ti]) * 64}")
            st[ti] = b.lg(f"ds_read_b128 {vr(c + 4, 4)}, v8 offset:{448 + (tau0 + taus[ti]) * 64}")
        st['rd'] = rd
        for ti, t in enumerate(taus):
            c0 = (CA, CB)[ti & 1]
            ops.append(lambda ti=ti: (b.wait(lg=st[ti]), rd(ti + 1) if CA != CB else None))
            for s in range(2):
                g = acc + ((t * 2 + 0) * 2 + s) * 4; u = acc + ((t * 2 + 1) * 2 + s) * 4
                if pk:
                    for (r, c) in ((g, c0), (g + 2, c0 + 2), (u, c0 + 4), (u + 2, c0 + 6)):
                        ops.append(lambda r=r, c=c, s=s: b.e(f"v_pk_fma_f32 {vr(r,2)}, {vr(c,2)}, v[12:13], {vr(r,2)} op_sel:[0,{s},0] op_sel_hi:[1,{s},1]"))
                else:
                    for q in range(4):
                        ops.append(lambda r=g + q, c=c0 + q, s=s: b.e(f"v_fmac_f32 v{r}, v{c}, v{12 + s}"))
                    for q in range(4):
                        ops.append(lambda r=u + q, c=c0 + 4 + q, s=s: b.e(f"v_fmac_f32 v{r}, v{c}, v{12 + s}"))
                if s == 1 and CA == CB: ops.append(lambda ti=ti: rd(ti + 1))
                for q in range(4):
                    ops.append(lambda r=g + q: b.e(f"v_max_f32 v{r}, 0, v{r}"))
                if pk:
                    for q in (0, 2):
                        ops.append(lambda r=g + q, u=u + q: b.e(f"v_pk_mul_f32 {vr(r,2)}, {vr(r,2)}, {vr(u,2)}"))
                else:
                    for q in range(4):
                        ops.append(lambda r=g + q, u=u + q: b.e(f"v_mul_f32 v{r}, v{r}, v{u}"))
                d, half, sreg, last = dsts[ti](s)
                for q in range(2):
                    ops.append(lambda d=d + q, r=g + 2 * q: b.e(f"v_cvt_pk_bf16_f32 v{d}, v{r}, v{r + 1}"))
                if last == 4:
                    ops.append(lambda d=d - 2, s=s, sreg=sreg: st.__setitem__('last', b.vm(f"buffer_store_dwordx4 {vr(d,4)}, v{4 if s == 0 else 24}, {WS}, s{sreg} offen sc1")))
                elif last == 2:
                    def hst(d=d - 2, sreg=sreg):
                        l = lab("hs")
                        b.e(f"s_bitcmp0_b32 s{sJ}, 1\ns_cbranch_scc1 {l}\nv_swap_b32 v{d}, v{d + 2}\nv_swap_b32 v{d + 1}, v{d + 3}\n{l}:")
                        st['last'] = b.vm(f"buffer_store_dwordx4 {vr(d,4)}, v4, {WS}, s{sreg} offen sc1")
                    ops.append(hst)
                if last: ops[-1].vm = True
        return [(o, 2 if getattr(o, 'vm', False) else 1) for o in ops], st
    def dst_pair(acc, ta, second, sreg):
        def f(s):
            base = acc + ((ta * 2 + 1) * 2 + s) * 4
            return (base + (2 if second else 0), second, sreg, 4 if second else 0)
        return f
    def dst_half(acc, t, sreg):
        def f(s): return (acc + (t * 2 + 1) * 8 + 2 * s, 0, sreg, 2 * s)
        return f
    d1 = [dst_pair(V_ACC1, 0, False, sHP), dst_pair(V_ACC1, 0, True, sHP), dst_pair(V_ACC1, 2, False, sHP + 1), dst_pair(V_ACC1, 2, True, sHP + 1)]
    ops, est = epi_ops(V_ACC1, 0, list(range(np1)), d1, OPT.get('pk1', 0), 16, 16)
    G = Gaps(b, spread=OPT.get('spread', 1))
    def addv(L, front=False):
        for it, c in (reversed(L) if front else L): G.addv(it, c, getattr(it, 'mem', False), front)
    n = 0
    tok = {}
    DS = OPT.get('ds', [0, 0, 0, 0, 1, 2, 1, 2, 1, 2, 1, 2, 1, 1, 1, 2, 2, 2, 2, 2])
    NT = nslot1 + nslot2
    pn = [LA]
    def slot(n, k, accb, t, mat, cap=None, first=False):
        if n % WG_ == 0: G.now(lambda: b.wait(lg=ftok[min(n + WG_ - 1, NT - 1)]), 1)
        if OPT.get('emu32'):
            a = accb + t * 16
            G.mfma(f"v_mfma_f32_32x32x16_bf16 {vr(a,16)}, {ar(A_RING + (n % 8) * 4, 4)}, {pan(k, mat, first)}, {'0' if (k == 0 and mat == 0) else vr(a,16)}")
            G.now(lambda: frag_read(n + FA), 1)
            c6 = OPT['emu32'] + (2 * (cap - 2) if cap else 0)
            G.fill(reserve=1 if (n + 1) % WG_ == 0 else 0, cap=c6); G.pos += 1
            ring['used'] = n
            return
        for s in range(2):
            a = accb + ((t * 2 + mat) * 2 + s) * 4
            G.mfma(f"v_mfma_f32_16x16x32_bf16 {vr(a,4)}, {ar(A_RING + (n % 8) * 4, 4)}, {pan(k, s, first)}, {'0' if k == 0 else vr(a,4)}")
            if s == 0: G.now(lambda: frag_read(n + FA), 1)
            G.fill(reserve=1 if (s == 1 and (n + 1) % WG_ == 0) else 0, cap=cap)
        ring['used'] = n
    for k in range(NK):
        if not stats:
            for _ in range(OPT.get('pr', [1] * 20)[k]):
                if pn[0] < NK:
                    addv(pan_load_ops(pn[0]))
                    pn[0] += 1
            if k + 1 < NK:
                fx = pan_fix_ops(k + 1)
                pos = min(len(G.q), 3)
                G.q[pos:pos] = [(c, it) for it, c in fx]
            for _ in range(DS[k]):
                addv(dma_ops())
            for it in pan_copy_ops(k): G.add(*it)
        if k == 1 and not stats:
            for x in CS_OPS: G.add(x)
            G.add(lambda: b.lg("ds_write_b32 v2, v16"), 2)
        T0 = OPT.get('t2at', 99)
        if k == T0 - 1:
            G.add(f"s_and_b32 s73, s{sRHO}, 3\ns_mul_i32 s73, s73, {60 * 128}"); G.add(f"s_add_u32 s73, s73, s{sW2}\nv_min_u32 v11, 5, v1")
            G.add(f"s_add_u32 s73, s73, {4096 - 768}\nv_lshlrev_b32 v11, 7, v11")
        if T0 <= k < T0 + 10:
            G.add("s_addk_i32 s73, 768"); G.add(lambda: b.vm(f"buffer_load_dword a253, v11, {WS}, s73 offen sc1"), 2)
        if k == OPT.get('t1at', 99) and not stats:
            G.add(f"s_mul_i32 s3, s{sSI}, {136 * 128}\ns_add_u32 s3, s3, s{sDMA}")
            G.add(f"s_sub_u32 s3, s3, s{sM0}\nv_lshlrev_b32 v2, 7, v0"); G.add(f"s_add_u32 s3, s3, 16384\nv_min_u32 v2, {135 * 128}, v2")
            G.add(lambda: b.vm(f"buffer_load_dword a252, v2, {WS}, s3 offen sc1"), 2)
        if k == NK - 2: G.add(lambda: tok.__setitem__('st2', ld_st2(b)), 2)
        if k == NK - 1: G.add(lambda: est['rd'](0), 2)
        G.begin(4 * np1)
        for t in range(np1):
            for mat in range(2):
                slot(n, k, V_ACC1, t, mat, first=not stats); n += 1
        G.flush()
        stamp(b, f'p1_{k}')
        if not stats and k in (3, 7, 11, 15, 19):
            ring_barrier(max(36, (dman[0] - 3) // 4 * 4))
    st2tok = tok['st2']
    stamp(b, 'p1_end')
    poll(b, ld_st2, COND_ST2, st2tok)
    b.e("v_lshlrev_b32 v12, 16, v28\nv_lshlrev_b32 v13, 16, v30\nv_xor_b32 v12, 0x80000000, v12\nv_xor_b32 v13, 0x80000000, v13")
    htok = {}; wtok = {}
    def g2_setup():
        return [l.strip().replace('|', '\n') for l in f"""s_mul_i32 s50, s{sC}, {1024 * OPT.get('hrot', 1)}
        s_cmp_eq_u32 s{sW}, 3|s_cselect_b32 s59, {7 * 1024}, -1|s_cselect_b32 s73, {3 * 1024}, -1
        v_and_b32 v2, 15, v1
        v_lshrrev_b32 v3, 4, v1
        v_lshlrev_b32 v14, 4, v2
        v_lshl_add_u32 v14, v3, 8, v14
        s_lshr_b32 s56, s{sW}, 1
        s_lshl_b32 s57, s{sRHO}, 1
        s_add_u32 s56, s56, s57
        s_and_b32 s57, s{sW}, 1
        s_mul_i32 s58, s56, 40960
        s_mul_i32 s3, s{sC}, 5120
        s_add_u32 s58, s58, s3
        s_lshl_b32 s3, s57, 3
        s_add_u32 s58, s58, s3
        s_add_u32 s74, s58, {HT}
        s_add_u32 s75, s74, 4096
        s_lshl_b32 s56, s56, 5
        s_add_u32 s56, s56, s57
        s_lshl_b32 s76, s56, 3
        s_add_u32 s76, s76, {ST2}
        s_mul_i32 s77, s56, 1280
        s_mul_i32 s3, s{sC}, 160
        s_add_u32 s77, s77, s3
        v_mul_u32_u24 v15, 2560, v2
        v_lshl_add_u32 v15, v3, 3, v15""".split("\n")]
    HD = OPT.get('hd', 4)
    def hreg(nn): return (32, 48, 64, 80, 224, 240)[nn % HD]
    def h_ops(nn):
        if nn >= 14: return []
        def addr():
            msk, base, dm = (7168, 0, 59) if nn < 8 else (3072, 8192, 73) if nn < 12 else (1024, 12288, None)
            b.e(f"s_add_u32 s56, s50, {nn * 1024}\ns_and_b32 s56, s56, {msk}")
            if dm: b.e(f"s_cmp_eq_u32 s56, s{dm}\ns_cselect_b32 s56, {OOB}, s56")
            if base: b.e(f"s_add_u32 s56, s56, {base}")
            b.e(f"v_add_u32 v{25 + (nn & 1) * 2}, s56, v4")
        L = [(addr, 2)]
        for tt in range(4):
            if OPT.get('noh'): htok[nn] = 0; continue
            L.append((M(lambda tt=tt: htok.__setitem__(nn, b.vm(f"buffer_load_dwordx4 {vr(hreg(nn) + tt * 4, 4)}, v{25 + (nn & 1) * 2}, {WS}, s{sH0 + tt} offen sc1"))), 2))
        return L
    stg = [40]; stok = {}; spos = {}; avail = []; freed = set(); NS = OPT.get('ns', 19)
    def release():
        for blk in range(0 if stats else 9, 14 if not stats else 5):
            if blk not in freed and 16 * (blk + 1) <= ring['free']:
                freed.add(blk); avail.extend((blk % 9) * 16384 + 1024 * q for q in range(4))
                if len(freed) == 1: avail.extend(147456 + 1024 * q for q in range(3))
    def stage_ops():
        m = stg[0]
        if m >= 40 + NS or not avail: return []
        stg[0] += 1
        a = avail.pop(0); spos[m] = a
        want = a - (m % 4) * 1024
        L = [(lambda: (set_m0(want), b.e(f"s_addk_i32 s{sW2}, 4096") if m % 4 == 0 else None), 1)]
        def go():
            set_m0(want)
            stok[m] = b.vm(f"buffer_load_dwordx4 v4, {WS}, s{sW2} offen offset:{(m % 4) * 1024} sc1 lds") if not OPT.get('nostage') else 0
        L.append((M(go), 2))
        return L
    P = dict(e1=36, xf=56, send=100, e2=102, xe=92, xr=84) if not stats else dict(e1=16, xf=26, send=38, e2=0, xe=38, xr=30)
    if not stats: P.update({k_: OPT[k_] for k_ in P if k_ in OPT})
    d2 = [dst_pair(V_ACC2, 0, False, sHP + 2), dst_pair(V_ACC2, 0, True, sHP + 2)]
    ops2, est2 = epi_ops(V_ACC2, np1, list(range(np2)), d2, False, 16, 16)
    ops3, est3 = epi_ops(V_ACC3, np1 + np2, [0], [dst_half(V_ACC3, 0, sHP + 3)], True, 16, 16)
    steps = [(2, k, np2, V_ACC2) for k in range(NK if np2 else 0)] + [(3, k, 1, V_ACC3) for k in range(NK)]
    XT_ = nslot2; X3 = XT_ - 2 * NK
    oi = o2 = 0; setup = g2_setup(); x = 0; hq = []; done = set()
    if stats: ring_barrier(36)
    release()
    def once(name, cond):
        if cond and name not in done: done.add(name); return True
        return False
    for (ps, k, npp, accb) in steps:
        x1 = x + 2 * npp
        if k % OPT.get('rk', 1) == 0 or ps == 3: addv(dma_ops())
        if k < 8: addv(dma_ops())
        hi = min(len(ops), -(-len(ops) * x1 // P['e1']))
        for it in ops[oi:hi]: G.add(*it)
        oi = hi
        setup_done = not setup
        if x >= P['e1']:
            for _ in range(6 if stats else 3 * npp):
                if setup: G.add(setup.pop(0))
        if np2 and once('rd2', x1 >= X3): G.add(lambda: est2['rd'](0), 2)
        if np2 and x >= X3:
            hi = min(len(ops2), -(-len(ops2) * (x1 - X3) // (P['e2'] - X3)))
            for it in ops2[o2:hi]: G.add(*it)
            o2 = hi
        if dq[0] >= 72 or stats:
            togo = min(40 + NS - stg[0], len(avail))
            for _ in range(-(-togo * 2 * npp // max(2 * npp, P['send'] - x))): addv(stage_ops())
        if once('res', x >= P['xr'] and setup_done):
            for dt in range(5):
                G.addv(lambda dt=dt: b.vm(f"buffer_load_dwordx2 {ar(240 + 2 * dt, 2)}, v14, {WS}, s{74 if dt < 4 else 75} offen offset:{(dt % 4) * 1024} sc1"))
        if once('eld', x1 >= P['xe'] - OPT.get('xel', 6)): G.add(lambda: tok.__setitem__('e', ld_flags(FLE)(b)), 4, front=True)
        if hq:
            for _ in range(-(-len(hq) * 2 * npp // (XT_ - x))):
                it = hq.pop(0); addv([it])
                if not getattr(it[0], 'mem', False) and hq: addv([hq.pop(0)])
                if not hq: break
        if x1 == XT_: G.add(lambda: est3['rd'](0), 2)
        ng = 4 * npp
        G.begin(ng)
        free2 = 2 * ng - 2 * npp - 2 * npp / WG_
        for t in range(npp):
            for mat in range(2):
                left = ng - 2 * (t * 2 + mat)
                need = G.need()
                cap = 2 if need <= free2 * left / ng else (3 if need <= (free2 + ng) * left / ng + 1 else 4 + need // left)
                slot(n, k, accb, t, mat, cap); n += 1
        G.flush()
        x = x1
        stamp(b, f'p{ps}_{k}')
        if once('fle', x >= P['xf']):
            b.wait(vm=est['last'])
            ring_barrier(72)
            flag_store(b, FLE); release()
            if stats: flag_store(b, FLM)
        if once('echk', x >= P['xe']):
            assert not setup
            poll(b, ld_flags(FLE), COND_FLAG, tok['e'])
            stamp(b, 'early_seen')
            hq = h_ops(0) + h_ops(1) + h_ops(2)
    assert 'res' in done and stg[0] == 40 + NS and oi == len(ops) and o2 == len(ops2), stg
    for it, _ in hq: it()
    stamp(b, 'p2_end')
    b.e(f"v_add_u32 v10, s{sM0}, v4\nv_add_u32 v5, s{sM0}, v5\nv_add_u32 v6, s{sM0}, v6")
    for o, _ in ops3: o()
    stamp(b, 'epi2_end')
    hmax = 7; hnext = 3
    NMF, NM, NF, NL = OPT.get('nmf', 0), OPT.get('nm', 5), OPT.get('nf', 2), OPT.get('nl', 8)
    wl = {}; direct = []; PL = OPT.get('pl', 2)
    def mid_flag():
        if not stats:
            b.wait(vm=est2['last'])
            b.e("s_barrier")
            flag_store(b, FLM)
    if NMF < 0: mid_flag()
    for nn in range(14):
        lim = min(nn + HD - 1, hmax, hnext + OPT.get('hb', 2) - 1)
        while hnext <= lim:
            addv(h_ops(hnext))
            hnext += 1
        if nn == max(NM - PL + 1, NF + 1): G.add(lambda: wtok.__setitem__('mid', ld_flags(FLM)(b)), 4, front=True)
        if 1 <= nn <= 6:
            for dt in range(5):
                m = (nn + 7) * 5 + dt
                if m in spos:
                    G.add(lambda m=m, nn=nn, dt=dt: (b.wait(vm=stok[39 + NS]), wl.__setitem__(nn + 7, b.lg(f"ds_read_b128 {ar(A_W2 + (nn - 1) * 20 + dt * 4, 4)}, v{(10, 5, 6)[spos[m] >> 16]} offset:{spos[m] & 0xffff}"))), 1)
                else: direct.append(m)
        D0 = OPT.get('d0', 7)
        if nn >= D0 and direct:
            for _ in range(-(-len(direct) // (11 - nn))):
                m = direct.pop(0); G.addv(lambda m=m: wtok.__setitem__(m // 5, w2_load(b, m)))
        if nn == 3: G.add(lambda: wtok.__setitem__('res', b.vm(f"buffer_load_dword v106, v9, {WS}, s76 offen sc1")), 2)
        if nn == max(NL - PL + 1, NM + 1): G.add(lambda: wtok.__setitem__('late', ld_flags(FLL)(b)), 4, front=True)
        if nn == 10:
            G.add(lambda: (b.wait(vm=wtok['res']), b.e("v_and_b32 v106, 0xffff0000, v106")), 2)
            G.add("v_rcp_f32 v106, v106")
            for dt in range(5):
                for k in range(2):
                    G.add(f"v_accvgpr_read_b32 v{96 + 2 * dt + k}, a{240 + 2 * dt + k}")
                    G.add(f"v_lshlrev_b32 v{108 + 4 * dt + 2 * k}, 16, v{96 + 2 * dt + k}\nv_and_b32 v{109 + 4 * dt + 2 * k}, 0xffff0000, v{96 + 2 * dt + k}")
            G.add("v_mul_f32 v106, v106, v106")
        if nn == 11:
            for q in (12, 13):
                G.add(lambda q=q: b.wait(vm=htok[q]), 1)
                for r in (hreg(q), hreg(q) + 8): G.add(f"v_swap_b32 v{r + 2}, v{r + 4}"); G.add(f"v_swap_b32 v{r + 3}, v{r + 5}")
        if nn == 9:
            for k in range(3): G.add(f"s_xor_b32 s56, s{sW}, {k + 1}\ns_mul_i32 s56, s56, 15360"); G.add(f"s_add_u32 s56, s56, 81920\nv_add_u32 v{16 + k}, s56, v4")
            G.add(f"s_mul_i32 s56, s{sW}, 15360\ns_add_u32 s56, s56, 81920"); G.add("v_add_u32 v19, s56, v4")
        def g2m(nn, tt, dt):
            a = V_G2 + (tt * 5 + dt) * 4
            G.mfma(f"v_mfma_f32_16x16x32_bf16 {vr(a,4)}, {ar(A_W2 + (nn % 8) * 20 + dt * 4, 4)}, {vr(hreg(nn) + tt * 4, 4)}, {'0' if nn == 0 else vr(a,4)}")
        if nn == 12 and OPT.get('ttail', 1):
            b.wait(vm=max(htok[13], wtok.get(13, -1)), lg=max(wl.values()))
            cnt = 0; pend = []
            for tt in (1, 2, 3, 0):
                for q in (12, 13):
                    for dt in range(5):
                        g2m(q, tt, dt); cnt += 1
                        if pend and cnt >= pend[0][0] and cnt % 2 == 0:
                            _, t2, d2_ = pend.pop(0)
                            b.lg(f"ds_write_b128 v{15 + t2}, {vr(V_G2 + (t2 * 5 + d2_) * 4, 4)} offset:{(t2 - 1) * 5120 + d2_ * 1024}")
                        if q == 13 and tt: pend.append((cnt + 5, tt, dt))
            for _, t2, d2_ in pend: b.lg(f"ds_write_b128 v{15 + t2}, {vr(V_G2 + (t2 * 5 + d2_) * 4, 4)} offset:{(t2 - 1) * 5120 + d2_ * 1024}")
            break
        b.wait(vm=max(htok[nn], wtok.get(nn, -1)), lg=wl.get(nn))
        G.begin(20)
        for dt in range(5):
            for tt in range(4):
                g2m(nn, tt, dt)
                G.fill()
        G.flush()
        stamp(b, f'g2_{nn}')
        if nn == NMF: mid_flag()
        if nn == NF:
            b.wait(vm=est3['last'])
            b.e("s_barrier")
            flag_store(b, FLL)
        if nn == NM:
            poll(b, ld_flags(FLM), COND_FLAG, wtok['mid']); hmax = 11
            stamp(b, 'mid_seen')
        if nn == NL:
            poll(b, ld_flags(FLL), COND_FLAG, wtok['late']); hmax = 13
            stamp(b, 'late_seen')
    stamp(b, 'g2_end')
    if not OPT.get('ttail', 1):
        for tt in range(1, 4):
            for dt in range(5):
                b.lg(f"ds_write_b128 v{15 + tt}, {vr(V_G2 + (tt * 5 + dt) * 4, 4)} offset:{(tt - 1) * 5120 + dt * 1024}")
    b.wait_all(vm=False)
    b.e("s_barrier")
    rk = {}
    for dt in range(5):
        for k in range(3):
            rk[dt] = b.lg(f"ds_read_b128 {vr(32 + (dt * 3 + k) * 4, 4)}, v19 offset:{k * 5120 + dt * 1024}")
    for dt in range(5):
        b.wait(lg=rk[dt])
        a = V_G2 + dt * 4; r = 32 + dt * 12
        for h in (0, 2):
            b.e(f"v_pk_add_f32 {vr(a + h, 2)}, {vr(a + h, 2)}, {vr(r + h, 2)}")
            b.e(f"v_pk_add_f32 {vr(r + 4 + h, 2)}, {vr(r + 4 + h, 2)}, {vr(r + 8 + h, 2)}")
        for h in (0, 2):
            b.e(f"v_pk_add_f32 {vr(a + h, 2)}, {vr(a + h, 2)}, {vr(r + 4 + h, 2)}")
        for h in (0, 2):
            b.e(f"v_pk_fma_f32 {vr(a + h, 2)}, {vr(a + h, 2)}, v[106:107], {vr(108 + 4 * dt + h, 2)} op_sel_hi:[1,0,1]")
        b.e(f"v_cvt_pk_bf16_f32 v{a}, v{a}, v{a + 1}\nv_cvt_pk_bf16_f32 v{a + 1}, v{a + 2}, v{a + 3}")
        b.vm(f"buffer_store_dwordx2 {vr(a, 2)}, v15, {OUT}, s77 offen offset:{dt * 32} {OPT.get('outaux', '')}")
    if OPT.get('endwb'): b.e("s_waitcnt vmcnt(0)\nbuffer_wbl2 sc1")
    stamp(b, 'end')
    stamp_dump(b)
    b.e("s_endpgm")
```

```python
sPAN, sDMA, sM0, sW2, sH0 = 60, 61, 62, 63, 64
sROT = 59
sHP, sSTK = 68, 72
CSB = 162816
A_PAN, A_RING, A_W2 = 0, 48, 80
V_ACC1, V_ACC2, V_ACC3, V_PAN = 32, 96, 128, 144
V_G2, V_HR = 144, 32

def ffn_map(helper):
    if helper:
        t = f"""s_lshr_b32 s76, s2, 3
            s_mul_i32 s{sJ}, s76, 43
            s_lshr_b32 s{sJ}, s{sJ}, 7
            s_mul_i32 s58, s{sJ}, 3
            s_sub_u32 s{sSI}, s76, s58
            s_and_b32 s58, s{sXCD}, 1
            s_mul_i32 s58, s58, 3
            s_add_u32 s{sI}, s{sSI}, s58
            s_mul_i32 s{sROT}, s{sSI}, 3
            s_lshr_b32 s{sC}, s76, 2
            """
    else:
        t = f"""s_lshr_b32 s76, s50, 3
            s_mul_i32 s{sJ}, s76, 52
            s_lshr_b32 s{sJ}, s{sJ}, 8
            s_mul_i32 s58, s{sJ}, 5
            s_sub_u32 s{sSI}, s76, s58
            s_and_b32 s58, s{sXCD}, 1
            s_mul_i32 s58, s58, 5
            s_add_u32 s58, s58, s{sSI}
            s_add_u32 s{sI}, s58, 6
            s_mov_b32 s{sROT}, 0
            s_lshr_b32 s{sC}, s76, 2
            s_add_u32 s{sC}, s{sC}, 3
            """
    return t + f"""s_lshr_b32 s58, s{sXCD}, 1
        s_lshl_b32 s58, s58, 2
        s_add_u32 s{sJ}, s{sJ}, s58
        s_and_b32 s76, s76, 3
        s_lshl_b32 s{sRHO}, s{sXCD}, 2
        s_add_u32 s{sRHO}, s{sRHO}, s76
        v_lshlrev_b32 v4, 4, v1
        s_lshl_b32 s{sM0}, s{sW}, 12
        s_mul_i32 s{sDMA}, s{sJ}, {JSTR}
        s_add_u32 s{sDMA}, s{sDMA}, s{sM0}
        s_add_u32 s{sDMA}, s{sDMA}, {W1P}
        s_mul_i32 s58, s{sC}, 56
        s_mul_i32 s{sW2}, s{sW}, 14
        s_add_u32 s58, s58, s{sW2}
        s_mul_i32 s{sW2}, s58, 5120
        s_add_u32 s{sW2}, s{sW2}, {W2P}"""

def w2_touch(b, late):
    nl = 60 if late else 80
    b.e(f"""s_and_b32 s3, s{sRHO}, 3
        s_mul_i32 s3, s3, {nl * 128}
        s_add_u32 s3, s3, s{sW2}
        v_lshlrev_b32 v2, 7, v1""")
    if late:
        b.e(f"s_add_u32 s3, s3, 4096\nv_min_u32 v2, {59 * 128}, v2")
        b.vm(f"buffer_load_dword a253, v2, {WS}, s3 offen sc1")
    else:
        b.e(f"v_add_u32 v3, 0x2000, v2\nv_min_u32 v3, {79 * 128}, v3")
        b.vm(f"buffer_load_dword a253, v2, {WS}, s3 offen sc1")
        b.vm(f"buffer_load_dword a254, v3, {WS}, s3 offen sc1")

def dma_w1(b, n):
    blk, k = n >> 2, n & 3
    if k == 0:
        b.e(f"s_add_u32 m0, s{sM0}, {(blk % 9) * 16384}\ns_addk_i32 s{sDMA}, 16384")
    return b.vm(f"buffer_load_dwordx4 v4, {WS}, s{sDMA} offen offset:{k * 1024} sc1 lds")

def w2_load(b, m):
    n, dt = divmod(m, 5)
    if m and m % 4 == 0: b.e(f"s_addk_i32 s{sW2}, 4096")
    return b.vm(f"buffer_load_dwordx4 {ar(A_W2 + (n % 8) * 20 + dt * 4, 4)}, v4, {WS}, s{sW2} offen offset:{(m % 4) * 1024} sc1")

def preload(b, lo, hi, order=None):
    for n in range(lo, hi):
        if order is not None:
            if n % 4 == 0 or n == lo: b.e(f"s_add_u32 m0, s{sM0}, {order[n // 4] * 16384}\ns_add_u32 s58, s{sDMA}, {order[n // 4] * 16384}")
            b.vm(f"buffer_load_dwordx4 v4, {WS}, s58 offen offset:{(n & 3) * 1024} sc1 lds")
            continue
        if n % 4 == 0:
            b.e(f"""s_lshl_b32 s56, s{sROT}, 14
                s_add_u32 m0, s{sM0}, s56
                s_add_u32 s57, s{sDMA}, s56
                s_add_u32 s{sROT}, s{sROT}, 1
                s_cmp_eq_u32 s{sROT}, 9
                s_cselect_b32 s{sROT}, 0, s{sROT}""")
        b.vm(f"buffer_load_dwordx4 v4, {WS}, s57 offen offset:{(n & 3) * 1024} sc1 lds")
    if hi == 36:
        b.e(f"""s_add_u32 s{sDMA}, s{sDMA}, {8 * 16384}
            v_cmp_lt_u32 vcc, 111, v0
            v_mov_b32 v2, 0
            v_mov_b32 v3, {7168 - 448}
            v_cndmask_b32 v2, v2, v3, vcc
            v_lshl_add_u32 v2, v0, 2, v2
            s_mul_i32 s56, s{sJ}, 448
            s_add_u32 s56, s56, {CSP}""")
        for k in range(7):
            b.vm(f"buffer_load_dword v{16 + k}, v2, {WS}, s56 offen sc1")
            b.e("s_addk_i32 s56, 14336")

def ffn(b):
    b.e(f"""v_add_u32 v5, 0x10000, v4
        v_add_u32 v6, 0x20000, v4
        v_and_b32 v2, 15, v1
        v_lshrrev_b32 v3, 4, v1
        v_lshlrev_b32 v7, 4, v2
        v_lshl_add_u32 v7, v3, 9, v7
        v_lshlrev_b32 v8, 4, v3
        v_add_u32 v8, {CSB}, v8
        v_lshlrev_b32 v9, 4, v2
        s_lshl_b32 s56, s{sI}, 2
        s_add_u32 s56, s56, s{sW}
        s_mul_i32 s{sPAN}, s56, 40960
        s_add_u32 s74, s{sPAN}, {HT}
        s_add_u32 s75, s74, 40960
        s_and_b32 s57, s{sJ}, {1 if OPT.get('krot', 0) >= 2 else 3}
        s_mul_i32 s57, s57, {(0, 5, 10, 4, 2)[OPT.get('krot', 0)]}
        s_lshr_b32 s57, s57, 1
        s_lshl_b32 s57, s57, 12
        s_add_u32 s{sPAN}, s74, s57
        s_lshl_b32 s{sSTK}, s56, 8
        s_add_u32 s{sSTK}, s{sSTK}, {ST2}
        s_mul_i32 s56, s56, {2 * 56 * 1024}
        s_add_u32 s56, s56, {HP}""")
    for k in range(2):
        b.e(f"""s_lshl_b32 s57, s{sJ}, 1
            s_add_u32 s57, s57, {k}
            s_and_b32 s58, s57, 3
            s_mul_i32 s58, s58, 14
            s_lshr_b32 s57, s57, 2
            s_add_u32 s57, s57, s58
            s_lshl_b32 s57, s57, 10
            s_add_u32 s{sHP + k}, s56, s57""")
    for k in range(2):
        b.e(f"s_mov_b32 s57, s{sJ}" if k == 0 else f"s_lshr_b32 s57, s{sJ}, 1")
        b.e(f"""s_and_b32 s58, s57, 3
            s_mul_i32 s58, s58, 14
            s_lshr_b32 s57, s57, 2
            s_add_u32 s57, s57, s58
            s_add_u32 s57, s57, {8 + 4 * k}
            s_lshl_b32 s57, s57, 10
            s_add_u32 s{sHP + 2 + k}, s56, s57""")
    b.e(f"""s_and_b32 s57, s{sJ}, 1
        s_mul_i32 s57, s57, {56 * 1024}
        s_add_u32 s{sHP + 3}, s{sHP + 3}, s57""")
    for k in range(4):
        b.e(f"""s_xor_b32 s57, s{sW}, {k}
            s_lshl_b32 s58, s{sRHO}, 2
            s_add_u32 s57, s57, s58
            s_mul_i32 s57, s57, 56
            s_mul_i32 s58, s{sW}, 14
            s_add_u32 s57, s57, s58
            s_lshl_b32 s57, s57, 10
            s_add_u32 s{sH0 + k}, s57, {HP}""")
    stamp(b, 'pre_issued')
    sk = lab("np")
    b.e(f"s_cmp_lg_u32 s{sW}, 0\ns_cbranch_scc1 {sk}")
    if OPT.get('mp', 6) & 2:
        f = b.fork()
        f.e(f"s_mov_b32 s55, {FLH}\nv_lshlrev_b32 v26, 7, v1\nv_add_u32 v27, 8192, v26\nv_min_u32 v28, 31, v1\nv_lshlrev_b32 v28, 7, v28\nv_add_u32 v28, 16384, v28")
        L = [f"buffer_load_dwordx2 {vr(10 + 2 * k, 2)}, v{26 + k}, {WS}, s55 offen sc1" for k in range(3)]
        for l in L: t = f.vm(l)
        poll_masked(f, L, [f"v_cmp_ne_u64 s[{18 + 2 * k}:{19 + 2 * k}], s[0:1], {vr(10 + 2 * k, 2)}" for k in range(3)], t)
    else: poll(b.fork(), ld_lines(FLH, 160, 10), cond_lines(160, 10))
    b.e(f"{sk}:")
    b.wait_all()
    b.e(f"s_cmp_eq_u32 s{sJ}, 15\ns_barrier\ns_cbranch_scc1 L_j15")
    stamp(b, 'g1_start')
    if OPT['stop'] == 'pre': stamp_dump(b); b.e("s_endpgm")
    g12(b.fork(), 4, 2, False)
    b.e("L_j15:")
    stamp(b, 'g1_start')
    g12(b.fork(), 2, 0, True)

def flag_store(b, base):
    b.e(f"s_lshl_b32 s16, s{sI}, 4\ns_add_u32 s16, s16, s{sJ}")
    arrive(b, base, "s16", "s16")
def ld_flags(base):
    return ld_lines(f"s_lshr_b32 s55, s{sRHO}, 1\ns_lshl_b32 s55, s55, 11\ns_add_u32 s55, s55, {base}", 16)
COND_FLAG = cond_lines(16)
def poll_flags(b, base, tok):
    if OPT.get('mp', 6) & 4:
        poll_masked(b, [f"buffer_load_dwordx2 v[28:29], v26, {WS}, s55 offen sc1"], ["v_cmp_ne_u64 s[18:19], s[0:1], v[28:29]"], tok)
    else: poll(b, ld_flags(base), COND_FLAG, tok)
def ld_st2(b):
    return b.vm(f"buffer_load_dwordx4 v[28:31], v9, {WS}, s{sSTK} offen sc1")
COND_ST2 = "v_xor_b32 v26, s0, v29\nv_xor_b32 v27, s1, v31\nv_or_b32 v26, v26, v27\nv_cmp_ne_u32 vcc, 0, v26"

CS_OPS = [f"v_add_f32 v16, v16, v17\nv_add_f32 v18, v18, v19", "v_add_f32 v20, v20, v21\nv_add_f32 v16, v16, v22",
          f"v_add_f32 v18, v18, v20\nv_lshlrev_b32 v2, 2, v0", f"v_add_u32 v2, {CSB}, v2\nv_add_f32 v16, v16, v18"]
def dbg_reset(b):
    sk = lab("dz")
    b.e(f"""s_cmp_lg_u32 s2, 255
        s_cbranch_scc1 {sk}
        s_mov_b32 s14, 128
        v_mov_b32 v23, 0
        v_lshlrev_b32 v3, 2, v0
        buffer_store_dword v23, v3, {OUT}, 0 offen sc1
        {sk}:""")
    mk_srd(b, 12, P_OUT, 2621440)
def M(fn):
    fn.mem = True; return fn

def g12(b, np1, np2, stats):
    NK = 20
    ptok = {}
    VT = V_ACC1 if stats else V_ACC2
    VS_ = 96
    def preg(k): return V_PAN + 8 * k if k < 14 else VT + 8 * (k - 14)
    def pan(k, s, first):
        return vr(preg(k) + 4 * s, 4) if (k < 14 or first) else ar(A_PAN + 8 * (k - 14) + 4 * s, 4)
    def pan_load(k):
        if k and k % 2 == 0:
            b.e(f"s_addk_i32 s{sPAN}, 4096")
            if OPT.get('krot', 0): b.e(f"s_cmp_eq_u32 s{sPAN}, s75\ns_cselect_b32 s{sPAN}, s74, s{sPAN}")
        for p in range(2):
            ptok[k] = b.vm(f"buffer_load_dwordx4 {vr(preg(k) + 4 * p, 4)}, v7, {WS}, s{sPAN} offen offset:{(k & 1) * 2048 + p * 256} sc1")
    def pan_fix(k):
        b.wait(vm=ptok[k])
        r = preg(k)
        b.e(f"v_swap_b32 v{r + 2}, v{r + 4}\nv_swap_b32 v{r + 3}, v{r + 5}")
        return [f"v_accvgpr_write_b32 a{A_PAN + 8 * (k - 14) + q}, v{r + q}" for q in range(8)] if k >= 14 else []
    def pan_load_ops(k):
        L = []
        if k and k % 2 == 0:
            L.append((f"s_addk_i32 s{sPAN}, 4096" + (f"\ns_cmp_eq_u32 s{sPAN}, s75\ns_cselect_b32 s{sPAN}, s74, s{sPAN}" if OPT.get('krot', 0) else ""), 1))
        for p in range(2):
            if OPT.get('nopan'): ptok[k] = 0; continue
            L.append((M(lambda p=p: ptok.__setitem__(k, b.vm(f"buffer_load_dwordx4 {vr(preg(k) + 4 * p, 4)}, v7, {WS}, s{sPAN} offen offset:{(k & 1) * 2048 + p * 256} sc1"))), 2))
        return L
    def pan_fix_ops(k):
        r = preg(k)
        L = [(lambda: b.wait(vm=ptok[k]), 1), (f"v_swap_b32 v{r + 2}, v{r + 4}", 2), (f"v_swap_b32 v{r + 3}, v{r + 5}", 2)]
        if OPT.get('emu32'): L = [L[0]] + [(f"v_permlane16_swap_b32 v{r + q}, v{r + q + 2}", 2) for q in (0, 1, 4, 5)]
        return L
    def pan_copy_ops(k):
        return [(f"v_accvgpr_write_b32 a{A_PAN + 8 * (k - 14) + q}, v{preg(k) + q}", 1) for q in range(8)] if k >= 14 else []
    LA = OPT.get('la', 5)
    for k in range(LA): pan_load(k)
    if OPT.get('ptouch'):
        P0 = OPT['ptouch']
        b.e(f"v_min_u32 v2, {(20 - P0) * 4 - 1}, v1\nv_lshlrev_b32 v2, 9, v2\ns_and_b32 s3, s{sJ}, 3\ns_lshl_b32 s3, s3, 7\ns_add_u32 s3, s3, s74\ns_add_u32 s3, s3, {P0 * 2048}")
        b.vm(f"buffer_load_dword a253, v2, {WS}, s3 offen sc1")
    nslot1, nslot2 = 2 * np1 * NK, 2 * (np2 + 1) * NK
    ftok = {}
    ring = dict(vis=9, free=0, rd=-1, used=-1)
    def frag_read(n):
        if n >= nslot1 + nslot2: return
        assert n // 16 < ring['vis'], ("ring RAW", n)
        pos = (n % 144) * 1024
        ftok[n] = b.lg(f"ds_read_b128 {ar(A_RING + (n % 8) * 4, 4)}, v{4 + (pos >> 16)} offset:{pos & 0xffff}")
    FA = OPT.get('fa', 7); WG_ = OPT.get('wg', 4)
    b.e(f"v_add_u32 v24, {56 * 1024}, v4")
    dbg_reset(b)
    if stats:
        for x in CS_OPS: b.e(x)
        b.wait(lg=b.lg("ds_write_b32 v2, v16")); b.e("s_barrier")
        b.e("s_mov_b32 s3, 0x3f803f80\nv_mov_b32 v12, s3\nv_mov_b32 v13, s3\nv_mov_b32 v14, s3\nv_mov_b32 v15, s3")
        pan_fix(0)
        for k in range(NK):
            if k + LA < NK: pan_load(k + LA)
            cp = pan_fix(k + 1) if k + 1 < NK else []
            for s in range(2):
                b.e(f"v_mfma_f32_16x16x32_bf16 {vr(VS_ + 4 * s, 4)}, v[12:15], {pan(k, s, True)}, {'0' if k == 0 else vr(VS_ + 4 * s, 4)}")
                b.e(f"v_mfma_f32_16x16x32_bf16 {vr(VS_ + 8 + 4 * s, 4)}, {pan(k, s, True)}, {pan(k, s, True)}, {'0' if k == 0 else vr(VS_ + 8 + 4 * s, 4)}")
            for c in cp: b.e(c)
        b.e("""v_and_b32 v2, 3, v1
            v_cmp_eq_u32 s[56:57], 1, v2
            v_cmp_eq_u32 s[58:59], 2, v2
            v_cmp_eq_u32 s[74:75], 3, v2
            v_bfe_u32 v2, v1, 2, 2
            v_lshrrev_b32 v3, 4, v1
            v_cmp_eq_u32 s[76:77], v2, v3""")
        for s in range(2):
            g = VS_ + 8 + 4 * s
            b.e(f"v_cndmask_b32 v{g}, v{g}, v{g+1}, s[56:57]\nv_cndmask_b32 v{g}, v{g}, v{g+2}, s[58:59]\nv_cndmask_b32 v{g}, v{g}, v{g+3}, s[74:75]")
            stats_finish(b, VS_ + 4 * s, g, 16 + 2 * s)
        b.e("v_mov_b32 v17, s0\nv_mov_b32 v19, s1\ns_mov_b64 exec, s[76:77]")
        b.vm(f"buffer_store_dwordx4 v[16:19], v9, {WS}, s{sSTK} offen sc1")
        b.e("s_mov_b64 exec, -1")
    for n in range(FA): frag_read(n)
    if not stats: pan_fix(0)
    dman = [36]
    dtok = {}
    def dma_next():
        if dman[0] < 72 and not stats:
            assert (dman[0] // 4 - 9 + 1) * 16 <= ring['free'], ("ring WAR", dman[0])
            dtok[dman[0]] = dma_w1(b, dman[0]); dman[0] += 1
    dq = [36]; m0cur = [None]
    def set_m0(want):
        if m0cur[0] != want: b.e(f"s_add_u32 m0, s{sM0}, {want & 0xffffffff}"); m0cur[0] = want
    def dma_ops():
        m = dq[0]
        if m >= 72 or stats: return []
        dq[0] += 1
        L = []
        want = ((m >> 2) % 9) * 16384
        if m % 4 == 0: L.append((lambda: (set_m0(want), b.e(f"s_addk_i32 s{sDMA}, 16384")), 2))
        def go():
            assert (m // 4 - 9 + 1) * 16 <= ring['free'], ("ring WAR", m)
            set_m0(want)
            dtok[m] = b.vm(f"buffer_load_dwordx4 v4, {WS}, s{sDMA} offen offset:{(m & 3) * 1024} sc1 lds") if not OPT.get('nodma') else b.vi - 1; dman[0] = m + 1
        L.append((M(go), 2))
        return L
    def ring_barrier(upto):
        if upto - 1 in dtok: b.wait(vm=dtok[upto - 1])
        else: assert upto == 36 or stats
        if not OPT.get('nobar'): b.e("s_barrier")
        ring['vis'] = max(ring['vis'], upto // 4); ring['free'] = ring['used'] + 1
    def epi_ops(acc, tau0, taus, dsts, pk, CA, CB):
        ops = []; st = {}
        def rd(ti):
            if ti >= len(taus): return
            c = (CA, CB)[ti & 1]
            b.lg(f"ds_read_b128 {vr(c, 4)}, v8 offset:{(tau0 + taus[ti]) * 64}")
            st[ti] = b.lg(f"ds_read_b128 {vr(c + 4, 4)}, v8 offset:{448 + (tau0 + taus[ti]) * 64}")
        st['rd'] = rd
        for ti, t in enumerate(taus):
            c0 = (CA, CB)[ti & 1]
            ops.append(lambda ti=ti: (b.wait(lg=st[ti]), rd(ti + 1) if CA != CB else None))
            for s in range(2):
                g = acc + ((t * 2 + 0) * 2 + s) * 4; u = acc + ((t * 2 + 1) * 2 + s) * 4
                if pk:
                    for (r, c) in ((g, c0), (g + 2, c0 + 2), (u, c0 + 4), (u + 2, c0 + 6)):
                        ops.append(lambda r=r, c=c, s=s: b.e(f"v_pk_fma_f32 {vr(r,2)}, {vr(c,2)}, v[12:13], {vr(r,2)} op_sel:[0,{s},0] op_sel_hi:[1,{s},1]"))
                else:
                    for q in range(4):
                        ops.append(lambda r=g + q, c=c0 + q, s=s: b.e(f"v_fmac_f32 v{r}, v{c}, v{12 + s}"))
                    for q in range(4):
                        ops.append(lambda r=u + q, c=c0 + 4 + q, s=s: b.e(f"v_fmac_f32 v{r}, v{c}, v{12 + s}"))
                if s == 1 and CA == CB: ops.append(lambda ti=ti: rd(ti + 1))
                for q in range(4):
                    ops.append(lambda r=g + q: b.e(f"v_max_f32 v{r}, 0, v{r}"))
                if pk:
                    for q in (0, 2):
                        ops.append(lambda r=g + q, u=u + q: b.e(f"v_pk_mul_f32 {vr(r,2)}, {vr(r,2)}, {vr(u,2)}"))
                else:
                    for q in range(4):
                        ops.append(lambda r=g + q, u=u + q: b.e(f"v_mul_f32 v{r}, v{r}, v{u}"))
                d, half, sreg, last = dsts[ti](s)
                for q in range(2):
                    ops.append(lambda d=d + q, r=g + 2 * q: b.e(f"v_cvt_pk_bf16_f32 v{d}, v{r}, v{r + 1}"))
                if last == 4:
                    ops.append(lambda d=d - 2, s=s, sreg=sreg: st.__setitem__('last', b.vm(f"buffer_store_dwordx4 {vr(d,4)}, v{4 if s == 0 else 24}, {WS}, s{sreg} offen sc1")))
                elif last == 2:
                    def hst(d=d - 2, sreg=sreg):
                        l = lab("hs")
                        b.e(f"s_bitcmp0_b32 s{sJ}, 1\ns_cbranch_scc1 {l}\nv_swap_b32 v{d}, v{d + 2}\nv_swap_b32 v{d + 1}, v{d + 3}\n{l}:")
                        st['last'] = b.vm(f"buffer_store_dwordx4 {vr(d,4)}, v4, {WS}, s{sreg} offen sc1")
                    ops.append(hst)
                if last: ops[-1].vm = True
        return [(o, 2 if getattr(o, 'vm', False) else 1) for o in ops], st
    def dst_pair(acc, ta, second, sreg):
        def f(s):
            base = acc + ((ta * 2 + 1) * 2 + s) * 4
            return (base + (2 if second else 0), second, sreg, 4 if second else 0)
        return f
    def dst_half(acc, t, sreg):
        def f(s): return (acc + (t * 2 + 1) * 8 + 2 * s, 0, sreg, 2 * s)
        return f
    d1 = [dst_pair(V_ACC1, 0, False, sHP), dst_pair(V_ACC1, 0, True, sHP), dst_pair(V_ACC1, 2, False, sHP + 1), dst_pair(V_ACC1, 2, True, sHP + 1)]
    ops, est = epi_ops(V_ACC1, 0, list(range(np1)), d1, OPT.get('pk1', 0), 16, 16)
    G = Gaps(b, spread=OPT.get('spread', 1))
    def addv(L, front=False):
        for it, c in (reversed(L) if front else L): G.addv(it, c, getattr(it, 'mem', False), front)
    n = 0
    tok = {}
    DS = OPT.get('ds', [0, 0, 0, 0, 1, 2, 1, 2, 1, 2, 1, 2, 1, 1, 1, 2, 2, 2, 2, 2])
    NT = nslot1 + nslot2
    pn = [LA]
    def slot(n, k, accb, t, mat, cap=None, first=False):
        if n % WG_ == 0: G.now(lambda: b.wait(lg=ftok[min(n + WG_ - 1, NT - 1)]), 1)
        if OPT.get('emu32'):
            a = accb + t * 16
            G.mfma(f"v_mfma_f32_32x32x16_bf16 {vr(a,16)}, {ar(A_RING + (n % 8) * 4, 4)}, {pan(k, mat, first)}, {'0' if (k == 0 and mat == 0) else vr(a,16)}")
            G.now(lambda: frag_read(n + FA), 1)
            c6 = OPT['emu32'] + (2 * (cap - 2) if cap else 0)
            G.fill(reserve=1 if (n + 1) % WG_ == 0 else 0, cap=c6); G.pos += 1
            ring['used'] = n
            return
        for s in range(2):
            a = accb + ((t * 2 + mat) * 2 + s) * 4
            G.mfma(f"v_mfma_f32_16x16x32_bf16 {vr(a,4)}, {ar(A_RING + (n % 8) * 4, 4)}, {pan(k, s, first)}, {'0' if k == 0 else vr(a,4)}")
            if s == 0: G.now(lambda: frag_read(n + FA), 1)
            G.fill(reserve=1 if (s == 1 and (n + 1) % WG_ == 0) else 0, cap=cap)
        ring['used'] = n
    for k in range(NK):
        if not stats:
            for _ in range(OPT.get('pr', [1] * 20)[k]):
                if pn[0] < NK:
                    addv(pan_load_ops(pn[0]))
                    pn[0] += 1
            if k + 1 < NK:
                fx = pan_fix_ops(k + 1)
                pos = min(len(G.q), 3)
                G.q[pos:pos] = [(c, it) for it, c in fx]
            for _ in range(DS[k]):
                addv(dma_ops())
            for it in pan_copy_ops(k): G.add(*it)
        if k == 1 and not stats:
            for x in CS_OPS: G.add(x)
            G.add(lambda: b.lg("ds_write_b32 v2, v16"), 2)
        T0 = OPT.get('t2at', 99)
        if k == T0 - 1:
            G.add(f"s_and_b32 s73, s{sRHO}, 3\ns_mul_i32 s73, s73, {60 * 128}"); G.add(f"s_add_u32 s73, s73, s{sW2}\nv_min_u32 v11, 5, v1")
            G.add(f"s_add_u32 s73, s73, {4096 - 768}\nv_lshlrev_b32 v11, 7, v11")
        if T0 <= k < T0 + 10:
            G.add("s_addk_i32 s73, 768"); G.add(lambda: b.vm(f"buffer_load_dword a253, v11, {WS}, s73 offen sc1"), 2)
        if k == OPT.get('t1at', 99) and not stats:
            G.add(f"s_mul_i32 s3, s{sSI}, {136 * 128}\ns_add_u32 s3, s3, s{sDMA}")
            G.add(f"s_sub_u32 s3, s3, s{sM0}\nv_lshlrev_b32 v2, 7, v0"); G.add(f"s_add_u32 s3, s3, 16384\nv_min_u32 v2, {135 * 128}, v2")
            G.add(lambda: b.vm(f"buffer_load_dword a252, v2, {WS}, s3 offen sc1"), 2)
        if k == NK - 2: G.add(lambda: tok.__setitem__('st2', ld_st2(b)), 2)
        if k == NK - 1: G.add(lambda: est['rd'](0), 2)
        G.begin(4 * np1)
        for t in range(np1):
            for mat in range(2):
                slot(n, k, V_ACC1, t, mat, first=not stats); n += 1
        G.flush()
        stamp(b, f'p1_{k}')
        if not stats and k in (3, 7, 11, 15, 19):
            ring_barrier(max(36, (dman[0] - 3) // 4 * 4))
    st2tok = tok['st2']
    stamp(b, 'p1_end')
    poll(b, ld_st2, COND_ST2, st2tok)
    b.e("v_lshlrev_b32 v12, 16, v28\nv_lshlrev_b32 v13, 16, v30\nv_xor_b32 v12, 0x80000000, v12\nv_xor_b32 v13, 0x80000000, v13")
    htok = {}; wtok = {}
    def g2_setup():
        return [l.strip().replace('|', '\n') for l in f"""s_mul_i32 s50, s{sC}, {1024 * OPT.get('hrot', 1)}
        s_cmp_eq_u32 s{sW}, 3|s_cselect_b32 s59, {7 * 1024}, -1|s_cselect_b32 s73, {3 * 1024}, -1
        v_and_b32 v2, 15, v1
        v_lshrrev_b32 v3, 4, v1
        v_lshlrev_b32 v14, 4, v2
        v_lshl_add_u32 v14, v3, 8, v14
        s_lshr_b32 s56, s{sW}, 1
        s_lshl_b32 s57, s{sRHO}, 1
        s_add_u32 s56, s56, s57
        s_and_b32 s57, s{sW}, 1
        s_mul_i32 s58, s56, 40960
        s_mul_i32 s3, s{sC}, 5120
        s_add_u32 s58, s58, s3
        s_lshl_b32 s3, s57, 3
        s_add_u32 s58, s58, s3
        s_add_u32 s74, s58, {HT}
        s_add_u32 s75, s74, 4096
        s_lshl_b32 s56, s56, 5
        s_add_u32 s56, s56, s57
        s_lshl_b32 s76, s56, 3
        s_add_u32 s76, s76, {ST2}
        s_mul_i32 s77, s56, 1280
        s_mul_i32 s3, s{sC}, 160
        s_add_u32 s77, s77, s3
        v_mul_u32_u24 v15, 2560, v2
        v_lshl_add_u32 v15, v3, 3, v15""".split("\n")]
    HD = OPT.get('hd', 4)
    def hreg(nn): return (32, 48, 64, 80, 224, 240)[nn % HD]
    def h_ops(nn):
        if nn >= 14: return []
        def addr():
            msk, base, dm = (7168, 0, 59) if nn < 8 else (3072, 8192, 73) if nn < 12 else (1024, 12288, None)
            b.e(f"s_add_u32 s56, s50, {nn * 1024}\ns_and_b32 s56, s56, {msk}")
            if dm: b.e(f"s_cmp_eq_u32 s56, s{dm}\ns_cselect_b32 s56, {OOB}, s56")
            if base: b.e(f"s_add_u32 s56, s56, {base}")
            b.e(f"v_add_u32 v{25 + (nn & 1) * 2}, s56, v4")
        L = [(addr, 2)]
        for tt in range(4):
            if OPT.get('noh'): htok[nn] = 0; continue
            L.append((M(lambda tt=tt: htok.__setitem__(nn, b.vm(f"buffer_load_dwordx4 {vr(hreg(nn) + tt * 4, 4)}, v{25 + (nn & 1) * 2}, {WS}, s{sH0 + tt} offen sc1"))), 2))
        return L
    stg = [40]; stok = {}; spos = {}; avail = []; freed = set(); NS = OPT.get('ns', 19)
    def release():
        for blk in range(0 if stats else 9, 14 if not stats else 5):
            if blk not in freed and 16 * (blk + 1) <= ring['free']:
                freed.add(blk); avail.extend((blk % 9) * 16384 + 1024 * q for q in range(4))
                if len(freed) == 1: avail.extend(147456 + 1024 * q for q in range(3))
    def stage_ops():
        m = stg[0]
        if m >= 40 + NS or not avail: return []
        stg[0] += 1
        a = avail.pop(0); spos[m] = a
        want = a - (m % 4) * 1024
        L = [(lambda: (set_m0(want), b.e(f"s_addk_i32 s{sW2}, 4096") if m % 4 == 0 else None), 1)]
        def go():
            set_m0(want)
            stok[m] = b.vm(f"buffer_load_dwordx4 v4, {WS}, s{sW2} offen offset:{(m % 4) * 1024} sc1 lds") if not OPT.get('nostage') else 0
        L.append((M(go), 2))
        return L
    P = dict(e1=36, xf=56, send=100, e2=102, xe=92, xr=84) if not stats else dict(e1=16, xf=26, send=38, e2=0, xe=38, xr=30)
    if not stats: P.update({k_: OPT[k_] for k_ in P if k_ in OPT})
    d2 = [dst_pair(V_ACC2, 0, False, sHP + 2), dst_pair(V_ACC2, 0, True, sHP + 2)]
    ops2, est2 = epi_ops(V_ACC2, np1, list(range(np2)), d2, False, 16, 16)
    ops3, est3 = epi_ops(V_ACC3, np1 + np2, [0], [dst_half(V_ACC3, 0, sHP + 3)], True, 16, 16)
    steps = [(2, k, np2, V_ACC2) for k in range(NK if np2 else 0)] + [(3, k, 1, V_ACC3) for k in range(NK)]
    XT_ = nslot2; X3 = XT_ - 2 * NK
    oi = o2 = 0; setup = g2_setup(); x = 0; hq = []; done = set()
    if stats: ring_barrier(36)
    release()
    def once(name, cond):
        if cond and name not in done: done.add(name); return True
        return False
    for (ps, k, npp, accb) in steps:
        x1 = x + 2 * npp
        if k % OPT.get('rk', 1) == 0 or ps == 3: addv(dma_ops())
        if k < 8: addv(dma_ops())
        hi = min(len(ops), -(-len(ops) * x1 // P['e1']))
        for it in ops[oi:hi]: G.add(*it)
        oi = hi
        setup_done = not setup
        if x >= P['e1']:
            for _ in range(6 if stats else 3 * npp):
                if setup: G.add(setup.pop(0))
        if np2 and once('rd2', x1 >= X3): G.add(lambda: est2['rd'](0), 2)
        if np2 and x >= X3:
            hi = min(len(ops2), -(-len(ops2) * (x1 - X3) // (P['e2'] - X3)))
            for it in ops2[o2:hi]: G.add(*it)
            o2 = hi
        if dq[0] >= 72 or stats:
            togo = min(40 + NS - stg[0], len(avail))
            for _ in range(-(-togo * 2 * npp // max(2 * npp, P['send'] - x))): addv(stage_ops())
        if once('res', x >= P['xr'] and setup_done):
            for dt in range(5):
                G.addv(lambda dt=dt: b.vm(f"buffer_load_dwordx2 {ar(240 + 2 * dt, 2)}, v14, {WS}, s{74 if dt < 4 else 75} offen offset:{(dt % 4) * 1024} sc1"))
        if once('eld', x1 >= P['xe'] - OPT.get('xel', 6)): G.add(lambda: tok.__setitem__('e', ld_flags(FLE)(b)), 4, front=True)
        if hq:
            for _ in range(-(-len(hq) * 2 * npp // (XT_ - x))):
                it = hq.pop(0); addv([it])
                if not getattr(it[0], 'mem', False) and hq: addv([hq.pop(0)])
                if not hq: break
        if x1 == XT_: G.add(lambda: est3['rd'](0), 2)
        ng = 4 * npp
        G.begin(ng)
        free2 = 2 * ng - 2 * npp - 2 * npp / WG_
        for t in range(npp):
            for mat in range(2):
                left = ng - 2 * (t * 2 + mat)
                need = G.need()
                cap = 2 if need <= free2 * left / ng else (3 if need <= (free2 + ng) * left / ng + 1 else 4 + need // left)
                slot(n, k, accb, t, mat, cap); n += 1
        G.flush()
        x = x1
        stamp(b, f'p{ps}_{k}')
        if once('fle', x >= P['xf']):
            b.wait(vm=est['last'])
            ring_barrier(72)
            flag_store(b, FLE); release()
            if stats: flag_store(b, FLM)
        if once('echk', x >= P['xe']):
            assert not setup
            poll_flags(b, FLE, tok['e'])
            stamp(b, 'early_seen')
            hq = h_ops(0) + h_ops(1) + h_ops(2)
    assert 'res' in done and stg[0] == 40 + NS and oi == len(ops) and o2 == len(ops2), stg
    for it, _ in hq: it()
    stamp(b, 'p2_end')
    b.e(f"v_add_u32 v10, s{sM0}, v4\nv_add_u32 v5, s{sM0}, v5\nv_add_u32 v6, s{sM0}, v6")
    for o, _ in ops3: o()
    stamp(b, 'epi2_end')
    hmax = 7; hnext = 3
    NMF, NM, NF, NL = OPT.get('nmf', -1), OPT.get('nm', 4), OPT.get('nf', 2), OPT.get('nl', 8)
    wl = {}; direct = []; PL = OPT.get('pl', 2)
    def mid_flag():
        if not stats:
            b.wait(vm=est2['last'])
            b.e("s_barrier")
            flag_store(b, FLM)
    if NMF < 0: mid_flag()
    for nn in range(14):
        lim = min(nn + HD - 1, hmax, hnext + OPT.get('hb', 2) - 1)
        while hnext <= lim:
            addv(h_ops(hnext))
            hnext += 1
        if nn == max(NM - PL + 1, NF + 1): G.add(lambda: wtok.__setitem__('mid', ld_flags(FLM)(b)), 4, front=True)
        if 1 <= nn <= 6:
            for dt in range(5):
                m = (nn + 7) * 5 + dt
                if m in spos:
                    G.add(lambda m=m, nn=nn, dt=dt: (b.wait(vm=stok[39 + NS]), wl.__setitem__(nn + 7, b.lg(f"ds_read_b128 {ar(A_W2 + (nn - 1) * 20 + dt * 4, 4)}, v{(10, 5, 6)[spos[m] >> 16]} offset:{spos[m] & 0xffff}"))), 1)
                else: direct.append(m)
        D0 = OPT.get('d0', 7)
        if nn >= D0 and direct:
            for _ in range(-(-len(direct) // (11 - nn))):
                m = direct.pop(0); G.addv(lambda m=m: wtok.__setitem__(m // 5, w2_load(b, m)))
        if nn == 3: G.add(lambda: wtok.__setitem__('res', b.vm(f"buffer_load_dword v106, v9, {WS}, s76 offen sc1")), 2)
        if nn == max(NL - PL + 1, NM + 1): G.add(lambda: wtok.__setitem__('late', ld_flags(FLL)(b)), 4, front=True)
        if nn == 10:
            G.add(lambda: (b.wait(vm=wtok['res']), b.e("v_and_b32 v106, 0xffff0000, v106")), 2)
            G.add("v_rcp_f32 v106, v106")
            for dt in range(5):
                for k in range(2):
                    G.add(f"v_accvgpr_read_b32 v{96 + 2 * dt + k}, a{240 + 2 * dt + k}")
                    G.add(f"v_lshlrev_b32 v{108 + 4 * dt + 2 * k}, 16, v{96 + 2 * dt + k}\nv_and_b32 v{109 + 4 * dt + 2 * k}, 0xffff0000, v{96 + 2 * dt + k}")
            G.add("v_mul_f32 v106, v106, v106")
        if nn == 11:
            for q in (12, 13):
                G.add(lambda q=q: b.wait(vm=htok[q]), 1)
                for r in (hreg(q), hreg(q) + 8): G.add(f"v_swap_b32 v{r + 2}, v{r + 4}"); G.add(f"v_swap_b32 v{r + 3}, v{r + 5}")
        if nn == 9:
            for k in range(3): G.add(f"s_xor_b32 s56, s{sW}, {k + 1}\ns_mul_i32 s56, s56, 15360"); G.add(f"s_add_u32 s56, s56, 81920\nv_add_u32 v{16 + k}, s56, v4")
            G.add(f"s_mul_i32 s56, s{sW}, 15360\ns_add_u32 s56, s56, 81920"); G.add("v_add_u32 v19, s56, v4")
        def g2m(nn, tt, dt):
            a = V_G2 + (tt * 5 + dt) * 4
            G.mfma(f"v_mfma_f32_16x16x32_bf16 {vr(a,4)}, {ar(A_W2 + (nn % 8) * 20 + dt * 4, 4)}, {vr(hreg(nn) + tt * 4, 4)}, {'0' if nn == 0 else vr(a,4)}")
        if nn == 12 and OPT.get('ttail', 1):
            b.wait(vm=max(htok[13], wtok.get(13, -1)), lg=max(wl.values()))
            cnt = 0; pend = []
            for tt in (1, 2, 3, 0):
                for q in (12, 13):
                    for dt in range(5):
                        g2m(q, tt, dt); cnt += 1
                        if pend and cnt >= pend[0][0] and cnt % 2 == 0:
                            _, t2, d2_ = pend.pop(0)
                            b.lg(f"ds_write_b128 v{15 + t2}, {vr(V_G2 + (t2 * 5 + d2_) * 4, 4)} offset:{(t2 - 1) * 5120 + d2_ * 1024}")
                        if q == 13 and tt: pend.append((cnt + 5, tt, dt))
            for _, t2, d2_ in pend: b.lg(f"ds_write_b128 v{15 + t2}, {vr(V_G2 + (t2 * 5 + d2_) * 4, 4)} offset:{(t2 - 1) * 5120 + d2_ * 1024}")
            break
        b.wait(vm=max(htok[nn], wtok.get(nn, -1)), lg=wl.get(nn))
        G.begin(20)
        for dt in range(5):
            for tt in range(4):
                g2m(nn, tt, dt)
                G.fill()
        G.flush()
        stamp(b, f'g2_{nn}')
        if nn == NMF: mid_flag()
        if nn == NF:
            b.wait(vm=est3['last'])
            b.e("s_barrier")
            flag_store(b, FLL)
        if nn == NM:
            poll_flags(b, FLM, wtok['mid']); hmax = 11
            stamp(b, 'mid_seen')
        if nn == NL:
            poll_flags(b, FLL, wtok['late']); hmax = 13
            stamp(b, 'late_seen')
    stamp(b, 'g2_end')
    if not OPT.get('ttail', 1):
        for tt in range(1, 4):
            for dt in range(5):
                b.lg(f"ds_write_b128 v{15 + tt}, {vr(V_G2 + (tt * 5 + dt) * 4, 4)} offset:{(tt - 1) * 5120 + dt * 1024}")
    b.wait_all(vm=False)
    b.e("s_barrier")
    rk = {}
    for dt in range(5):
        for k in range(3):
            rk[dt] = b.lg(f"ds_read_b128 {vr(32 + (dt * 3 + k) * 4, 4)}, v19 offset:{k * 5120 + dt * 1024}")
    for dt in range(5):
        b.wait(lg=rk[dt])
        a = V_G2 + dt * 4; r = 32 + dt * 12
        for h in (0, 2):
            b.e(f"v_pk_add_f32 {vr(a + h, 2)}, {vr(a + h, 2)}, {vr(r + h, 2)}")
            b.e(f"v_pk_add_f32 {vr(r + 4 + h, 2)}, {vr(r + 4 + h, 2)}, {vr(r + 8 + h, 2)}")
        for h in (0, 2):
            b.e(f"v_pk_add_f32 {vr(a + h, 2)}, {vr(a + h, 2)}, {vr(r + 4 + h, 2)}")
        for h in (0, 2):
            b.e(f"v_pk_fma_f32 {vr(a + h, 2)}, {vr(a + h, 2)}, v[106:107], {vr(108 + 4 * dt + h, 2)} op_sel_hi:[1,0,1]")
        b.e(f"v_cvt_pk_bf16_f32 v{a}, v{a}, v{a + 1}\nv_cvt_pk_bf16_f32 v{a + 1}, v{a + 2}, v{a + 3}")
        b.vm(f"buffer_store_dwordx2 {vr(a, 2)}, v15, {OUT}, s77 offen offset:{dt * 32} {OPT.get('outaux', '')}")
    if OPT.get('endwb'): b.e("s_waitcnt vmcnt(0)\nbuffer_wbl2 sc1")
    stamp(b, 'end')
    stamp_dump(b)
    b.e("s_endpgm")
```

```python
import sys, os
from asmlib import B, hazard_pass, align_pass, Gaps
KN = "sequential_preLN__ssm_conv_s4__glu_gated_reglu__prompt_kernel"
OPT = dict(stamps=False, stop=None, spin=1000000)

ST1, ST2 = 0, 16384
EPOCH = 32768
FLP2, FLP, FLH, FLE, FLL, FLM = 0x1520000, 0x1524000, 0x1528000, 0x1530000, 0x1538000, 0x1540000
CSP = 0x1500000
STAMP = 0xC000
XT, W1P, W2P, HP = 0x10000, 0x600000, 0xB00000, 0xE00000
HT = 0x300000
WS_STAMP = 0x1600000
WS_SIZE = 0x1700000
JSTR = 286720
P_X, P_ARE, P_AIM, P_BRE, P_BIM, P_CRE, P_CIM, P_LDT, P_DSK, P_BX, P_WG, P_WU, P_WD, P_OUT, P_DBG, P_WS = [16 + 2 * k for k in range(16)]
sW, sXCD, sI, sJ, sRHO, sC = 48, 49, 51, 52, 53, 54
sSI = 77
SRC = "s[4:7]"; WS = "s[8:11]"; OUT = "s[12:15]"
def sp(r): return f"s[{r}:{r+1}]"
def vr(r, n): return f"v[{r}:{r+n-1}]" if n > 1 else f"v{r}"
def ar(r, n): return f"a[{r}:{r+n-1}]" if n > 1 else f"a{r}"
RSTR = 33856
_lab = [0]
def lab(p):
    _lab[0] += 1; return f"L_{p}{_lab[0]}"

def stamp(b, name):
    if OPT.get('jitter') and name != 'top':
        l = lab("jt"); _lab[0] += 1
        b.e(f"""s_memtime s[98:99]
            s_waitcnt lgkmcnt(0)
            s_lshr_b32 s98, s98, 2
            s_mul_i32 s98, s98, 0x9e3779b1
            s_lshr_b32 s99, s98, 28
            s_bfe_u32 s98, s98, 0x30010
            s_cmp_eq_u32 s98, 0
            s_cselect_b32 s99, s99, 0
            s_mul_i32 s99, s99, {OPT['jitter']}
            {l}:
            s_cmp_eq_u32 s99, 0
            s_cbranch_scc1 {l}_e
            s_sleep 1
            s_sub_u32 s99, s99, 1
            s_branch {l}
            {l}_e:""")
        b.ld = b.li
    st = OPT['stamps']
    if not st or name not in st: return
    r = 78 + 2 * st.index(name)
    b.sm(f"{'s_memtime' if OPT.get('cyc') else 's_memrealtime'} s[{r}:{r+1}]")
def stamp_init(b):
    if OPT['stamps']:
        for r in range(78, 102, 2): b.e(f"s_mov_b64 s[{r}:{r+1}], 0")
def stamp_dump(b):
    if not OPT['stamps']: return
    if OPT.get('amplify'):
        sk = lab("am"); lo = lab("al")
        b.e(f"""s_waitcnt lgkmcnt(0)
            s_cmp_lg_u32 s2, 100
            s_cbranch_scc1 {sk}
            s_sub_u32 s56, s80, s78
            s_mul_i32 s56, s56, 10
            s_min_u32 s56, s56, 100000
            s_memrealtime s[58:59]
            s_waitcnt lgkmcnt(0)
            {lo}:
            s_memrealtime s[60:61]
            s_waitcnt lgkmcnt(0)
            s_sub_u32 s57, s60, s58
            s_cmp_lt_u32 s57, s56
            s_cbranch_scc1 {lo}
            {sk}:""")
        return
    if OPT.get('dbgdump'):
        sk = lab("dd")
        b.e(f"s_waitcnt lgkmcnt(0)\ns_cmp_lg_u32 s{sW}, 0\ns_cbranch_scc1 {sk}\ns_mov_b64 exec, 1\nv_mov_b32 v30, 0\ns_not_b32 s78, s78")
        for k in range(12):
            b.e(f"v_mov_b32 v31, s{78 + 2 * k}\nglobal_atomic_umax v30, v31, {sp(P_DBG)} offset:{4 * k + 4} sc1")
        b.e(f"{sk}:")
        return
    b.e(f"s_waitcnt lgkmcnt(0)\ns_lshl_b32 s3, s2, 2\ns_add_u32 s3, s3, s{sW}\ns_lshl_b32 s3, s3, 7\ns_add_u32 s3, s3, {WS_STAMP}\nv_mov_b32 v30, 0")
    for k in range(12):
        b.e(f"v_mov_b32 v31, s{78 + 2 * k}\nbuffer_store_dword v31, v30, {WS}, s3 offen offset:{4 * k}")

def poll(b, load, cond, tok=None, sleep=0):
    if tok is None: tok = load(b)
    b.wait(vm=tok)
    lo, ok = lab("poll"), lab("ok")
    b.e(cond)
    b.e(f"s_cbranch_vccz {ok}\ns_mov_b32 s3, 0\n{lo}:")
    if sleep or OPT.get('backoff', 0): b.e(f"s_sleep {sleep or OPT['backoff']}")
    f = b.fork(); load(f); f.wait_all(lg=False)
    b.e(cond)
    b.e(f"s_add_u32 s3, s3, 1\ns_cmp_gt_u32 s3, {OPT['spin']}\ns_cbranch_scc1 {ok}\ns_cbranch_vccnz {lo}\n{ok}:")

def poll_masked(b, loads, masks, tok):
    b.wait(vm=tok)
    lo, ok = lab("mp"), lab("mok")
    red = "\n".join(masks) + "\ns_mov_b64 vcc, s[18:19]\n" + "\n".join(f"s_or_b64 vcc, vcc, s[{18 + 2 * k}:{19 + 2 * k}]" for k in range(1, len(masks)))
    b.e(red + f"\ns_cbranch_vccz {ok}\ns_mov_b32 s3, 0\n{lo}:")
    for k, l in enumerate(loads):
        b.e(f"s_mov_b64 exec, s[{18 + 2 * k}:{19 + 2 * k}]\ns_cbranch_execz {lo}_{k}\n{l}\n{lo}_{k}:")
    b.e("s_mov_b64 exec, -1\ns_waitcnt vmcnt(0)\n" + red)
    b.e(f"s_add_u32 s3, s3, 1\ns_cmp_gt_u32 s3, {OPT['spin']}\ns_cbranch_scc1 {ok}\ns_cbranch_vccnz {lo}\n{ok}:")

def ld_ready(b, every=False):
    b.e("v_mov_b32 v26, 0" if every else f"s_lshl_b32 s55, s{sW}, 8\nv_mov_b32 v26, s55")
    return b.vm(f"buffer_load_dwordx4 v[28:31], v26, {OUT}, 0 offen sc1")
COND_READY = "v_xor_b32 v26, v28, v30\nv_xor_b32 v27, v29, v31\nv_and_b32 v26, v26, v27\nv_cmp_ne_u32 vcc, -1, v26"

def code_prefetch(b, stage):
    if stage == 1:
        _lab[0] += 1
        b.e(f"""s_getpc_b64 s[76:77]
            L_pc{_lab[0]}:
            s_sub_u32 s76, s76, L_pc{_lab[0]}-{KN}
            s_subb_u32 s77, s77, 0
            s_lshr_b32 s55, s2, 3
            s_lshl_b32 s55, s55, 2
            s_add_u32 s55, s55, s{sW}
            s_and_b32 s55, s55, 31""")
    lo, hi = (KN, "L_stage2") if stage == 1 else ("L_stage2", "L_code_end")
    if OPT.get('cpf1', 1):
        if stage == 2: return
        hi = "L_code_end"
    nl = f"((({hi}-{lo})+4095)/4096)"
    b.e(f"""s_mul_i32 s3, s55, {nl}*128
        s_add_u32 s3, s3, {lo}-{KN}
        v_min_u32 v26, {nl}-1, v1
        v_lshl_add_u32 v26, v26, 7, s3
        s_mov_b32 s3, L_code_end-{KN}-4
        v_min_u32 v26, s3, v26""")
    b.vm(f"global_load_dword a{253 + stage}, v26, s[76:77]")

def mk_srd(b, r, ptr, size):
    b.e(f"s_mov_b32 s{r}, s{ptr}\ns_mov_b32 s{r+1}, s{ptr+1}\ns_mov_b32 s{r+2}, {size}\ns_mov_b32 s{r+3}, 0x20000")

LNB = 143104
LNS = LNB - 128
OOB = 0x40000000
def x_dma(c, late=False):
    so = "s59" if late else "s57"
    if late: c.e(f"v_lshl_add_u32 v26, v1, 4, s60\ns_mul_i32 s59, s50, 20480\ns_mul_i32 s3, s{sW}, 5120\ns_add_u32 s59, s59, s3")
    for p in range(2):
        if p: c.e(f"s_add_u32 m0, s58, 2592\ns_addk_i32 {so}, 2560")
        for k in range(3):
            if k == 2: c.e("s_mov_b32 exec_hi, 0")
            t = c.vm(f"buffer_load_dwordx4 {'v26' if late else 'v2'}, {SRC}, {so} offen offset:{k * 1024} nt lds")
        c.e("s_mov_b32 exec_hi, -1")
    return t
def entry(b):
    stamp_init(b)
    stamp(b, 'top')
    EV = OPT.get('ev', 0)
    ids = f"""v_lshrrev_b32 v2, 6, v0
        v_and_b32 v1, 63, v0
        v_readfirstlane_b32 s{sW}, v2
        s_and_b32 s{sXCD}, s2, 7"""
    consts = f"""s_mov_b32 s7, 0x20000
        s_mov_b32 s10, {WS_SIZE}
        s_mov_b32 s11, 0x20000
        s_movk_i32 s14, 128
        s_mov_b32 s15, 0x20000"""
    srd = f"""s_mov_b32 s4, s{P_X}
        s_mov_b32 s5, s{P_X + 1}
        s_mov_b32 s8, s{P_WS}
        s_mov_b32 s9, s{P_WS + 1}
        s_mov_b32 s12, s{P_DBG}
        s_mov_b32 s13, s{P_DBG + 1}"""
    xprep = f"""s_mov_b32 s50, s2
        s_cmp_lt_u32 s50, 128
        s_cselect_b32 s60, 0, {OOB}
        v_lshl_add_u32 v2, v1, 4, s60
        s_mul_i32 s57, s50, 20480
        s_mul_i32 s58, s{sW}, 5120
        s_add_u32 s57, s57, s58
        s_mul_i32 s58, s{sW}, 5184
        s_add_u32 s58, s58, {LNB}
        s_mov_b32 m0, s58
        s_mov_b32 s6, 2621440
        s_lshl_b32 s59, s50, 3"""
    b.e(f"""s_load_dwordx16 s[16:31], s[0:1], 0
        s_load_dwordx16 s[32:47], s[0:1], 64
        s_lshl_b32 s61, s2, 10
        v_lshl_add_u32 v3, v0, 2, s61
        s_cmp_ge_u32 s2, 160
        s_cbranch_scc1 L_help""")
    c = b.fork()
    if EV == 0: c.e(ids); code_prefetch(c, 1); c.e(xprep + "\n" + consts)
    if EV == 2: c.e(ids + "\n" + xprep + "\n" + consts)
    c.e("s_waitcnt lgkmcnt(0)")
    c.sm(f"s_load_dwordx2 s[62:63], {sp(P_LDT)}, s59\ns_load_dwordx2 s[64:65], {sp(P_DSK)}, s59")
    pt = []
    def par():
        for k, p in enumerate((P_ARE, P_AIM, P_BRE, P_BIM, P_CRE, P_CIM)):
            pt.append(c.vm(f"global_load_dword v{4 + k}, v3, {sp(p)} nt"))
    if not OPT.get('xfirst', 0): par()
    c.e(srd)
    t = x_dma(c)
    if OPT.get('xfirst', 0): par()
    stamp(c, 'start')
    c.e("s_branch L_conv")
    b.e(f"L_help:\ns_cmp_ge_u32 s2, 256\ns_cbranch_scc1 L_exit\n{ids}")
    code_prefetch(b, 1)
    b.e(consts + "\ns_waitcnt lgkmcnt(0)")
    b.e(f"""{srd}
        s_sub_u32 s2, s2, 160
        s_cmp_lg_u32 s2, 0
        s_cbranch_scc1 L_noinit
        s_cmp_lg_u32 s{sW}, 3
        s_cbranch_scc1 L_noinit
        v_mov_b32 v4, 0
        s_mov_b32 s56, {EPOCH}
        buffer_load_dwordx2 v[8:9], v4, {WS}, s56 offen sc1
        v_lshlrev_b32 v10, 4, v1
        s_waitcnt vmcnt(0)
        v_add_co_u32 v12, vcc, 1, v8
        v_addc_co_u32 v13, vcc, 0, v9, vcc
        v_not_b32 v14, v12
        v_not_b32 v15, v13
        buffer_store_dwordx4 v[12:15], v10, {OUT}, 0 offen sc1
        s_mov_b64 exec, 1
        buffer_store_dwordx2 v[12:13], v4, {WS}, s56 offen sc1
        s_mov_b64 exec, -1
        L_noinit:""")
    return t, c, pt

def ln1_addr(b):
    b.e(f"""v_and_b32 v2, 7, v1
        v_lshrrev_b32 v3, 3, v1
        v_mul_u32_u24 v240, 2592, v2
        v_lshl_add_u32 v240, v3, 3, v240
        s_lshl_b32 s3, s{sW}, 6
        s_add_u32 s3, s3, {LNB}
        v_add_u32 v240, s3, v240
        v_lshlrev_b32 v241, 8, v3
        v_lshl_add_u32 v241, v2, 4, v241
        s_lshl_b32 s3, s{sW}, 11
        s_add_u32 s3, s3, s60
        v_add_u32 v241, s3, v241
        v_lshrrev_b32 v2, 5, v1
        v_bfe_u32 v3, v1, 4, 1
        v_mul_u32_u24 v242, 2592, v2
        v_mul_u32_u24 v3, 1280, v3
        v_and_b32 v2, 15, v1
        v_lshl_add_u32 v242, v2, 4, v242
        v_add3_u32 v242, v242, v3, s58
        s_lshl_b32 s3, s{sW}, 4
        s_add_u32 s3, s3, {LNS}
        v_lshrrev_b32 v2, 4, v1
        v_lshl_add_u32 v243, v2, 2, s3
        s_lshr_b32 s57, s50, 1
        s_mul_i32 s57, s57, 40960
        s_and_b32 s3, s50, 1
        s_lshl_b32 s3, s3, 7
        s_add_u32 s57, s57, s3
        s_add_u32 s57, s57, {XT}""")

def ln1_a(b, xtok, R, out):
    A0 = R + 40
    tk = []; st = []; C = []
    def c0():
        b.e("s_mov_b32 s56, 0x3f803f80")
        b.wait(vm=xtok)
        b.e("s_barrier")
        stamp(b, 'ln_x')
        for k in range(5):
            b.lg(f"ds_read_b64 {vr(R + 4 * k, 2)}, v240 offset:{256 * k}")
            tk.append(b.lg(f"ds_read_b64 {vr(R + 4 * k + 2, 2)}, v240 offset:{256 * k + 1280}"))
    C.append(c0)
    def stores(ks):
        def f():
            for k in ks:
                b.wait(lg=tk[k])
                out['last'] = b.vm(f"buffer_store_dwordx4 {vr(R + 4 * k, 4)}, v241, {WS}, s57 offen sc1")
                b.e("s_addk_i32 s57, 8192")
                st.append(b.lg(f"ds_read_b128 {vr(R + 20 + 4 * k, 4)}, v242 offset:{256 * k}"))
            if 4 in ks: ld_ready(b)
        return f
    C += [stores([0, 1]), stores([2, 3]), stores([4])]
    def dots(g):
        def f():
            b.wait(lg=st[g])
            for k in range(4 * g, 4 * g + 4):
                r = R + 20 + k
                b.e(f"v_dot2_f32_bf16 v{A0 + (k & 1)}, v{r}, s56, {'0' if k < 2 else f'v{A0 + (k & 1)}'}")
                b.e(f"v_dot2_f32_bf16 v{A0 + 2 + (k & 1)}, v{r}, v{r}, {'0' if k < 2 else f'v{A0 + 2 + (k & 1)}'}")
        return f
    C += [dots(g) for g in range(5)]
    C.append(lambda: b.e(f"v_add_f32 v{A0}, v{A0}, v{A0 + 1}\nv_add_f32 v{A0 + 2}, v{A0 + 2}, v{A0 + 3}"))
    for m in ("quad_perm:[1,0,3,2]", "quad_perm:[2,3,0,1]", "row_half_mirror", "row_mirror"):
        C.append(lambda m=m: b.e(f"v_add_f32_dpp v{A0}, v{A0}, v{A0} {m} row_mask:0xf bank_mask:0xf\nv_add_f32_dpp v{A0 + 2}, v{A0 + 2}, v{A0 + 2} {m} row_mask:0xf bank_mask:0xf"))
    def fin():
        stats_finish(b, A0, A0 + 2, A0 + 1)
        b.e("s_mov_b32 exec_lo, 0x10001\ns_mov_b32 exec_hi, 0x10001")
        b.lg(f"ds_write_b32 v243, v{A0 + 1}")
        b.e("s_mov_b64 exec, -1")
        stamp(b, 'ln_a')
    C.append(fin)
    return C

def ln1_b(b, last):
    last = last + 1
    sk0 = lab("l0")
    b.wait(vm=last, lg=b.li - 1)
    stamp(b, 'ln_drain')
    b.e(f"s_cmp_lg_u32 s{sW}, 0\ns_cbranch_scc1 {sk0}")
    f = b.fork()
    poll(f, ld_ready, COND_READY, last)
    f.e(f"v_mov_b32 v2, {LNS + 64}\nds_write_b64 v2, v[28:29]\ns_waitcnt lgkmcnt(0)")
    b.e(f"{sk0}:\ns_barrier")
    b.e(f"""v_mov_b32 v2, {LNS + 64}
        v_and_b32 v26, 7, v1
        v_lshlrev_b32 v26, 3, v26
        v_add_u32 v26, {LNS}, v26""")
    b.lg("ds_read_b64 v[28:29], v2")
    t = b.lg("ds_read_b64 v[2:3], v26")
    b.e(f"""s_lshl_b32 s3, s{sW}, 30
        s_or_b32 s3, s3, s60
        v_lshl_add_u32 v27, v1, 4, s3
        s_lshl_b32 s56, s50, 7""")
    b.wait(lg=t)
    b.e(f"""v_readfirstlane_b32 s0, v28
        v_readfirstlane_b32 s1, v29
        v_mov_b32 v31, v29
        v_mov_b32 v29, v28
        v_mov_b32 v28, v2
        v_mov_b32 v30, v3
        s_mov_b64 exec, 0xff""")
    b.vm(f"buffer_store_dwordx4 v[28:31], v27, {WS}, s56 offen sc1")
    b.e("s_mov_b64 exec, -1")
    stamp(b, 'ln_done')

def w_prefetch(b):
    b.e(f"""s_lshr_b32 s3, s50, 3
        s_lshl_b32 s3, s3, 2
        s_add_u32 s3, s3, s{sW}
        s_min_u32 s3, s3, 71
        s_lshl_b32 s3, s3, 6
        v_add_u32 v140, s3, v1
        v_mul_u32_u24 v141, 43691, v140
        v_lshrrev_b32 v141, 22, v141
        v_mul_u32_u24 v142, 96, v141
        v_sub_u32 v140, v140, v142
        v_lshrrev_b32 v142, 2, v141
        v_and_b32 v141, 3, v141
        v_lshl_add_u32 v141, v142, 5, v141
        s_lshl_b32 s3, s{sXCD}, 2
        v_add_u32 v141, s3, v141
        v_min_u32 v141, 377, v141
        v_mul_u32_u24 v142, 9363, v141
        v_lshrrev_b32 v142, 16, v142
        v_mul_u32_u24 v143, 7, v142
        v_sub_u32 v141, v141, v143
        v_mad_u32_u24 v140, v141, 48, v140
        v_mad_u32_u24 v140, v141, 48, v140
        v_min_u32 v140, 639, v140
        v_mul_u32_u24 v140, 3456, v140
        v_lshrrev_b32 v143, 1, v142
        v_lshl_add_u32 v140, v143, 7, v140
        v_and_b32 v142, 1, v142
        v_cmp_eq_u32 vcc, 0, v142
        v_mov_b32 v142, s{P_WU}
        v_mov_b32 v143, s{P_WG}
        v_cndmask_b32 v142, v142, v143, vcc
        v_mov_b32 v141, s{P_WU + 1}
        v_mov_b32 v143, s{P_WG + 1}
        v_cndmask_b32 v143, v141, v143, vcc
        v_add_co_u32 v142, vcc, v142, v140
        v_addc_co_u32 v143, vcc, 0, v143, vcc""")
    b.vm("global_load_dword a251, v[142:143], off nt")

def stats_finish(b, vs, vq, vo):
    b.e(f"""s_mov_b32 s3, 0x3acccccd
        v_mul_f32 v{vs}, s3, v{vs}
        v_mul_f32 v{vq}, s3, v{vq}
        v_fma_f32 v{vq}, -v{vs}, v{vs}, v{vq}
        v_max_f32 v{vq}, 0, v{vq}
        v_cvt_pk_bf16_f32 v{vq}, v{vq}, v{vq}
        v_lshlrev_b32 v{vq}, 16, v{vq}
        v_add_f32 v{vq}, 0x3727c5ac, v{vq}
        v_cvt_pk_bf16_f32 v{vq}, v{vq}, v{vq}
        v_lshlrev_b32 v{vq}, 16, v{vq}
        v_sqrt_f32 v{vq}, v{vq}
        v_cvt_pk_bf16_f32 v{vo}, v{vs}, v{vq}""")

def pack(b):
    mk_srd(b, 4, P_WD, 2211840)
    b.e(f"""s_mul_i32 s50, s{sW}, 20480
        s_mul_i32 s56, s2, 3
        s_add_u32 s56, s56, s{sW}
        s_cmp_lt_u32 s{sW}, 3
        s_cselect_b32 s56, s56, 999
        s_cmp_lt_u32 s56, 270
        s_cselect_b32 s76, 0, {OOB}
        s_cmp_lt_u32 s56, 280
        s_cselect_b32 s66, 0, {OOB}
        s_cselect_b32 s56, s56, 0
        s_mul_i32 s60, s56, 13108
        s_lshr_b32 s60, s60, 16
        s_mul_i32 s59, s60, 5
        s_sub_u32 s59, s56, s59
        s_cmp_ge_u32 s60, 31
        s_cbranch_scc1 L_w2late
        s_lshr_b32 s61, s60, 1
        s_mul_i32 s61, s61, 112
        s_and_b32 s62, s60, 1
        s_lshl_b32 s62, s62, 5
        s_add_u32 s61, s61, s62
        s_add_u32 s62, s61, 16
        s_and_b32 s63, s60, 3
        s_lshr_b32 s64, s60, 2
        s_branch L_w2go
        L_w2late:
        s_sub_u32 s60, s60, 31
        s_mul_i32 s61, s60, 112
        s_add_u32 s61, s61, 64
        s_add_u32 s62, s61, 16
        s_sub_u32 s70, s60, 15
        s_mul_i32 s64, s70, 224
        s_add_u32 s64, s64, 96
        s_add_u32 s65, s64, 112
        s_min_u32 s65, s65, 1712
        s_bitcmp1_b32 s70, 0
        s_cselect_b32 s71, s65, s64
        s_cselect_b32 s65, s64, s65
        s_add_u32 s70, s70, 16
        s_cmp_lt_u32 s60, 15
        s_cselect_b32 s61, s61, s71
        s_cselect_b32 s62, s62, s65
        s_cselect_b32 s70, s60, s70
        s_and_b32 s63, s70, 3
        s_lshr_b32 s64, s70, 2
        s_add_u32 s64, s64, 8
        s_cmp_eq_u32 s60, 23
        s_cselect_b32 s63, 3, s63
        s_cselect_b32 s64, 11, s64
        s_cmp_eq_u32 s60, 24
        s_cselect_b32 s63, 3, s63
        s_cselect_b32 s64, 7, s64
        L_w2go:
        v_lshrrev_b32 v4, 4, v1
        v_and_b32 v5, 15, v1
        v_lshlrev_b32 v6, 1, v4
        v_xor_b32 v6, v6, v5
        v_mul_u32_u24 v7, 1280, v4
        v_lshl_add_u32 v24, v6, 4, v7
        v_add_u32 v24, s76, v24
        v_xor_b32 v25, 0x80, v24
        s_lshl_b32 s65, s59, 8
        s_mul_i32 s61, s61, 1280
        s_mul_i32 s62, s62, 1280
        s_add_u32 s61, s61, s65
        s_add_u32 s62, s62, s65""")
    def a_dma():
        for m in range(8):
            b.e(f"s_add_u32 m0, s50, {m * 1024}" + (f"\ns_addk_i32 s{61 + (m >> 2)}, 5120" if m & 3 else ""))
            ta = b.vm(f"buffer_load_dwordx4 v{24 + (m & 1)}, {SRC}, s{61 + (m >> 2)} offen nt lds")
        return ta
    if not OPT.get('alate', 1): ta = a_dma()
    else: b.e('s_mov_b32 s54, s61\ns_mov_b32 s53, s62\ns_mov_b32 s52, s4\ns_mov_b32 s51, s5')
    b.e(f"""s_lshl_b32 s56, s2, 2
        s_add_u32 s56, s56, s{sW}
        s_cmp_lt_u32 s56, 378
        s_cselect_b32 s67, 0, {OOB}
        s_cselect_b32 s56, s56, 0
        s_mul_i32 s60, s56, 9363
        s_lshr_b32 s60, s60, 16
        s_mul_i32 s68, s60, 7
        s_sub_u32 s68, s56, s68
        s_and_b32 s69, s60, 1
        s_lshr_b32 s60, s60, 1
        s_cmp_eq_u32 s69, 0
        s_cselect_b32 s4, s{P_WG}, s{P_WU}
        s_cselect_b32 s5, s{P_WG+1}, s{P_WU+1}
        v_lshrrev_b32 v6, 3, v1
        v_and_b32 v7, 7, v1
        v_bfe_u32 v8, v1, 4, 1
        v_lshlrev_b32 v8, 1, v8
        v_xor_b32 v7, v7, v8
        v_mul_u32_u24 v6, 3456, v6
        v_lshl_add_u32 v12, v7, 4, v6
        v_add_u32 v12, s67, v12
        v_xor_b32 v13, 0x40, v12
        s_cmp_eq_u32 s68, 6
        s_cselect_b32 s56, {OOB}, 0
        v_or_b32 v14, s56, v12
        v_or_b32 v15, s56, v13
        s_mul_i32 s61, s68, {96 * 3456}
        s_lshl_b32 s62, s60, 7
        s_add_u32 s61, s61, s62""")
    tb = []
    def bdma(m):
        b.e(f"s_add_u32 m0, s50, {8192 + m * 1024}" + ("\ns_addk_i32 s61, 27648" if m else "\ns_nop 0"))
        tb.append(b.vm(f"buffer_load_dwordx4 v{(14 if m >= 8 else 12) + (m & 1)}, {SRC}, s61 offen nt lds"))
    NB1 = OPT.get('nb1', 0)
    for m in range(NB1): bdma(m)
    b.e("""s_mul_i32 s63, s63, 14
        s_lshl_b32 s56, s59, 3
        s_mul_i32 s57, s56, 205
        s_lshr_b32 s57, s57, 10
        s_mul_i32 s62, s57, 5
        s_sub_u32 s56, s56, s62
        s_cmp_lt_u32 s64, 12
        s_cselect_b32 s77, 3, 1
        s_cmp_lt_u32 s64, 8
        s_cselect_b32 s77, 7, s77""")
    for i3 in range(3):
        b.e(f"""s_mul_i32 s62, s57, {OPT.get('hrot', 1)}
            s_sub_u32 s70, s64, s62
            s_and_b32 s70, s70, s77
            s_andn2_b32 s71, s64, s77
            s_or_b32 s70, s70, s71
            s_mul_i32 s71, s57, 56
            s_add_u32 s71, s71, s63
            s_add_u32 s71, s71, s70
            s_mul_i32 s71, s71, 5
            s_add_u32 s71, s71, s56
            s_lshl_b32 s71, s71, 10
            s_add_u32 s{73 + i3}, s71, {W2P - 5 * i3 * 1024}
            s_add_u32 s57, s57, 1""")
    for t in range(8):
        b.e(f"""s_cmp_ge_u32 s56, {max(5 - t, 0)}
            s_cselect_b32 s71, s74, s73
            s_cmp_ge_u32 s56, {10 - t}
            s_cselect_b32 s71, s75, s71
            s_add_u32 s{16 + t}, s71, {t * 1024}""")
    b.e(f"""v_bfe_u32 v6, v1, 2, 2
        v_and_b32 v11, 1, v4
        v_lshl_add_u32 v11, v11, 2, v6
        v_lshlrev_b32 v11, 5, v11
        v_lshl_add_u32 v11, v6, 8, v11
        v_lshl_add_u32 v11, v4, 10, v11
        v_and_b32 v6, 3, v1
        v_lshl_add_u32 v11, v6, 3, v11
        v_add_u32 v11, s50, v11
        v_lshlrev_b32 v9, 4, v1
        v_add_u32 v10, s66, v9
        """)
    if OPT.get('alate', 1):
        b.e('s_mov_b32 s70, s61\ns_mov_b32 s71, s4\ns_mov_b32 s72, s5\ns_mov_b32 s61, s54\ns_mov_b32 s62, s53\ns_mov_b32 s4, s52\ns_mov_b32 s5, s51')
        ta = a_dma()
        b.e('s_mov_b32 s61, s70\ns_mov_b32 s4, s71\ns_mov_b32 s5, s72')
    b.wait(vm=ta)
    stamp(b, 'pkA_loaded')
    tk = []
    for t in range(8):
        b.e(f"v_xor_b32 v{98 + t}, {t << 5}, v11")
        b.lg(f"ds_read_b64_tr_b16 {vr(64 + 4 * t, 2)}, v{98 + t}")
        tk.append(b.lg(f"ds_read_b64_tr_b16 {vr(66 + 4 * t, 2)}, v{98 + t} offset:4096"))
    for t in range(8):
        b.wait(lg=tk[t])
        sa = b.vm(f"buffer_store_dwordx4 {vr(64 + 4 * t, 4)}, v10, {WS}, s{16 + t} offen sc1")
    rt = ld_ready(b, True)
    NB2 = OPT.get('nb2', 6)
    for m in range(NB1, NB2): bdma(m)
    for t in range(4):
        T, J, TA, BS, STR = 62, 63, 64, 24 + 2 * t, 25 + 2 * t
        b.e(f"""s_lshl_b32 s{T}, s60, 2
            s_add_u32 s{T}, s{T}, {t}
            s_mul_i32 s{J}, s{T}, 9363
            s_lshr_b32 s{J}, s{J}, 16
            s_mul_i32 s{TA}, s{J}, 7
            s_sub_u32 s{TA}, s{T}, s{TA}
            s_cmp_eq_u32 s{J}, 15
            s_cselect_b32 s65, 2, 4
            s_cselect_b32 s56, 2, 6
            s_mul_i32 s57, s65, 40
            s_mul_i32 s3, s56, 40
            s_cmp_eq_u32 s{TA}, s56
            s_cselect_b32 s{STR}, 1, 2
            s_cselect_b32 s57, s3, s57
            s_cselect_b32 s56, s56, s65
            s_cmp_lt_u32 s{TA}, s65
            s_cselect_b32 s{STR}, s65, s{STR}
            s_cselect_b32 s57, 0, s57
            s_cselect_b32 s56, 0, s56
            s_sub_u32 s{TA}, s{TA}, s56
            s_lshl_b32 s{TA}, s{TA}, 1
            s_add_u32 s{TA}, s{TA}, s69
            s_add_u32 s{TA}, s{TA}, s57
            s_lshl_b32 s{STR}, s{STR}, 11
            s_lshl_b32 s{TA}, s{TA}, 10
            s_and_b32 s56, s{J}, {1 if OPT.get('krot', 0) >= 2 else 3}
            s_mul_i32 s56, s56, {(0, 5, 10, 4, 2)[OPT.get('krot', 0)]}
            s_and_b32 s56, s56, -2
            s_mul_i32 s57, s68, 3
            s_add_u32 s57, s57, 20
            s_sub_u32 s{70 + t}, s57, s56
            s_mul_i32 s{J}, s{J}, {JSTR}
            s_add_u32 s{BS}, s{J}, s{TA}
            s_add_u32 s{BS}, s{BS}, {W1P}""")
    b.e(f"""v_bfe_u32 v6, v1, 2, 2
        v_bfe_u32 v7, v1, 3, 1
        v_and_b32 v8, 1, v4
        v_lshl_add_u32 v7, v8, 1, v7
        v_lshlrev_b32 v7, 5, v7
        v_lshl_add_u32 v7, v6, 7, v7
        v_lshl_add_u32 v7, v4, 10, v7
        v_and_b32 v6, 3, v1
        v_lshl_add_u32 v7, v6, 3, v7
        s_add_u32 s56, s50, 8192
        v_add_u32 v56, s56, v7
        v_xor_b32 v57, 32, v56
        v_xor_b32 v58, 64, v56
        v_xor_b32 v59, 0x60, v56
        v_add_u32 v96, s67, v9
        s_cmp_eq_u32 s68, 6
        s_cselect_b32 s56, {OOB}, s67
        v_add_u32 v97, s56, v9
        s_mov_b32 s3, 0x3f803f80
        v_mov_b32 v60, s3
        v_mov_b32 v61, s3
        v_mov_b32 v62, s3
        v_mov_b32 v63, s3""")
    poll(b, lambda bb: ld_ready(bb, True), COND_READY, rt)
    b.e("v_readfirstlane_b32 s0, v28\nv_readfirstlane_b32 s1, v29")
    b.e("s_barrier")
    arrive(b, FLP2, "s2")
    stamp(b, 'pkA_done')
    for m in range(NB2, 12): bdma(m)
    for k in range(3):
        b.wait(vm=tb[4 * k + 3])
        if k == 2: stamp(b, 'pk_loaded')
        tk = []
        for t in range(4):
            r = 128 + (k * 4 + t) * 4
            b.lg(f"ds_read_b64_tr_b16 {vr(r, 2)}, v{56 + t} offset:{k * 4096}")
            tk.append(b.lg(f"ds_read_b64_tr_b16 {vr(r + 2, 2)}, v{56 + t} offset:{k * 4096 + 512}"))
        for t in range(4):
            r = 128 + (k * 4 + t) * 4
            b.e(f"""s_add_u32 s56, s{70 + t}, {k}
                s_sub_u32 s57, s56, 20
                s_cmp_ge_u32 s56, 20
                s_cselect_b32 s56, s57, s56
                s_sub_u32 s57, s56, 20
                s_cmp_ge_u32 s56, 20
                s_cselect_b32 s56, s57, s56
                s_mul_i32 s56, s56, s{25 + 2 * t}
                s_add_u32 s57, s56, s{24 + 2 * t}""")
            b.wait(lg=tk[t])
            b.vm(f"buffer_store_dwordx4 {vr(r, 4)}, v{97 if k == 2 else 96}, {WS}, s57 offen sc1")
            b.e(f"v_mfma_f32_16x16x32_bf16 {vr(112 + 4 * t, 4)}, {vr(r, 4)}, v[60:63], {'0' if k == 0 else vr(112 + 4 * t, 4)}")
    b.e(f"""v_and_b32 v3, 3, v1
        v_cmp_eq_u32 s[62:63], 1, v3
        v_cmp_eq_u32 s[64:65], 2, v3
        v_cmp_eq_u32 vcc, 3, v3
        v_lshlrev_b32 v2, 4, v4
        v_lshl_add_u32 v2, v3, 6, v2
        v_add_u32 v2, s67, v2
        s_lshl_b32 s56, s68, 1
        s_add_u32 s56, s56, s69
        s_mul_i32 s56, s56, 7168
        s_lshl_b32 s57, s60, 8
        s_add_u32 s56, s56, s57
        s_add_u32 s56, s56, {CSP}""")
    for q in range(4):
        b.e(f"v_cndmask_b32 v{112 + q}, v{112 + q}, v{116 + q}, s[62:63]\nv_cndmask_b32 v{112 + q}, v{112 + q}, v{120 + q}, s[64:65]\nv_cndmask_b32 v{112 + q}, v{112 + q}, v{124 + q}, vcc")
    b.e("s_mov_b32 exec_lo, 0xf000f\ns_mov_b32 exec_hi, 0xf000f")
    b.vm(f"buffer_store_dwordx4 v[112:115], v2, {WS}, s56 offen sc1")
    b.e("s_mov_b64 exec, -1")
    stamp(b, 'pk_stored')
    b.wait_all()
    b.e("s_barrier")
    arrive(b, FLP, "s2")
    stamp(b, 'pack_done')

def arrive(b, base, idx, T='s3'):
    b.e(f"""s_lshl_b32 {T}, {idx}, 7
        s_add_u32 {T}, {T}, {base}
        s_lshl_b32 s55, s{sW}, 30
        v_lshl_add_u32 v26, v1, 3, s55
        v_mov_b32 v28, s0
        v_mov_b32 v29, s1
        s_mov_b64 exec, 0xffff""")
    t = b.vm(f"buffer_store_dwordx2 v[28:29], v26, {WS}, {T} offen sc1")
    b.e("s_mov_b64 exec, -1")
    return t

def ld_lines(base, n, R=28):
    def f(b):
        b.e(f"s_mov_b32 s55, {base}" if isinstance(base, int) else base)
        for k in range((n + 63) // 64):
            lim = n - 1 - 64 * k
            b.e((f"v_min_u32 v26, {lim}, v1\nv_lshlrev_b32 v26, 7, v26" if lim < 63 else "v_lshlrev_b32 v26, 7, v1") + (f"\nv_add_u32 v26, {8192 * k}, v26" if k else ""))
            t = b.vm(f"buffer_load_dwordx2 {vr(R + 2 * k, 2)}, v26, {WS}, s55 offen sc1")
        return t
    return f
def ld_quarter(base):
    return ld_lines(f"s_mul_i32 s55, s{sW}, {24 * 128}\ns_add_u32 s55, s55, {base}", 24)
def cond_lines(n, R=28):
    t = []
    for k in range((n + 63) // 64):
        t.append(f"v_xor_b32 v{R + 2 * k}, s0, v{R + 2 * k}\nv_xor_b32 v{R + 1 + 2 * k}, s1, v{R + 1 + 2 * k}")
        t.append(f"v_or3_b32 v26, v26, v{R + 2 * k}, v{R + 1 + 2 * k}" if k else f"v_or_b32 v26, v{R}, v{R + 1}")
    return "\n".join(t) + "\nv_cmp_ne_u32 vcc, 0, v26"

L2E, L2E_LO, LN2 = 0x3FB8AA3B, 0x32A57060, 0x3F317218
def cmul(b, o, x, w, t):
    b.e(f"v_pk_mul_f32 {vr(t,2)}, {vr(x,2)}, {vr(w,2)} op_sel_hi:[1,0]")
    b.e(f"v_pk_fma_f32 {vr(o,2)}, {vr(x,2)}, {vr(w,2)}, {vr(t,2)} op_sel:[1,1,0] op_sel_hi:[0,1,1] neg_lo:[0,1,0]")

PORD = [1, 3, 5, 7, 8, 0, 2, 4, 6]
CSTR, SPB, UB = 2368, 9472, 11008
def conv(b, xtok, pt):
    b.e("L_conv:")
    stamp(b, 'c_in')
    VX, VS, VU, SG, XR, RR, BND = 192, 193, 194, 196, 212, 228, 244
    RB = "s76"
    if OPT.get('wpf', 0) == 1: w_prefetch(b)
    ln1_addr(b)
    if OPT.get('xat', 0) == 1: xtok = x_dma(b, True)
    b.e(f"""s_mul_i32 {RB}, s{sW}, {RSTR}
        v_lshl_add_u32 v10, v1, 3, {RB}
        v_and_b32 v2, 31, v1
        v_lshrrev_b32 v3, 5, v1
        v_lshl_add_u32 v3, v3, 4, {RB}
        v_lshrrev_b32 v11, 3, v2
        v_lshlrev_b32 v11, 2, v11
        v_and_b32 v12, 3, v2
        v_add_u32 v11, v11, v12
        v_bfe_u32 v12, v2, 2, 1
        s_mov_b32 s72, 0x86444200
        s_mov_b32 s73, 0xfedcba88
        v_lshlrev_b32 v16, 2, v11
        v_lshrrev_b64 v[16:17], v16, s[72:73]
        v_and_b32 v16, 15, v16
        v_add_u32 v16, 16, v16
        v_cmp_eq_u32 vcc, 1, v12
        v_cndmask_b32 v11, v11, v16, vcc
        v_add_u32 v13, 32, v2
        s_movk_i32 s3, 528
        v_mad_u32_u24 v11, v11, s3, v3
        v_mad_u32_u24 v13, v13, s3, v3
        v_sub_u32 v2, 63, v1
        v_lshl_add_u32 v12, v2, 4, {RB}
        v_lshl_add_u32 v253, v1, 4, {RB}
        v_and_b32 v250, 15, v1
        v_lshrrev_b32 v251, 4, v1
        v_sub_u32 v16, 2, v250
        v_and_b32 v16, 3, v16
        v_add_u32 v17, v250, v16
        v_sub_u32 v17, 18, v17
        v_lshlrev_b32 v17, 1, v17
        v_mul_u32_u24 v16, {CSTR}, v16
        v_add3_u32 v17, v17, v16, {RB}
        v_lshl_add_u32 v236, v251, 4, v17
        v_lshlrev_b32 v17, 5, v250
        v_lshl_add_u32 v17, v251, 4, v17
        s_add_u32 s3, {RB}, {UB}
        v_add_u32 v237, s3, v17
        s_add_u32 s3, {RB}, {SPB + 126}
        v_subrev_u32 v16, 1, v1
        v_and_b32 v16, -2, v16
        v_and_b32 v17, 1, v1
        v_mul_u32_u24 v17, 768, v17
        v_sub_u32 v17, v17, v16
        v_add_u32 v254, s3, v17
        v_subrev_u32 v255, 64, v254
        v_cmp_eq_u32 s[70:71], 0, v1
        s_sub_u32 s3, s3, 126
        v_writelane_b32 v254, s3, 0
        s_add_u32 s3, s3, 64
        v_writelane_b32 v255, s3, 0
        s_mov_b32 s72, 0x01028403
        s_mov_b32 s73, 0x8500
        v_lshlrev_b32 v16, 3, v1
        v_lshrrev_b64 v[16:17], v16, s[72:73]
        v_and_b32 v16, 0xff, v16
        v_lshl_add_u32 v252, v16, 4, {RB}
        v_lshrrev_b32 v2, 4, v0
        v_mul_u32_u24 v2, 40960, v2
        v_lshl_add_u32 v{VX}, v250, 4, v2
        v_lshlrev_b32 v{VS}, 4, v0
        s_movk_i32 s72, 4096
        s_movk_i32 s73, 8192
        v_lshlrev_b32 v{VU}, 2, v0
        v_add_u32 v{VU}, {UB + 512}, v{VU}
        v_add_u32 v{VU + 1}, {2 * RSTR}, v{VU}
        s_lshl_b32 s74, s50, 8
        s_add_u32 s75, s74, {XT}
        s_add_u32 s74, s74, {HT}
        s_lshr_b32 s{sC}, s50, 5
        s_add_u32 s{sC}, s{sC}, 3
        s_mul_i32 s3, s{sC}, 56
        s_mul_i32 s61, s{sW}, 14
        s_add_u32 s3, s3, s61
        s_mul_i32 s3, s3, 5120
        s_add_u32 s61, s3, {W2P}""")
    band = [f"v_lshlrev_b32 v16, 3, v251\nv_sub_u32 v16, v250, v16", "v_add_u32 v18, 36, v16\ns_mov_b32 s72, 0x1ff", "s_mov_b32 s73, 0\nv_add_u32 v19, 37, v16",
            "v_lshlrev_b64 v[20:21], v18, s[72:73]", "s_mov_b32 s72, 0x7f", "v_lshlrev_b64 v[22:23], v19, s[72:73]\ns_movk_i32 s73, 0x3f80",
            "v_mov_b32 v14, v250\nv_mov_b32 v15, v251"]
    for cl in range(2):
        for k in range(4):
            d = BND + 4 * cl + k
            band += [f"v_bfe_u32 v{d}, v{21 + 2 * cl}, {2 * k}, 2\nv_lshl_or_b32 v{d}, v{d}, 15, v{d}", f"v_and_b32 v{d}, 0x10001, v{d}\nv_mul_u32_u24 v{d}, s73, v{d}"]
    late = [l.strip() for l in f"""v_sub_u32 v16, 3, v14
        v_and_b32 v16, 3, v16
        v_add_u32 v17, v14, v16
        v_sub_u32 v17, 15, v17
        v_lshl_add_u32 v17, v15, 2, v17
        v_lshlrev_b32 v17, 1, v17
        v_mul_u32_u24 v16, 192, v16
        s_add_u32 s72, {RB}, {SPB}
        v_add3_u32 v5, v17, v16, s72
        v_lshlrev_b32 v17, 4, v14
        v_lshl_add_u32 v17, v15, 2, v17
        v_add_u32 v8, {RB}, v17
        v_lshrrev_b32 v17, 2, v14
        v_mul_u32_u24 v17, {RSTR}, v17
        v_lshl_add_u32 v17, v15, 5, v17
        v_and_b32 v16, 3, v14
        v_lshl_add_u32 v17, v16, 3, v17
        s_lshl_b32 s72, s{sW}, 7
        v_add_u32 v9, s72, v17""".split("\n")]
    fmap = [l.strip() for l in ffn_map(False).split("\n")]
    fmap = [l for l in fmap[:fmap.index(f"s_mul_i32 s58, s{sC}, 56")] if l and not l.startswith("v_lshlrev_b32 v4")]
    stamp(b, 'c_sm')
    b.wait_all(vm=False)
    b.e(f"""s_lshr_b32 s3, s{sW}, 1
        s_cmp_eq_u32 s3, 0
        s_cselect_b32 s62, s62, s63
        s_and_b32 s3, s{sW}, 1
        s_lshl_b32 s3, s3, 4
        s_lshr_b32 s62, s62, s3
        s_lshl_b32 s62, s62, 16
        s_mov_b32 s65, s65
        v_mov_b32 v14, s62
        s_lshl_b32 s66, s64, 16
        s_and_b32 s67, s64, 0xffff0000
        s_lshl_b32 s68, s65, 16
        s_and_b32 s69, s65, 0xffff0000
        s_mov_b32 s64, 0x{L2E:x}
        v_mul_f32 v15, s64, v14
        v_fma_f32 v16, v14, s64, -v15
        v_fmac_f32 v16, 0x{L2E_LO:x}, v14
        v_exp_f32 v15, v15
        v_mul_f32 v16, 0x{LN2:x}, v16
        v_fmac_f32 v15, v15, v16
        v_cvt_pk_bf16_f32 v15, v15, v15
        v_lshlrev_b32 v14, 16, v15""".replace("        s_mov_b32 s65, s65\n", ""))
    b.e(f"s_mov_b32 s{sW2}, s61")
    if OPT.get('wpf', 0) == 2: w_prefetch(b)
    AL, BE, CC, Z1, Z8, Z256, T, DB, X, X2, X4, X6, X8, X10, Y = range(0, 30, 2)
    R = lambda n, k: 32 + n * 32 + k
    stamp(b, 'kg_pre')
    b.wait(vm=pt[5])
    stamp(b, 'kg_par')
    for n in range(2):
        un = (lambda d, s: f"v_lshlrev_b32 v{d}, 16, v{s}") if n == 0 else (lambda d, s: f"v_and_b32 v{d}, 0xffff0000, v{s}")
        b.e("\n".join([un(R(n, AL), 4), un(R(n, BE), 5), un(R(n, DB), 6), un(R(n, DB) + 1, 7), un(R(n, CC), 8), un(R(n, CC) + 1, 9)]))
    for n in range(2):
        b.e(f"""v_mul_f32 v{R(n,AL)}, v14, v{R(n,AL)}
            v_mul_f32 v{R(n,BE)}, v14, v{R(n,BE)}
            v_pk_mul_f32 {vr(R(n,DB),2)}, {vr(R(n,DB),2)}, v[14:15] op_sel_hi:[1,0]
            v_mul_f32 v{R(n,AL)}, s64, v{R(n,AL)}
            v_mul_f32 v{R(n,BE)}, 0.15915494, v{R(n,BE)}""")
    b.e("v_lshlrev_b32 v4, 4, v1\nv_mov_b32 v6, v236\nv_mov_b32 v7, v237")
    for n in range(2): cmul(b, R(n, X), R(n, CC), R(n, DB), R(n, T))
    for (z, p) in ((Z8, 0x41000000), (Z1, None), (Z256, 0x43800000)):
        for n in range(2):
            e, ph = R(n, T), R(n, T) + 1
            if p is None: b.e(f"v_exp_f32 v{e}, v{R(n,AL)}\nv_fract_f32 v{ph}, v{R(n,BE)}")
            else: b.e(f"v_mul_f32 v{e}, 0x{p:x}, v{R(n,AL)}\nv_mul_f32 v{ph}, 0x{p:x}, v{R(n,BE)}\nv_exp_f32 v{e}, v{e}\nv_fract_f32 v{ph}, v{ph}")
        for n in range(2):
            b.e(f"v_cos_f32 v{R(n,z)}, v{R(n,T)+1}\nv_sin_f32 v{R(n,z)+1}, v{R(n,T)+1}")
        for n in range(2):
            b.e(f"v_pk_mul_f32 {vr(R(n,z),2)}, {vr(R(n,z),2)}, {vr(R(n,T),2)} op_sel_hi:[1,0]")
    pk = [0]
    def put(src, rows, neg=False):
        d = 16 + 2 * (pk[0] & 3); pk[0] += 1
        for n in range(2):
            b.e(f"v_cvt_pk_bf16_f32 v{d + n}, v{R(n,src)}, {'-' if neg else ''}v{R(n,src)+1}")
        for r in rows: b.lg(f"ds_write_b64 v10, {vr(d,2)} offset:{r * 528}")
    def mul(o, x, w):
        for n in range(2): b.e(f"v_pk_mul_f32 {vr(R(n,T),2)}, {vr(R(n,x),2)}, {vr(R(n,w),2)} op_sel_hi:[1,0]")
        for n in range(2): b.e(f"v_pk_fma_f32 {vr(R(n,o),2)}, {vr(R(n,x),2)}, {vr(R(n,w),2)}, {vr(R(n,T),2)} op_sel:[1,1,0] op_sel_hi:[0,1,1] neg_lo:[0,1,0]")
    stamp(b, 'kg_base')
    b.e("v_mov_b32 v24, 0x3f80\nv_mov_b32 v25, 0x3f80")
    b.lg(f"ds_write_b64 v10, v[24:25] offset:{32 * 528}")
    put(Z8, [33], True)
    lo = {}; chunks = ln1_a(b, xtok, 96, lo); step = [0]
    LNA, LNB_ = OPT.get('lna_at', 4), OPT.get('lnb_at', 14)
    def ld_st(bb):
        for q in range(4):
            t = bb.vm(f"buffer_load_dwordx4 {vr(SG + 4 * q, 4)}, v{VS}, {WS}, {('0', 's72', 's73', 's14')[q]} offen sc1")
        return t
    def nxt(o, x, w, rows, neg=False):
        mul(o, x, w); put(o, rows, neg); step[0] += 1
        for _ in range(OPT.get('lnr', 5)):
            if step[0] >= LNA and chunks: chunks.pop(0)()
        if step[0] == LNB_:
            assert not chunks
            ln1_b(b, lo['last']); b.e("s_movk_i32 s14, 12288")
        if step[0] == OPT.get('wp_at', 99): w_prefetch(b)
        if step[0] == OPT.get('st_at', 56): lo['st'] = ld_st(b)
    cur = Z8
    for j in range(2, 32):
        nxt(Y, cur, Z8, [32 + j], True); cur = Y
    put(X, [0])
    keep = {2: X2, 4: X4, 6: X6, 8: X8, 10: X10}
    cur = X
    for o in range(1, 11):
        d = keep.get(o, Y)
        nxt(d, cur, Z1, [o]); cur = d
    for src, row in ((X, 16), (X2, 18), (X4, 20), (X6, 22), (X8, 24), (X10, 26)):
        nxt(src, src, Z256, [row])
    for r0 in (11, 27):
        for k, src in enumerate((X, X4, X8)):
            nxt(src, src, Z256, [r0 + k])
    for r0 in (14, 30, 15, 31):
        nxt(X, X, Z256, [r0])
    stok = lo.get('st')
    mul(X, X, Z256)
    b.wait_all(vm=False)
    stamp(b, 'kg_pow')
    tk = {}
    def rd(ks):
        r = 112 + (ks % 4) * 8
        b.lg(f"ds_read_b128 {vr(r,4)}, v11 offset:{32 * ks}")
        tk[ks] = b.lg(f"ds_read_b128 {vr(r+4,4)}, v13 offset:{32 * ks}")
    fill = [f"v_add_f32 v14, v{R(0,X)}, v{R(1,X)}"]
    for m in ("quad_perm:[1,0,3,2] row_mask:0xf", "quad_perm:[2,3,0,1] row_mask:0xf", "row_half_mirror row_mask:0xf", "row_mirror row_mask:0xf", "row_bcast:15 row_mask:0xa", "row_bcast:31 row_mask:0xc"):
        fill.append(f"v_add_f32_dpp v14, v14, v14 {m} bank_mask:0xf")
    fill += ["v_readlane_b32 s56, v14, 63", "v_mov_b32 v20, 0\nv_mov_b32 v21, 0", "v_mov_b32 v22, 0\nv_mov_b32 v23, 0"]
    for ks in range(3): rd(ks)
    cond = "\n".join(f"v_xor_b32 v2, s0, v{SG + 1 + 4 * q}\nv_xor_b32 v3, s1, v{SG + 3 + 4 * q}\n" + (f"v_or3_b32 v15, v2, v3, v15" if q else "v_or_b32 v15, v2, v3") for q in range(4))
    xt = []
    KC = OPT.get('kc', 11)
    for ks in range(16):
        r = 112 + (ks % 4) * 8
        b.wait(lg=tk[ks])
        b.e(f"v_mfma_f32_32x32x16_bf16 v[96:111], {vr(r,4)}, {vr(r+4,4)}, {'0' if ks == 0 else 'v[96:111]'}")
        if ks + 3 < 16: rd(ks + 3)
        if ks == OPT.get('st_ks', -1): stok = ld_st(b)
        if ks == KC:
            stamp(b, 'st_chk')
            if OPT.get('mp', 6) & 1:
                poll_masked(b, [f"buffer_load_dwordx4 {vr(SG + 4 * q, 4)}, v{VS}, {WS}, {('0', 's72', 's73', 's14')[q]} offen sc1" for q in range(4)],
                            [f"v_cmp_ne_u32 vcc, s0, v{SG + 1 + 4 * q}\nv_cmp_ne_u32 s[{18 + 2 * q}:{19 + 2 * q}], s1, v{SG + 3 + 4 * q}\ns_or_b64 s[{18 + 2 * q}:{19 + 2 * q}], s[{18 + 2 * q}:{19 + 2 * q}], vcc" for q in range(4)], stok)
            else: poll(b, ld_st, cond + "\nv_cmp_ne_u32 vcc, 0, v15", stok)
            stamp(b, 'st_ok')
            for k in range(8):
                fill.append(f"v_and_b32 v{RR + 2 * k}, 0xffff0000, v{SG + 2 * k}\nv_lshlrev_b32 v{RR + 1 + 2 * k}, 16, v{SG + 2 * k}\nv_rcp_f32 v{RR + 2 * k}, v{RR + 2 * k}" + (f"\nv_mul_f32 v{RR - 1 + 2 * k}, -v{RR - 1 + 2 * k}, v{RR - 2 + 2 * k}" if k else ""))
            fill.append(f"v_mul_f32 v{RR + 15}, -v{RR + 15}, v{RR + 14}")
        if KC < ks <= KC + 4:
            q = ks - KC - 1
            xt.append(b.vm(f"buffer_load_dwordx4 {vr(XR + 4 * q, 4)}, v{VX}, {WS}, s75 offen sc1"))
            b.e("s_add_u32 s75, s75, 655360")
        if fill: b.e(fill.pop(0))
        if fill and ks > KC + 4: b.e(fill.pop(0))
    while len(xt) < 4:
        xt.append(b.vm(f"buffer_load_dwordx4 {vr(XR + 4 * len(xt), 4)}, v{VX}, {WS}, s75 offen sc1"))
        b.e("s_add_u32 s75, s75, 655360")
    for x in fill: b.e(x)
    stamp(b, 'kg_mfma')
    p2tok = ld_quarter(FLP2)(b)
    b.lg(f"ds_write_b128 v253, v[20:23] offset:{SPB}")
    b.lg(f"ds_write_b128 v253, v[20:23] offset:{SPB + 1024}")
    b.e("s_barrier")
    stamp(b, 'st1_seen')
    b.e("""v_cmp_eq_u32 vcc, 31, v1
        v_cndmask_b32 v24, 0, v96, s[70:71]
        v_cndmask_b32 v25, 0, v97, s[70:71]
        v_cndmask_b32 v18, 0, v98, s[70:71]
        v_cndmask_b32 v105, v105, v104, vcc
        v_cmp_eq_u32 vcc, 63, v1
        v_cndmask_b32 v19, 0, v110, s[70:71]
        v_writelane_b32 v110, s56, 0
        v_cndmask_b32 v106, v106, v104, vcc
        v_mov_b32_dpp v24, v24 row_shr:1 row_mask:0xf bank_mask:0xf bound_ctrl:1
        v_mov_b32_dpp v25, v25 row_shr:1 row_mask:0xf bank_mask:0xf bound_ctrl:1
        v_mov_b32_dpp v18, v18 row_shr:1 row_mask:0xf bank_mask:0xf bound_ctrl:1
        v_cvt_pk_bf16_f32 v14, v110, v111""")
    pats = [list(range(96, 107)), [107] * 3 + [108] * 3 + [109] * 5, [19] * 5 + [20] * 3 + [24, 25, 18]]
    for rnd, w in enumerate(pats):
        for c in range(4):
            d = 32 + ((rnd * 4 + c) % 8) * 4
            for k in range(4):
                b.e(f"v_cvt_pk_bf16_f32 v{d + k}, v{w[10 - c - 2 * k]}, v{w[9 - c - 2 * k]}")
            if rnd < 2: b.lg(f"ds_write_b128 v12, {vr(d,4)} offset:{c * CSTR + 64 + (1 - rnd) * 1024}")
        if rnd == 0:
            for c in range(4): b.lg(f"ds_write_b16 v254, v14 offset:{c * 190}")
        if rnd == 1:
            for c in range(4): b.lg(f"ds_write_b16_d16_hi v255, v14 offset:{c * 190}")
    b.e("s_mov_b64 exec, 63")
    for c in range(4): b.lg(f"ds_write_b128 v252, {vr(32 + c * 4, 4)} offset:{c * CSTR}")
    b.e("s_mov_b64 exec, -1")
    stamp(b, 'kgen_done')
    b.e("L_stage2:")
    XF, UF = 128, 160
    for q in range(4):
        b.wait(vm=xt[q])
        for k in range(4):
            b.e(f"v_lshlrev_b32 v{XF + 8 * q + 2 * k}, 16, v{XR + 4 * q + k}\nv_and_b32 v{XF + 8 * q + 2 * k + 1}, 0xffff0000, v{XR + 4 * q + k}")
        for k in range(4):
            rr = RR + 2 * (2 * q + (k >> 1))
            b.e(f"v_pk_fma_f32 {vr(UF + 8 * q + 2 * k, 2)}, {vr(XF + 8 * q + 2 * k, 2)}, {vr(rr, 2)}, {vr(rr, 2)} op_sel:[0,0,1] op_sel_hi:[1,0,1]")
        for c in range(4):
            b.e(f"v_cvt_pk_bf16_f32 v{SG + 4 * q + c}, v{UF + 8 * q + c}, v{UF + 8 * q + 4 + c}")
        for c in range(4):
            b.lg(f"ds_write_b32 v{VU + (c >> 1)}, v{SG + 4 * q + c} offset:{(c & 1) * RSTR + q * 1024}")
    rtok = {}
    ACC, VB, UA, DW, WF = 32, 64, 36, 196, 228
    def f_rd(it, k, r=None):
        d = 2 * it + 1 + 16 * k; r = (it & 1) * 16 + 4 * k if r is None else r
        b.lg(f"ds_read_b64 {ar(r, 2)}, v6 offset:{2080 - 32 * d}")
        rtok[(it, 'f', k)] = b.lg(f"ds_read_b64 {ar(r + 2, 2)}, v6 offset:{2080 - 32 * d + 8}")
    def v_rd(it, k):
        rtok[(it, 'v', k)] = b.lg(f"ds_read_b128 {vr(VB + (it & 1) * 32 + 4 * k, 4)}, v7 offset:{512 + 512 * k - 32 * (2 * it + 1)}")
    ulast = b.li - 1
    for k in range(4): f_rd(0, k)
    f_rd(0, 4, 32)
    if OPT.get('w2t', 0): w2_touch(b, False)
    poll(b, ld_quarter(FLP2), cond_lines(24), p2tok)
    b.wait(lg=ulast)
    b.e("s_barrier")
    stamp(b, 'conv_start')
    for k in range(8): v_rd(0, k)
    G = Gaps(b, spread=OPT.get('spread', 1))
    w2n = 0; W1AT = OPT.get('w1at', 99); W2AT = OPT.get('w2at', 0)
    tok = {}
    def y_out(ct, G_=None):
        G.add(f"v_cvt_pk_bf16_f32 v{64 + 2 * ct}, v{ACC + 4 * ct}, v{ACC + 4 * ct + 2}\nv_cvt_pk_bf16_f32 v{65 + 2 * ct}, v{ACC + 4 * ct + 1}, v{ACC + 4 * ct + 3}")
        G.add(lambda: b.lg(f"ds_write2st64_b32 v8, v{64 + 2 * ct}, v{65 + 2 * ct} offset0:{ct} offset1:{ct + 8}"), 2)
    for it in range(8):
        par = it & 1
        stamp(b, f'cv_{it}')
        if it < 7:
            for k in range(8):
                if k < 4: G.add(lambda k=k, it=it: f_rd(it + 1, k), 2)
                G.add(lambda k=k, it=it: v_rd(it + 1, k), 1)
        ex = []
        SH = OPT.get('sh', 1)
        nb = -(-len(band) // (2 + SH))
        for x in band[it * nb:(it + 1) * nb]: G.add(x, front=False)
        if it == 1 + SH:
            for x in late[:9]: G.add(x)
        if it == 5:
            for x in late[9:]: G.add(x)
        if it in (5, 6):
            for x in fmap[(it - 5) * 8:8 if it == 5 else None]: G.add(x)
        if it == 0:
            ex = [(vr(ACC + 4 * ct, 4), ar(32, 4), vr(VB + 4 * (ct - 4), 4), vr(ACC + 4 * ct, 4)) for ct in range(4, 8)]
        if it == SH:
            for cl in range(2):
                for t in range(4):
                    G.add(lambda cl=cl, t=t: tok.__setitem__('u', b.lg(f"ds_read_b128 {ar(UA + 16 * cl + 4 * t, 4)}, v7 offset:{512 + 512 * t - (48 if cl == 0 else 32)}")), 1)
        if it == 1 + SH:
            ex = [(vr(DW + 16 * cl + 4 * t, 4), ar(UA + 16 * cl + 4 * t, 4), vr(BND + 4 * cl, 4), '0') for cl in range(2) for t in range(4)]
        if it == 2 + SH:
            for cl in range(2):
                for d in range(3, -1, -1):
                    G.add(lambda cl=cl, d=d: tok.__setitem__('t', b.lg(f"ds_read_b64 {ar(UA + 10 * cl + 2 * (3 - d), 2)}, v5 offset:{768 * cl + 96 - 32 * d}")), 1)
                G.add(f"v_accvgpr_write_b32 a{UA + 10 * cl + 8}, 0\nv_accvgpr_write_b32 a{UA + 10 * cl + 9}, 0")
            for cl in range(2):
                for t in range(4):
                    G.add(f"v_cvt_pk_bf16_f32 v{WF + 8 * cl + 2 * t}, v{DW + 16 * cl + 4 * t}, v{DW + 16 * cl + 4 * t + 1}\nv_cvt_pk_bf16_f32 v{WF + 8 * cl + 2 * t + 1}, v{DW + 16 * cl + 4 * t + 2}, v{DW + 16 * cl + 4 * t + 3}")
        if it in (3 + SH, 4 + SH):
            cl = it - 3 - SH
            ex = [(vr(ACC + 4 * ct, 4), vr(WF + 8 * cl + 4 * kk, 4), ar(UA + 10 * cl + 2 * (3 - (ct - 4 - 2 * kk)), 4), vr(ACC + 4 * ct, 4)) for kk in range(2) for ct in range(4 + 2 * kk, 8)]
        if it >= 4:
            q = it - 4
            for k in range(8): G.add(f"v_fma_f32 v{XF + 8 * q + k}, v{UF + 8 * q + k}, s{66 + (k & 3)}, v{XF + 8 * q + k}")
        if it == W1AT:
            G.add(f"v_lshlrev_b32 v2, 7, v0\nv_min_u32 v2, {230 * 128}, v2"); G.add(f"s_mul_i32 s3, s{sSI}, {231 * 128}\ns_add_u32 s3, s3, s{sDMA}")
            G.add(lambda: (b.e(f"s_sub_u32 s3, s3, s{sM0}"), b.vm(f"buffer_load_dword a252, v2, {WS}, s3 offen sc1")), 2)
        if it >= W2AT:
            for _ in range(-(-(OPT.get('w2n', 40) - w2n) // (8 - it))):
                G.addv(lambda m=w2n: w2_load(b, m)); w2n += 1
        if it == OPT.get('p1at', 6): G.add(lambda: tok.__setitem__('p1', ld_quarter(FLP)(b)), 2, front=True)
        G.begin(26 + len(ex))
        order = [(i, ct) for i in range(4) for ct in range(i, 8)]
        if it == 7: order = [(i, ct) for ct in range(8) for i in range(min(ct, 3) + 1)]
        pend = []
        for cnt, (i, ct) in enumerate(order):
            c = '0' if (it == 0 and i == 0) else vr(ACC + 4 * ct, 4)
            G.now(lambda: b.wait(lg=max(rtok[(it, 'f', i)], rtok[(it, 'v', ct - i)])), 1)
            G.mfma(f"v_mfma_f32_16x16x32_bf16 {vr(ACC + 4 * ct, 4)}, {ar(par * 16 + 4 * i, 4)}, {vr(VB + par * 32 + 4 * (ct - i), 4)}, {c}")
            if pend and cnt >= pend[0][0]:
                y_out(pend.pop(0)[1])
            G.fill()
            if it == 7 and i == min(ct, 3): pend.append((cnt + 4, ct))
        if it == 1 + SH: assert not any(isinstance(x[1], str) and x[1] in band for x in G.q)
        for x in ex:
            G.mfma("v_mfma_f32_16x16x32_bf16 %s, %s, %s, %s" % x)
            G.fill()
        if it == 7:
            stamp(b, 'p1_chk')
            poll(b, ld_quarter(FLP), cond_lines(24), tok['p1'])
            stamp(b, 'p1_ok')
            for _, ct in pend: y_out(ct)
        G.flush()
        if it < 7: b.wait(lg=b.li - 1)
    stamp(b, 'conv_end')
    b.e("s_mov_b32 s56, 0x3f80\ns_mov_b32 s57, 0x3f800000")
    b.wait_all(vm=False)
    stamp(b, 'y_written')
    b.e("s_barrier")
    stamp(b, 'y_bar')
    yt = []
    for q in range(4):
        b.lg(f"ds_read_b64_tr_b16 {vr(80 + 4 * q, 2)}, v9 offset:{512 * q}")
        yt.append(b.lg(f"ds_read_b64_tr_b16 {vr(82 + 4 * q, 2)}, v9 offset:{512 * q + 2048}"))
    preload(b, 0, OPT.get('pre0', 0), PORD)
    def h_pack(q):
        for k in range(4):
            b.e(f"v_cvt_pk_bf16_f32 v{96 + 4 * q + k}, v{XF + 8 * q + 2 * k}, v{XF + 8 * q + 2 * k + 1}")
        t = b.vm(f"buffer_store_dwordx4 {vr(96 + 4 * q, 4)}, v{VX}, {WS}, s74 offen sc1")
        b.e("s_add_u32 s74, s74, 655360")
        return t
    for q in range(4):
        b.wait(lg=yt[q])
        for k in range(8):
            b.e(f"v_dot2_f32_bf16 v{XF + 8 * q + k}, v{80 + 4 * q + (k >> 1)}, s{56 + (k & 1)}, v{XF + 8 * q + k}")
        if q: h_pack(q - 1)
    hs = h_pack(3)
    stamp(b, 'h_stored')
    return None, hs

from ffn import ffn_map, preload, ffn

def build():
    _lab[0] = 0
    b = B()
    xtok, b3, pt = entry(b)
    b2 = b.fork()
    pack(b2)
    if OPT['stop'] in ('pack', 'conv'): (b2.e("s_add_u32 s2, s2, 160"), stamp_dump(b2), b2.e("s_endpgm"))
    b2.e(ffn_map(True))
    poll(b2, ld_quarter(FLP2), cond_lines(24))
    b2.e("s_barrier")
    if OPT.get('hw2t', 0):
        w2_touch(b2, False)
        b2.wait_all(lg=False)
    HW = OPT.get('hw2', 28)
    for m in range(HW): w2_load(b2, m)
    stamp(b2, 'w2_issued')
    poll(b2, ld_quarter(FLP), cond_lines(24), sleep=OPT.get('psl', 4))
    b2.e("s_barrier")
    stamp(b2, 'p1_seen')
    preload(b2, 0, 36)
    for m in range(HW, 40): w2_load(b2, m)
    if OPT.get('buddy', 0):
        sk = lab("bd")
        b2.e(f"s_cmp_lg_u32 s{sW}, 0\ns_cbranch_scc1 {sk}")
        poll(b2.fork(), ld_lines(f"s_lshl_b32 s55, s2, 7\ns_add_u32 s55, s55, {FLH}", 1), cond_lines(1), sleep=OPT.get('bsl', 2))
        b2.e(f"{sk}:")
    b2.e("s_add_u32 s2, s2, 160\ns_branch L_g1")
    packtok, hs = conv(b3, xtok, pt)
    if OPT['stop'] in ('pack', 'conv'): (stamp_dump(b3), b3.e("s_endpgm"))
    preload(b3, OPT.get('pre0', 0), OPT.get('pre1', 12), PORD)
    b3.wait(vm=hs)
    b3.e("s_barrier")
    arrive(b3, FLH, "s50")
    stamp(b3, 'h_arrive')
    preload(b3, OPT.get('pre1', 12), 36, PORD)
    for m in range(OPT.get('w2n', 40), 40): w2_load(b3, m)
    b3.e(f"s_add_u32 s{sSI}, s{sSI}, 3\nL_g1:")
    b4 = B(); b4.L = b.L; b4.vi = 100
    ffn(b4)
    b.e("L_exit:\ns_endpgm\nL_code_end:")
    lines, nn = hazard_pass(b.L, verbose=OPT.get('verbose', False))
    if OPT.get('align', 1):
        lines = align_pass([KN + ':'] + lines, nop_cost=OPT.get('nopc', 4.0))[0][1:]
    hdr = open(os.path.join(os.path.dirname(os.path.abspath(__file__)), "header.txt")).read()
    out = hdr + (f"; stamps: {','.join(OPT['stamps'])}\n" if OPT['stamps'] else "") + "; @launch grid=(256,1,1) block=(256,1,1) lds=163840\n"
    out += f'.amdgcn_target "amdgcn-amd-amdhsa--gfx950"\n.text\n.globl {KN}\n.p2align 8\n.type {KN},@function\n{KN}:\n'
    out += "\n".join(("" if l.endswith(":") else "    ") + l for l in lines)
    out += f"""
.section .rodata,"a"
.p2align 6
.amdhsa_kernel {KN}
  .amdhsa_next_free_vgpr 512
  .amdhsa_next_free_sgpr 102
  .amdhsa_accum_offset 256
  .amdhsa_group_segment_fixed_size 0
  .amdhsa_kernarg_size 128
  .amdhsa_user_sgpr_count 2
  .amdhsa_user_sgpr_kernarg_segment_ptr 1
  .amdhsa_system_sgpr_workgroup_id_x 1
.end_amdhsa_kernel
"""
    return out, nn, len(lines)

if __name__ == "__main__":
    import ffn as _f
    for a in sys.argv[2:]:
        k, v = a.split("=")
        OPT[k] = eval(v)
    out, nn, nl = build()
    open(sys.argv[1], "w").write(out)
    print(f"wrote {sys.argv[1]}: {nl} lines, {nn} hazard nops")
```

```python
sPAN, sDMA, sM0, sW2, sH0 = 60, 61, 62, 63, 64
sROT = 59
sHP, sSTK = 68, 72
CSB = 162816
A_PAN, A_RING, A_W2 = 0, 48, 80
V_ACC1, V_ACC2, V_ACC3, V_PAN = 32, 96, 128, 144
V_G2, V_HR = 144, 32

def ffn_map(helper):
    if helper:
        t = f"""s_lshr_b32 s76, s2, 3
            s_mul_i32 s{sJ}, s76, 43
            s_lshr_b32 s{sJ}, s{sJ}, 7
            s_mul_i32 s58, s{sJ}, 3
            s_sub_u32 s{sSI}, s76, s58
            s_and_b32 s58, s{sXCD}, 1
            s_mul_i32 s58, s58, 3
            s_add_u32 s{sI}, s{sSI}, s58
            s_mul_i32 s{sROT}, s{sSI}, 3
            s_lshr_b32 s{sC}, s76, 2
            """
    else:
        t = f"""s_lshr_b32 s76, s50, 3
            s_mul_i32 s{sJ}, s76, 52
            s_lshr_b32 s{sJ}, s{sJ}, 8
            s_mul_i32 s58, s{sJ}, 5
            s_sub_u32 s{sSI}, s76, s58
            s_and_b32 s58, s{sXCD}, 1
            s_mul_i32 s58, s58, 5
            s_add_u32 s58, s58, s{sSI}
            s_add_u32 s{sI}, s58, 6
            s_mov_b32 s{sROT}, 0
            s_lshr_b32 s{sC}, s76, 2
            s_add_u32 s{sC}, s{sC}, 3
            """
    return t + f"""s_lshr_b32 s58, s{sXCD}, 1
        s_lshl_b32 s58, s58, 2
        s_add_u32 s{sJ}, s{sJ}, s58
        s_and_b32 s76, s76, 3
        s_lshl_b32 s{sRHO}, s{sXCD}, 2
        s_add_u32 s{sRHO}, s{sRHO}, s76
        v_lshlrev_b32 v4, 4, v1
        s_lshl_b32 s{sM0}, s{sW}, 12
        s_mul_i32 s{sDMA}, s{sJ}, {JSTR}
        s_add_u32 s{sDMA}, s{sDMA}, s{sM0}
        s_add_u32 s{sDMA}, s{sDMA}, {W1P}
        s_mul_i32 s58, s{sC}, 56
        s_mul_i32 s{sW2}, s{sW}, 14
        s_add_u32 s58, s58, s{sW2}
        s_mul_i32 s{sW2}, s58, 5120
        s_add_u32 s{sW2}, s{sW2}, {W2P}"""

def w2_touch(b, late):
    nl = 60 if late else 80
    b.e(f"""s_and_b32 s3, s{sRHO}, 3
        s_mul_i32 s3, s3, {nl * 128}
        s_add_u32 s3, s3, s{sW2}
        v_lshlrev_b32 v2, 7, v1""")
    if late:
        b.e(f"s_add_u32 s3, s3, 4096\nv_min_u32 v2, {59 * 128}, v2")
        b.vm(f"buffer_load_dword a253, v2, {WS}, s3 offen sc1")
    else:
        b.e(f"v_add_u32 v3, 0x2000, v2\nv_min_u32 v3, {79 * 128}, v3")
        b.vm(f"buffer_load_dword a253, v2, {WS}, s3 offen sc1")
        b.vm(f"buffer_load_dword a254, v3, {WS}, s3 offen sc1")

def dma_w1(b, n):
    blk, k = n >> 2, n & 3
    if k == 0:
        b.e(f"s_add_u32 m0, s{sM0}, {(blk % 9) * 16384}\ns_addk_i32 s{sDMA}, 16384")
    return b.vm(f"buffer_load_dwordx4 v4, {WS}, s{sDMA} offen offset:{k * 1024} sc1 lds")

def w2_load(b, m):
    n, dt = divmod(m, 5)
    if m and m % 4 == 0: b.e(f"s_addk_i32 s{sW2}, 4096")
    return b.vm(f"buffer_load_dwordx4 {ar(A_W2 + (n % 8) * 20 + dt * 4, 4)}, v4, {WS}, s{sW2} offen offset:{(m % 4) * 1024} sc1")

def preload(b, lo, hi, order=None):
    for n in range(lo, hi):
        if order is not None:
            if n % 4 == 0 or n == lo: b.e(f"s_add_u32 m0, s{sM0}, {order[n // 4] * 16384}\ns_add_u32 s58, s{sDMA}, {order[n // 4] * 16384}")
            b.vm(f"buffer_load_dwordx4 v4, {WS}, s58 offen offset:{(n & 3) * 1024} sc1 lds")
            continue
        if n % 4 == 0:
            b.e(f"""s_lshl_b32 s56, s{sROT}, 14
                s_add_u32 m0, s{sM0}, s56
                s_add_u32 s57, s{sDMA}, s56
                s_add_u32 s{sROT}, s{sROT}, 1
                s_cmp_eq_u32 s{sROT}, 9
                s_cselect_b32 s{sROT}, 0, s{sROT}""")
        b.vm(f"buffer_load_dwordx4 v4, {WS}, s57 offen offset:{(n & 3) * 1024} sc1 lds")
    if hi == 36:
        b.e(f"""s_add_u32 s{sDMA}, s{sDMA}, {8 * 16384}
            v_cmp_lt_u32 vcc, 111, v0
            v_mov_b32 v2, 0
            v_mov_b32 v3, {7168 - 448}
            v_cndmask_b32 v2, v2, v3, vcc
            v_lshl_add_u32 v2, v0, 2, v2
            s_mul_i32 s56, s{sJ}, 448
            s_add_u32 s56, s56, {CSP}""")
        for k in range(7):
            b.vm(f"buffer_load_dword v{16 + k}, v2, {WS}, s56 offen sc1")
            b.e("s_addk_i32 s56, 14336")

def ffn(b):
    b.e(f"""v_add_u32 v5, 0x10000, v4
        v_add_u32 v6, 0x20000, v4
        v_and_b32 v2, 15, v1
        v_lshrrev_b32 v3, 4, v1
        v_lshlrev_b32 v7, 4, v2
        v_lshl_add_u32 v7, v3, 9, v7
        v_lshlrev_b32 v8, 4, v3
        v_add_u32 v8, {CSB}, v8
        v_lshlrev_b32 v9, 4, v2
        s_lshl_b32 s56, s{sI}, 2
        s_add_u32 s56, s56, s{sW}
        s_mul_i32 s{sPAN}, s56, 40960
        s_add_u32 s74, s{sPAN}, {HT}
        s_add_u32 s75, s74, 40960
        s_and_b32 s57, s{sJ}, {1 if OPT.get('krot', 0) >= 2 else 3}
        s_mul_i32 s57, s57, {(0, 5, 10, 4, 2)[OPT.get('krot', 0)]}
        s_lshr_b32 s57, s57, 1
        s_lshl_b32 s57, s57, 12
        s_add_u32 s{sPAN}, s74, s57
        s_lshl_b32 s{sSTK}, s56, 8
        s_add_u32 s{sSTK}, s{sSTK}, {ST2}
        s_mul_i32 s56, s56, {2 * 56 * 1024}
        s_add_u32 s56, s56, {HP}""")
    for k in range(2):
        b.e(f"""s_lshl_b32 s57, s{sJ}, 1
            s_add_u32 s57, s57, {k}
            s_and_b32 s58, s57, 3
            s_mul_i32 s58, s58, 14
            s_lshr_b32 s57, s57, 2
            s_add_u32 s57, s57, s58
            s_lshl_b32 s57, s57, 10
            s_add_u32 s{sHP + k}, s56, s57""")
    for k in range(2):
        b.e(f"s_mov_b32 s57, s{sJ}" if k == 0 else f"s_lshr_b32 s57, s{sJ}, 1")
        b.e(f"""s_and_b32 s58, s57, 3
            s_mul_i32 s58, s58, 14
            s_lshr_b32 s57, s57, 2
            s_add_u32 s57, s57, s58
            s_add_u32 s57, s57, {8 + 4 * k}
            s_lshl_b32 s57, s57, 10
            s_add_u32 s{sHP + 2 + k}, s56, s57""")
    b.e(f"""s_and_b32 s57, s{sJ}, 1
        s_mul_i32 s57, s57, {56 * 1024}
        s_add_u32 s{sHP + 3}, s{sHP + 3}, s57""")
    for k in range(4):
        b.e(f"""s_xor_b32 s57, s{sW}, {k}
            s_lshl_b32 s58, s{sRHO}, 2
            s_add_u32 s57, s57, s58
            s_mul_i32 s57, s57, 56
            s_mul_i32 s58, s{sW}, 14
            s_add_u32 s57, s57, s58
            s_lshl_b32 s57, s57, 10
            s_add_u32 s{sH0 + k}, s57, {HP}""")
    stamp(b, 'pre_issued')
    sk = lab("np")
    b.e(f"s_cmp_lg_u32 s{sW}, 0\ns_cbranch_scc1 {sk}")
    if OPT.get('mp', 6) & 2:
        f = b.fork()
        f.e(f"s_mov_b32 s55, {FLH}\nv_lshlrev_b32 v26, 7, v1\nv_add_u32 v27, 8192, v26\nv_min_u32 v28, 31, v1\nv_lshlrev_b32 v28, 7, v28\nv_add_u32 v28, 16384, v28")
        L = [f"buffer_load_dwordx2 {vr(10 + 2 * k, 2)}, v{26 + k}, {WS}, s55 offen sc1" for k in range(3)]
        for l in L: t = f.vm(l)
        poll_masked(f, L, [f"v_cmp_ne_u64 s[{18 + 2 * k}:{19 + 2 * k}], s[0:1], {vr(10 + 2 * k, 2)}" for k in range(3)], t)
    else: poll(b.fork(), ld_lines(FLH, 160, 10), cond_lines(160, 10))
    b.e(f"{sk}:")
    b.wait_all()
    b.e(f"s_cmp_eq_u32 s{sJ}, 15\ns_barrier\ns_cbranch_scc1 L_j15")
    stamp(b, 'g1_start')
    if OPT['stop'] == 'pre': stamp_dump(b); b.e("s_endpgm")
    g12(b.fork(), 4, 2, False)
    b.e("L_j15:")
    stamp(b, 'g1_start')
    g12(b.fork(), 2, 0, True)

def flag_store(b, base):
    b.e(f"s_lshl_b32 s16, s{sI}, 4\ns_add_u32 s16, s16, s{sJ}")
    arrive(b, base, "s16", "s16")
def ld_flags(base):
    return ld_lines(f"s_lshr_b32 s55, s{sRHO}, 1\ns_lshl_b32 s55, s55, 11\ns_add_u32 s55, s55, {base}", 16)
COND_FLAG = cond_lines(16)
def poll_flags(b, base, tok):
    if OPT.get('mp', 6) & 4:
        poll_masked(b, [f"buffer_load_dwordx2 v[28:29], v26, {WS}, s55 offen sc1"], ["v_cmp_ne_u64 s[18:19], s[0:1], v[28:29]"], tok)
    else: poll(b, ld_flags(base), COND_FLAG, tok)
def ld_st2(b):
    return b.vm(f"buffer_load_dwordx4 v[28:31], v9, {WS}, s{sSTK} offen sc1")
COND_ST2 = "v_xor_b32 v26, s0, v29\nv_xor_b32 v27, s1, v31\nv_or_b32 v26, v26, v27\nv_cmp_ne_u32 vcc, 0, v26"

CS_OPS = [f"v_add_f32 v16, v16, v17\nv_add_f32 v18, v18, v19", "v_add_f32 v20, v20, v21\nv_add_f32 v16, v16, v22",
          f"v_add_f32 v18, v18, v20\nv_lshlrev_b32 v2, 2, v0", f"v_add_u32 v2, {CSB}, v2\nv_add_f32 v16, v16, v18"]
def dbg_reset(b):
    sk = lab("dz")
    b.e(f"""s_cmp_lg_u32 s2, 255
        s_cbranch_scc1 {sk}
        s_mov_b32 s14, 128
        v_mov_b32 v23, 0
        v_lshlrev_b32 v3, 2, v0
        buffer_store_dword v23, v3, {OUT}, 0 offen sc1
        {sk}:""")
    mk_srd(b, 12, P_OUT, 2621440)
def M(fn):
    fn.mem = True; return fn

def g12(b, np1, np2, stats):
    NK = 20
    ptok = {}
    VT = V_ACC1 if stats else V_ACC2
    VS_ = 96
    def preg(k): return V_PAN + 8 * k if k < 14 else VT + 8 * (k - 14)
    def pan(k, s, first):
        return vr(preg(k) + 4 * s, 4) if (k < 14 or first) else ar(A_PAN + 8 * (k - 14) + 4 * s, 4)
    def pan_load(k):
        if k and k % 2 == 0:
            b.e(f"s_addk_i32 s{sPAN}, 4096")
            if OPT.get('krot', 0): b.e(f"s_cmp_eq_u32 s{sPAN}, s75\ns_cselect_b32 s{sPAN}, s74, s{sPAN}")
        for p in range(2):
            ptok[k] = b.vm(f"buffer_load_dwordx4 {vr(preg(k) + 4 * p, 4)}, v7, {WS}, s{sPAN} offen offset:{(k & 1) * 2048 + p * 256} sc1")
    def pan_fix(k):
        b.wait(vm=ptok[k])
        r = preg(k)
        b.e(f"v_swap_b32 v{r + 2}, v{r + 4}\nv_swap_b32 v{r + 3}, v{r + 5}")
        return [f"v_accvgpr_write_b32 a{A_PAN + 8 * (k - 14) + q}, v{r + q}" for q in range(8)] if k >= 14 else []
    def pan_load_ops(k):
        L = []
        if k and k % 2 == 0:
            L.append((f"s_addk_i32 s{sPAN}, 4096" + (f"\ns_cmp_eq_u32 s{sPAN}, s75\ns_cselect_b32 s{sPAN}, s74, s{sPAN}" if OPT.get('krot', 0) else ""), 1))
        for p in range(2):
            if OPT.get('nopan'): ptok[k] = 0; continue
            L.append((M(lambda p=p: ptok.__setitem__(k, b.vm(f"buffer_load_dwordx4 {vr(preg(k) + 4 * p, 4)}, v7, {WS}, s{sPAN} offen offset:{(k & 1) * 2048 + p * 256} sc1"))), 2))
        return L
    def pan_fix_ops(k):
        r = preg(k)
        L = [(lambda: b.wait(vm=ptok[k]), 1), (f"v_swap_b32 v{r + 2}, v{r + 4}", 2), (f"v_swap_b32 v{r + 3}, v{r + 5}", 2)]
        if OPT.get('emu32'): L = [L[0]] + [(f"v_permlane16_swap_b32 v{r + q}, v{r + q + 2}", 2) for q in (0, 1, 4, 5)]
        return L
    def pan_copy_ops(k):
        return [(f"v_accvgpr_write_b32 a{A_PAN + 8 * (k - 14) + q}, v{preg(k) + q}", 1) for q in range(8)] if k >= 14 else []
    LA = OPT.get('la', 5)
    for k in range(LA): pan_load(k)
    if OPT.get('ptouch'):
        P0 = OPT['ptouch']
        b.e(f"v_min_u32 v2, {(20 - P0) * 4 - 1}, v1\nv_lshlrev_b32 v2, 9, v2\ns_and_b32 s3, s{sJ}, 3\ns_lshl_b32 s3, s3, 7\ns_add_u32 s3, s3, s74\ns_add_u32 s3, s3, {P0 * 2048}")
        b.vm(f"buffer_load_dword a253, v2, {WS}, s3 offen sc1")
    nslot1, nslot2 = 2 * np1 * NK, 2 * (np2 + 1) * NK
    ftok = {}
    ring = dict(vis=9, free=0, rd=-1, used=-1)
    def frag_read(n):
        if n >= nslot1 + nslot2: return
        assert n // 16 < ring['vis'], ("ring RAW", n)
        pos = (n % 144) * 1024
        ftok[n] = b.lg(f"ds_read_b128 {ar(A_RING + (n % 8) * 4, 4)}, v{4 + (pos >> 16)} offset:{pos & 0xffff}")
    FA = OPT.get('fa', 7); WG_ = OPT.get('wg', 4)
    b.e(f"v_add_u32 v24, {56 * 1024}, v4")
    dbg_reset(b)
    if stats:
        for x in CS_OPS: b.e(x)
        b.wait(lg=b.lg("ds_write_b32 v2, v16")); b.e("s_barrier")
        b.e("s_mov_b32 s3, 0x3f803f80\nv_mov_b32 v12, s3\nv_mov_b32 v13, s3\nv_mov_b32 v14, s3\nv_mov_b32 v15, s3")
        pan_fix(0)
        for k in range(NK):
            if k + LA < NK: pan_load(k + LA)
            cp = pan_fix(k + 1) if k + 1 < NK else []
            for s in range(2):
                b.e(f"v_mfma_f32_16x16x32_bf16 {vr(VS_ + 4 * s, 4)}, v[12:15], {pan(k, s, True)}, {'0' if k == 0 else vr(VS_ + 4 * s, 4)}")
                b.e(f"v_mfma_f32_16x16x32_bf16 {vr(VS_ + 8 + 4 * s, 4)}, {pan(k, s, True)}, {pan(k, s, True)}, {'0' if k == 0 else vr(VS_ + 8 + 4 * s, 4)}")
            for c in cp: b.e(c)
        b.e("""v_and_b32 v2, 3, v1
            v_cmp_eq_u32 s[56:57], 1, v2
            v_cmp_eq_u32 s[58:59], 2, v2
            v_cmp_eq_u32 s[74:75], 3, v2
            v_bfe_u32 v2, v1, 2, 2
            v_lshrrev_b32 v3, 4, v1
            v_cmp_eq_u32 s[76:77], v2, v3""")
        for s in range(2):
            g = VS_ + 8 + 4 * s
            b.e(f"v_cndmask_b32 v{g}, v{g}, v{g+1}, s[56:57]\nv_cndmask_b32 v{g}, v{g}, v{g+2}, s[58:59]\nv_cndmask_b32 v{g}, v{g}, v{g+3}, s[74:75]")
            stats_finish(b, VS_ + 4 * s, g, 16 + 2 * s)
        b.e("v_mov_b32 v17, s0\nv_mov_b32 v19, s1\ns_mov_b64 exec, s[76:77]")
        b.vm(f"buffer_store_dwordx4 v[16:19], v9, {WS}, s{sSTK} offen sc1")
        b.e("s_mov_b64 exec, -1")
    for n in range(FA): frag_read(n)
    if not stats: pan_fix(0)
    dman = [36]
    dtok = {}
    def dma_next():
        if dman[0] < 72 and not stats:
            assert (dman[0] // 4 - 9 + 1) * 16 <= ring['free'], ("ring WAR", dman[0])
            dtok[dman[0]] = dma_w1(b, dman[0]); dman[0] += 1
    dq = [36]; m0cur = [None]
    def set_m0(want):
        if m0cur[0] != want: b.e(f"s_add_u32 m0, s{sM0}, {want & 0xffffffff}"); m0cur[0] = want
    def dma_ops():
        m = dq[0]
        if m >= 72 or stats: return []
        dq[0] += 1
        L = []
        want = ((m >> 2) % 9) * 16384
        if m % 4 == 0: L.append((lambda: (set_m0(want), b.e(f"s_addk_i32 s{sDMA}, 16384")), 2))
        def go():
            assert (m // 4 - 9 + 1) * 16 <= ring['free'], ("ring WAR", m)
            set_m0(want)
            dtok[m] = b.vm(f"buffer_load_dwordx4 v4, {WS}, s{sDMA} offen offset:{(m & 3) * 1024} sc1 lds") if not OPT.get('nodma') else b.vi - 1; dman[0] = m + 1
        L.append((M(go), 2))
        return L
    def ring_barrier(upto):
        if upto - 1 in dtok: b.wait(vm=dtok[upto - 1])
        else: assert upto == 36 or stats
        if not OPT.get('nobar'): b.e("s_barrier")
        ring['vis'] = max(ring['vis'], upto // 4); ring['free'] = ring['used'] + 1
    def epi_ops(acc, tau0, taus, dsts, pk, CA, CB):
        ops = []; st = {}
        def rd(ti):
            if ti >= len(taus): return
            c = (CA, CB)[ti & 1]
            b.lg(f"ds_read_b128 {vr(c, 4)}, v8 offset:{(tau0 + taus[ti]) * 64}")
            st[ti] = b.lg(f"ds_read_b128 {vr(c + 4, 4)}, v8 offset:{448 + (tau0 + taus[ti]) * 64}")
        st['rd'] = rd
        for ti, t in enumerate(taus):
            c0 = (CA, CB)[ti & 1]
            ops.append(lambda ti=ti: (b.wait(lg=st[ti]), rd(ti + 1) if CA != CB else None))
            for s in range(2):
                g = acc + ((t * 2 + 0) * 2 + s) * 4; u = acc + ((t * 2 + 1) * 2 + s) * 4
                if pk:
                    for (r, c) in ((g, c0), (g + 2, c0 + 2), (u, c0 + 4), (u + 2, c0 + 6)):
                        ops.append(lambda r=r, c=c, s=s: b.e(f"v_pk_fma_f32 {vr(r,2)}, {vr(c,2)}, v[12:13], {vr(r,2)} op_sel:[0,{s},0] op_sel_hi:[1,{s},1]"))
                else:
                    for q in range(4):
                        ops.append(lambda r=g + q, c=c0 + q, s=s: b.e(f"v_fmac_f32 v{r}, v{c}, v{12 + s}"))
                    for q in range(4):
                        ops.append(lambda r=u + q, c=c0 + 4 + q, s=s: b.e(f"v_fmac_f32 v{r}, v{c}, v{12 + s}"))
                if s == 1 and CA == CB: ops.append(lambda ti=ti: rd(ti + 1))
                for q in range(4):
                    ops.append(lambda r=g + q: b.e(f"v_max_f32 v{r}, 0, v{r}"))
                if pk:
                    for q in (0, 2):
                        ops.append(lambda r=g + q, u=u + q: b.e(f"v_pk_mul_f32 {vr(r,2)}, {vr(r,2)}, {vr(u,2)}"))
                else:
                    for q in range(4):
                        ops.append(lambda r=g + q, u=u + q: b.e(f"v_mul_f32 v{r}, v{r}, v{u}"))
                d, half, sreg, last = dsts[ti](s)
                for q in range(2):
                    ops.append(lambda d=d + q, r=g + 2 * q: b.e(f"v_cvt_pk_bf16_f32 v{d}, v{r}, v{r + 1}"))
                if last == 4:
                    ops.append(lambda d=d - 2, s=s, sreg=sreg: st.__setitem__('last', b.vm(f"buffer_store_dwordx4 {vr(d,4)}, v{4 if s == 0 else 24}, {WS}, s{sreg} offen sc1")))
                elif last == 2:
                    def hst(d=d - 2, sreg=sreg):
                        l = lab("hs")
                        b.e(f"s_bitcmp0_b32 s{sJ}, 1\ns_cbranch_scc1 {l}\nv_swap_b32 v{d}, v{d + 2}\nv_swap_b32 v{d + 1}, v{d + 3}\n{l}:")
                        st['last'] = b.vm(f"buffer_store_dwordx4 {vr(d,4)}, v4, {WS}, s{sreg} offen sc1")
                    ops.append(hst)
                if last: ops[-1].vm = True
        return [(o, 2 if getattr(o, 'vm', False) else 1) for o in ops], st
    def dst_pair(acc, ta, second, sreg):
        def f(s):
            base = acc + ((ta * 2 + 1) * 2 + s) * 4
            return (base + (2 if second else 0), second, sreg, 4 if second else 0)
        return f
    def dst_half(acc, t, sreg):
        def f(s): return (acc + (t * 2 + 1) * 8 + 2 * s, 0, sreg, 2 * s)
        return f
    d1 = [dst_pair(V_ACC1, 0, False, sHP), dst_pair(V_ACC1, 0, True, sHP), dst_pair(V_ACC1, 2, False, sHP + 1), dst_pair(V_ACC1, 2, True, sHP + 1)]
    ops, est = epi_ops(V_ACC1, 0, list(range(np1)), d1, OPT.get('pk1', 0), 16, 16)
    G = Gaps(b, spread=OPT.get('spread', 1))
    def addv(L, front=False):
        for it, c in (reversed(L) if front else L): G.addv(it, c, getattr(it, 'mem', False), front)
    n = 0
    tok = {}
    DS = OPT.get('ds', [0, 0, 0, 0, 1, 2, 1, 2, 1, 2, 1, 2, 1, 1, 1, 2, 2, 2, 2, 2])
    NT = nslot1 + nslot2
    pn = [LA]
    def slot(n, k, accb, t, mat, cap=None, first=False):
        if n % WG_ == 0: G.now(lambda: b.wait(lg=ftok[min(n + WG_ - 1, NT - 1)]), 1)
        if OPT.get('emu32'):
            a = accb + t * 16
            G.mfma(f"v_mfma_f32_32x32x16_bf16 {vr(a,16)}, {ar(A_RING + (n % 8) * 4, 4)}, {pan(k, mat, first)}, {'0' if (k == 0 and mat == 0) else vr(a,16)}")
            G.now(lambda: frag_read(n + FA), 1)
            c6 = OPT['emu32'] + (2 * (cap - 2) if cap else 0)
            G.fill(reserve=1 if (n + 1) % WG_ == 0 else 0, cap=c6); G.pos += 1
            ring['used'] = n
            return
        for s in range(2):
            a = accb + ((t * 2 + mat) * 2 + s) * 4
            G.mfma(f"v_mfma_f32_16x16x32_bf16 {vr(a,4)}, {ar(A_RING + (n % 8) * 4, 4)}, {pan(k, s, first)}, {'0' if k == 0 else vr(a,4)}")
            if s == 0: G.now(lambda: frag_read(n + FA), 1)
            G.fill(reserve=1 if (s == 1 and (n + 1) % WG_ == 0) else 0, cap=cap)
        ring['used'] = n
    for k in range(NK):
        if not stats:
            for _ in range(OPT.get('pr', [1] * 20)[k]):
                if pn[0] < NK:
                    addv(pan_load_ops(pn[0]))
                    pn[0] += 1
            if k + 1 < NK:
                fx = pan_fix_ops(k + 1)
                pos = min(len(G.q), 3)
                G.q[pos:pos] = [(c, it) for it, c in fx]
            for _ in range(DS[k]):
                addv(dma_ops())
            for it in pan_copy_ops(k): G.add(*it)
        if k == 1 and not stats:
            for x in CS_OPS: G.add(x)
            G.add(lambda: b.lg("ds_write_b32 v2, v16"), 2)
        T0 = OPT.get('t2at', 99)
        if k == T0 - 1:
            G.add(f"s_and_b32 s73, s{sRHO}, 3\ns_mul_i32 s73, s73, {60 * 128}"); G.add(f"s_add_u32 s73, s73, s{sW2}\nv_min_u32 v11, 5, v1")
            G.add(f"s_add_u32 s73, s73, {4096 - 768}\nv_lshlrev_b32 v11, 7, v11")
        if T0 <= k < T0 + 10:
            G.add("s_addk_i32 s73, 768"); G.add(lambda: b.vm(f"buffer_load_dword a253, v11, {WS}, s73 offen sc1"), 2)
        if k == OPT.get('t1at', 99) and not stats:
            G.add(f"s_mul_i32 s3, s{sSI}, {136 * 128}\ns_add_u32 s3, s3, s{sDMA}")
            G.add(f"s_sub_u32 s3, s3, s{sM0}\nv_lshlrev_b32 v2, 7, v0"); G.add(f"s_add_u32 s3, s3, 16384\nv_min_u32 v2, {135 * 128}, v2")
            G.add(lambda: b.vm(f"buffer_load_dword a252, v2, {WS}, s3 offen sc1"), 2)
        if k == NK - 2: G.add(lambda: tok.__setitem__('st2', ld_st2(b)), 2)
        if k == NK - 1: G.add(lambda: est['rd'](0), 2)
        G.begin(4 * np1)
        for t in range(np1):
            for mat in range(2):
                slot(n, k, V_ACC1, t, mat, first=not stats); n += 1
        G.flush()
        stamp(b, f'p1_{k}')
        if not stats and k in (3, 7, 11, 15, 19):
            ring_barrier(max(36, (dman[0] - 3) // 4 * 4))
    st2tok = tok['st2']
    stamp(b, 'p1_end')
    poll(b, ld_st2, COND_ST2, st2tok)
    b.e("v_lshlrev_b32 v12, 16, v28\nv_lshlrev_b32 v13, 16, v30\nv_xor_b32 v12, 0x80000000, v12\nv_xor_b32 v13, 0x80000000, v13")
    htok = {}; wtok = {}
    def g2_setup():
        return [l.strip().replace('|', '\n') for l in f"""s_mul_i32 s50, s{sC}, {1024 * OPT.get('hrot', 1)}
        s_cmp_eq_u32 s{sW}, 3|s_cselect_b32 s59, {7 * 1024}, -1|s_cselect_b32 s73, {3 * 1024}, -1
        v_and_b32 v2, 15, v1
        v_lshrrev_b32 v3, 4, v1
        v_lshlrev_b32 v14, 4, v2
        v_lshl_add_u32 v14, v3, 8, v14
        s_lshr_b32 s56, s{sW}, 1
        s_lshl_b32 s57, s{sRHO}, 1
        s_add_u32 s56, s56, s57
        s_and_b32 s57, s{sW}, 1
        s_mul_i32 s58, s56, 40960
        s_mul_i32 s3, s{sC}, 5120
        s_add_u32 s58, s58, s3
        s_lshl_b32 s3, s57, 3
        s_add_u32 s58, s58, s3
        s_add_u32 s74, s58, {HT}
        s_add_u32 s75, s74, 4096
        s_lshl_b32 s56, s56, 5
        s_add_u32 s56, s56, s57
        s_lshl_b32 s76, s56, 3
        s_add_u32 s76, s76, {ST2}
        s_mul_i32 s77, s56, 1280
        s_mul_i32 s3, s{sC}, 160
        s_add_u32 s77, s77, s3
        v_mul_u32_u24 v15, 2560, v2
        v_lshl_add_u32 v15, v3, 3, v15""".split("\n")]
    HD = OPT.get('hd', 4)
    def hreg(nn): return (32, 48, 64, 80, 224, 240)[nn % HD]
    def h_ops(nn):
        if nn >= 14: return []
        def addr():
            msk, base, dm = (7168, 0, 59) if nn < 8 else (3072, 8192, 73) if nn < 12 else (1024, 12288, None)
            b.e(f"s_add_u32 s56, s50, {nn * 1024}\ns_and_b32 s56, s56, {msk}")
            if dm: b.e(f"s_cmp_eq_u32 s56, s{dm}\ns_cselect_b32 s56, {OOB}, s56")
            if base: b.e(f"s_add_u32 s56, s56, {base}")
            b.e(f"v_add_u32 v{25 + (nn & 1) * 2}, s56, v4")
        L = [(addr, 2)]
        for tt in range(4):
            if OPT.get('noh'): htok[nn] = 0; continue
            L.append((M(lambda tt=tt: htok.__setitem__(nn, b.vm(f"buffer_load_dwordx4 {vr(hreg(nn) + tt * 4, 4)}, v{25 + (nn & 1) * 2}, {WS}, s{sH0 + tt} offen sc1"))), 2))
        return L
    stg = [40]; stok = {}; spos = {}; avail = []; freed = set(); NS = OPT.get('ns', 19)
    def release():
        for blk in range(0 if stats else 9, 14 if not stats else 5):
            if blk not in freed and 16 * (blk + 1) <= ring['free']:
                freed.add(blk); avail.extend((blk % 9) * 16384 + 1024 * q for q in range(4))
                if len(freed) == 1: avail.extend(147456 + 1024 * q for q in range(3))
    def stage_ops():
        m = stg[0]
        if m >= 40 + NS or not avail: return []
        stg[0] += 1
        a = avail.pop(0); spos[m] = a
        want = a - (m % 4) * 1024
        L = [(lambda: (set_m0(want), b.e(f"s_addk_i32 s{sW2}, 4096") if m % 4 == 0 else None), 1)]
        def go():
            set_m0(want)
            stok[m] = b.vm(f"buffer_load_dwordx4 v4, {WS}, s{sW2} offen offset:{(m % 4) * 1024} sc1 lds") if not OPT.get('nostage') else 0
        L.append((M(go), 2))
        return L
    P = dict(e1=36, xf=56, send=100, e2=102, xe=92, xr=84) if not stats else dict(e1=16, xf=26, send=38, e2=0, xe=38, xr=30)
    if not stats: P.update({k_: OPT[k_] for k_ in P if k_ in OPT})
    d2 = [dst_pair(V_ACC2, 0, False, sHP + 2), dst_pair(V_ACC2, 0, True, sHP + 2)]
    ops2, est2 = epi_ops(V_ACC2, np1, list(range(np2)), d2, False, 16, 16)
    ops3, est3 = epi_ops(V_ACC3, np1 + np2, [0], [dst_half(V_ACC3, 0, sHP + 3)], True, 16, 16)
    steps = [(2, k, np2, V_ACC2) for k in range(NK if np2 else 0)] + [(3, k, 1, V_ACC3) for k in range(NK)]
    XT_ = nslot2; X3 = XT_ - 2 * NK
    oi = o2 = 0; setup = g2_setup(); x = 0; hq = []; done = set()
    if stats: ring_barrier(36)
    release()
    def once(name, cond):
        if cond and name not in done: done.add(name); return True
        return False
    for (ps, k, npp, accb) in steps:
        x1 = x + 2 * npp
        if k % OPT.get('rk', 1) == 0 or ps == 3: addv(dma_ops())
        if k < 8: addv(dma_ops())
        hi = min(len(ops), -(-len(ops) * x1 // P['e1']))
        for it in ops[oi:hi]: G.add(*it)
        oi = hi
        setup_done = not setup
        if x >= P['e1']:
            for _ in range(6 if stats else 3 * npp):
                if setup: G.add(setup.pop(0))
        if np2 and once('rd2', x1 >= X3): G.add(lambda: est2['rd'](0), 2)
        if np2 and x >= X3:
            hi = min(len(ops2), -(-len(ops2) * (x1 - X3) // (P['e2'] - X3)))
            for it in ops2[o2:hi]: G.add(*it)
            o2 = hi
        if dq[0] >= 72 or stats:
            togo = min(40 + NS - stg[0], len(avail))
            for _ in range(-(-togo * 2 * npp // max(2 * npp, P['send'] - x))): addv(stage_ops())
        if once('res', x >= P['xr'] and setup_done):
            for dt in range(5):
                G.addv(lambda dt=dt: b.vm(f"buffer_load_dwordx2 {ar(240 + 2 * dt, 2)}, v14, {WS}, s{74 if dt < 4 else 75} offen offset:{(dt % 4) * 1024} sc1"))
        if once('eld', x1 >= P['xe'] - OPT.get('xel', 6)): G.add(lambda: tok.__setitem__('e', ld_flags(FLE)(b)), 4, front=True)
        if hq:
            for _ in range(-(-len(hq) * 2 * npp // (XT_ - x))):
                it = hq.pop(0); addv([it])
                if not getattr(it[0], 'mem', False) and hq: addv([hq.pop(0)])
                if not hq: break
        if x1 == XT_: G.add(lambda: est3['rd'](0), 2)
        ng = 4 * npp
        G.begin(ng)
        free2 = 2 * ng - 2 * npp - 2 * npp / WG_
        for t in range(npp):
            for mat in range(2):
                left = ng - 2 * (t * 2 + mat)
                need = G.need()
                cap = 2 if need <= free2 * left / ng else (3 if need <= (free2 + ng) * left / ng + 1 else 4 + need // left)
                slot(n, k, accb, t, mat, cap); n += 1
        G.flush()
        x = x1
        stamp(b, f'p{ps}_{k}')
        if once('fle', x >= P['xf']):
            b.wait(vm=est['last'])
            ring_barrier(72)
            flag_store(b, FLE); release()
            if stats: flag_store(b, FLM)
        if once('echk', x >= P['xe']):
            assert not setup
            poll_flags(b, FLE, tok['e'])
            stamp(b, 'early_seen')
            hq = h_ops(0) + h_ops(1) + h_ops(2)
    assert 'res' in done and stg[0] == 40 + NS and oi == len(ops) and o2 == len(ops2), stg
    for it, _ in hq: it()
    stamp(b, 'p2_end')
    b.e(f"v_add_u32 v10, s{sM0}, v4\nv_add_u32 v5, s{sM0}, v5\nv_add_u32 v6, s{sM0}, v6")
    for o, _ in ops3: o()
    stamp(b, 'epi2_end')
    hmax = 7; hnext = 3
    NMF, NM, NF, NL = OPT.get('nmf', -1), OPT.get('nm', 4), OPT.get('nf', 2), OPT.get('nl', 8)
    wl = {}; direct = []; PL = OPT.get('pl', 2)
    def mid_flag():
        if not stats:
            b.wait(vm=est2['last'])
            b.e("s_barrier")
            flag_store(b, FLM)
    if NMF < 0: mid_flag()
    for nn in range(14):
        lim = min(nn + (HD - 1 if hnext >= OPT.get('hx', 12) else 3), hmax, hnext + OPT.get('hb', 2) - 1)
        while hnext <= lim:
            addv(h_ops(hnext))
            hnext += 1
        if nn == max(NM - PL + 1, NF + 1): G.add(lambda: wtok.__setitem__('mid', ld_flags(FLM)(b)), 4, front=True)
        if 1 <= nn <= 6:
            for dt in range(5):
                m = (nn + 7) * 5 + dt
                if m in spos:
                    G.add(lambda m=m, nn=nn, dt=dt: (b.wait(vm=stok[39 + NS]), wl.__setitem__(nn + 7, b.lg(f"ds_read_b128 {ar(A_W2 + (nn - 1) * 20 + dt * 4, 4)}, v{(10, 5, 6)[spos[m] >> 16]} offset:{spos[m] & 0xffff}"))), 1)
                else: direct.append(m)
        D0 = OPT.get('d0', 7)
        if nn >= D0 and direct:
            for _ in range(-(-len(direct) // max(1, OPT.get('d1', 11) - nn))):
                m = direct.pop(0); G.addv(lambda m=m: wtok.__setitem__(m // 5, w2_load(b, m)))
        if nn == 3: G.add(lambda: wtok.__setitem__('res', b.vm(f"buffer_load_dword v106, v9, {WS}, s76 offen sc1")), 2)
        if nn == max(NL - PL + 1, NM + 1): G.add(lambda: wtok.__setitem__('late', ld_flags(FLL)(b)), 4, front=True)
        if nn == 10:
            G.add(lambda: (b.wait(vm=wtok['res']), b.e("v_and_b32 v106, 0xffff0000, v106")), 2)
            G.add("v_rcp_f32 v106, v106")
            for dt in range(5):
                for k in range(2):
                    G.add(f"v_accvgpr_read_b32 v{96 + 2 * dt + k}, a{240 + 2 * dt + k}")
                    G.add(f"v_lshlrev_b32 v{108 + 4 * dt + 2 * k}, 16, v{96 + 2 * dt + k}\nv_and_b32 v{109 + 4 * dt + 2 * k}, 0xffff0000, v{96 + 2 * dt + k}")
            G.add("v_mul_f32 v106, v106, v106")
        if nn == 11:
            for q in (12, 13):
                G.add(lambda q=q: b.wait(vm=htok[q]), 1)
                for r in (hreg(q), hreg(q) + 8): G.add(f"v_swap_b32 v{r + 2}, v{r + 4}"); G.add(f"v_swap_b32 v{r + 3}, v{r + 5}")
        if nn == 9:
            for k in range(3): G.add(f"s_xor_b32 s58, s{sW}, {k + 1}\ns_mul_i32 s58, s58, 15360"); G.add(f"s_add_u32 s58, s58, 81920\nv_add_u32 v{16 + k}, s58, v4")
            G.add(f"s_mul_i32 s58, s{sW}, 15360\ns_add_u32 s58, s58, 81920"); G.add("v_add_u32 v19, s58, v4")
        def g2m(nn, tt, dt):
            a = V_G2 + (tt * 5 + dt) * 4
            G.mfma(f"v_mfma_f32_16x16x32_bf16 {vr(a,4)}, {ar(A_W2 + (nn % 8) * 20 + dt * 4, 4)}, {vr(hreg(nn) + tt * 4, 4)}, {'0' if nn == 0 else vr(a,4)}")
        if nn == 12 and OPT.get('ttail', 1):
            b.wait(vm=max(htok[13], wtok.get(13, -1)), lg=max(wl.values()))
            cnt = 0; pend = []
            for tt in (1, 2, 3, 0):
                for q in (12, 13):
                    for dt in range(5):
                        g2m(q, tt, dt); cnt += 1
                        if pend and cnt >= pend[0][0] and cnt % 2 == 0:
                            _, t2, d2_ = pend.pop(0)
                            b.lg(f"ds_write_b128 v{15 + t2}, {vr(V_G2 + (t2 * 5 + d2_) * 4, 4)} offset:{(t2 - 1) * 5120 + d2_ * 1024}")
                        if q == 13 and tt: pend.append((cnt + 5, tt, dt))
            for _, t2, d2_ in pend: b.lg(f"ds_write_b128 v{15 + t2}, {vr(V_G2 + (t2 * 5 + d2_) * 4, 4)} offset:{(t2 - 1) * 5120 + d2_ * 1024}")
            break
        b.wait(vm=max(htok[nn], wtok.get(nn, -1)), lg=wl.get(nn))
        G.begin(20)
        for dt in range(5):
            for tt in range(4):
                g2m(nn, tt, dt)
                G.fill()
        G.flush()
        stamp(b, f'g2_{nn}')
        if nn == NMF: mid_flag()
        if nn == NF:
            b.wait(vm=est3['last'])
            b.e("s_barrier")
            flag_store(b, FLL)
        if nn == NM:
            poll_flags(b, FLM, wtok['mid']); hmax = 11
            stamp(b, 'mid_seen')
        if nn == NL:
            poll_flags(b, FLL, wtok['late']); hmax = 13
            stamp(b, 'late_seen')
    stamp(b, 'g2_end')
    if not OPT.get('ttail', 1):
        for tt in range(1, 4):
            for dt in range(5):
                b.lg(f"ds_write_b128 v{15 + tt}, {vr(V_G2 + (tt * 5 + dt) * 4, 4)} offset:{(tt - 1) * 5120 + dt * 1024}")
    b.wait_all(vm=False)
    b.e("s_barrier")
    rk = {}
    for dt in range(5):
        for k in range(3):
            rk[dt] = b.lg(f"ds_read_b128 {vr(32 + (dt * 3 + k) * 4, 4)}, v19 offset:{k * 5120 + dt * 1024}")
    for dt in range(5):
        b.wait(lg=rk[dt])
        a = V_G2 + dt * 4; r = 32 + dt * 12
        for h in (0, 2):
            b.e(f"v_pk_add_f32 {vr(a + h, 2)}, {vr(a + h, 2)}, {vr(r + h, 2)}")
            b.e(f"v_pk_add_f32 {vr(r + 4 + h, 2)}, {vr(r + 4 + h, 2)}, {vr(r + 8 + h, 2)}")
        for h in (0, 2):
            b.e(f"v_pk_add_f32 {vr(a + h, 2)}, {vr(a + h, 2)}, {vr(r + 4 + h, 2)}")
        for h in (0, 2):
            b.e(f"v_pk_fma_f32 {vr(a + h, 2)}, {vr(a + h, 2)}, v[106:107], {vr(108 + 4 * dt + h, 2)} op_sel_hi:[1,0,1]")
        b.e(f"v_cvt_pk_bf16_f32 v{a}, v{a}, v{a + 1}\nv_cvt_pk_bf16_f32 v{a + 1}, v{a + 2}, v{a + 3}")
        b.vm(f"buffer_store_dwordx2 {vr(a, 2)}, v15, {OUT}, s77 offen offset:{dt * 32} {OPT.get('outaux', '')}")
    if OPT.get('endwb'): b.e("s_waitcnt vmcnt(0)\nbuffer_wbl2 sc1")
    stamp(b, 'end')
    stamp_dump(b)
    b.e("s_endpgm")
```
